```python
import torch

def _softmax(x, axis=-1):
    return torch.softmax(x, dim=axis)
def _gelu(x):
    return torch.nn.functional.gelu(x, approximate="tanh")
def _silu(x):
    return torch.nn.functional.silu(x)
def _sigmoid(x):
    return torch.sigmoid(x)
def _layernorm(x, axis=-1, eps=1e-5):
    m = x.mean(dim=axis, keepdim=True)
    v = x.var(dim=axis, keepdim=True, unbiased=False)
    return (x - m) / torch.sqrt(v + eps)
def _scatter_add(tgt, idx, src, axis=0):
    return tgt.clone().index_add_(axis, idx, src)
def _segment_sum(src, seg, n):
    out = torch.zeros((n,) + src.shape[1:], dtype=src.dtype)
    return out.index_add_(0, seg, src)
def _pad(x, pw):
    flat = tuple(v for pair in reversed(pw) for v in pair)
    return torch.nn.functional.pad(x, flat)

kernel_name = 'parallel_sum__ssm_conv_s5__mixer_channel_mlp__prompt'

def setup_inputs():

    _w = (lambda a: (lambda t: t.to(torch.bfloat16) if t.is_floating_point() else t)(torch.as_tensor(a)))
    def _A_setup():
        B, S, D = 1, 2048, 512
        P = D
        Lambda_re = -0.5 * (lambda _x: torch.exp(torch.as_tensor(_x)))((lambda *s: torch.randn(*s, dtype=torch.bfloat16) * 0.2)(P))
        Lambda_im = (lambda *s: torch.randn(*s, dtype=torch.bfloat16) * 0.8)(P) * 1.0
        B_re = (lambda *s: torch.randn(*s, dtype=torch.bfloat16) * 0.2)(P, D) * (D ** -0.5)
        B_im = (lambda *s: torch.randn(*s, dtype=torch.bfloat16) * 0.2)(P, D) * (D ** -0.5)
        C_re = (lambda *s: torch.randn(*s, dtype=torch.bfloat16) * 0.2)(D, P) * (P ** -0.5)
        C_im = (lambda *s: torch.randn(*s, dtype=torch.bfloat16) * 0.2)(D, P) * (P ** -0.5)
        log_dt = (lambda *s: torch.randn(*s, dtype=torch.bfloat16) * 0.2)(P) * 0.3 - 2.0
        Dskip = (lambda *s: torch.randn(*s, dtype=torch.bfloat16) * 0.05)(D)
        return {
            "x": _w((lambda *s: torch.randn(*s, dtype=torch.bfloat16) * 0.05)(B, S, D)),
            "Lambda_re": _w(Lambda_re),
            "Lambda_im": _w(Lambda_im),
            "B_re": _w(B_re),
            "B_im": _w(B_im),
            "C_re": _w(C_re),
            "C_im": _w(C_im),
            "log_dt": _w(log_dt),
            "Dskip": _w(Dskip),
        }
    _A_in = _A_setup()

    def _B_setup():
        B, S, D, F = 1, 2048, 512, 1792
        return {
            "x": _w((lambda *s: torch.randn(*s, dtype=torch.bfloat16) * 0.05)(B, S, D)),
            "w1": _w((lambda *s: torch.randn(*s, dtype=torch.bfloat16) * 1.6)(D, F) * (D ** -0.5)),
            "b1": _w((lambda *s: torch.randn(*s, dtype=torch.bfloat16) * 0.8)(F)),
            "w2": _w((lambda *s: torch.randn(*s, dtype=torch.bfloat16) * 0.05)(F, D) * (F ** -0.5)),
            "b2": _w((lambda *s: torch.randn(*s, dtype=torch.bfloat16) * 0.05)(D)),
        }
    _B_in = _B_setup()

    return {
        "A_x": _A_in["x"],
        "A_Lambda_re": _A_in["Lambda_re"],
        "A_Lambda_im": _A_in["Lambda_im"],
        "A_B_re": _A_in["B_re"],
        "A_B_im": _A_in["B_im"],
        "A_C_re": _A_in["C_re"],
        "A_C_im": _A_in["C_im"],
        "A_log_dt": _A_in["log_dt"],
        "A_Dskip": _A_in["Dskip"],
        "B_x": _B_in["x"],
        "B_w1": _B_in["w1"],
        "B_b1": _B_in["b1"],
        "B_w2": _B_in["w2"],
        "B_b2": _B_in["b2"],
    }

def reference(A_x, A_Lambda_re, A_Lambda_im, A_B_re, A_B_im, A_C_re, A_C_im, A_log_dt, A_Dskip, B_x, B_w1, B_b1, B_w2, B_b2):
    def _A_ref(x, Lambda_re, Lambda_im, B_re, B_im, C_re, C_im, log_dt, Dskip):
        Bsz, L, H = x.shape
        Lam = Lambda_re + 1j * Lambda_im
        Bmat = B_re + 1j * B_im
        Cmat = C_re + 1j * C_im
        dt = torch.exp(log_dt)
        Lam_bar = torch.exp(dt * Lam)
        B_bar = ((Lam_bar - 1.0) / Lam)[:, None] * Bmat
        Bu = torch.einsum("bld,pd->blp", x + 0j, B_bar)
        h = torch.zeros_like(Bu[:, 0, :])
        hs = []
        for t in range(L):
            h = Lam_bar[None, :] * h + Bu[:, t, :]
            hs.append(h)
        hseq = torch.stack(hs, 1)
        y = 2.0 * torch.einsum("blp,dp->bld", hseq, Cmat).real + x * Dskip[None, None, :]
        return y

    def _B_ref(x, w1, b1, w2, b2):
        y = _layernorm(x, axis=-1)
        h = _gelu(torch.einsum("bsd,df->bsf", y, w1) + b1)
        return torch.einsum("bsf,fd->bsd", h, w2) + b2

    x = A_x
    xn = _layernorm(x, axis=-1)
    return x + _A_ref(xn, A_Lambda_re, A_Lambda_im, A_B_re, A_B_im, A_C_re, A_C_im, A_log_dt, A_Dskip) + _B_ref(xn, B_w1, B_b1, B_w2, B_b2)
```

```python
import re

TRANS = ("v_exp_f32", "v_log_f32", "v_rcp_f32", "v_rsq_f32", "v_sqrt_f32", "v_sin_f32", "v_cos_f32")
RMW = ("v_fmac_f32", "v_dot2c_f32_bf16", "v_fmac_f32_e32", "v_dot2c_f32_bf16_e32")


def regs_of(op):
    op = op.strip()
    op = op.lstrip("-")
    m = re.fullmatch(r"abs\((.*)\)|\|(.*)\|", op)
    if m:
        op = m.group(1) or m.group(2)
    m = re.fullmatch(r"([vas])\[(\d+):(\d+)\]", op)
    if m:
        return [f"{m.group(1)}{i}" for i in range(int(m.group(2)), int(m.group(3)) + 1)]
    m = re.fullmatch(r"([vas])(\d+)", op)
    if m:
        return [op]
    if op == "vcc":
        return ["vcc"]
    if op == "exec":
        return ["exec"]
    if op == "m0":
        return ["m0"]
    return []


class Ins:
    __slots__ = ("text", "mn", "kind", "rd", "wr", "srcc", "wide_store", "tag", "track", "lds_dma", "sdata")

    def __init__(self, text, tag=None, track=True):
        self.text = text
        self.tag = tag
        self.track = track
        t = text.split(";")[0].strip()
        parts = t.split(None, 1)
        self.mn = mn = parts[0]
        rest = parts[1] if len(parts) > 1 else ""
        ops = [o.strip() for o in rest.split(",")] if rest else []
        cleaned = []
        for o in ops:
            cleaned.append(o.split()[0] if o.split() else o)
        ops = cleaned
        self.rd, self.wr, self.srcc = [], [], []
        self.wide_store = False
        self.lds_dma = False
        self.sdata = []
        R = lambda i: regs_of(ops[i]) if i < len(ops) else []
        if mn.startswith("v_mfma"):
            self.kind = "mfma"
            self.wr = R(0)
            self.rd = R(1) + R(2)
            self.srcc = R(3)
        elif mn.startswith("v_"):
            self.kind = "valu"
            if mn.startswith("v_permlane"):
                self.wr = R(0) + R(1)
                self.rd = R(0) + R(1)
            elif mn.startswith("v_add_co") or mn.startswith("v_addc_co") or mn.startswith("v_sub_co"):
                self.wr = R(0) + R(1)
                self.rd = sum((R(i) for i in range(2, len(ops))), [])
            else:
                self.wr = R(0)
                self.rd = sum((R(i) for i in range(1, len(ops))), [])
                if mn in RMW:
                    self.rd += R(0)
        elif mn.startswith("ds_read"):
            self.kind = "ds"
            self.wr = R(0)
            self.rd = R(1)
        elif mn.startswith("ds_write"):
            self.kind = "ds"
            self.rd = sum((R(i) for i in range(len(ops))), [])
        elif mn.startswith("buffer_load"):
            self.kind = "vm"
            if re.search(r"\blds\b", t):
                self.lds_dma = True
                self.rd = R(0) + R(1) + R(2) + ["m0"]
            else:
                self.wr = R(0)
                self.rd = R(1) + R(2) + R(3)
        elif mn.startswith("buffer_store"):
            self.kind = "vm"
            self.rd = R(0) + R(1) + R(2) + R(3)
            self.wide_store = mn.endswith("x4") or mn.endswith("x3")
            self.sdata = R(0)
        elif mn.startswith("global_load"):
            self.kind = "vm"
            self.wr = R(0)
            self.rd = R(1) + R(2)
        elif mn.startswith("global_store"):
            self.kind = "vm"
            self.rd = R(0) + R(1) + R(2)
            self.wide_store = mn.endswith("x4") or mn.endswith("x3")
            self.sdata = R(1)
        elif mn.startswith("s_load") or mn.startswith("s_mem"):
            self.kind = "smem"
            self.wr = R(0)
            self.rd = R(1)
        elif mn in ("s_waitcnt", "s_nop", "s_barrier", "s_endpgm", "s_sleep", "s_setprio") or mn.startswith("s_cbranch") or mn == "s_branch":
            self.kind = "ctl"
        elif mn.startswith("s_cmp"):
            self.kind = "salu"
            self.rd = R(0) + R(1)
        elif mn.startswith("s_"):
            self.kind = "salu"
            self.wr = R(0)
            self.rd = sum((R(i) for i in range(1, len(ops))), [])
        else:
            raise ValueError("unknown instruction: " + text)


class Asm:
    def __init__(self):
        self.out = []
        self.reset_state()
        self.nops = 0
        self.count = 0

    def reset_state(self):
        self.pos = 0
        self.vmq = []
        self.lgq = []
        self.last = {}

    def raw(self, text):
        self.out.append(text)

    def comment(self, text):
        self.out.append("    ; " + text)

    def label(self, name, settle=True):
        self.out.append(name + ":")
        if settle:
            self.settle()

    def settle(self, n=None):
        pass

    def _put(self, text, states=1):
        self.out.append("    " + text)
        self.pos += states
        self.count += 1

    def nop(self, n):
        while n > 0:
            k = min(n, 16)
            self._put(f"s_nop {k-1}", k)
            self.nops += 1
            n -= k

    def _wait_vm_idx(self, idx):
        n = sum(1 for e in self.vmq[idx + 1:] if e.track)
        self._put(f"s_waitcnt vmcnt({min(n, 63)})")
        self.vmq = self.vmq[idx + 1:]

    def _wait_lg_idx(self, idx):
        if any(e.kind == "smem" for e in self.lgq):
            self._put("s_waitcnt lgkmcnt(0)")
            self.lgq = []
            return
        n = sum(1 for e in self.lgq[idx + 1:] if e.track)
        self._put(f"s_waitcnt lgkmcnt({min(n, 15)})")
        self.lgq = self.lgq[idx + 1:]

    def wait_vm(self, tag):
        idx = max((i for i, e in enumerate(self.vmq) if e.tag == tag), default=-1)
        if idx >= 0:
            self._wait_vm_idx(idx)

    def wait_lg(self, tag):
        idx = max((i for i, e in enumerate(self.lgq) if e.tag == tag), default=-1)
        if idx >= 0:
            self._wait_lg_idx(idx)

    def wait_vm_all(self):
        self._put("s_waitcnt vmcnt(0)")
        self.vmq = []

    def wait_lg_all(self):
        self._put("s_waitcnt lgkmcnt(0)")
        self.lgq = []

    def need(self, regs):
        rs = set(sum((regs_of(r) for r in regs), []))
        self._dep_wait(rs)

    def _dep_wait(self, rs):
        idx = max((i for i, e in enumerate(self.vmq) if rs & set(e.wr)), default=-1)
        if idx >= 0:
            self._wait_vm_idx(idx)
        idx = max((i for i, e in enumerate(self.lgq) if rs & set(e.wr)), default=-1)
        if idx >= 0:
            self._wait_lg_idx(idx)

    def I(self, text, tag=None, track=True):
        if callable(text):
            text(self)
            return
        if isinstance(text, tuple):
            text, tag = text
        for line in text.split("\n"):
            line = line.strip()
            if line:
                self._one(Ins(line, tag, track))

    def run(self, items):
        for it in items:
            self.I(it)

    def _one(self, ins):
        allr = ins.rd + ins.srcc
        self._dep_wait(set(allr) | set(ins.wr))
        need = 0
        L = self.last

        def req(kind, regs, ws):
            nonlocal need
            for r in regs:
                p = L.get((kind, r))
                if p is not None:
                    need = max(need, ws - (self.pos - p - 1))

        k = ins.kind
        is_trans = ins.mn.replace("_e32", "").replace("_e64", "") in TRANS
        is_dot = ins.mn.startswith("v_dot")
        if k == "mfma":
            req("valu_w", allr, 2)
            req("mfma_w", ins.rd, 12)
            blk = tuple(ins.srcc)
            for r in ins.srcc:
                p = L.get(("mfma_w", r))
                if p is not None and L.get(("mfma_blk", r)) != blk:
                    need = max(need, 10 - (self.pos - p - 1))
            for r in ins.wr:
                p = L.get(("mfma_w", r))
                if p is not None and r not in ins.srcc:
                    pass
            req("dot_w", allr + ins.wr, 3)
        else:
            if k in ("valu", "vm", "ds"):
                req("mfma_w", allr + ins.wr, 12)
            if k == "valu":
                req("mfma_c", ins.wr, 7)
                if not is_trans:
                    req("trans_w", ins.rd, 1)
                else:
                    req("trans_w", ins.rd, 1)
                if ins.mn.startswith("v_permlane") or "dpp" in ins.mn:
                    req("valu_w", ins.rd, 2)
                if ins.mn.startswith("v_readlane") or ins.mn.startswith("v_readfirstlane"):
                    req("valu_w", ins.rd, 1)
                srd = [r for r in ins.rd if r[0] == "s" or r == "vcc"]
                req("valu_w", srd, 2)
                req("store_d", ins.wr, 2)
                if is_dot:
                    src = [r for r in ins.rd if r not in ins.wr]
                    req("dot_w", src, 3)
                else:
                    req("dot_w", ins.rd + ins.wr, 3)
            if k == "vm":
                req("valu_w", [r for r in ins.rd if r[0] == "s"], 5)
                if ins.lds_dma:
                    req("salu_w", ["m0"], 1)
                req("store_d", ins.wr, 2)
                req("trans_w", ins.rd, 1)
                req("dot_w", ins.rd, 3)
            if k == "ds":
                req("store_d", ins.wr, 2)
                req("trans_w", ins.rd, 1)
                req("dot_w", ins.rd, 3)
            if k in ("salu", "smem"):
                req("valu_w", ins.rd, 2)
        if need > 0:
            self.nop(need)
        here = self.pos
        st = 1
        if ins.mn == "s_nop":
            st = int(ins.text.split()[1], 0) + 1
        self._put(ins.text, st)
        if ins.mn == "s_waitcnt":
            raise ValueError("use the wait helpers")
        if k == "mfma":
            for r in ins.wr:
                L[("mfma_w", r)] = here
                L[("mfma_blk", r)] = tuple(ins.wr)
            for r in ins.srcc:
                L[("mfma_c", r)] = here
        elif k == "valu":
            for r in ins.wr:
                L[("valu_w", r)] = here
                L.pop(("mfma_w", r), None)
                if is_trans:
                    L[("trans_w", r)] = here
                if is_dot:
                    L[("dot_w", r)] = here
        elif k == "salu":
            for r in ins.wr:
                L[("salu_w", r)] = here
        elif k == "vm":
            if ins.wide_store:
                for r in ins.sdata:
                    L[("store_d", r)] = here
            self.vmq.append(ins)
        elif k in ("ds", "smem"):
            self.lgq.append(ins)

    def text(self):
        return "\n".join(self.out) + "\n"


def interleave(main, fill, start=0, end=None):
    n = len(main)
    end = n if end is None else end
    span = max(end - start, 1)
    res = []
    done = 0
    for i, g in enumerate(main):
        res += g
        if start <= i < end:
            upto = (len(fill) * (i - start + 1)) // span
            res += fill[done:upto]
            done = upto
    res += fill[done:]
    return res
```

```python
import sys, math, struct
from asmlib import Asm, interleave

NAME = "parallel_sum__ssm_conv_s5__mixer_channel_mlp__prompt"
KB = 1024
RT_STRIDE = 176 * KB
G_STRIDE = 44 * KB
HID = 0
BW = 64 * RT_STRIDE
EOFF = BW + 16 * RT_STRIDE
STATS = EOFF + 64 * KB
BFLAG = STATS + 64 * KB
HFLAG = BFLAG + 4 * KB
WS_END = HFLAG + 16 * KB
SPIN_MAX = 4000

H = [0, 32 * KB, 64 * KB, 96 * KB, 128 * KB, 0]
PARK = H[1]
ETAB = H[1] + 28 * KB
TRB = H[2]


def f32(x):
    return "0x%08x" % struct.unpack("<I", struct.pack("<f", x))[0]


pX, pLRE, pLIM, pBRE, pBIM, pCRE, pCIM, pLDT = [4 + 2 * i for i in range(8)]
pDSK, pBX, pW1, pB1, pW2, pB2, pOUT, pDBG = [20 + 2 * i for i in range(8)]
pWS = 36
SX, SBR, SBI, SW1, SW1B, SWS, SWS2, SR, SRS, SOUT, SDBG, SE = [40 + 4 * i for i in range(12)]
sW, sR, sJ, sJJ, sG, sROT, sT0, sT1, sT2, sRA, sRB, sHB, sONE, sCNT = range(88, 102)
sXB = 38
sUB = 39
sBB = 3


def srd(n):
    return f"s[{n}:{n+3}]"


def sp(n):
    return f"s[{n}:{n+1}]"


def vr(n, c=1):
    return f"v{n}" if c == 1 else f"v[{n}:{n+c-1}]"


def ar(n, c=1):
    return f"a{n}" if c == 1 else f"a[{n}:{n+c-1}]"


X = 0
ACA, ACB = 128, 160
VQ, VW, RDS, RDT = 192, 196, 200, 204
L16 = 206
MEAN, RSTD, IR2, K0, K1 = 207, 208, 209, 210, 211
PA, PC, PA16, PAS, PAH, PA256, PP = 212, 214, 216, 218, 220, 222, 224
BIA = 226
SB = 234
KEEP = 238
T = 242
STG = 224


def mk_srd(a, n, ptr, size):
    a.I(f"s_mov_b32 s{n}, s{ptr}")
    a.I(f"s_mov_b32 s{n+1}, s{ptr+1}")
    a.I(f"s_mov_b32 s{n+2}, {size}")
    a.I(f"s_mov_b32 s{n+3}, 0x20000")


def load_kernargs(a):
    a.I("s_load_dwordx16 s[4:19], s[0:1], 0")
    a.I("s_load_dwordx16 s[20:35], s[0:1], 64")
    a.I("s_load_dwordx2 s[36:37], s[0:1], 128")


def dma4(vbase, s, soff, m0expr, tag):
    it = list(m0expr)
    for q in range(4):
        it.append((f"buffer_load_dwordx4 v{vbase+q}, {srd(s)}, s{soff} offen offset:{q*1024} lds", tag))
    return it


def phase1(a, fused):
    I = a.I
    load_kernargs(a)
    LN, TA, TB, TC, TD = T, T + 1, T + 2, T + 3, T + 4
    I(f"v_lshrrev_b32 v{TA}, 6, v0")
    I(f"v_and_b32 v{LN}, 63, v0")
    I(f"v_readfirstlane_b32 s{sW}, v{TA}")
    I(f"s_lshr_b32 s{sT0}, s2, 3")
    I(f"s_and_b32 s{sT1}, s{sT0}, 7")
    I(f"s_lshr_b32 s{sJJ}, s{sT0}, 3")
    I(f"s_and_b32 s{sR}, s2, 1")
    I(f"s_lshl_b32 s{sR}, s{sR}, 3")
    I(f"s_add_u32 s{sR}, s{sR}, s{sT1}")
    I(f"s_bfe_u32 s{sG}, s2, 0x20001")
    I(f"s_lshl_b32 s{sJ}, s{sG}, 2")
    I(f"s_add_u32 s{sJ}, s{sJ}, s{sJJ}")
    I(f"s_lshl_b32 s{sROT}, s{sJJ}, 1")
    I(f"s_add_u32 s{sROT}, s{sROT}, s{sT1}")
    I(f"s_and_b32 s{sROT}, s{sROT}, 7")
    I(f"s_lshl_b32 s{sXB}, s{sR}, 2")
    I(f"s_add_u32 s{sXB}, s{sXB}, s{sW}")
    I(f"s_mul_i32 s{sHB}, s{sXB}, {RT_STRIDE}")
    I(f"s_mul_i32 s{sT0}, s{sG}, {G_STRIDE}")
    I(f"s_add_u32 s{sHB}, s{sHB}, s{sT0}")
    I(f"s_lshl_b32 s{sT0}, s{sJJ}, 12")
    I(f"s_add_u32 s{sHB}, s{sHB}, s{sT0}")
    I(f"s_lshl_b32 s{sXB}, s{sXB}, 15")
    I(f"s_mul_i32 s{sUB}, s{sG}, 7")
    I(f"s_lshl_b32 s{sT0}, s{sJJ}, 1")
    I(f"s_add_u32 s{sUB}, s{sUB}, s{sT0}")
    I(f"s_lshl_b32 s{sUB}, s{sUB}, 7")
    I(f"s_mov_b32 s{sONE}, 0x3f803f80")
    I(f"v_lshlrev_b32 v{L16}, 4, v{LN}")
    I(f"v_lshrrev_b32 v{TA}, 3, v{LN}")
    I(f"v_and_b32 v{TB}, 7, v{LN}")
    I(f"v_lshrrev_b32 v{TC}, 1, v{TA}")
    I(f"v_xor_b32 v{TC}, v{TB}, v{TC}")
    I(f"v_lshlrev_b32 v{TC}, 4, v{TC}")
    I(f"v_and_b32 v{TD}, 3, v{TA}")
    I(f"v_lshl_or_b32 v{TC}, v{TD}, 10, v{TC}")
    I(f"v_lshrrev_b32 v{TD}, 2, v{TA}")
    I(f"v_lshl_or_b32 v{VQ}, v{TD}, 14, v{TC}")
    I(f"v_xor_b32 v{VQ+1}, 64, v{VQ}")
    I(f"v_add_u32 v{VQ+2}, {2*3072}, v{VQ}")
    I(f"v_add_u32 v{VQ+3}, {3*3072}, v{VQ+1}")
    I(f"v_add_u32 v{VQ+1}, 3072, v{VQ+1}")
    I(f"v_and_b32 v{TC}, 2, v{TA}")
    I(f"v_lshlrev_b32 v{TC}, 1, v{TC}")
    I(f"v_xor_b32 v{TC}, v{TB}, v{TC}")
    I(f"v_lshlrev_b32 v{TC}, 4, v{TC}")
    VR = T + 5
    I(f"v_lshl_or_b32 v{VR}, v{TA}, 10, v{TC}")
    I(f"v_mul_u32_u24 v{TD}, 3584, v{TA}")
    I(f"v_add_u32 v{VW}, v{TD}, v{TC}")
    for q in range(1, 4):
        I(f"v_add_u32 v{VW+q}, {q*(8*3584-1024)}, v{VW}")
    a.wait_lg_all()
    mk_srd(a, SX, pX, 2048 * 1024)
    mk_srd(a, SWS, pWS, WS_END)
    mk_srd(a, SRS, pWS, WS_END)
    RR = ACA
    xlds = lambda c: 32 * KB * (1 + (c >> 1)) + 4 * KB * (c & 1)
    sWL = sBB
    I(f"s_lshl_b32 s{sWL}, s{sW}, 13")
    HH, RHO, SG, PI = T + 6, T + 7, T + 8, T + 9
    I(f"v_lshrrev_b32 v{HH}, 5, v{LN}")
    I(f"v_and_b32 v{RHO}, 31, v{LN}")
    I(f"v_and_b32 v{TA}, 19, v{RHO}")
    I(f"v_bfe_u32 v{TB}, v{RHO}, 2, 1")
    I(f"v_lshl_or_b32 v{TA}, v{TB}, 3, v{TA}")
    I(f"v_bfe_u32 v{TC}, v{RHO}, 3, 1")
    I(f"v_lshl_or_b32 v{SG}, v{TC}, 2, v{TA}")
    I(f"s_cmp_ge_u32 s{sW}, 2")
    I("s_cbranch_scc1 L_role23")
    I(f"s_lshl_b32 s{sT0}, s2, 1")
    I(f"s_add_u32 s{sT0}, s{sT0}, s{sW}")
    mk_srd(a, SR, pW2, 1792 * 1024)
    I(f"s_cmp_lt_u32 s{sT0}, 448")
    I(f"s_cselect_b32 s{SR+2}, s{SR+2}, 0")
    I(f"s_cselect_b32 s{SRS+2}, s{SRS+2}, 0")
    I(f"s_cselect_b32 s{sT0}, s{sT0}, 0")
    I(f"s_and_b32 s{sT1}, s{sT0}, 7")
    I(f"s_lshr_b32 s{sT0}, s{sT0}, 3")
    I(f"s_lshl_b32 s{sT2}, s{sT0}, 15")
    I(f"s_lshl_b32 s{sRA}, s{sT1}, 7")
    I(f"s_add_u32 s{sT2}, s{sT2}, s{sRA}")
    I(f"s_add_u32 s{sRA}, s{sWL}, {xlds(7)}")
    for q in range(4):
        I(f"s_add_u32 m0, s{sRA}, {q*1024}")
        if q:
            I(f"s_add_u32 s{sT2}, s{sT2}, 8192")
        I(f"buffer_load_dwordx4 v{VR}, {srd(SR)}, s{sT2} offen lds", tag="R", track=False)
    I(f"s_mul_i32 s{sRA}, s{sT1}, {2*RT_STRIDE}")
    I(f"s_and_b32 s{sT2}, s{sT0}, 1")
    I(f"s_lshl_b32 s{sT2}, s{sT2}, 11")
    I(f"s_add_u32 s{sRA}, s{sRA}, s{sT2}")
    if fused:
        I(f"s_lshl_b32 s{sCNT}, s{sT1}, 9")
        I(f"s_lshl_b32 s{sT2}, s{sT0}, 2")
        I(f"s_add_u32 s{sCNT}, s{sCNT}, s{sT2}")
    I(f"s_lshr_b32 s{sT0}, s{sT0}, 1")
    I(f"s_mul_i32 s{sT1}, s{sT0}, 37")
    I(f"s_lshr_b32 s{sT1}, s{sT1}, 8")
    if fused:
        I(f"s_mul_i32 s{sT2}, s{sT1}, {128-56}")
        I(f"s_add_u32 s{sCNT}, s{sCNT}, s{sT2}")
    I(f"s_mul_i32 s{sT2}, s{sT1}, {G_STRIDE}")
    I(f"s_add_u32 s{sRA}, s{sRA}, s{sT2}")
    I(f"s_mul_i32 s{sT1}, s{sT1}, 7")
    I(f"s_sub_u32 s{sT0}, s{sT0}, s{sT1}")
    I(f"s_lshr_b32 s{sT1}, s{sT0}, 1")
    I(f"s_and_b32 s{sT0}, s{sT0}, 1")
    I(f"s_lshl_b32 s{sT0}, s{sT0}, 2")
    I(f"s_add_u32 s{sT0}, s{sT0}, s{sT1}")
    I(f"s_lshl_b32 s{sT0}, s{sT0}, 12")
    I(f"s_add_u32 s{sRA}, s{sRA}, s{sT0}")
    I(f"s_add_u32 s{sRA}, s{sRA}, {BW}")
    I(f"s_add_u32 s{sRB}, s{sRA}, {RT_STRIDE}")
    I("s_branch L_rolejoin")
    a.label("L_role23")
    I(f"s_cmp_eq_u32 s{sW}, 3")
    I("s_cbranch_scc1 L_role3")
    I(f"s_and_b32 s{sT0}, s2, 1")
    I(f"s_cmp_eq_u32 s{sT0}, 0")
    I(f"s_cselect_b32 s{SR}, s{pCRE}, s{pCIM}")
    I(f"s_cselect_b32 s{SR+1}, s{pCRE+1}, s{pCIM+1}")
    I(f"s_mov_b32 s{SR+2}, {512*1024}")
    I(f"s_mov_b32 s{SR+3}, 0x20000")
    I(f"s_bfe_u32 s{sT1}, s2, 0x30001")
    I(f"s_lshr_b32 s{sT2}, s2, 4")
    I(f"s_lshl_b32 s{sRA}, s{sT2}, 15")
    I(f"s_lshl_b32 s{sRB}, s{sT1}, 7")
    I(f"s_add_u32 s{sRA}, s{sRA}, s{sRB}")
    I(f"v_lshlrev_b32 v{TA}, 4, v{HH}")
    I(f"v_lshl_or_b32 v{TA}, v{SG}, 10, v{TA}")
    for k in range(4):
        I(f"buffer_load_dwordx4 {vr(RR+4*k,4)}, v{TA}, {srd(SR)}, s{sRA} offen offset:{32*k}", tag="R", track=False)
    if fused:
        I(f"s_lshr_b32 s{sCNT}, s{sT2}, 1")
        I(f"s_lshl_b32 s{sCNT}, s{sCNT}, 9")
        I(f"s_lshr_b32 s{sRA}, s{sT1}, 1")
        I(f"s_lshl_b32 s{sRA}, s{sRA}, 7")
        I(f"s_add_u32 s{sCNT}, s{sCNT}, s{sRA}")
        I(f"s_and_b32 s{sRA}, s{sT2}, 1")
        I(f"s_lshl_b32 s{sRA}, s{sRA}, 4")
        I(f"s_add_u32 s{sCNT}, s{sCNT}, s{sRA}")
        I(f"s_and_b32 s{sRA}, s2, 3")
        I(f"s_lshl_b32 s{sRA}, s{sRA}, 2")
        I(f"s_add_u32 s{sCNT}, s{sCNT}, s{sRA}")
        I(f"s_add_u32 s{sCNT}, s{sCNT}, 56")
    I(f"s_mul_i32 s{sRA}, s{sT2}, {RT_STRIDE}")
    I(f"s_lshr_b32 s{sT2}, s{sT1}, 1")
    I(f"s_mul_i32 s{sT2}, s{sT2}, {G_STRIDE}")
    I(f"s_add_u32 s{sRA}, s{sRA}, s{sT2}")
    I(f"s_and_b32 s{sT1}, s{sT1}, 1")
    I(f"s_lshl_b32 s{sT1}, s{sT1}, 13")
    I(f"s_add_u32 s{sRA}, s{sRA}, s{sT1}")
    I(f"s_lshl_b32 s{sT0}, s{sT0}, 11")
    I(f"s_add_u32 s{sRA}, s{sRA}, s{sT0}")
    I(f"s_add_u32 s{sRA}, s{sRA}, {BW + 28*KB}")
    I(f"s_add_u32 s{sRB}, s{sRA}, 4096")
    I("s_branch L_rolejoin")
    a.label("L_role3")
    I(f"s_mov_b32 s{SRS+2}, 0")
    I(f"s_mov_b32 s{sRA}, 0")
    I(f"s_mov_b32 s{sRB}, 0")
    I(f"s_mov_b32 s{sCNT}, 0")
    I("s_cmp_ge_u32 s2, 16")
    I("s_cbranch_scc1 L_rolejoin")
    for k in range(4):
        I(f"v_mov_b32 v{RR+k}, -1")
        I(f"v_mov_b32 v{RR+4+k}, 0")
    I(f"s_lshl_b32 s{sT0}, s2, 12")
    I(f"s_add_u32 s{sT0}, s{sT0}, {EOFF}")
    for k in range(4):
        I(f"buffer_store_dwordx4 {vr(RR,4)}, v{L16}, {srd(SWS)}, s{sT0} offen offset:{1024*k} sc1", tag="R", track=False)
    if fused:
        I(f"s_lshl_b32 s{sT0}, s2, 10")
        I(f"s_add_u32 s{sT0}, s{sT0}, {HFLAG}")
        I(f"buffer_store_dwordx4 {vr(RR+4,4)}, v{L16}, {srd(SWS)}, s{sT0} offen sc1", tag="R", track=False)
        I(f"s_lshl_b32 s{sT0}, s2, 8")
        I(f"s_add_u32 s{sT0}, s{sT0}, {BFLAG}")
        I(f"v_lshlrev_b32 v{TA}, 2, v{LN}")
        I(f"buffer_store_dword v{RR+4}, v{TA}, {srd(SWS)}, s{sT0} offen sc1", tag="R", track=False)
    a.label("L_rolejoin")
    a.nop(2)

    def xgroup(c):
        return dma4(VQ, SX, sT0, [f"s_xor_b32 s{sT0}, s{sROT}, {c}", f"s_lshl_b32 s{sT0}, s{sT0}, 7",
                                  f"s_add_u32 s{sT0}, s{sT0}, s{sXB}", f"s_add_u32 m0, s{sWL}, {xlds(c)}"], f"x{c}")

    def wgroup(n, half):
        tag = f"H{n}"
        pre = [f"s_add_u32 m0, s{sWL}, {H[n] + 4*KB*half}"]
        if n < 2:
            pre += [f"s_or_b32 s{sT0}, s{sW}, {4*(n&1)}", f"s_xor_b32 s{sT0}, s{sT0}, s{sROT}",
                    f"s_lshl_b32 s{sT0}, s{sT0}, 7", f"s_lshl_b32 s{sT1}, s{sJ}, 15", f"s_add_u32 s{sT0}, s{sT0}, s{sT1}"]
            return dma4(VQ, SBI if half else SBR, sT0, pre, tag)
        pre += [f"s_or_b32 s{sT0}, s{sW}, {4*(n&1)}", f"s_xor_b32 s{sT0}, s{sT0}, s{sROT}",
                f"s_mul_i32 s{sT0}, s{sT0}, {64*3584}", f"s_add_u32 s{sT0}, s{sT0}, s{sUB}"]
        off = 32 * 3584 * half + (128 if n >= 4 else 0)
        if off:
            pre += [f"s_add_u32 s{sT0}, s{sT0}, {off}"]
        return dma4(VW, SW1B if n >= 4 else SW1, sT0, pre, tag)

    for c in range(3):
        a.run(xgroup(c))
    mk_srd(a, SBR, pBRE, 512 * 1024)
    mk_srd(a, SBI, pBIM, 512 * 1024)
    mk_srd(a, SW1, pW1, 512 * 3584)
    mk_srd(a, SW1B, pW1, 512 * 3584)
    mk_srd(a, SWS2, pWS, WS_END)
    mk_srd(a, SDBG, pDBG, 256)
    I(f"s_cmp_lt_u32 s{sJJ}, 3")
    I(f"s_cselect_b32 s{SW1B+2}, s{SW1B+2}, 0")
    I(f"s_cselect_b32 s{SWS2+2}, s{SWS2+2}, 0")
    I(f"s_lshl_b32 s{sT0}, s{sJ}, 12")
    I(f"s_add_u32 s{sT0}, s{sT0}, {EOFF}")
    I(f"s_add_u32 s{SE}, s{pWS}, s{sT0}")
    I(f"s_addc_u32 s{SE+1}, s{pWS+1}, 0")
    I(f"s_mov_b32 s{SE+2}, 4096")
    I(f"s_mov_b32 s{SE+3}, 0x20000")
    I(f"v_and_b32 v{TA}, 3, v{RHO}")
    I(f"v_lshrrev_b32 v{TC}, 3, v{RHO}")
    I(f"v_lshl_or_b32 v{TA}, v{TC}, 2, v{TA}")
    I(f"v_bfe_u32 v{TB}, v{RHO}, 2, 1")
    I(f"v_lshl_or_b32 v{PI}, v{TB}, 4, v{TA}")
    I(f"s_lshl_b32 s{sT0}, s{sJ}, 6")
    I(f"v_lshl_add_u32 v{TA}, v{PI}, 1, s{sT0}")
    I(f"global_load_ushort v{PA}, v{TA}, {sp(pLRE)}")
    I(f"global_load_ushort v{PA+1}, v{TA}, {sp(pLIM)}")
    I(f"global_load_ushort v{PC}, v{TA}, {sp(pLDT)}")
    I(f"v_lshl_add_u32 v{TA}, v{SG}, 1, s{sUB}")
    I(f"global_load_ushort v{BIA}, v{TA}, {sp(pB1)}")
    I(f"global_load_ushort v{BIA+2}, v{TA}, {sp(pB1)} offset:64")
    I(f"s_add_u32 s{sT0}, s{sUB}, 128")
    I(f"s_min_u32 s{sT0}, s{sT0}, {27*128}")
    I(f"v_lshl_add_u32 v{TA}, v{SG}, 1, s{sT0}")
    I(f"global_load_ushort v{BIA+4}, v{TA}, {sp(pB1)}")
    I(f"global_load_ushort v{BIA+6}, v{TA}, {sp(pB1)} offset:64")
    I(f"v_bfe_u32 v{TA}, v{RHO}, 1, 3")
    I(f"v_xor_b32 v{TA}, v{TA}, v{HH}")
    I(f"v_lshlrev_b32 v{TA}, 4, v{TA}")
    I(f"v_lshl_or_b32 v{TA}, v{RHO}, 7, v{TA}")
    I(f"v_add_u32 v{RDS}, s{sWL}, v{TA}")
    I(f"v_add_u32 v{RDS}, {32*KB}, v{RDS}")
    for k in range(1, 4):
        I(f"v_xor_b32 v{RDS+k}, {32*k}, v{RDS}")
    I(f"v_bfe_u32 v{TA}, v{LN}, 2, 2")
    I(f"v_lshl_or_b32 v{TB}, v{HH}, 3, v{TA}")
    I(f"v_lshlrev_b32 v{TB}, 7, v{TB}")
    I(f"v_lshrrev_b32 v{TA}, 1, v{TA}")
    I(f"v_lshl_or_b32 v{TB}, v{TA}, 6, v{TB}")
    I(f"v_bfe_u32 v{TA}, v{LN}, 4, 1")
    I(f"v_lshl_or_b32 v{TB}, v{TA}, 5, v{TB}")
    I(f"v_and_b32 v{TA}, 1, v{LN}")
    I(f"v_lshl_or_b32 v{TB}, v{TA}, 4, v{TB}")
    I(f"v_bfe_u32 v{TA}, v{LN}, 1, 1")
    I(f"v_lshl_or_b32 v{RDT}, v{TA}, 3, v{TB}")
    I(f"v_xor_b32 v{RDT+1}, 64, v{RDT}")
    SEL = ACB + 16
    I(f"v_bfe_u32 v{TA}, v{SG}, 3, 1")
    I(f"v_cmp_eq_u32 vcc, v{TA}, v{HH}")
    I(f"v_and_b32 v{TA}, 1, v{SG}")
    I(f"v_lshlrev_b32 v{TA}, 4, v{TA}")
    I(f"v_mov_b32 v{TB}, 0x3f80")
    I(f"v_lshlrev_b32 v{TA}, v{TA}, v{TB}")
    I(f"v_cndmask_b32 v{TA}, 0, v{TA}, vcc")
    I(f"v_bfe_u32 v{TB}, v{SG}, 1, 2")
    I(f"v_lshrrev_b32 v{TC}, 4, v{SG}")
    I(f"v_lshl_or_b32 v{TB}, v{TC}, 2, v{TB}")
    for k in range(8):
        I(f"v_cmp_eq_u32 vcc, {k}, v{TB}")
        I(f"v_cndmask_b32 v{SEL+k}, 0, v{TA}, vcc")
    for k in (1, 3, 5, 7, 9, 10, 11):
        I(f"v_mov_b32 v{BIA+k}, 0")
    I(f"v_mov_b32 v{MEAN}, 0")
    I(f"v_mov_b32 v{RSTD}, 0")
    a.wait_vm("R")
    I(f"s_cmp_ge_u32 s{sW}, 2")
    I("s_cbranch_scc1 L_rp23")
    I(f"s_add_u32 s{sT0}, s{sWL}, {xlds(7)}")
    I(f"v_add_u32 v{TA}, s{sT0}, v{RDT}")
    I(f"v_add_u32 v{TB}, s{sT0}, v{RDT+1}")
    for dt in range(2):
        for ph in range(2):
            for e in range(2):
                I(f"ds_read_b64_tr_b16 {vr(RR+8*dt+4*ph+2*e,2)}, v{TA+dt} offset:{ph*2048+e*512}", track=False)
    a.wait_lg_all()
    I("s_branch L_rpjoin")
    a.label("L_rp23")
    I(f"s_cmp_eq_u32 s{sW}, 2")
    I("s_cbranch_scc1 L_rpjoin")
    I("s_cmp_ge_u32 s2, 16")
    I("s_cbranch_scc1 L_rpjoin")
    I(f"s_lshl_b32 s{sT0}, s2, 2")
    I(f"v_mov_b32 v{TA}, 1")
    I(f"v_mov_b32 v{TB}, 0")
    I(f"buffer_store_dword v{TA}, v{TB}, {srd(SDBG)}, s{sT0} offen sc1", track=False)
    a.label("L_rpjoin")
    a.nop(1)

    def stats(c):
        it = [lambda a: a.need([vr(X + 16 * c, 16)])]
        for k in range(16):
            it.append(f"v_dot2c_f32_bf16 v{MEAN}, s{sONE}, v{X+16*c+k}")
            it.append(f"v_dot2c_f32_bf16 v{RSTD}, v{X+16*c+k}, v{X+16*c+k}")
        return it

    for c in range(8):
        if c + 3 < 8:
            a.run(xgroup(c + 3))
            if c == 4:
                for k in range(4):
                    I(f"buffer_store_dwordx4 {vr(RR+4*k,4)}, v{L16}, {srd(SRS)}, s{sRB if k>=2 else sRA} offen offset:{1024*(k&1)} sc1", tag="RS")
        elif c < 7:
            a.run(wgroup(0, c - 5))
        else:
            a.run(wgroup(1, 0))
        if c == 4:
            for k in range(4):
                I(f"v_add_u32 v{RDS+k}, {64*KB}, v{RDS+k}")
        a.wait_vm(f"x{c}")
        for k in range(4):
            I(f"ds_read_b128 {vr(X+16*c+4*k,4)}, v{RDS+k} offset:{(xlds(c)-32*KB) % (64*KB)}")
        if c:
            a.run(stats(c - 1))
    a.run(wgroup(1, 1))
    a.run(stats(7))
    NEGM = ACB
    I(f"v_mov_b32 v{TA}, v{MEAN}")
    I(f"v_mov_b32 v{TB}, v{RSTD}")
    I(f"v_permlane32_swap_b32 v{TA}, v{MEAN}")
    I(f"v_permlane32_swap_b32 v{TB}, v{RSTD}")
    I(f"v_add_f32 v{MEAN}, v{TA}, v{MEAN}")
    I(f"v_add_f32 v{RSTD}, v{TB}, v{RSTD}")
    I(f"v_mul_f32 v{NEGM}, {f32(-1/512)}, v{MEAN}")
    for k in range(1, 16):
        I(f"v_mov_b32 v{NEGM+k}, v{NEGM}")
    I(f"s_add_u32 s{sT0}, s{sWL}, {96*KB}")
    for k in range(4):
        I(f"v_subrev_u32 v{RDS+k}, s{sT0}, v{RDS+k}")

    I(GO_LOAD)
    groups = []
    for k2 in range(17):
        g = []
        if k2 < 16:
            D = ACA + 16 * (k2 & 1)
            g.append(f"v_mfma_f32_32x32x16_bf16 {vr(D,16)}, {vr(SEL,4)}, {vr(X+8*k2,4)}, {vr(NEGM,16)}")
            g.append(f"v_mfma_f32_32x32x16_bf16 {vr(D,16)}, {vr(SEL+4,4)}, {vr(X+8*k2+4,4)}, {vr(D,16)}")
        groups.append(g)
        g = []
        if k2:
            D = ACA + 16 * ((k2 - 1) & 1)
            for n in range(8):
                g.append(f"v_cvt_pk_bf16_f32 v{X+8*(k2-1)+n}, v{D+2*n}, v{D+2*n+1}")
        groups.append(g)
    fill = wgroup(2, 0) + wgroup(2, 1) + wgroup(3, 0)
    seq = []
    per = [fill[(len(fill) * i) // 15:(len(fill) * (i + 1)) // 15] for i in range(15)]
    for i in range(17):
        seq += groups[2 * i]
        if 1 <= i <= 15:
            seq += per[i - 1]
        if i == 15:
            seq.append(wait_go)
            seq.append(lambda a: a.wait_vm("H0"))
            seq.append("s_barrier")
            seq += frag_reads(0)
        seq += groups[2 * i + 1]
    a.run(seq)

    fl0 = fill_u0(fused)
    fl1 = fill_u1()
    fl2, tail_items = fill_u2(fused)
    mem0 = wgroup(3, 1) + wgroup(4, 0) + wgroup(4, 1)
    mem1 = wgroup(5, 0) + wgroup(5, 1)
    mem2 = []
    if fused:
        raise NotImplementedError
    for u, (fl, mem, last) in enumerate(((fl0, mem0, 64), (fl1, mem1, 60), (fl2, mem2, 64))):
        a.comment(f"---- GEMM unit {u} ----")
        main = []
        for d in range(16):
            n = 16 * u + d
            pre = [lambda a, n=n: a.need(stage_regs(n))]
            if n + 1 < 48 and (n + 1) % 8 == 0:
                hn = (n + 1) // 8
                pre += [lambda a: a.wait_lg_all() if a.lgq else None, lambda a, hn=hn: a.wait_vm(f"H{hn}"), "s_barrier"]
            if n + 1 == 16:
                pre += [f"v_add_u32 v{RDT}, {H[2]}, v{RDT}", f"v_add_u32 v{RDT+1}, {H[2]}, v{RDT+1}"]
            if n + 1 == 32:
                pre += [f"v_add_u32 v{RDT}, {H[4]-H[2]}, v{RDT}", f"v_add_u32 v{RDT+1}, {H[4]-H[2]}, v{RDT+1}"]
            if n + 1 == 40:
                pre += [f"v_subrev_u32 v{RDT}, {H[4]}, v{RDT}", f"v_subrev_u32 v{RDT+1}, {H[4]}, v{RDT+1}"]
            ms = mfmas(n)
            rd = frag_reads(n + 1) if n + 1 < 48 else []
            h = min(len(rd), 5)
            main.append(pre + ms[0] + rd[:h])
            main.append(ms[1] + rd[h:])
            main.append(ms[2])
            main.append(ms[3])
        wts = []
        for i in range(64):
            nrd = sum(1 for it in main[i] if isinstance(it, str) and it.startswith("ds_read"))
            wts.append(max(6 - nrd - (1 if i % 4 == 0 else 0), 0) if i < last else 0)
        wts[0] = 0
        allf = merge(fl, mem)
        tot = sum(wts)
        acc = 0
        done = 0
        for i in range(64):
            a.run(main[i])
            acc += wts[i]
            upto = (len(allf) * acc) // tot
            a.run(allf[done:upto])
            done = upto
    a.run(tail_items)


def merge(fl, mem):
    if not mem:
        return list(fl)
    res = []
    n, m = len(fl), len(mem)
    j = 0
    for i in range(n):
        while j < m and j * n <= i * m:
            res.append(mem[j])
            j += 1
        res.append(fl[i])
    res += mem[j:]
    return res


def stage_regs(n):
    return [ar(STG + 16 * (n & 1), 16)]


def frag_reads(n):
    u, d = divmod(n, 16)
    it = []
    for s in range(2):
        k = 2 * d + s
        base = STG + 16 * (n & 1) + 8 * s
        if u == 0:
            for part in range(2):
                it.append(f"ds_read_b128 {ar(base+4*part,4)}, v{RDS+(k&3)} offset:{(k>>2)*8192+part*4096}")
        else:
            kk = k if u == 1 else (k & 15)
            for t in range(2):
                for e in range(2):
                    it.append(f"ds_read_b64_tr_b16 {ar(base+4*t+2*e,2)}, v{RDT+t} offset:{kk*2048+e*512}")
    return it


def mfmas(n):
    u, d = divmod(n, 16)
    res = []
    acc = (ACA, ACB, ACA)[u]
    for s in range(2):
        k = 2 * d + s
        base = STG + 16 * (n & 1) + 8 * s
        for t in range(2):
            D = vr(acc + 16 * t, 16)
            g = []
            if u == 0:
                c = D if k else "0"
                g.append(f"v_mfma_f32_32x32x16_bf16 {D}, {vr(X+4*k,4)}, {ar(base+4*t,4)}, {c}")
            else:
                if k == 0:
                    g.append(f"v_mfma_f32_32x32x16_bf16 {D}, {vr(BIA+2*(2*(u-1)+t),4)}, {vr(SB,4)}, 0")
                g.append(f"v_mfma_f32_32x32x16_bf16 {D}, {ar(base+4*t,4)}, {vr(X+4*k,4)}, {D}")
            res.append(g)
    return res


LN, HH, RHO = T, T + 6, T + 7


def cpow(dst, nreg_or_const, zr, zv, t0, t1):
    it = []
    n = nreg_or_const
    if n == 1:
        it += [f"v_exp_f32 v{t0}, v{zr}", f"v_fract_f32 v{t1}, v{zv}"]
    else:
        src = n if isinstance(n, str) else f32(float(n))
        it += [f"v_mul_f32 v{t0}, {src}, v{zr}", f"v_mul_f32 v{t1}, {src}, v{zv}",
               f"v_exp_f32 v{t0}, v{t0}", f"v_fract_f32 v{t1}, v{t1}"]
    it += [f"v_cos_f32 v{dst}, v{t1}", f"v_sin_f32 v{dst+1}, v{t1}",
           f"v_mul_f32 v{dst}, v{dst}, v{t0}", f"v_mul_f32 v{dst+1}, v{dst+1}, v{t0}"]
    return it


def fill_u0(fused):
    it = []
    A0, A1, A2, A3, A4, A5, A6, A7 = [ACB + 24 + i for i in range(8)]
    EPS = f32(1e-5)
    k0 = -2.0 * math.log2(math.e) * math.sqrt(2.0 / math.pi)
    k1 = k0 * 0.044715
    it += [f"v_mul_f32 v{MEAN}, {f32(1/512)}, v{MEAN}",
           f"v_mul_f32 v{A0}, {f32(1/512)}, v{RSTD}",
           f"v_fma_f32 v{A0}, -v{MEAN}, v{MEAN}, v{A0}",
           f"v_max_f32 v{A0}, 0, v{A0}",
           f"v_add_f32 v{A1}, {EPS}, v{A0}",
           f"v_rsq_f32 v{RSTD}, v{A1}",
           f"v_fmac_f32 v{A0}, {EPS}, v{A1}",
           f"v_rsq_f32 v{A2}, v{A0}",
           f"v_sqrt_f32 v{IR2}, v{A0}",
           f"v_mul_f32 v{K0}, {f32(k0)}, v{A2}",
           f"v_mul_f32 v{A3}, v{A2}, v{A2}",
           f"v_mul_f32 v{A3}, {f32(0.044715)}, v{A3}",
           f"v_mul_f32 v{K1}, v{K0}, v{A3}",
           f"v_mul_f32 v{A1}, 0.5, v{IR2}",
           f"v_cvt_pk_bf16_f32 v{A2}, v{A1}, v{A1}",
           f"v_and_b32 v{A3}, 0xffff0000, v{A2}",
           f"v_sub_f32 v{A3}, v{A1}, v{A3}",
           f"v_cvt_pk_bf16_f32 v{SB}, v{A1}, v{A3}"]
    it += [f"s_cmp_eq_u32 s{sJJ}, 0\ns_cselect_b32 s{SRS+2}, {WS_END}, 0",
           f"s_lshr_b32 s{sRA}, s{sXB}, 7",
           f"s_lshl_b32 s{sRB}, s{sG}, 14",
           f"s_add_u32 s{sRA}, s{sRA}, s{sRB}",
           f"s_add_u32 s{sRA}, s{sRA}, {STATS}",
           f"v_mov_b32 v{A4}, v{MEAN}",
           f"v_mov_b32 v{A5}, v{RSTD}",
           f"v_lshlrev_b32 v{A6}, 3, v{RHO}",
           f"buffer_store_dwordx2 {vr(A4,2)}, v{A6}, {srd(SRS)}, s{sRA} offen sc1"]
    for k in range(4):
        it.append(f"v_lshl_or_b32 v{BIA+2*k}, v{BIA+2*k}, 16, v{BIA+2*k}")
    LR, LI, ZR, ZV = ACB, ACB + 1, ACB + 2, ACB + 3
    it += [f"v_lshlrev_b32 v{LR}, 16, v{PA}",
           f"v_lshlrev_b32 v{LI}, 16, v{PA+1}",
           f"v_lshlrev_b32 v{A0}, 16, v{PC}",
           f"v_mul_f32 v{A0}, {f32(math.log2(math.e))}, v{A0}",
           f"v_exp_f32 v{A0}, v{A0}",
           f"v_cvt_f32_u32 v{A2}, v{HH}",
           f"v_cvt_pk_bf16_f32 v{A0}, v{A0}, v{A0}",
           f"v_and_b32 v{A0}, 0xffff0000, v{A0}",
           f"v_mul_f32 v{ZR}, v{A0}, v{LR}",
           f"v_mul_f32 v{ZV}, v{A0}, v{LI}",
           f"v_mul_f32 v{ZR}, {f32(math.log2(math.e))}, v{ZR}",
           f"v_mul_f32 v{ZV}, 0.15915494, v{ZV}"]
    it += cpow(PA, 1, ZR, ZV, A0, A1)
    it += cpow(PA16, 16, ZR, ZV, A0, A1)
    it += cpow(PA256, 256, ZR, ZV, A0, A1)
    it += [f"v_mul_f32 v{A3}, {f32(128.0)}, v{A2}"]
    it += cpow(PAH, f"v{A3}", ZR, ZV, A0, A1)
    it += [f"s_lshl_b32 s{sRA}, s{sW}, 1",
           f"v_add_u32 v{A3}, s{sRA}, v{HH}",
           f"v_cvt_f32_u32 v{A3}, v{A3}",
           f"v_mul_f32 v{A3}, {f32(16.0)}, v{A3}"]
    it += cpow(PAS, f"v{A3}", ZR, ZV, A0, A1)
    it += [f"v_mul_f32 v{A0}, v{LR}, v{LR}",
           f"v_fmac_f32 v{A0}, v{LI}, v{LI}",
           f"v_rcp_f32 v{A0}, v{A0}",
           f"v_add_f32 v{A1}, -1.0, v{PA}",
           f"v_mul_f32 v{A2}, v{A1}, v{LR}",
           f"v_fmac_f32 v{A2}, v{PA+1}, v{LI}",
           f"v_mul_f32 v{A3}, v{PA+1}, v{LR}",
           f"v_fma_f32 v{A3}, -v{A1}, v{LI}, v{A3}",
           f"v_add_f32 v{A0}, v{A0}, v{A0}",
           f"v_mul_f32 v{PC}, v{A2}, v{A0}",
           f"v_mul_f32 v{PC+1}, v{A3}, v{A0}"]
    APK, ARS, AET, ARW = VQ, VQ + 1, VQ + 2, VQ + 3
    it += [f"s_mul_i32 s{sRA}, s{sW}, {7*KB}",
           f"s_add_u32 s{sRA}, s{sRA}, {PARK}",
           f"v_add_u32 v{APK}, s{sRA}, v{L16}",
           f"s_add_u32 s{sRA}, s{sRA}, {6*KB}",
           f"v_lshl_add_u32 v{ARS}, v{HH}, 6, s{sRA}",
           f"v_lshl_add_u32 v{ARW}, v{T+9}, 2, s{sRA}",
           f"s_lshl_b32 s{sRA}, s{sW}, 9",
           f"s_add_u32 s{sRA}, s{sRA}, {ETAB}",
           f"v_lshl_add_u32 v{AET}, v{LN}, 3, s{sRA}"]
    return it


def fill_u1():
    APK, ARS, AET, ARW = VQ, VQ + 1, VQ + 2, VQ + 3
    RS = RDS
    Q0, Q1 = T + 10, KEEP
    t0, t1 = T + 1, T + 2
    E0, E1 = T + 4, PP
    Z = T + 8
    it = [f"ds_write_b32 v{ARW}, v{RSTD}",
          f"v_mov_b32 v{Z}, 0", f"v_mov_b32 v{Z+1}, 0",
          f"ds_write_b64 v{AET}, {vr(Z,2)}"]
    cur = None
    for i in range(16):
        if i % 4 == 0:
            it.append(f"ds_read_b128 {vr(RS,4)}, v{ARS} offset:{4*i}")
        q = (Q0, Q1)[(i >> 1) & 1] + 2 * (i & 1)
        it += [f"v_mul_f32 v{t0}, v{ACA+i}, v{RS+(i&3)}",
               f"v_mul_f32 v{t1}, v{ACA+16+i}, v{RS+(i&3)}",
               f"v_mul_f32 v{q}, v{PC}, v{t0}",
               f"v_mul_f32 v{q+1}, v{PC}, v{t1}",
               f"v_fma_f32 v{q}, -v{PC+1}, v{t1}, v{q}",
               f"v_fmac_f32 v{q+1}, v{PC+1}, v{t0}"]
        if i == 0:
            cur = q
        else:
            nx = E0 if i & 1 else E1
            it += [f"v_fma_f32 v{nx}, v{PA}, v{cur}, v{q}",
                   f"v_fma_f32 v{nx+1}, v{PA}, v{cur+1}, v{q+1}",
                   f"v_fma_f32 v{nx}, -v{PA+1}, v{cur+1}, v{nx}",
                   f"v_fmac_f32 v{nx+1}, v{PA+1}, v{cur}"]
            cur = nx
        if i & 1 and i < 15:
            it.append(f"ds_write_b128 v{APK}, {vr(q-2,4)} offset:{(i>>1)*1024}")
    assert cur == E0
    it.append(f"ds_write_b64 v{AET}, {vr(E0,2)} offset:2048")
    return it


def gelu_plain(regs, tmp):
    it = []
    n = len(regs)
    for r, t in zip(regs, tmp):
        it.append(f"v_mul_f32 v{t}, v{r}, v{r}")
    for r, t in zip(regs, tmp):
        it.append(f"v_fma_f32 v{t}, v{t}, v{K1}, v{K0}")
    for r, t in zip(regs, tmp):
        it.append(f"v_mul_f32 v{t}, v{t}, v{r}")
    for r, t in zip(regs, tmp):
        it.append(f"v_exp_f32 v{t}, v{t}")
    for r, t in zip(regs, tmp):
        it.append(f"v_fma_f32 v{t}, v{t}, v{IR2}, v{IR2}")
    for r, t in zip(regs, tmp):
        it.append(f"v_rcp_f32 v{t}, v{t}")
    for r, t in zip(regs, tmp):
        it.append(f"v_mul_f32 v{r}, v{r}, v{t}")
    return it


def gelu_packed(base, tmp):
    it = []
    kk = vr(K0, 2)
    ii = vr(RSTD, 2)
    for p in (0, 2):
        it.append(f"v_pk_mul_f32 {vr(tmp+p,2)}, {vr(base+p,2)}, {vr(base+p,2)}")
    for p in (0, 2):
        it.append(f"v_pk_fma_f32 {vr(tmp+p,2)}, {vr(tmp+p,2)}, {kk}, {kk} op_sel:[0,1,0] op_sel_hi:[1,1,0]")
    for p in (0, 2):
        it.append(f"v_pk_mul_f32 {vr(tmp+p,2)}, {vr(tmp+p,2)}, {vr(base+p,2)}")
    for p in range(4):
        it.append(f"v_exp_f32 v{tmp+p}, v{tmp+p}")
    for p in (0, 2):
        it.append(f"v_pk_fma_f32 {vr(tmp+p,2)}, {vr(tmp+p,2)}, {ii}, {ii} op_sel:[0,1,1] op_sel_hi:[1,1,1]")
    for p in range(4):
        it.append(f"v_rcp_f32 v{tmp+p}, v{tmp+p}")
    for p in (0, 2):
        it.append(f"v_pk_mul_f32 {vr(base+p,2)}, {vr(base+p,2)}, {vr(tmp+p,2)}")
    return it


def pack_store(base, s, soff, off):
    it = [f"v_cvt_pk_bf16_f32 v{base+n}, v{base+2*n}, v{base+2*n+1}" for n in range(4)]
    it.append((f"buffer_store_dwordx4 {vr(base,4)}, v{L16}, {srd(s)}, s{soff} offen offset:{off} sc1", "HS"))
    return it


def cfma(dst, m, x, add):
    return [f"v_fma_f32 v{dst}, v{m}, v{x}, v{add}",
            f"v_fma_f32 v{dst+1}, v{m}, v{x+1}, v{add+1}",
            f"v_fma_f32 v{dst}, -v{m+1}, v{x+1}, v{dst}",
            f"v_fmac_f32 v{dst+1}, v{m+1}, v{x}"]


GO_LOAD = f"s_load_dwordx16 s[4:19], {sp(pDBG)}, 0 glc"


def wait_go(a):
    a.I(f"s_mov_b32 s{sT2}, 0")
    a.label("L_go")
    a.wait_lg_all()
    for k in range(0, 16, 4):
        a.I(f"s_and_b64 s[{4+k}:{5+k}], s[{4+k}:{5+k}], s[{6+k}:{7+k}]")
    a.I("s_and_b64 s[4:5], s[4:5], s[8:9]")
    a.I("s_and_b64 s[12:13], s[12:13], s[16:17]")
    a.I("s_and_b64 s[4:5], s[4:5], s[12:13]")
    a.I(f"s_add_u32 s{sT2}, s{sT2}, 1")
    a.I(f"s_cmp_ge_u32 s{sT2}, {SPIN_MAX}")
    a.I("s_cbranch_scc1 L_go_done")
    a.I("s_and_b32 s4, s4, s5")
    a.I("s_cbranch_scc1 L_go_done")
    a.I(GO_LOAD)
    a.I("s_branch L_go")
    a.lgq = []
    a.label("L_go_done")


def fill_u2(fused):
    APK, ARS, AET, ARW = VQ, VQ + 1, VQ + 2, VQ + 3
    E0 = T + 4
    it = []
    slots = [RDS, RDS + 2, VW, VW + 2, T + 8, T + 10, T + 12]
    for m in range(6, -1, -1):
        it.append(f"ds_read_b64 {vr(slots[m],2)}, v{AET} offset:{(7-m)*256}")
    cur = slots[6]
    for m in range(5, -1, -1):
        dst = PP if m == 0 else slots[m]
        it += cfma(dst, PA16, cur, slots[m])
        cur = dst
    it += cfma(E0, PA16, PP, E0)
    it += [f"s_lshl_b32 s{sRA}, s{sR}, 8",
           f"s_movk_i32 s{sRB}, 4096\ns_cmp_eq_u32 s{sW}, 3\ns_cselect_b32 s{sRB}, 256, s{sRB}",
           f"v_lshlrev_b32 v{T+1}, 3, v{LN}",
           f"v_subrev_u32 v{T+1}, s{sRB}, v{T+1}",
           f"v_add_u32 v{T+2}, s{sRA}, v{T+1}",
           f"v_cmp_gt_i32 vcc, 0, v{T+1}",
           f"v_cndmask_b32 v{T+1}, v{T+2}, v{T+1}, vcc",
           f"buffer_store_dwordx2 {vr(E0,2)}, v{T+1}, {srd(SE)}, 0 offen sc1"]
    tmp = [T + 8 + i for i in range(4)]
    for qd in range(4):
        it += gelu_plain([ACB + 4 * qd + i for i in range(4)], tmp)
        if qd & 1:
            it += pack_store(ACB + 8 * (qd >> 1), SWS, sHB, 1024 * (qd >> 1))
    tl = []
    EL = X
    EA = X + 16
    tl += [f"s_lshl_b32 s{sRA}, s{sR}, 8",
           f"s_sub_u32 s{sRA}, s{sRA}, 256",
           f"v_lshlrev_b32 v{EA}, 3, v{RHO}",
           f"v_lshlrev_b32 v{EA+1}, 8, v{HH}",
           f"v_sub_u32 v{EA}, v{EA}, v{EA+1}",
           f"v_add_u32 v{EA}, s{sRA}, v{EA}"]
    for n in range(1, 8):
        tl.append(f"v_subrev_u32 v{EA+n}, {512*n}, v{EA}")
    eloads = [f"buffer_load_dwordx2 {vr(EL+2*n,2)}, v{EA+n}, {srd(SE)}, 0 offen sc1" for n in range(8)]
    for qd in range(4, 8):
        tl += gelu_packed(ACB + 4 * qd, T + 8)
        if qd & 1:
            tl += pack_store(ACB + 8 * (qd >> 1), SWS, sHB, 1024 * (qd >> 1))
    tl += eloads
    U = X + 32
    for n in range(7):
        tl.append(f"ds_read_b128 {vr(U+4*n,4)}, v{APK} offset:{n*1024}")
    tl += [f"s_add_u32 s{sRB}, s{sHB}, {16*KB}"]
    for qd in range(8):
        tl += gelu_packed(ACA + 4 * qd, T + 8)
        if qd & 1:
            tl += pack_store(ACA + 8 * (qd >> 1), SWS2, sRB, 1024 * (qd >> 1))
    for k in range(4):
        tl.append(f"v_mov_b32 v{U+28+k}, v{KEEP+k}")
    TW, TR = VW, VW + 1
    tl += [f"s_mul_i32 s{sRA}, s{sW}, 5120",
           f"s_add_u32 s{sRA}, s{sRA}, {TRB}",
           f"v_mul_u32_u24 v{TW}, 80, v{RHO}",
           f"v_lshl_add_u32 v{TW}, v{HH}, 5, v{TW}",
           f"v_add_u32 v{TW}, s{sRA}, v{TW}",
           f"v_bfe_u32 v{T+1}, v{LN}, 2, 2",
           f"v_lshl_add_u32 v{T+1}, v{HH}, 4, v{T+1}",
           f"v_mul_u32_u24 v{TR}, 80, v{T+1}",
           f"v_and_b32 v{T+1}, 1, v{LN}",
           f"v_lshl_add_u32 v{TR}, v{T+1}, 5, v{TR}",
           f"v_bfe_u32 v{T+1}, v{LN}, 4, 1",
           f"v_lshl_add_u32 v{TR}, v{T+1}, 4, v{TR}",
           f"v_bfe_u32 v{T+1}, v{LN}, 1, 1",
           f"v_lshl_add_u32 v{TR}, v{T+1}, 3, v{TR}",
           f"v_add_u32 v{TR}, s{sRA}, v{TR}"]

    def epoll(a):
        a.need([vr(EL, 16)])
        a.I(f"s_mov_b32 s{sT2}, 0")
        a.label("L_epoll")
        a.I(f"v_max3_u32 v{T+1}, v{EL}, v{EL+1}, v{EL+2}")
        for n in range(3, 15, 2):
            a.I(f"v_max3_u32 v{T+1}, v{T+1}, v{EL+n}, v{EL+n+1}")
        a.I(f"v_max_u32 v{T+1}, v{T+1}, v{EL+15}")
        a.I(f"v_cmp_eq_u32 vcc, -1, v{T+1}")
        a.I(f"s_add_u32 s{sT2}, s{sT2}, 1")
        a.I(f"s_cmp_ge_u32 s{sT2}, {SPIN_MAX}")
        a.I("s_cbranch_scc1 L_epoll_done")
        a.nop(3)
        a.I("s_cbranch_vccz L_epoll_done")
        save = list(a.vmq)
        for l in eloads:
            a.I(l, track=False)
        a.wait_vm_all()
        a.I("s_branch L_epoll")
        a.vmq = save
        a.label("L_epoll_done")
    tl.append(epoll)
    cur = EL + 14
    for n in range(6, -1, -1):
        tl += cfma(EL + 2 * n, PA256, cur, EL + 2 * n)
        cur = EL + 2 * n
    S0, S1 = EL + 2, EL + 4
    tl += [f"v_mul_f32 v{S0}, v{PAH}, v{EL}",
           f"v_mul_f32 v{S0+1}, v{PAH}, v{EL+1}",
           f"v_fma_f32 v{S0}, -v{PAH+1}, v{EL+1}, v{S0}",
           f"v_fmac_f32 v{S0+1}, v{PAH+1}, v{EL}",
           f"v_mov_b32 v{S1}, v{S0}",
           f"v_mov_b32 v{S1+1}, v{S0+1}",
           f"v_permlane32_swap_b32 v{S0}, v{S1}",
           f"v_permlane32_swap_b32 v{S0+1}, v{S1+1}",
           f"v_add_f32 v{S0}, v{S0}, v{S1}",
           f"v_add_f32 v{S0+1}, v{S0+1}, v{S1+1}"]
    tl += cfma(PP, PAS, S0, PP)
    prev = PP
    aa = vr(PA, 2)
    RE, IM = X + 64, X + 72
    for i in range(16):
        u = U + 2 * i
        tl += [f"v_pk_fma_f32 {vr(u,2)}, {vr(prev,2)}, {aa}, {vr(u,2)} op_sel:[0,0,0] op_sel_hi:[1,0,1]",
               f"v_pk_fma_f32 {vr(u,2)}, {vr(prev,2)}, {aa}, {vr(u,2)} op_sel:[1,1,0] op_sel_hi:[0,1,1] neg_lo:[0,1,0]"]
        prev = u
        if i & 1:
            tl += [f"v_cvt_pk_bf16_f32 v{RE+(i>>1)}, v{u-2}, v{u}",
                   f"v_cvt_pk_bf16_f32 v{IM+(i>>1)}, -v{u-1}, -v{u+1}"]
    for p, R in enumerate((RE, IM)):
        for hf in range(2):
            tl.append(f"ds_write_b128 v{TW}, {vr(R+4*hf,4)} offset:{p*2560+16*hf}")
    FR = X + 80
    for p in range(2):
        for k in range(2):
            for e in range(2):
                tl.append(f"ds_read_b64_tr_b16 {vr(FR+8*p+4*k+2*e,2)}, v{TR} offset:{p*2560+(8*e+4*k)*80}")
    tl += [f"s_add_u32 s{sRB}, s{sHB}, {28*KB}"]
    for f in range(4):
        tl.append((f"buffer_store_dwordx4 {vr(FR+4*f,4)}, v{L16}, {srd(SWS)}, s{sRB} offen offset:{1024*f} sc1", "HS"))
    return it, tl


sI2, sN, sA0, sA1, sB0, sB1 = sR, sJ, sRA, sRB, sHB, sCNT
ACC2 = 128
HRING = [ar(224 + 4 * i, 4) for i in range(8)] + [vr(192 + 4 * i, 4) for i in range(8)]
P2L16, P2LN = 224, 225


def wreg(k, dt):
    return vr(8 * k + 4 * dt, 4) if k < 16 else ar(8 * (k - 16) + 4 * dt, 4)


def p2_index(a):
    I = a.I
    I(f"s_and_b32 s{sI2}, s2, 7")
    I(f"s_lshl_b32 s{sI2}, s{sI2}, 2")
    I(f"s_lshr_b32 s{sT0}, s2, 6")
    I(f"s_add_u32 s{sI2}, s{sI2}, s{sT0}")
    I(f"s_bfe_u32 s{sN}, s2, 0x30003")
    I(f"s_mul_i32 s{sT0}, s{sW}, {G_STRIDE}")
    I(f"s_mul_i32 s{sA0}, s{sI2}, {2*RT_STRIDE}")
    I(f"s_add_u32 s{sA0}, s{sA0}, s{sT0}")
    I(f"s_add_u32 s{sA1}, s{sA0}, {RT_STRIDE}")
    I(f"s_mul_i32 s{sB0}, s{sN}, {2*RT_STRIDE}")
    I(f"s_add_u32 s{sB0}, s{sB0}, s{sT0}")
    I(f"s_add_u32 s{sB0}, s{sB0}, {BW}")
    I(f"s_add_u32 s{sB1}, s{sB0}, {RT_STRIDE}")


def b_loads(ks):
    it = []
    for k in ks:
        if k % 4 == 0:
            it += [f"s_add_u32 s{sT0}, s{sB0}, {k*1024}", f"s_add_u32 s{sT1}, s{sB1}, {k*1024}"]
        for dt in range(2):
            it.append(f"buffer_load_dwordx4 {wreg(k,dt)}, v{P2L16}, {srd(SWS)}, s{sT0+dt} offen offset:{(k&3)*1024} sc1")
    return it


def a_loads(k):
    it = []
    if k % 4 == 0 and k:
        it += [f"s_add_u32 s{sA0}, s{sA0}, 4096", f"s_add_u32 s{sA1}, s{sA1}, 4096"]
    for tt in range(2):
        it.append(f"buffer_load_dwordx4 {HRING[(2*k+tt)%16]}, v{P2L16}, {srd(SWS)}, s{sA0+tt} offen offset:{(k&3)*1024} sc1")
    return it


def phase2_body(a, interleave_b=False):
    I = a.I
    LOOK = 7
    if interleave_b:
        for k in range(LOOK):
            a.run(b_loads_one(k))
            a.run(a_loads(k))
    else:
        for k in range(LOOK):
            a.run(a_loads(k))
    XA, OA, SA = 226, 227, 228
    TA, TB, TC = 229, 230, 231
    XV, ST, DK, BB, BASE = 0, 8, 16, 18, 32
    WA = 232
    RA = 236
    prep = []
    prep += [f"s_lshr_b32 s{sT2}, s{sW}, 1",
             f"s_lshl_b32 s{sT2}, s{sT2}, 5",
             f"s_and_b32 s{sG}, s{sW}, 1",
             f"s_lshl_b32 s{sG}, s{sG}, 3",
             f"s_add_u32 s{sT2}, s{sT2}, s{sG}",
             f"s_lshl_b32 s{sG}, s{sI2}, 6",
             f"s_add_u32 s{sT2}, s{sT2}, s{sG}",
             f"v_lshrrev_b32 v{TA}, 4, v{P2LN}",
             f"v_and_b32 v{TB}, 15, v{P2LN}",
             f"v_add_u32 v{TC}, s{sT2}, v{TA}",
             f"s_lshl_b32 s{sG}, s{sN}, 7",
             f"v_lshl_add_u32 v{SA}, v{TB}, 3, s{sG}",
             f"global_load_dwordx2 {vr(DK,2)}, v{SA}, {sp(pDSK)}",
             f"global_load_dwordx2 {vr(BB,2)}, v{SA}, {sp(pB2)}",
             f"v_lshl_add_u32 v{XA}, v{TC}, 10, v{SA}",
             f"v_lshlrev_b32 v{OA}, 1, v{XA}",
             f"s_lshl_b32 s{sG}, s{sW}, 14",
             f"s_lshl_b32 s{sJJ}, s{sI2}, 9",
             f"s_add_u32 s{sG}, s{sG}, s{sJJ}",
             f"s_lshl_b32 s{sJJ}, s{sW}, 7",
             f"s_add_u32 s{sG}, s{sG}, s{sJJ}",
             f"s_add_u32 s{sG}, s{sG}, {STATS}",
             f"v_lshlrev_b32 v{SA}, 3, v{TA}"]
    rowoff = lambda it: 16 * (it & 1) + 4 * (it >> 1)
    for it in range(4):
        prep += [f"s_mov_b32 s{sJJ}, {rowoff(it)*1024}",
                 f"buffer_load_dwordx2 {vr(XV+2*it,2)}, v{XA}, {srd(SX)}, s{sJJ} offen",
                 f"buffer_load_dwordx2 {vr(ST+2*it,2)}, v{SA}, {srd(SWS)}, s{sG} offen offset:{32*it} sc1"]
    prep += [f"v_and_b32 v{TC}, 31, v{P2LN}",
             f"v_lshrrev_b32 v{WA}, 5, v{P2LN}",
             f"v_lshlrev_b32 v{WA}, 1, v{WA}",
             f"v_and_b32 v{WA+1}, 7, v{P2LN}",
             f"v_xor_b32 v{WA}, v{WA}, v{WA+1}",
             f"v_lshlrev_b32 v{WA}, 4, v{WA}",
             f"v_lshl_or_b32 v{WA}, v{TC}, 8, v{WA}",
             f"s_lshl_b32 s{sJJ}, s{sW}, 14",
             f"v_add_u32 v{WA}, s{sJJ}, v{WA}",
             f"v_xor_b32 v{WA+1}, 16, v{WA}",
             f"v_xor_b32 v{WA+2}, 64, v{WA}",
             f"v_xor_b32 v{WA+3}, 80, v{WA}",
             f"v_xor_b32 v{RA}, v{TA}, v{TB}",
             f"v_lshlrev_b32 v{RA}, 4, v{RA}",
             f"v_lshl_or_b32 v{RA}, v{TA}, 8, v{RA}",
             f"s_lshl_b32 s{sJJ}, s{sW}, 12",
             f"v_add_u32 v{RA}, s{sJJ}, v{RA}",
             f"v_xor_b32 v{RA+1}, 64, v{RA}"]
    prep2 = []
    DF, BF = 20, 24
    for h in range(2):
        prep2 += [f"v_lshlrev_b32 v{DF+2*h}, 16, v{DK+h}", f"v_and_b32 v{DF+2*h+1}, 0xffff0000, v{DK+h}",
                  f"v_lshlrev_b32 v{BF+2*h}, 16, v{BB+h}", f"v_and_b32 v{BF+2*h+1}, 0xffff0000, v{BB+h}"]
    for it in range(4):
        for c in range(4):
            b = BASE + 4 * it + c
            src = XV + 2 * it + (c >> 1)
            prep2 += [f"v_lshlrev_b32 v{b}, 16, v{src}" if c % 2 == 0 else f"v_and_b32 v{b}, 0xffff0000, v{src}",
                      f"v_sub_f32 v{TA}, v{b}, v{ST+2*it}",
                      f"v_mul_f32 v{TA}, v{TA}, v{ST+2*it+1}",
                      f"v_add_f32 v{b}, v{b}, v{BF+c}",
                      f"v_fmac_f32 v{b}, v{TA}, v{DF+c}"]
    for k in range(44):
        ms = []
        for dt in range(2):
            for tt in range(2):
                D = vr(ACC2 + 32 * dt + 16 * tt, 16)
                ms.append(f"v_mfma_f32_32x32x16_bf16 {D}, {wreg(k,dt)}, {HRING[(2*k+tt)%16]}, {D if k else '0'}")
        a.need([HRING[(2 * k) % 16], HRING[(2 * k + 1) % 16], wreg(k, 0), wreg(k, 1)])
        I(ms[0])
        if k + LOOK < 44:
            if interleave_b:
                a.run(b_loads_one(k + LOOK))
            a.run(a_loads(k + LOOK))
        fl = []
        if 18 <= k < 24:
            fl = prep[(len(prep) * (k - 18)) // 6:(len(prep) * (k - 17)) // 6]
        if 34 <= k < 42:
            fl = prep2[(len(prep2) * (k - 34)) // 8:(len(prep2) * (k - 33)) // 8]
        n3 = (len(fl) + 2) // 3
        for i in range(1, 4):
            I(ms[i])
            a.run(fl[(i - 1) * n3:i * n3])
    for dt in range(2):
        for tt in range(2):
            for gq in range(4):
                I(f"ds_write_b128 v{WA+gq}, {vr(ACC2+32*dt+16*tt+4*gq,4)} offset:{tt*8192+dt*128}")
    a.wait_lg_all()
    I("s_barrier")
    PR = 64
    for it in range(4):
        for q in range(4):
            I(f"ds_read_b128 {vr(PR+16*it+4*q,4)}, v{RA+(it&1)} offset:{q*16384+it*1024}")
    for it in range(4):
        b = BASE + 4 * it
        p = PR + 16 * it
        for h in (0, 2):
            I(f"v_pk_add_f32 {vr(p+h,2)}, {vr(p+h,2)}, {vr(p+4+h,2)}")
        for h in (0, 2):
            I(f"v_pk_add_f32 {vr(p+8+h,2)}, {vr(p+8+h,2)}, {vr(p+12+h,2)}")
        for h in (0, 2):
            I(f"v_pk_add_f32 {vr(b+h,2)}, {vr(b+h,2)}, {vr(p+h,2)}")
        for h in (0, 2):
            I(f"v_pk_add_f32 {vr(b+h,2)}, {vr(b+h,2)}, {vr(p+8+h,2)}")
        I(f"s_mov_b32 s{sJJ}, {rowoff(it)*2048}")
        I(f"buffer_store_dwordx4 {vr(b,4)}, v{OA}, {srd(SOUT)}, s{sJJ} offen")


def b_loads_one(k):
    it = []
    if k % 4 == 0 and k:
        it += [f"s_add_u32 s{sB0}, s{sB0}, 4096", f"s_add_u32 s{sB1}, s{sB1}, 4096"]
    for dt in range(2):
        it.append(f"buffer_load_dwordx4 {wreg(k,dt)}, v{P2L16}, {srd(SWS)}, s{(sB0,sB1)[dt]} offen offset:{(k&3)*1024} sc1")
    return it


def kernel2(a):
    I = a.I
    load_kernargs(a)
    I("v_lshrrev_b32 v1, 6, v0")
    I(f"v_and_b32 v{P2LN}, 63, v0")
    I(f"v_readfirstlane_b32 s{sW}, v1")
    I(f"v_lshlrev_b32 v{P2L16}, 4, v{P2LN}")
    p2_index(a)
    a.wait_lg_all()
    mk_srd(a, SWS, pWS, WS_END)
    mk_srd(a, SX, pX, 2048 * 1024)
    mk_srd(a, SOUT, pOUT, 2048 * 2048)
    phase2_body(a, interleave_b=True)


HEADER = open(__file__.rsplit("/", 1)[0] + "/header.txt").read() if "/" in __file__ else open("header.txt").read()


def kd(name):
    return f""".amdhsa_kernel {name}
  .amdhsa_next_free_vgpr 512
  .amdhsa_next_free_sgpr 102
  .amdhsa_accum_offset 256
  .amdhsa_group_segment_fixed_size 0
  .amdhsa_float_denorm_mode_32 3
  .amdhsa_kernarg_size 136
  .amdhsa_user_sgpr_count 2
  .amdhsa_user_sgpr_kernarg_segment_ptr 1
  .amdhsa_system_sgpr_workgroup_id_x 1
.end_amdhsa_kernel
"""


def entry(a, name, endlabel):
    a.raw(f".globl {name}\n.p2align 8\n.type {name},@function\n{name}:")
    a.reset_state()
    a.I("s_cmp_ge_u32 s2, 256")
    a.I(f"s_cbranch_scc1 {endlabel}")


def build_two():
    a = Asm()
    k1, k2 = NAME + "_kernel", "phase2_kernel"
    a.raw(HEADER.rstrip())
    a.raw(f"; @launch kernel={k1} grid=(256,1,1) block=(256,1,1) lds=163840")
    a.raw(f"; @launch kernel={k2} grid=(256,1,1) block=(256,1,1) lds=65536")
    a.raw('.amdgcn_target "amdgcn-amd-amdhsa--gfx950"\n.text')
    entry(a, k1, "L_end1")
    phase1(a, False)
    a.label("L_end1")
    a.I("s_endpgm")
    n1 = a.count
    entry(a, k2, "L_end2")
    kernel2(a)
    a.label("L_end2")
    a.I("s_endpgm")
    a.raw('.section .rodata,"a"\n.p2align 6')
    a.raw(kd(k1))
    a.raw(".p2align 6")
    a.raw(kd(k2))
    print(f"instructions: k1 {n1}, k2 {a.count-n1}, nops {a.nops}", file=sys.stderr)
    return a.text()


if __name__ == "__main__":
    out = sys.argv[1] if len(sys.argv) > 1 else f"cdna_kernels/{NAME}.s"
    open(out, "w").write(build_two())
```

```python
import sys, math, struct
from asmlib import Asm, interleave

NAME = "parallel_sum__ssm_conv_s5__mixer_channel_mlp__prompt"
KB = 1024
RT_STRIDE = 176 * KB
G_STRIDE = 44 * KB
HID = 0
BW = 64 * RT_STRIDE
EOFF = BW + 16 * RT_STRIDE
STATS = EOFF + 64 * KB
BFLAG = STATS + 64 * KB
HFLAG = BFLAG + 4 * KB
WS_END = HFLAG + 16 * KB
SPIN_MAX = 4000

H = [0, 32 * KB, 64 * KB, 96 * KB, 128 * KB, 0]
PARK = H[1]
ETAB = H[1] + 28 * KB
TRB = H[2]


def f32(x):
    return "0x%08x" % struct.unpack("<I", struct.pack("<f", x))[0]


pX, pLRE, pLIM, pBRE, pBIM, pCRE, pCIM, pLDT = [4 + 2 * i for i in range(8)]
pDSK, pBX, pW1, pB1, pW2, pB2, pOUT, pDBG = [20 + 2 * i for i in range(8)]
pWS = 36
SX, SBR, SBI, SW1, SW1B, SWS, SWS2, SR, SRS, SOUT, SDBG, SE = [40 + 4 * i for i in range(12)]
sW, sR, sJ, sJJ, sG, sROT, sT0, sT1, sT2, sRA, sRB, sHB, sONE, sCNT = range(88, 102)
sXB = 38
sUB = 39
sBB = 3


def srd(n):
    return f"s[{n}:{n+3}]"


def sp(n):
    return f"s[{n}:{n+1}]"


def vr(n, c=1):
    return f"v{n}" if c == 1 else f"v[{n}:{n+c-1}]"


def ar(n, c=1):
    return f"a{n}" if c == 1 else f"a[{n}:{n+c-1}]"


X = 0
ACA, ACB = 128, 160
VQ, VW, RDS, RDT = 192, 196, 200, 204
L16 = 206
MEAN, RSTD, IR2, K0, K1 = 207, 208, 209, 210, 211
PA, PC, PA16, PAS, PAH, PA256, PP = 212, 214, 216, 218, 220, 222, 224
BIA = 226
SB = 234
KEEP = 238
T = 242
STG = 224


DEBUG = False
STAMPV = T + 3
STAMPS = []
DBGOFF = 15 * 1024 * KB


def stamp(name):
    def f(a):
        if not DEBUG:
            return
        n = len(STAMPS)
        STAMPS.append(name)
        if name.endswith("start") and name[0] in "sk":
            a.I("s_memrealtime s[22:23]")
            a.wait_lg_all()
            a.I(f"v_writelane_b32 v{STAMPV}, s22, 62")
        a.I("s_memtime s[22:23]")
        a.wait_lg_all()
        a.I(f"v_writelane_b32 v{STAMPV}, s22, {n}")
    return f


def stamp_flush(a, which):
    if not DEBUG:
        return
    a.I("s_memrealtime s[22:23]")
    a.wait_lg_all()
    a.I(f"v_writelane_b32 v{STAMPV}, s22, 63")
    a.I(f"s_lshl_b32 s22, s2, 2\ns_add_u32 s22, s22, s{sW}\ns_lshl_b32 s22, s22, 8\ns_add_u32 s22, s22, {DBGOFF + which*256*KB}")
    a.I(f"s_mov_b32 s{SWS+2}, {16*1024*KB}")
    a.I(f"v_mbcnt_lo_u32_b32 v0, -1, 0\nv_mbcnt_hi_u32_b32 v0, -1, v0\nv_lshlrev_b32 v0, 2, v0")
    a.I(f"buffer_store_dword v{STAMPV}, v0, {srd(SWS)}, s22 offen")


def mk_srd(a, n, ptr, size):
    a.I(f"s_mov_b32 s{n}, s{ptr}")
    a.I(f"s_mov_b32 s{n+1}, s{ptr+1}")
    a.I(f"s_mov_b32 s{n+2}, {size}")
    a.I(f"s_mov_b32 s{n+3}, 0x20000")


def load_kernargs(a):
    a.I("s_load_dwordx16 s[4:19], s[0:1], 0")
    a.I("s_load_dwordx16 s[20:35], s[0:1], 64")
    a.I("s_load_dwordx2 s[36:37], s[0:1], 128")


def dma4(vbase, s, soff, m0expr, tag):
    it = list(m0expr)
    for q in range(4):
        it.append((f"buffer_load_dwordx4 v{vbase+q}, {srd(s)}, s{soff} offen offset:{q*1024} lds", tag))
    return it


def phase1(a, fused):
    I = a.I
    load_kernargs(a)
    LN, TA, TB, TC, TD = T, T + 1, T + 2, ACB + 31, T + 4
    I(f"v_lshrrev_b32 v{TA}, 6, v0")
    I(f"v_and_b32 v{LN}, 63, v0")
    I(f"v_readfirstlane_b32 s{sW}, v{TA}")
    I(f"s_lshr_b32 s{sT0}, s2, 3")
    I(f"s_and_b32 s{sT1}, s{sT0}, 7")
    I(f"s_lshr_b32 s{sJJ}, s{sT0}, 3")
    I(f"s_and_b32 s{sR}, s2, 1")
    I(f"s_lshl_b32 s{sR}, s{sR}, 3")
    I(f"s_add_u32 s{sR}, s{sR}, s{sT1}")
    I(f"s_bfe_u32 s{sG}, s2, 0x20001")
    I(f"s_lshl_b32 s{sJ}, s{sG}, 2")
    I(f"s_add_u32 s{sJ}, s{sJ}, s{sJJ}")
    I(f"s_lshl_b32 s{sROT}, s{sJJ}, 1")
    I(f"s_add_u32 s{sROT}, s{sROT}, s{sT1}")
    I(f"s_and_b32 s{sROT}, s{sROT}, 7")
    I(f"s_lshl_b32 s{sXB}, s{sR}, 2")
    I(f"s_add_u32 s{sXB}, s{sXB}, s{sW}")
    I(f"s_mul_i32 s{sHB}, s{sXB}, {RT_STRIDE}")
    I(f"s_mul_i32 s{sT0}, s{sG}, {G_STRIDE}")
    I(f"s_add_u32 s{sHB}, s{sHB}, s{sT0}")
    I(f"s_lshl_b32 s{sT0}, s{sJJ}, 12")
    I(f"s_add_u32 s{sHB}, s{sHB}, s{sT0}")
    I(f"s_lshl_b32 s{sXB}, s{sXB}, 15")
    I(f"s_mul_i32 s{sUB}, s{sG}, 7")
    I(f"s_lshl_b32 s{sT0}, s{sJJ}, 1")
    I(f"s_add_u32 s{sUB}, s{sUB}, s{sT0}")
    I(f"s_lshl_b32 s{sUB}, s{sUB}, 7")
    I(f"s_mov_b32 s{sONE}, 0x3f803f80")
    I(f"v_lshlrev_b32 v{L16}, 4, v{LN}")
    I(f"v_lshrrev_b32 v{TA}, 3, v{LN}")
    I(f"v_and_b32 v{TB}, 7, v{LN}")
    I(f"v_lshrrev_b32 v{TC}, 1, v{TA}")
    I(f"v_xor_b32 v{TC}, v{TB}, v{TC}")
    I(f"v_lshlrev_b32 v{TC}, 4, v{TC}")
    I(f"v_and_b32 v{TD}, 3, v{TA}")
    I(f"v_lshl_or_b32 v{TC}, v{TD}, 10, v{TC}")
    I(f"v_lshrrev_b32 v{TD}, 2, v{TA}")
    I(f"v_lshl_or_b32 v{VQ}, v{TD}, 14, v{TC}")
    I(f"v_xor_b32 v{VQ+1}, 64, v{VQ}")
    I(f"v_add_u32 v{VQ+2}, {2*3072}, v{VQ}")
    I(f"v_add_u32 v{VQ+3}, {3*3072}, v{VQ+1}")
    I(f"v_add_u32 v{VQ+1}, 3072, v{VQ+1}")
    I(f"v_and_b32 v{TC}, 2, v{TA}")
    I(f"v_lshlrev_b32 v{TC}, 1, v{TC}")
    I(f"v_xor_b32 v{TC}, v{TB}, v{TC}")
    I(f"v_lshlrev_b32 v{TC}, 4, v{TC}")
    VR = T + 5
    I(f"v_lshl_or_b32 v{VR}, v{TA}, 10, v{TC}")
    I(f"v_mul_u32_u24 v{TD}, 3584, v{TA}")
    I(f"v_add_u32 v{VW}, v{TD}, v{TC}")
    for q in range(1, 4):
        I(f"v_add_u32 v{VW+q}, {q*(8*3584-1024)}, v{VW}")
    a.wait_lg_all()
    I(stamp("start"))
    mk_srd(a, SX, pX, 2048 * 1024)
    mk_srd(a, SWS, pWS, WS_END)
    mk_srd(a, SRS, pWS, WS_END)
    RR = ACA
    xlds = lambda c: 32 * KB * (1 + (c >> 1)) + 4 * KB * (c & 1)
    sWL = sBB
    I(f"s_lshl_b32 s{sWL}, s{sW}, 13")
    HH, RHO, SG, PI = T + 6, T + 7, T + 8, T + 9
    I(f"v_lshrrev_b32 v{HH}, 5, v{LN}")
    I(f"v_and_b32 v{RHO}, 31, v{LN}")
    I(f"v_and_b32 v{TA}, 19, v{RHO}")
    I(f"v_bfe_u32 v{TB}, v{RHO}, 2, 1")
    I(f"v_lshl_or_b32 v{TA}, v{TB}, 3, v{TA}")
    I(f"v_bfe_u32 v{TC}, v{RHO}, 3, 1")
    I(f"v_lshl_or_b32 v{SG}, v{TC}, 2, v{TA}")
    I(f"s_cmp_ge_u32 s{sW}, 2")
    I("s_cbranch_scc1 L_role23")
    I(f"s_lshl_b32 s{sT0}, s2, 1")
    I(f"s_add_u32 s{sT0}, s{sT0}, s{sW}")
    mk_srd(a, SR, pW2, 1792 * 1024)
    I(f"s_cmp_lt_u32 s{sT0}, 448")
    I(f"s_cselect_b32 s{SR+2}, s{SR+2}, 0")
    I(f"s_cselect_b32 s{SRS+2}, s{SRS+2}, 0")
    I(f"s_cselect_b32 s{sT0}, s{sT0}, 0")
    I(f"s_and_b32 s{sT1}, s{sT0}, 7")
    I(f"s_lshr_b32 s{sT0}, s{sT0}, 3")
    I(f"s_lshl_b32 s{sT2}, s{sT0}, 15")
    I(f"s_lshl_b32 s{sRA}, s{sT1}, 7")
    I(f"s_add_u32 s{sT2}, s{sT2}, s{sRA}")
    I(f"s_add_u32 s{sRA}, s{sWL}, {xlds(7)}")
    for q in range(4):
        I(f"s_add_u32 m0, s{sRA}, {q*1024}")
        if q:
            I(f"s_add_u32 s{sT2}, s{sT2}, 8192")
        I(f"buffer_load_dwordx4 v{VR}, {srd(SR)}, s{sT2} offen lds", tag="R", track=False)
    I(f"s_mul_i32 s{sRA}, s{sT1}, {2*RT_STRIDE}")
    I(f"s_and_b32 s{sT2}, s{sT0}, 1")
    I(f"s_lshl_b32 s{sT2}, s{sT2}, 11")
    I(f"s_add_u32 s{sRA}, s{sRA}, s{sT2}")
    if fused:
        I(f"s_lshl_b32 s{sCNT}, s{sT1}, 9")
        I(f"s_lshl_b32 s{sT2}, s{sT0}, 2")
        I(f"s_add_u32 s{sCNT}, s{sCNT}, s{sT2}")
    I(f"s_lshr_b32 s{sT0}, s{sT0}, 1")
    I(f"s_mul_i32 s{sT1}, s{sT0}, 37")
    I(f"s_lshr_b32 s{sT1}, s{sT1}, 8")
    if fused:
        I(f"s_mul_i32 s{sT2}, s{sT1}, {128-56}")
        I(f"s_add_u32 s{sCNT}, s{sCNT}, s{sT2}")
    I(f"s_mul_i32 s{sT2}, s{sT1}, {G_STRIDE}")
    I(f"s_add_u32 s{sRA}, s{sRA}, s{sT2}")
    I(f"s_mul_i32 s{sT1}, s{sT1}, 7")
    I(f"s_sub_u32 s{sT0}, s{sT0}, s{sT1}")
    I(f"s_lshr_b32 s{sT1}, s{sT0}, 1")
    I(f"s_and_b32 s{sT0}, s{sT0}, 1")
    I(f"s_lshl_b32 s{sT0}, s{sT0}, 2")
    I(f"s_add_u32 s{sT0}, s{sT0}, s{sT1}")
    I(f"s_lshl_b32 s{sT0}, s{sT0}, 12")
    I(f"s_add_u32 s{sRA}, s{sRA}, s{sT0}")
    I(f"s_add_u32 s{sRA}, s{sRA}, {BW}")
    I(f"s_add_u32 s{sRB}, s{sRA}, {RT_STRIDE}")
    I("s_branch L_rolejoin")
    a.label("L_role23")
    I(f"s_cmp_eq_u32 s{sW}, 3")
    I("s_cbranch_scc1 L_role3")
    I(f"s_and_b32 s{sT0}, s2, 1")
    I(f"s_cmp_eq_u32 s{sT0}, 0")
    I(f"s_cselect_b32 s{SR}, s{pCRE}, s{pCIM}")
    I(f"s_cselect_b32 s{SR+1}, s{pCRE+1}, s{pCIM+1}")
    I(f"s_mov_b32 s{SR+2}, {512*1024}")
    I(f"s_mov_b32 s{SR+3}, 0x20000")
    I(f"s_bfe_u32 s{sT1}, s2, 0x30001")
    I(f"s_lshr_b32 s{sT2}, s2, 4")
    I(f"s_lshl_b32 s{sRA}, s{sT2}, 15")
    I(f"s_lshl_b32 s{sRB}, s{sT1}, 7")
    I(f"s_add_u32 s{sRA}, s{sRA}, s{sRB}")
    I(f"v_lshlrev_b32 v{TA}, 4, v{HH}")
    I(f"v_lshl_or_b32 v{TA}, v{SG}, 10, v{TA}")
    for k in range(4):
        I(f"buffer_load_dwordx4 {vr(RR+4*k,4)}, v{TA}, {srd(SR)}, s{sRA} offen offset:{32*k}", tag="R", track=False)
    if fused:
        I(f"s_lshr_b32 s{sCNT}, s{sT2}, 1")
        I(f"s_lshl_b32 s{sCNT}, s{sCNT}, 9")
        I(f"s_lshr_b32 s{sRA}, s{sT1}, 1")
        I(f"s_lshl_b32 s{sRA}, s{sRA}, 7")
        I(f"s_add_u32 s{sCNT}, s{sCNT}, s{sRA}")
        I(f"s_and_b32 s{sRA}, s{sT2}, 1")
        I(f"s_lshl_b32 s{sRA}, s{sRA}, 4")
        I(f"s_add_u32 s{sCNT}, s{sCNT}, s{sRA}")
        I(f"s_and_b32 s{sRA}, s2, 3")
        I(f"s_lshl_b32 s{sRA}, s{sRA}, 2")
        I(f"s_add_u32 s{sCNT}, s{sCNT}, s{sRA}")
        I(f"s_add_u32 s{sCNT}, s{sCNT}, 56")
    I(f"s_mul_i32 s{sRA}, s{sT2}, {RT_STRIDE}")
    I(f"s_lshr_b32 s{sT2}, s{sT1}, 1")
    I(f"s_mul_i32 s{sT2}, s{sT2}, {G_STRIDE}")
    I(f"s_add_u32 s{sRA}, s{sRA}, s{sT2}")
    I(f"s_and_b32 s{sT1}, s{sT1}, 1")
    I(f"s_lshl_b32 s{sT1}, s{sT1}, 13")
    I(f"s_add_u32 s{sRA}, s{sRA}, s{sT1}")
    I(f"s_lshl_b32 s{sT0}, s{sT0}, 11")
    I(f"s_add_u32 s{sRA}, s{sRA}, s{sT0}")
    I(f"s_add_u32 s{sRA}, s{sRA}, {BW + 28*KB}")
    I(f"s_add_u32 s{sRB}, s{sRA}, 4096")
    I("s_branch L_rolejoin")
    a.label("L_role3")
    I(f"s_mov_b32 s{SRS+2}, 0")
    I(f"s_mov_b32 s{sRA}, 0")
    I(f"s_mov_b32 s{sRB}, 0")
    I(f"s_mov_b32 s{sCNT}, 0")
    I("s_cmp_ge_u32 s2, 16")
    I("s_cbranch_scc1 L_rolejoin")
    for k in range(4):
        I(f"v_mov_b32 v{RR+k}, -1")
        I(f"v_mov_b32 v{RR+4+k}, 0")
    I(f"s_lshl_b32 s{sT0}, s2, 12")
    I(f"s_add_u32 s{sT0}, s{sT0}, {EOFF}")
    for k in range(4):
        I(f"buffer_store_dwordx4 {vr(RR,4)}, v{L16}, {srd(SWS)}, s{sT0} offen offset:{1024*k} sc1", tag="R", track=False)
    if fused:
        I(f"s_lshl_b32 s{sT0}, s2, 10")
        I(f"s_add_u32 s{sT0}, s{sT0}, {HFLAG}")
        I(f"buffer_store_dwordx4 {vr(RR+4,4)}, v{L16}, {srd(SWS)}, s{sT0} offen sc1", tag="R", track=False)
        I(f"s_lshl_b32 s{sT0}, s2, 8")
        I(f"s_add_u32 s{sT0}, s{sT0}, {BFLAG}")
        I(f"v_lshlrev_b32 v{TA}, 2, v{LN}")
        I(f"buffer_store_dword v{RR+4}, v{TA}, {srd(SWS)}, s{sT0} offen sc1", tag="R", track=False)
    a.label("L_rolejoin")
    a.nop(2)

    def xgroup(c):
        return dma4(VQ, SX, sT0, [f"s_xor_b32 s{sT0}, s{sROT}, {c}", f"s_lshl_b32 s{sT0}, s{sT0}, 7",
                                  f"s_add_u32 s{sT0}, s{sT0}, s{sXB}", f"s_add_u32 m0, s{sWL}, {xlds(c)}"], f"x{c}")

    def wgroup(n, half):
        tag = f"H{n}"
        pre = [f"s_add_u32 m0, s{sWL}, {H[n] + 4*KB*half}"]
        if n < 2:
            pre += [f"s_or_b32 s{sT0}, s{sW}, {4*(n&1)}", f"s_xor_b32 s{sT0}, s{sT0}, s{sROT}",
                    f"s_lshl_b32 s{sT0}, s{sT0}, 7", f"s_lshl_b32 s{sT1}, s{sJ}, 15", f"s_add_u32 s{sT0}, s{sT0}, s{sT1}"]
            return dma4(VQ, SBI if half else SBR, sT0, pre, tag)
        pre += [f"s_or_b32 s{sT0}, s{sW}, {4*(n&1)}", f"s_xor_b32 s{sT0}, s{sT0}, s{sROT}",
                f"s_mul_i32 s{sT0}, s{sT0}, {64*3584}", f"s_add_u32 s{sT0}, s{sT0}, s{sUB}"]
        off = 32 * 3584 * half + (128 if n >= 4 else 0)
        if off:
            pre += [f"s_add_u32 s{sT0}, s{sT0}, {off}"]
        return dma4(VW, SW1B if n >= 4 else SW1, sT0, pre, tag)

    for c in range(3):
        a.run(xgroup(c))
    mk_srd(a, SBR, pBRE, 512 * 1024)
    mk_srd(a, SBI, pBIM, 512 * 1024)
    mk_srd(a, SW1, pW1, 512 * 3584)
    mk_srd(a, SW1B, pW1, 512 * 3584)
    mk_srd(a, SWS2, pWS, WS_END)
    mk_srd(a, SDBG, pDBG, 256)
    I(f"s_cmp_lt_u32 s{sJJ}, 3")
    I(f"s_cselect_b32 s{SW1B+2}, s{SW1B+2}, 0")
    I(f"s_cselect_b32 s{SWS2+2}, s{SWS2+2}, 0")
    I(f"s_lshl_b32 s{sT0}, s{sJ}, 12")
    I(f"s_add_u32 s{sT0}, s{sT0}, {EOFF}")
    I(f"s_add_u32 s{SE}, s{pWS}, s{sT0}")
    I(f"s_addc_u32 s{SE+1}, s{pWS+1}, 0")
    I(f"s_mov_b32 s{SE+2}, 4096")
    I(f"s_mov_b32 s{SE+3}, 0x20000")
    I(f"v_and_b32 v{TA}, 3, v{RHO}")
    I(f"v_lshrrev_b32 v{TC}, 3, v{RHO}")
    I(f"v_lshl_or_b32 v{TA}, v{TC}, 2, v{TA}")
    I(f"v_bfe_u32 v{TB}, v{RHO}, 2, 1")
    I(f"v_lshl_or_b32 v{PI}, v{TB}, 4, v{TA}")
    I(f"s_lshl_b32 s{sT0}, s{sJ}, 6")
    I(f"v_lshl_add_u32 v{TA}, v{PI}, 1, s{sT0}")
    I(f"global_load_ushort v{PA}, v{TA}, {sp(pLRE)}")
    I(f"global_load_ushort v{PA+1}, v{TA}, {sp(pLIM)}")
    I(f"global_load_ushort v{PC}, v{TA}, {sp(pLDT)}")
    I(f"v_lshl_add_u32 v{TA}, v{SG}, 1, s{sUB}")
    I(f"global_load_ushort v{BIA}, v{TA}, {sp(pB1)}")
    I(f"global_load_ushort v{BIA+2}, v{TA}, {sp(pB1)} offset:64")
    I(f"s_add_u32 s{sT0}, s{sUB}, 128")
    I(f"s_min_u32 s{sT0}, s{sT0}, {27*128}")
    I(f"v_lshl_add_u32 v{TA}, v{SG}, 1, s{sT0}")
    I(f"global_load_ushort v{BIA+4}, v{TA}, {sp(pB1)}")
    I(f"global_load_ushort v{BIA+6}, v{TA}, {sp(pB1)} offset:64")
    I(f"v_bfe_u32 v{TA}, v{RHO}, 1, 3")
    I(f"v_xor_b32 v{TA}, v{TA}, v{HH}")
    I(f"v_lshlrev_b32 v{TA}, 4, v{TA}")
    I(f"v_lshl_or_b32 v{TA}, v{RHO}, 7, v{TA}")
    I(f"v_add_u32 v{RDS}, s{sWL}, v{TA}")
    I(f"v_add_u32 v{RDS}, {32*KB}, v{RDS}")
    for k in range(1, 4):
        I(f"v_xor_b32 v{RDS+k}, {32*k}, v{RDS}")
    I(f"v_bfe_u32 v{TA}, v{LN}, 2, 2")
    I(f"v_lshl_or_b32 v{TB}, v{HH}, 3, v{TA}")
    I(f"v_lshlrev_b32 v{TB}, 7, v{TB}")
    I(f"v_lshrrev_b32 v{TA}, 1, v{TA}")
    I(f"v_lshl_or_b32 v{TB}, v{TA}, 6, v{TB}")
    I(f"v_bfe_u32 v{TA}, v{LN}, 4, 1")
    I(f"v_lshl_or_b32 v{TB}, v{TA}, 5, v{TB}")
    I(f"v_and_b32 v{TA}, 1, v{LN}")
    I(f"v_lshl_or_b32 v{TB}, v{TA}, 4, v{TB}")
    I(f"v_bfe_u32 v{TA}, v{LN}, 1, 1")
    I(f"v_lshl_or_b32 v{RDT}, v{TA}, 3, v{TB}")
    I(f"v_xor_b32 v{RDT+1}, 64, v{RDT}")
    SEL = ACB + 16
    I(f"v_bfe_u32 v{TA}, v{SG}, 3, 1")
    I(f"v_cmp_eq_u32 vcc, v{TA}, v{HH}")
    I(f"v_and_b32 v{TA}, 1, v{SG}")
    I(f"v_lshlrev_b32 v{TA}, 4, v{TA}")
    I(f"v_mov_b32 v{TB}, 0x3f80")
    I(f"v_lshlrev_b32 v{TA}, v{TA}, v{TB}")
    I(f"v_cndmask_b32 v{TA}, 0, v{TA}, vcc")
    I(f"v_bfe_u32 v{TB}, v{SG}, 1, 2")
    I(f"v_lshrrev_b32 v{TC}, 4, v{SG}")
    I(f"v_lshl_or_b32 v{TB}, v{TC}, 2, v{TB}")
    for k in range(8):
        I(f"v_cmp_eq_u32 vcc, {k}, v{TB}")
        I(f"v_cndmask_b32 v{SEL+k}, 0, v{TA}, vcc")
    for k in (1, 3, 5, 7, 9, 10, 11):
        I(f"v_mov_b32 v{BIA+k}, 0")
    I(f"v_mov_b32 v{MEAN}, 0")
    I(f"v_mov_b32 v{RSTD}, 0")
    I(stamp("setup done"))
    a.wait_vm("R")
    I(stamp("R landed"))
    I(f"s_cmp_ge_u32 s{sW}, 2")
    I("s_cbranch_scc1 L_rp23")
    I(f"s_add_u32 s{sT0}, s{sWL}, {xlds(7)}")
    I(f"v_add_u32 v{TA}, s{sT0}, v{RDT}")
    I(f"v_add_u32 v{TB}, s{sT0}, v{RDT+1}")
    for dt in range(2):
        for ph in range(2):
            for e in range(2):
                I(f"ds_read_b64_tr_b16 {vr(RR+8*dt+4*ph+2*e,2)}, v{TA+dt} offset:{ph*2048+e*512}", track=False)
    a.wait_lg_all()
    I("s_branch L_rpjoin")
    a.label("L_rp23")
    I(f"s_cmp_eq_u32 s{sW}, 2")
    I("s_cbranch_scc1 L_rpjoin")
    I("s_cmp_ge_u32 s2, 16")
    I("s_cbranch_scc1 L_rpjoin")
    I(f"s_lshl_b32 s{sT0}, s2, 2")
    I(f"v_mov_b32 v{TA}, 1")
    I(f"v_mov_b32 v{TB}, 0")
    I(f"buffer_store_dword v{TA}, v{TB}, {srd(SDBG)}, s{sT0} offen sc1", track=False)
    a.label("L_rpjoin")
    a.nop(1)

    def stats(c):
        it = [lambda a: a.need([vr(X + 16 * c, 16)])]
        for k in range(16):
            it.append(f"v_dot2c_f32_bf16 v{MEAN}, s{sONE}, v{X+16*c+k}")
            it.append(f"v_dot2c_f32_bf16 v{RSTD}, v{X+16*c+k}, v{X+16*c+k}")
        return it

    for c in range(8):
        if c + 3 < 8:
            a.run(xgroup(c + 3))
            if c == 4:
                for k in range(4):
                    I(f"buffer_store_dwordx4 {vr(RR+4*k,4)}, v{L16}, {srd(SRS)}, s{sRB if k>=2 else sRA} offen offset:{1024*(k&1)} sc1", tag="RS")
        elif c < 7:
            a.run(wgroup(0, c - 5))
        else:
            a.run(wgroup(1, 0))
        if c == 4:
            for k in range(4):
                I(f"v_add_u32 v{RDS+k}, {64*KB}, v{RDS+k}")
        a.wait_vm(f"x{c}")
        if c in (0, 4, 7):
            I(stamp(f"x{c} landed"))
        for k in range(4):
            I(f"ds_read_b128 {vr(X+16*c+4*k,4)}, v{RDS+k} offset:{(xlds(c)-32*KB) % (64*KB)}")
        if c:
            a.run(stats(c - 1))
    a.run(wgroup(1, 1))
    a.run(stats(7))
    NEGM = ACB
    I(f"v_mov_b32 v{TA}, v{MEAN}")
    I(f"v_mov_b32 v{TB}, v{RSTD}")
    I(f"v_permlane32_swap_b32 v{TA}, v{MEAN}")
    I(f"v_permlane32_swap_b32 v{TB}, v{RSTD}")
    I(f"v_add_f32 v{MEAN}, v{TA}, v{MEAN}")
    I(f"v_add_f32 v{RSTD}, v{TB}, v{RSTD}")
    I(f"v_mul_f32 v{NEGM}, {f32(-1/512)}, v{MEAN}")
    for k in range(1, 16):
        I(f"v_mov_b32 v{NEGM+k}, v{NEGM}")
    I(f"s_add_u32 s{sT0}, s{sWL}, {96*KB}")
    for k in range(4):
        I(f"v_subrev_u32 v{RDS+k}, s{sT0}, v{RDS+k}")

    I(stamp("stats done"))
    I(GO_LOAD)
    groups = []
    for k2 in range(17):
        g = []
        if k2 < 16:
            D = ACA + 16 * (k2 & 1)
            g.append(f"v_mfma_f32_32x32x16_bf16 {vr(D,16)}, {vr(SEL,4)}, {vr(X+8*k2,4)}, {vr(NEGM,16)}")
            g.append(f"v_mfma_f32_32x32x16_bf16 {vr(D,16)}, {vr(SEL+4,4)}, {vr(X+8*k2+4,4)}, {vr(D,16)}")
        groups.append(g)
        g = []
        if k2:
            D = ACA + 16 * ((k2 - 1) & 1)
            for n in range(8):
                g.append(f"v_cvt_pk_bf16_f32 v{X+8*(k2-1)+n}, v{D+2*n}, v{D+2*n+1}")
        groups.append(g)
    fill = wgroup(2, 0) + wgroup(2, 1) + wgroup(3, 0)
    seq = []
    per = [fill[(len(fill) * i) // 15:(len(fill) * (i + 1)) // 15] for i in range(15)]
    for i in range(17):
        seq += groups[2 * i]
        if 1 <= i <= 15:
            seq += per[i - 1]
        if i == 15:
            seq.append(stamp("center15"))
            seq.append(wait_go)
            seq.append(stamp("go seen"))
            seq.append(lambda a: a.wait_vm("H0"))
            seq.append("s_barrier")
            seq += frag_reads(0)
        seq += groups[2 * i + 1]
    a.run(seq)

    fl0 = fill_u0(fused)
    fl1 = fill_u1()
    fl2, tail_items = fill_u2(fused)
    mem0 = wgroup(3, 1) + wgroup(4, 0) + wgroup(4, 1)
    mem1 = wgroup(5, 0) + wgroup(5, 1)
    mem2 = []
    if fused:
        raise NotImplementedError
    for u, (fl, mem, last) in enumerate(((fl0, mem0, 64), (fl1, mem1, 60), (fl2, mem2, 64))):
        a.comment(f"---- GEMM unit {u} ----")
        I(stamp(f"U{u} start"))
        main = []
        for d in range(16):
            n = 16 * u + d
            pre = [lambda a, n=n: a.need(stage_regs(n))]
            if n + 1 < 48 and (n + 1) % 8 == 0:
                hn = (n + 1) // 8
                pre += [lambda a: a.wait_lg_all() if a.lgq else None, lambda a, hn=hn: a.wait_vm(f"H{hn}"), "s_barrier"]
            if n + 1 == 16:
                pre += [f"v_add_u32 v{RDT}, {H[2]}, v{RDT}", f"v_add_u32 v{RDT+1}, {H[2]}, v{RDT+1}"]
            if n + 1 == 32:
                pre += [f"v_add_u32 v{RDT}, {H[4]-H[2]}, v{RDT}", f"v_add_u32 v{RDT+1}, {H[4]-H[2]}, v{RDT+1}"]
            if n + 1 == 40:
                pre += [f"v_subrev_u32 v{RDT}, {H[4]}, v{RDT}", f"v_subrev_u32 v{RDT+1}, {H[4]}, v{RDT+1}"]
            ms = mfmas(n)
            rd = frag_reads(n + 1) if n + 1 < 48 else []
            h = min(len(rd), 5)
            main.append(pre + ms[0] + rd[:h])
            main.append(ms[1] + rd[h:])
            main.append(ms[2])
            main.append(ms[3])
        wts = []
        for i in range(64):
            nrd = sum(1 for it in main[i] if isinstance(it, str) and it.startswith("ds_read"))
            wts.append(max(6 - nrd - (1 if i % 4 == 0 else 0), 0) if i < last else 0)
        wts[0] = 0
        allf = merge(fl, mem)
        tot = sum(wts)
        acc = 0
        done = 0
        for i in range(64):
            a.run(main[i])
            acc += wts[i]
            upto = (len(allf) * acc) // tot
            a.run(allf[done:upto])
            done = upto
    I(stamp("tail start"))
    a.run(tail_items)
    I(stamp("tail issued"))
    if DEBUG:
        a.wait_vm_all()
    I(stamp("stores done"))


def merge(fl, mem):
    if not mem:
        return list(fl)
    res = []
    n, m = len(fl), len(mem)
    j = 0
    for i in range(n):
        while j < m and j * n <= i * m:
            res.append(mem[j])
            j += 1
        res.append(fl[i])
    res += mem[j:]
    return res


def stage_regs(n):
    return [ar(STG + 16 * (n & 1), 16)]


def frag_reads(n):
    u, d = divmod(n, 16)
    it = []
    for s in range(2):
        k = 2 * d + s
        base = STG + 16 * (n & 1) + 8 * s
        if u == 0:
            for part in range(2):
                it.append(f"ds_read_b128 {ar(base+4*part,4)}, v{RDS+(k&3)} offset:{(k>>2)*8192+part*4096}")
        else:
            kk = k if u == 1 else (k & 15)
            for t in range(2):
                for e in range(2):
                    it.append(f"ds_read_b64_tr_b16 {ar(base+4*t+2*e,2)}, v{RDT+t} offset:{kk*2048+e*512}")
    return it


def mfmas(n):
    u, d = divmod(n, 16)
    res = []
    acc = (ACA, ACB, ACA)[u]
    for s in range(2):
        k = 2 * d + s
        base = STG + 16 * (n & 1) + 8 * s
        for t in range(2):
            D = vr(acc + 16 * t, 16)
            g = []
            if u == 0:
                c = D if k else "0"
                g.append(f"v_mfma_f32_32x32x16_bf16 {D}, {vr(X+4*k,4)}, {ar(base+4*t,4)}, {c}")
            else:
                if k == 0:
                    g.append(f"v_mfma_f32_32x32x16_bf16 {D}, {vr(BIA+2*(2*(u-1)+t),4)}, {vr(SB,4)}, 0")
                g.append(f"v_mfma_f32_32x32x16_bf16 {D}, {ar(base+4*t,4)}, {vr(X+4*k,4)}, {D}")
            res.append(g)
    return res


LN, HH, RHO = T, T + 6, T + 7


def cpow(dst, nreg_or_const, zr, zv, t0, t1):
    it = []
    n = nreg_or_const
    if n == 1:
        it += [f"v_exp_f32 v{t0}, v{zr}", f"v_fract_f32 v{t1}, v{zv}"]
    else:
        src = n if isinstance(n, str) else f32(float(n))
        it += [f"v_mul_f32 v{t0}, {src}, v{zr}", f"v_mul_f32 v{t1}, {src}, v{zv}",
               f"v_exp_f32 v{t0}, v{t0}", f"v_fract_f32 v{t1}, v{t1}"]
    it += [f"v_cos_f32 v{dst}, v{t1}", f"v_sin_f32 v{dst+1}, v{t1}",
           f"v_mul_f32 v{dst}, v{dst}, v{t0}", f"v_mul_f32 v{dst+1}, v{dst+1}, v{t0}"]
    return it


def fill_u0(fused):
    it = []
    A0, A1, A2, A3, A4, A5, A6, A7 = [ACB + 24 + i for i in range(8)]
    EPS = f32(1e-5)
    k0 = -2.0 * math.log2(math.e) * math.sqrt(2.0 / math.pi)
    k1 = k0 * 0.044715
    it += [f"v_mul_f32 v{MEAN}, {f32(1/512)}, v{MEAN}",
           f"v_mul_f32 v{A0}, {f32(1/512)}, v{RSTD}",
           f"v_fma_f32 v{A0}, -v{MEAN}, v{MEAN}, v{A0}",
           f"v_max_f32 v{A0}, 0, v{A0}",
           f"v_add_f32 v{A1}, {EPS}, v{A0}",
           f"v_rsq_f32 v{RSTD}, v{A1}",
           f"v_fmac_f32 v{A0}, {EPS}, v{A1}",
           f"v_rsq_f32 v{A2}, v{A0}",
           f"v_sqrt_f32 v{IR2}, v{A0}",
           f"v_mul_f32 v{K0}, {f32(k0)}, v{A2}",
           f"v_mul_f32 v{A3}, v{A2}, v{A2}",
           f"v_mul_f32 v{A3}, {f32(0.044715)}, v{A3}",
           f"v_mul_f32 v{K1}, v{K0}, v{A3}",
           f"v_mul_f32 v{A1}, 0.5, v{IR2}",
           f"v_cvt_pk_bf16_f32 v{A2}, v{A1}, v{A1}",
           f"v_and_b32 v{A3}, 0xffff0000, v{A2}",
           f"v_sub_f32 v{A3}, v{A1}, v{A3}",
           f"v_cvt_pk_bf16_f32 v{SB}, v{A1}, v{A3}"]
    it += [f"s_cmp_eq_u32 s{sJJ}, 0\ns_cselect_b32 s{SRS+2}, {WS_END}, 0",
           f"s_lshr_b32 s{sRA}, s{sXB}, 7",
           f"s_lshl_b32 s{sRB}, s{sG}, 14",
           f"s_add_u32 s{sRA}, s{sRA}, s{sRB}",
           f"s_add_u32 s{sRA}, s{sRA}, {STATS}",
           f"v_mov_b32 v{A4}, v{MEAN}",
           f"v_mov_b32 v{A5}, v{RSTD}",
           f"v_lshlrev_b32 v{A6}, 3, v{RHO}",
           f"buffer_store_dwordx2 {vr(A4,2)}, v{A6}, {srd(SRS)}, s{sRA} offen sc1"]
    for k in range(4):
        it.append(f"v_lshl_or_b32 v{BIA+2*k}, v{BIA+2*k}, 16, v{BIA+2*k}")
    LR, LI, ZR, ZV = ACB, ACB + 1, ACB + 2, ACB + 3
    it += [f"v_lshlrev_b32 v{LR}, 16, v{PA}",
           f"v_lshlrev_b32 v{LI}, 16, v{PA+1}",
           f"v_lshlrev_b32 v{A0}, 16, v{PC}",
           f"v_mul_f32 v{A0}, {f32(math.log2(math.e))}, v{A0}",
           f"v_exp_f32 v{A0}, v{A0}",
           f"v_cvt_f32_u32 v{A2}, v{HH}",
           f"v_cvt_pk_bf16_f32 v{A0}, v{A0}, v{A0}",
           f"v_and_b32 v{A0}, 0xffff0000, v{A0}",
           f"v_mul_f32 v{ZR}, v{A0}, v{LR}",
           f"v_mul_f32 v{ZV}, v{A0}, v{LI}",
           f"v_mul_f32 v{ZR}, {f32(math.log2(math.e))}, v{ZR}",
           f"v_mul_f32 v{ZV}, 0.15915494, v{ZV}"]
    it += cpow(PA, 1, ZR, ZV, A0, A1)
    it += cpow(PA16, 16, ZR, ZV, A0, A1)
    it += cpow(PA256, 256, ZR, ZV, A0, A1)
    it += [f"v_mul_f32 v{A3}, {f32(128.0)}, v{A2}"]
    it += cpow(PAH, f"v{A3}", ZR, ZV, A0, A1)
    it += [f"s_lshl_b32 s{sRA}, s{sW}, 1",
           f"v_add_u32 v{A3}, s{sRA}, v{HH}",
           f"v_cvt_f32_u32 v{A3}, v{A3}",
           f"v_mul_f32 v{A3}, {f32(16.0)}, v{A3}"]
    it += cpow(PAS, f"v{A3}", ZR, ZV, A0, A1)
    it += [f"v_mul_f32 v{A0}, v{LR}, v{LR}",
           f"v_fmac_f32 v{A0}, v{LI}, v{LI}",
           f"v_rcp_f32 v{A0}, v{A0}",
           f"v_add_f32 v{A1}, -1.0, v{PA}",
           f"v_mul_f32 v{A2}, v{A1}, v{LR}",
           f"v_fmac_f32 v{A2}, v{PA+1}, v{LI}",
           f"v_mul_f32 v{A3}, v{PA+1}, v{LR}",
           f"v_fma_f32 v{A3}, -v{A1}, v{LI}, v{A3}",
           f"v_add_f32 v{A0}, v{A0}, v{A0}",
           f"v_mul_f32 v{PC}, v{A2}, v{A0}",
           f"v_mul_f32 v{PC+1}, v{A3}, v{A0}"]
    APK, ARS, AET, ARW = VQ, VQ + 1, VQ + 2, VQ + 3
    it += [f"s_mul_i32 s{sRA}, s{sW}, {7*KB}",
           f"s_add_u32 s{sRA}, s{sRA}, {PARK}",
           f"v_add_u32 v{APK}, s{sRA}, v{L16}",
           f"s_add_u32 s{sRA}, s{sRA}, {6*KB}",
           f"v_lshl_add_u32 v{ARS}, v{HH}, 6, s{sRA}",
           f"v_lshl_add_u32 v{ARW}, v{T+9}, 2, s{sRA}",
           f"s_lshl_b32 s{sRA}, s{sW}, 9",
           f"s_add_u32 s{sRA}, s{sRA}, {ETAB}",
           f"v_lshl_add_u32 v{AET}, v{LN}, 3, s{sRA}"]
    return it


def fill_u1():
    APK, ARS, AET, ARW = VQ, VQ + 1, VQ + 2, VQ + 3
    RS = RDS
    Q0, Q1 = T + 10, KEEP
    t0, t1 = T + 1, T + 2
    E0, E1 = T + 4, PP
    Z = T + 8
    it = [f"ds_write_b32 v{ARW}, v{RSTD}",
          f"v_mov_b32 v{Z}, 0", f"v_mov_b32 v{Z+1}, 0",
          f"ds_write_b64 v{AET}, {vr(Z,2)}"]
    cur = None
    for i in range(16):
        if i % 4 == 0:
            it.append(f"ds_read_b128 {vr(RS,4)}, v{ARS} offset:{4*i}")
        q = (Q0, Q1)[(i >> 1) & 1] + 2 * (i & 1)
        it += [f"v_mul_f32 v{t0}, v{ACA+i}, v{RS+(i&3)}",
               f"v_mul_f32 v{t1}, v{ACA+16+i}, v{RS+(i&3)}",
               f"v_mul_f32 v{q}, v{PC}, v{t0}",
               f"v_mul_f32 v{q+1}, v{PC}, v{t1}",
               f"v_fma_f32 v{q}, -v{PC+1}, v{t1}, v{q}",
               f"v_fmac_f32 v{q+1}, v{PC+1}, v{t0}"]
        if i == 0:
            cur = q
        else:
            nx = E0 if i & 1 else E1
            it += [f"v_fma_f32 v{nx}, v{PA}, v{cur}, v{q}",
                   f"v_fma_f32 v{nx+1}, v{PA}, v{cur+1}, v{q+1}",
                   f"v_fma_f32 v{nx}, -v{PA+1}, v{cur+1}, v{nx}",
                   f"v_fmac_f32 v{nx+1}, v{PA+1}, v{cur}"]
            cur = nx
        if i & 1 and i < 15:
            it.append(f"ds_write_b128 v{APK}, {vr(q-2,4)} offset:{(i>>1)*1024}")
    assert cur == E0
    it.append(f"ds_write_b64 v{AET}, {vr(E0,2)} offset:2048")
    return it


def gelu_plain(regs, tmp):
    it = []
    n = len(regs)
    for r, t in zip(regs, tmp):
        it.append(f"v_mul_f32 v{t}, v{r}, v{r}")
    for r, t in zip(regs, tmp):
        it.append(f"v_fma_f32 v{t}, v{t}, v{K1}, v{K0}")
    for r, t in zip(regs, tmp):
        it.append(f"v_mul_f32 v{t}, v{t}, v{r}")
    for r, t in zip(regs, tmp):
        it.append(f"v_exp_f32 v{t}, v{t}")
    for r, t in zip(regs, tmp):
        it.append(f"v_fma_f32 v{t}, v{t}, v{IR2}, v{IR2}")
    for r, t in zip(regs, tmp):
        it.append(f"v_rcp_f32 v{t}, v{t}")
    for r, t in zip(regs, tmp):
        it.append(f"v_mul_f32 v{r}, v{r}, v{t}")
    return it


def gelu_packed(base, tmp):
    it = []
    kk = vr(K0, 2)
    ii = vr(RSTD, 2)
    for p in (0, 2):
        it.append(f"v_pk_mul_f32 {vr(tmp+p,2)}, {vr(base+p,2)}, {vr(base+p,2)}")
    for p in (0, 2):
        it.append(f"v_pk_fma_f32 {vr(tmp+p,2)}, {vr(tmp+p,2)}, {kk}, {kk} op_sel:[0,1,0] op_sel_hi:[1,1,0]")
    for p in (0, 2):
        it.append(f"v_pk_mul_f32 {vr(tmp+p,2)}, {vr(tmp+p,2)}, {vr(base+p,2)}")
    for p in range(4):
        it.append(f"v_exp_f32 v{tmp+p}, v{tmp+p}")
    for p in (0, 2):
        it.append(f"v_pk_fma_f32 {vr(tmp+p,2)}, {vr(tmp+p,2)}, {ii}, {ii} op_sel:[0,1,1] op_sel_hi:[1,1,1]")
    for p in range(4):
        it.append(f"v_rcp_f32 v{tmp+p}, v{tmp+p}")
    for p in (0, 2):
        it.append(f"v_pk_mul_f32 {vr(base+p,2)}, {vr(base+p,2)}, {vr(tmp+p,2)}")
    return it


def pack_store(base, s, soff, off):
    it = [f"v_cvt_pk_bf16_f32 v{base+n}, v{base+2*n}, v{base+2*n+1}" for n in range(4)]
    it.append((f"buffer_store_dwordx4 {vr(base,4)}, v{L16}, {srd(s)}, s{soff} offen offset:{off} sc1", "HS"))
    return it


def cfma(dst, m, x, add):
    return [f"v_fma_f32 v{dst}, v{m}, v{x}, v{add}",
            f"v_fma_f32 v{dst+1}, v{m}, v{x+1}, v{add+1}",
            f"v_fma_f32 v{dst}, -v{m+1}, v{x+1}, v{dst}",
            f"v_fmac_f32 v{dst+1}, v{m+1}, v{x}"]


GO_LOAD = f"s_load_dwordx16 s[4:19], {sp(pDBG)}, 0"


def wait_go(a):
    a.wait_lg_all()
    for k in range(0, 16, 4):
        a.I(f"s_and_b64 s[{4+k}:{5+k}], s[{4+k}:{5+k}], s[{6+k}:{7+k}]")
    a.I("s_and_b64 s[4:5], s[4:5], s[8:9]")
    a.I("s_and_b64 s[12:13], s[12:13], s[16:17]")
    a.I("s_and_b64 s[4:5], s[4:5], s[12:13]")
    a.I("s_and_b32 s4, s4, s5")
    a.I("s_cbranch_scc1 L_go_done")
    save, pos = list(a.vmq), a.pos
    a.I(f"s_mov_b32 s{sT2}, 0")
    a.I(f"v_and_b32 v{T+1}, 15, v{LN}")
    a.I(f"v_lshlrev_b32 v{T+1}, 2, v{T+1}")
    a.label("L_go")
    a.I(f"buffer_load_dword v{T+2}, v{T+1}, {srd(SDBG)}, 0 offen sc1", track=False)
    a.wait_vm_all()
    a.I(f"v_cmp_eq_u32 vcc, 0, v{T+2}")
    a.I(f"s_add_u32 s{sT2}, s{sT2}, 1")
    a.I(f"s_cmp_ge_u32 s{sT2}, {SPIN_MAX}")
    a.I("s_cbranch_scc1 L_go_done")
    a.nop(3)
    a.I("s_cbranch_vccnz L_go")
    a.vmq, a.pos = save, pos
    a.label("L_go_done")


def fill_u2(fused):
    APK, ARS, AET, ARW = VQ, VQ + 1, VQ + 2, VQ + 3
    E0 = T + 4
    it = []
    slots = [RDS, RDS + 2, VW, VW + 2, T + 8, T + 10, T + 12]
    for m in range(6, -1, -1):
        it.append(f"ds_read_b64 {vr(slots[m],2)}, v{AET} offset:{(7-m)*256}")
    cur = slots[6]
    for m in range(5, -1, -1):
        dst = PP if m == 0 else slots[m]
        it += cfma(dst, PA16, cur, slots[m])
        cur = dst
    it += cfma(E0, PA16, PP, E0)
    it += [f"s_lshl_b32 s{sRA}, s{sR}, 8",
           f"s_movk_i32 s{sRB}, 4096\ns_cmp_eq_u32 s{sW}, 3\ns_cselect_b32 s{sRB}, 256, s{sRB}",
           f"v_lshlrev_b32 v{T+1}, 3, v{LN}",
           f"v_subrev_u32 v{T+1}, s{sRB}, v{T+1}",
           f"v_add_u32 v{T+2}, s{sRA}, v{T+1}",
           f"v_cmp_gt_i32 vcc, 0, v{T+1}",
           f"v_cndmask_b32 v{T+1}, v{T+2}, v{T+1}, vcc",
           f"buffer_store_dwordx2 {vr(E0,2)}, v{T+1}, {srd(SE)}, 0 offen sc1"]
    tmp = [T + 8 + i for i in range(4)]
    for qd in range(4):
        it += gelu_plain([ACB + 4 * qd + i for i in range(4)], tmp)
        if qd & 1:
            it += pack_store(ACB + 8 * (qd >> 1), SWS, sHB, 1024 * (qd >> 1))
    tl = []
    EL = X
    EA = X + 16
    tl += [f"s_lshl_b32 s{sRA}, s{sR}, 8",
           f"s_sub_u32 s{sRA}, s{sRA}, 256",
           f"v_lshlrev_b32 v{EA}, 3, v{RHO}",
           f"v_lshlrev_b32 v{EA+1}, 8, v{HH}",
           f"v_sub_u32 v{EA}, v{EA}, v{EA+1}",
           f"v_add_u32 v{EA}, s{sRA}, v{EA}"]
    for n in range(1, 8):
        tl.append(f"v_subrev_u32 v{EA+n}, {512*n}, v{EA}")
    eloads = [f"buffer_load_dwordx2 {vr(EL+2*n,2)}, v{EA+n}, {srd(SE)}, 0 offen sc1" for n in range(8)]
    for qd in range(4, 8):
        tl += gelu_packed(ACB + 4 * qd, T + 8)
        if qd & 1:
            tl += pack_store(ACB + 8 * (qd >> 1), SWS, sHB, 1024 * (qd >> 1))
    tl += eloads
    U = X + 32
    for n in range(7):
        tl.append(f"ds_read_b128 {vr(U+4*n,4)}, v{APK} offset:{n*1024}")
    tl += [f"s_add_u32 s{sRB}, s{sHB}, {16*KB}"]
    for qd in range(8):
        tl += gelu_packed(ACA + 4 * qd, T + 8)
        if qd & 1:
            tl += pack_store(ACA + 8 * (qd >> 1), SWS2, sRB, 1024 * (qd >> 1))
    for k in range(4):
        tl.append(f"v_mov_b32 v{U+28+k}, v{KEEP+k}")
    TW, TR = VW, VW + 1
    tl += [f"s_mul_i32 s{sRA}, s{sW}, 5120",
           f"s_add_u32 s{sRA}, s{sRA}, {TRB}",
           f"v_mul_u32_u24 v{TW}, 80, v{RHO}",
           f"v_lshl_add_u32 v{TW}, v{HH}, 5, v{TW}",
           f"v_add_u32 v{TW}, s{sRA}, v{TW}",
           f"v_bfe_u32 v{T+1}, v{LN}, 2, 2",
           f"v_lshl_add_u32 v{T+1}, v{HH}, 4, v{T+1}",
           f"v_mul_u32_u24 v{TR}, 80, v{T+1}",
           f"v_and_b32 v{T+1}, 1, v{LN}",
           f"v_lshl_add_u32 v{TR}, v{T+1}, 5, v{TR}",
           f"v_bfe_u32 v{T+1}, v{LN}, 4, 1",
           f"v_lshl_add_u32 v{TR}, v{T+1}, 4, v{TR}",
           f"v_bfe_u32 v{T+1}, v{LN}, 1, 1",
           f"v_lshl_add_u32 v{TR}, v{T+1}, 3, v{TR}",
           f"v_add_u32 v{TR}, s{sRA}, v{TR}"]

    def epoll(a):
        a.need([vr(EL, 16)])
        a.I(f"s_mov_b32 s{sT2}, 0")
        a.label("L_epoll")
        a.I(f"v_max3_u32 v{T+1}, v{EL}, v{EL+1}, v{EL+2}")
        for n in range(3, 15, 2):
            a.I(f"v_max3_u32 v{T+1}, v{T+1}, v{EL+n}, v{EL+n+1}")
        a.I(f"v_max_u32 v{T+1}, v{T+1}, v{EL+15}")
        a.I(f"v_cmp_eq_u32 vcc, -1, v{T+1}")
        a.I(f"s_add_u32 s{sT2}, s{sT2}, 1")
        a.I(f"s_cmp_ge_u32 s{sT2}, {SPIN_MAX}")
        a.I("s_cbranch_scc1 L_epoll_done")
        a.nop(3)
        a.I("s_cbranch_vccz L_epoll_done")
        save = list(a.vmq)
        for l in eloads:
            a.I(l, track=False)
        a.wait_vm_all()
        a.I("s_branch L_epoll")
        a.vmq = save
        a.label("L_epoll_done")
    tl.append(stamp("gelu done"))
    tl.append(epoll)
    tl.append(stamp("E seen"))
    cur = EL + 14
    for n in range(6, -1, -1):
        tl += cfma(EL + 2 * n, PA256, cur, EL + 2 * n)
        cur = EL + 2 * n
    S0, S1 = EL + 2, EL + 4
    tl += [f"v_mul_f32 v{S0}, v{PAH}, v{EL}",
           f"v_mul_f32 v{S0+1}, v{PAH}, v{EL+1}",
           f"v_fma_f32 v{S0}, -v{PAH+1}, v{EL+1}, v{S0}",
           f"v_fmac_f32 v{S0+1}, v{PAH+1}, v{EL}",
           f"v_mov_b32 v{S1}, v{S0}",
           f"v_mov_b32 v{S1+1}, v{S0+1}",
           f"v_permlane32_swap_b32 v{S0}, v{S1}",
           f"v_permlane32_swap_b32 v{S0+1}, v{S1+1}",
           f"v_add_f32 v{S0}, v{S0}, v{S1}",
           f"v_add_f32 v{S0+1}, v{S0+1}, v{S1+1}"]
    tl += cfma(PP, PAS, S0, PP)
    prev = PP
    aa = vr(PA, 2)
    RE, IM = X + 64, X + 72
    for i in range(16):
        u = U + 2 * i
        tl += [f"v_pk_fma_f32 {vr(u,2)}, {vr(prev,2)}, {aa}, {vr(u,2)} op_sel:[0,0,0] op_sel_hi:[1,0,1]",
               f"v_pk_fma_f32 {vr(u,2)}, {vr(prev,2)}, {aa}, {vr(u,2)} op_sel:[1,1,0] op_sel_hi:[0,1,1] neg_lo:[0,1,0]"]
        prev = u
        if i & 1:
            tl += [f"v_cvt_pk_bf16_f32 v{RE+(i>>1)}, v{u-2}, v{u}",
                   f"v_cvt_pk_bf16_f32 v{IM+(i>>1)}, -v{u-1}, -v{u+1}"]
    for p, R in enumerate((RE, IM)):
        for hf in range(2):
            tl.append(f"ds_write_b128 v{TW}, {vr(R+4*hf,4)} offset:{p*2560+16*hf}")
    FR = X + 80
    for p in range(2):
        for k in range(2):
            for e in range(2):
                tl.append(f"ds_read_b64_tr_b16 {vr(FR+8*p+4*k+2*e,2)}, v{TR} offset:{p*2560+(8*e+4*k)*80}")
    tl += [f"s_add_u32 s{sRB}, s{sHB}, {28*KB}"]
    for f in range(4):
        tl.append((f"buffer_store_dwordx4 {vr(FR+4*f,4)}, v{L16}, {srd(SWS)}, s{sRB} offen offset:{1024*f} sc1", "HS"))
    return it, tl


sI2, sN, sA0, sA1, sB0, sB1 = sR, sJ, sRA, sRB, sHB, sCNT
ACC2 = 128
HRING = [ar(224 + 4 * i, 4) for i in range(8)] + [vr(192 + 4 * i, 4) for i in range(8)]
P2L16, P2LN = 224, 225


def wreg(k, dt):
    return vr(8 * k + 4 * dt, 4) if k < 16 else ar(8 * (k - 16) + 4 * dt, 4)


def p2_index(a):
    I = a.I
    I(f"s_and_b32 s{sI2}, s2, 7")
    I(f"s_lshl_b32 s{sI2}, s{sI2}, 2")
    I(f"s_lshr_b32 s{sT0}, s2, 6")
    I(f"s_add_u32 s{sI2}, s{sI2}, s{sT0}")
    I(f"s_bfe_u32 s{sN}, s2, 0x30003")
    I(f"s_mul_i32 s{sT0}, s{sW}, {G_STRIDE}")
    I(f"s_mul_i32 s{sA0}, s{sI2}, {2*RT_STRIDE}")
    I(f"s_add_u32 s{sA0}, s{sA0}, s{sT0}")
    I(f"s_add_u32 s{sA1}, s{sA0}, {RT_STRIDE}")
    I(f"s_mul_i32 s{sB0}, s{sN}, {2*RT_STRIDE}")
    I(f"s_add_u32 s{sB0}, s{sB0}, s{sT0}")
    I(f"s_add_u32 s{sB0}, s{sB0}, {BW}")
    I(f"s_add_u32 s{sB1}, s{sB0}, {RT_STRIDE}")


def b_loads(ks):
    it = []
    for k in ks:
        if k % 4 == 0:
            it += [f"s_add_u32 s{sT0}, s{sB0}, {k*1024}", f"s_add_u32 s{sT1}, s{sB1}, {k*1024}"]
        for dt in range(2):
            it.append(f"buffer_load_dwordx4 {wreg(k,dt)}, v{P2L16}, {srd(SWS)}, s{sT0+dt} offen offset:{(k&3)*1024} sc1")
    return it


def a_loads(k):
    it = []
    if k % 4 == 0 and k:
        it += [f"s_add_u32 s{sA0}, s{sA0}, 4096", f"s_add_u32 s{sA1}, s{sA1}, 4096"]
    for tt in range(2):
        it.append(f"buffer_load_dwordx4 {HRING[(2*k+tt)%16]}, v{P2L16}, {srd(SWS)}, s{sA0+tt} offen offset:{(k&3)*1024} sc1")
    return it


def phase2_body(a, interleave_b=False):
    I = a.I
    LOOK = 7
    if interleave_b:
        for k in range(LOOK):
            a.run(b_loads_one(k))
            a.run(a_loads(k))
    else:
        for k in range(LOOK):
            a.run(a_loads(k))
    XA, OA, SA = 226, 227, 228
    TA, TB, TC = 229, 230, 231
    XV, ST, DK, BB, BASE = 0, 8, 16, 18, 32
    WA = 232
    RA = 236
    prep = []
    prep += [f"s_lshr_b32 s{sT2}, s{sW}, 1",
             f"s_lshl_b32 s{sT2}, s{sT2}, 5",
             f"s_and_b32 s{sG}, s{sW}, 1",
             f"s_lshl_b32 s{sG}, s{sG}, 3",
             f"s_add_u32 s{sT2}, s{sT2}, s{sG}",
             f"s_lshl_b32 s{sG}, s{sI2}, 6",
             f"s_add_u32 s{sT2}, s{sT2}, s{sG}",
             f"v_lshrrev_b32 v{TA}, 4, v{P2LN}",
             f"v_and_b32 v{TB}, 15, v{P2LN}",
             f"v_add_u32 v{TC}, s{sT2}, v{TA}",
             f"s_lshl_b32 s{sG}, s{sN}, 7",
             f"v_lshl_add_u32 v{SA}, v{TB}, 3, s{sG}",
             f"global_load_dwordx2 {vr(DK,2)}, v{SA}, {sp(pDSK)}",
             f"global_load_dwordx2 {vr(BB,2)}, v{SA}, {sp(pB2)}",
             f"v_lshl_add_u32 v{XA}, v{TC}, 10, v{SA}",
             f"v_lshlrev_b32 v{OA}, 1, v{XA}",
             f"s_lshl_b32 s{sG}, s{sW}, 14",
             f"s_lshl_b32 s{sJJ}, s{sI2}, 9",
             f"s_add_u32 s{sG}, s{sG}, s{sJJ}",
             f"s_lshl_b32 s{sJJ}, s{sW}, 7",
             f"s_add_u32 s{sG}, s{sG}, s{sJJ}",
             f"s_add_u32 s{sG}, s{sG}, {STATS}",
             f"v_lshlrev_b32 v{SA}, 3, v{TA}"]
    rowoff = lambda it: 16 * (it & 1) + 4 * (it >> 1)
    for it in range(4):
        prep += [f"s_mov_b32 s{sJJ}, {rowoff(it)*1024}",
                 f"buffer_load_dwordx2 {vr(XV+2*it,2)}, v{XA}, {srd(SX)}, s{sJJ} offen",
                 f"buffer_load_dwordx2 {vr(ST+2*it,2)}, v{SA}, {srd(SWS)}, s{sG} offen offset:{32*it} sc1"]
    prep += [f"v_and_b32 v{TC}, 31, v{P2LN}",
             f"v_lshrrev_b32 v{WA}, 5, v{P2LN}",
             f"v_lshlrev_b32 v{WA}, 1, v{WA}",
             f"v_and_b32 v{WA+1}, 7, v{P2LN}",
             f"v_xor_b32 v{WA}, v{WA}, v{WA+1}",
             f"v_lshlrev_b32 v{WA}, 4, v{WA}",
             f"v_lshl_or_b32 v{WA}, v{TC}, 8, v{WA}",
             f"s_lshl_b32 s{sJJ}, s{sW}, 14",
             f"v_add_u32 v{WA}, s{sJJ}, v{WA}",
             f"v_xor_b32 v{WA+1}, 16, v{WA}",
             f"v_xor_b32 v{WA+2}, 64, v{WA}",
             f"v_xor_b32 v{WA+3}, 80, v{WA}",
             f"v_xor_b32 v{RA}, v{TA}, v{TB}",
             f"v_lshlrev_b32 v{RA}, 4, v{RA}",
             f"v_lshl_or_b32 v{RA}, v{TA}, 8, v{RA}",
             f"s_lshl_b32 s{sJJ}, s{sW}, 12",
             f"v_add_u32 v{RA}, s{sJJ}, v{RA}",
             f"v_xor_b32 v{RA+1}, 64, v{RA}"]
    prep2 = []
    DF, BF = 20, 24
    for h in range(2):
        prep2 += [f"v_lshlrev_b32 v{DF+2*h}, 16, v{DK+h}", f"v_and_b32 v{DF+2*h+1}, 0xffff0000, v{DK+h}",
                  f"v_lshlrev_b32 v{BF+2*h}, 16, v{BB+h}", f"v_and_b32 v{BF+2*h+1}, 0xffff0000, v{BB+h}"]
    for it in range(4):
        for c in range(4):
            b = BASE + 4 * it + c
            src = XV + 2 * it + (c >> 1)
            prep2 += [f"v_lshlrev_b32 v{b}, 16, v{src}" if c % 2 == 0 else f"v_and_b32 v{b}, 0xffff0000, v{src}",
                      f"v_sub_f32 v{TA}, v{b}, v{ST+2*it}",
                      f"v_mul_f32 v{TA}, v{TA}, v{ST+2*it+1}",
                      f"v_add_f32 v{b}, v{b}, v{BF+c}",
                      f"v_fmac_f32 v{b}, v{TA}, v{DF+c}"]
    for k in range(44):
        ms = []
        for dt in range(2):
            for tt in range(2):
                D = vr(ACC2 + 32 * dt + 16 * tt, 16)
                ms.append(f"v_mfma_f32_32x32x16_bf16 {D}, {wreg(k,dt)}, {HRING[(2*k+tt)%16]}, {D if k else '0'}")
        a.need([HRING[(2 * k) % 16], HRING[(2 * k + 1) % 16], wreg(k, 0), wreg(k, 1)])
        if k in (0, 11, 22, 33):
            I(stamp(f"k{k}"))
        I(ms[0])
        if k + LOOK < 44:
            if interleave_b:
                a.run(b_loads_one(k + LOOK))
            a.run(a_loads(k + LOOK))
        fl = []
        if 18 <= k < 24:
            fl = prep[(len(prep) * (k - 18)) // 6:(len(prep) * (k - 17)) // 6]
        if 34 <= k < 42:
            fl = prep2[(len(prep2) * (k - 34)) // 8:(len(prep2) * (k - 33)) // 8]
        n3 = (len(fl) + 2) // 3
        for i in range(1, 4):
            I(ms[i])
            a.run(fl[(i - 1) * n3:i * n3])
    I(stamp("mfma done"))
    for dt in range(2):
        for tt in range(2):
            for gq in range(4):
                I(f"ds_write_b128 v{WA+gq}, {vr(ACC2+32*dt+16*tt+4*gq,4)} offset:{tt*8192+dt*128}")
    a.wait_lg_all()
    I("s_barrier")
    I(stamp("red barrier"))
    PR = 64
    for it in range(4):
        for q in range(4):
            I(f"ds_read_b128 {vr(PR+16*it+4*q,4)}, v{RA+(it&1)} offset:{q*16384+it*1024}")
    for it in range(4):
        b = BASE + 4 * it
        p = PR + 16 * it
        for h in (0, 2):
            I(f"v_pk_add_f32 {vr(p+h,2)}, {vr(p+h,2)}, {vr(p+4+h,2)}")
        for h in (0, 2):
            I(f"v_pk_add_f32 {vr(p+8+h,2)}, {vr(p+8+h,2)}, {vr(p+12+h,2)}")
        for h in (0, 2):
            I(f"v_pk_add_f32 {vr(b+h,2)}, {vr(b+h,2)}, {vr(p+h,2)}")
        for h in (0, 2):
            I(f"v_pk_add_f32 {vr(b+h,2)}, {vr(b+h,2)}, {vr(p+8+h,2)}")
        I(f"s_mov_b32 s{sJJ}, {rowoff(it)*2048}")
        I(f"buffer_store_dwordx4 {vr(b,4)}, v{OA}, {srd(SOUT)}, s{sJJ} offen")
    I(stamp("out issued"))
    if DEBUG:
        a.wait_vm_all()
    I(stamp("out done"))


def b_loads_one(k):
    it = []
    if k % 4 == 0 and k:
        it += [f"s_add_u32 s{sB0}, s{sB0}, 4096", f"s_add_u32 s{sB1}, s{sB1}, 4096"]
    for dt in range(2):
        it.append(f"buffer_load_dwordx4 {wreg(k,dt)}, v{P2L16}, {srd(SWS)}, s{(sB0,sB1)[dt]} offen offset:{(k&3)*1024} sc1")
    return it


def kernel2(a):
    I = a.I
    load_kernargs(a)
    I("v_lshrrev_b32 v1, 6, v0")
    I(f"v_and_b32 v{P2LN}, 63, v0")
    I(f"v_readfirstlane_b32 s{sW}, v1")
    I(f"v_lshlrev_b32 v{P2L16}, 4, v{P2LN}")
    p2_index(a)
    a.wait_lg_all()
    I(stamp("k2 start"))
    mk_srd(a, SWS, pWS, WS_END)
    mk_srd(a, SX, pX, 2048 * 1024)
    mk_srd(a, SOUT, pOUT, 2048 * 2048)
    phase2_body(a, interleave_b=True)


HEADER = open(__file__.rsplit("/", 1)[0] + "/header.txt").read() if "/" in __file__ else open("header.txt").read()


def kd(name):
    return f""".amdhsa_kernel {name}
  .amdhsa_next_free_vgpr 512
  .amdhsa_next_free_sgpr 102
  .amdhsa_accum_offset 256
  .amdhsa_group_segment_fixed_size 0
  .amdhsa_float_denorm_mode_32 3
  .amdhsa_kernarg_size 136
  .amdhsa_user_sgpr_count 2
  .amdhsa_user_sgpr_kernarg_segment_ptr 1
  .amdhsa_system_sgpr_workgroup_id_x 1
.end_amdhsa_kernel
"""


def entry(a, name, endlabel):
    a.raw(f".globl {name}\n.p2align 8\n.type {name},@function\n{name}:")
    a.reset_state()
    a.I("s_cmp_ge_u32 s2, 256")
    a.I(f"s_cbranch_scc1 {endlabel}")


def build_two():
    a = Asm()
    k1, k2 = NAME + "_kernel", "phase2_kernel"
    a.raw(HEADER.rstrip())
    a.raw(f"; @launch kernel={k1} grid=(256,1,1) block=(256,1,1) lds=163840")
    a.raw(f"; @launch kernel={k2} grid=(256,1,1) block=(256,1,1) lds=65536")
    a.raw('.amdgcn_target "amdgcn-amd-amdhsa--gfx950"\n.text')
    entry(a, k1, "L_end1")
    phase1(a, False)
    stamp_flush(a, 0)
    STAMPS.append("|")
    a.label("L_end1")
    a.I("s_endpgm")
    n1 = a.count
    entry(a, k2, "L_end2")
    kernel2(a)
    stamp_flush(a, 1)
    a.label("L_end2")
    a.I("s_endpgm")
    a.raw('.section .rodata,"a"\n.p2align 6')
    a.raw(kd(k1))
    a.raw(".p2align 6")
    a.raw(kd(k2))
    print(f"instructions: k1 {n1}, k2 {a.count-n1}, nops {a.nops}", file=sys.stderr)
    return a.text()


if __name__ == "__main__":
    out = sys.argv[1] if len(sys.argv) > 1 else f"cdna_kernels/{NAME}.s"
    DEBUG = "-d" in sys.argv
    txt = build_two()
    if DEBUG:
        txt += "; STAMPS " + ",".join(STAMPS) + "\n"
    open(out, "w").write(txt)
```

```python
import sys, math, struct
from asmlib import Asm, interleave

NAME = "parallel_sum__ssm_conv_s5__mixer_channel_mlp__prompt"
KB = 1024
RT_STRIDE = 176 * KB
G_STRIDE = 44 * KB
HID = 0
BW = 64 * RT_STRIDE
EOFF = BW + 16 * RT_STRIDE
STATS = EOFF + 64 * KB
BFLAG = STATS + 64 * KB
HFLAG = BFLAG + 4 * KB
WS_END = HFLAG + 16 * KB
SPIN_MAX = 4000

H = [0, 32 * KB, 64 * KB, 96 * KB, 128 * KB, 0]
PARK = H[1]
ETAB = H[1] + 28 * KB
TRB = H[2]


def f32(x):
    return "0x%08x" % struct.unpack("<I", struct.pack("<f", x))[0]


pX, pLRE, pLIM, pBRE, pBIM, pCRE, pCIM, pLDT = [4 + 2 * i for i in range(8)]
pDSK, pBX, pW1, pB1, pW2, pB2, pOUT, pDBG = [20 + 2 * i for i in range(8)]
pWS = 36
SX, SBR, SBI, SW1, SW1B, SWS, SWS2, SR, SRS, SOUT, SDBG, SE = [40 + 4 * i for i in range(12)]
sW, sR, sJ, sJJ, sG, sROT, sT0, sT1, sT2, sRA, sRB, sHB, sONE, sFL = range(88, 102)
sXB = 38
sUB = 39
sWL = 3
sUO = 4
sI2, sN, sB0, sA0, sP0, sP1 = 15, 16, 17, 18, 24, 25
sCS, sCM0, sCM1 = 26, 27, 28
sHF = 29
sINI = 0


def srd(n):
    return f"s[{n}:{n+3}]"


def sp(n):
    return f"s[{n}:{n+1}]"


def vr(n, c=1):
    return f"v{n}" if c == 1 else f"v[{n}:{n+c-1}]"


def ar(n, c=1):
    return f"a{n}" if c == 1 else f"a[{n}:{n+c-1}]"


X = 0
ACA, ACB = 128, 160
VQ, VW, RDS, RDT = 192, 196, 200, 204
L16 = 206
MEAN, RSTD, IR2, K0, K1 = 207, 208, 209, 210, 211
PA, PC, PA16, PAS, PAH, PA256, PP = 212, 214, 216, 218, 220, 222, 224
BIA = 226
SB = 234
KEEP = 238
T = 242
STG = 224


DEBUG = False
STAMPV = T + 3
STAMPS = []
DBGOFF = 15 * 1024 * KB


def stamp(name):
    def f(a):
        if not DEBUG:
            return
        n = len(STAMPS)
        STAMPS.append(name)
        if name.endswith("start") and name[0] in "sk":
            a.I("s_memrealtime s[22:23]")
            a.wait_lg_all()
            a.I(f"v_writelane_b32 v{STAMPV}, s22, 62")
        a.I("s_memtime s[22:23]")
        a.wait_lg_all()
        a.I(f"v_writelane_b32 v{STAMPV}, s22, {n}")
    return f


def stamp_flush(a, which):
    if not DEBUG:
        return
    a.I("s_memrealtime s[22:23]")
    a.wait_lg_all()
    a.I(f"v_writelane_b32 v{STAMPV}, s22, 63")
    a.I(f"s_lshl_b32 s22, s2, 2\ns_add_u32 s22, s22, s{sW}\ns_lshl_b32 s22, s22, 8\ns_add_u32 s22, s22, {DBGOFF + which*256*KB}")
    a.I(f"s_mov_b32 s{SWS+2}, {16*1024*KB}")
    a.I(f"v_mbcnt_lo_u32_b32 v0, -1, 0\nv_mbcnt_hi_u32_b32 v0, -1, v0\nv_lshlrev_b32 v0, 2, v0")
    a.I(f"buffer_store_dword v{STAMPV}, v0, {srd(SWS)}, s22 offen")


def mk_srd(a, n, ptr, size):
    a.I(f"s_mov_b32 s{n}, s{ptr}")
    a.I(f"s_mov_b32 s{n+1}, s{ptr+1}")
    a.I(f"s_mov_b32 s{n+2}, {size}")
    a.I(f"s_mov_b32 s{n+3}, 0x20000")


def load_kernargs(a):
    a.I("s_load_dwordx16 s[4:19], s[0:1], 0")
    a.I("s_load_dwordx16 s[20:35], s[0:1], 64")
    a.I("s_load_dwordx2 s[36:37], s[0:1], 128")


def dma4(vbase, s, soff, m0expr, tag):
    it = list(m0expr)
    for q in range(4):
        it.append((f"buffer_load_dwordx4 v{vbase+q}, {srd(s)}, s{soff} offen offset:{q*1024} lds", tag))
    return it


def stage_regs(n):
    return [ar(STG + 16 * (n & 1), 16)]


def frag_reads(n):
    u, d = divmod(n, 16)
    it = []
    for s in range(2):
        k = 2 * d + s
        base = STG + 16 * (n & 1) + 8 * s
        if u == 0:
            for part in range(2):
                it.append(f"ds_read_b128 {ar(base+4*part,4)}, v{RDS+(k&3)} offset:{(k>>2)*8192+part*4096}")
        else:
            kk = k if u == 1 else (k & 15)
            for t in range(2):
                for e in range(2):
                    it.append(f"ds_read_b64_tr_b16 {ar(base+4*t+2*e,2)}, v{RDT+t} offset:{kk*2048+e*512}")
    return it


def mfmas(n):
    u, d = divmod(n, 16)
    res = []
    acc = (ACA, ACB, ACA)[u]
    for s in range(2):
        k = 2 * d + s
        base = STG + 16 * (n & 1) + 8 * s
        for t in range(2):
            D = vr(acc + 16 * t, 16)
            g = []
            if u == 0:
                c = D if k else "0"
                g.append(f"v_mfma_f32_32x32x16_bf16 {D}, {vr(X+4*k,4)}, {ar(base+4*t,4)}, {c}")
            else:
                if k == 0:
                    g.append(f"v_mfma_f32_32x32x16_bf16 {D}, {vr(BIA+2*(2*(u-1)+t),4)}, {vr(SB,4)}, 0")
                g.append(f"v_mfma_f32_32x32x16_bf16 {D}, {ar(base+4*t,4)}, {vr(X+4*k,4)}, {D}")
            res.append(g)
    return res


LN, HH, RHO = T, T + 6, T + 7


def cpow(dst, nreg_or_const, zr, zv, t0, t1):
    it = []
    n = nreg_or_const
    if n == 1:
        it += [f"v_exp_f32 v{t0}, v{zr}", f"v_fract_f32 v{t1}, v{zv}"]
    else:
        src = n if isinstance(n, str) else f32(float(n))
        it += [f"v_mul_f32 v{t0}, {src}, v{zr}", f"v_mul_f32 v{t1}, {src}, v{zv}",
               f"v_exp_f32 v{t0}, v{t0}", f"v_fract_f32 v{t1}, v{t1}"]
    it += [f"v_cos_f32 v{dst}, v{t1}", f"v_sin_f32 v{dst+1}, v{t1}",
           f"v_mul_f32 v{dst}, v{dst}, v{t0}", f"v_mul_f32 v{dst+1}, v{dst+1}, v{t0}"]
    return it


def fill_u0():
    it = []
    A0, A1, A2, A3, A4, A5, A6, A7 = [ACB + 24 + i for i in range(8)]
    EPS = f32(1e-5)
    k0 = -2.0 * math.log2(math.e) * math.sqrt(2.0 / math.pi)
    k1 = k0 * 0.044715
    it += [f"v_mul_f32 v{MEAN}, {f32(1/512)}, v{MEAN}",
           f"v_mul_f32 v{A0}, {f32(1/512)}, v{RSTD}",
           f"v_fma_f32 v{A0}, -v{MEAN}, v{MEAN}, v{A0}",
           f"v_max_f32 v{A0}, 0, v{A0}",
           f"v_add_f32 v{A1}, {EPS}, v{A0}",
           f"v_rsq_f32 v{RSTD}, v{A1}",
           f"v_fmac_f32 v{A0}, {EPS}, v{A1}",
           f"v_rsq_f32 v{A2}, v{A0}",
           f"v_sqrt_f32 v{IR2}, v{A0}",
           f"v_mul_f32 v{K0}, {f32(k0)}, v{A2}",
           f"v_mul_f32 v{A3}, v{A2}, v{A2}",
           f"v_mul_f32 v{A3}, {f32(0.044715)}, v{A3}",
           f"v_mul_f32 v{K1}, v{K0}, v{A3}",
           f"v_mul_f32 v{A1}, 0.5, v{IR2}",
           f"v_cvt_pk_bf16_f32 v{A2}, v{A1}, v{A1}",
           f"v_and_b32 v{A3}, 0xffff0000, v{A2}",
           f"v_sub_f32 v{A3}, v{A1}, v{A3}",
           f"v_cvt_pk_bf16_f32 v{SB}, v{A1}, v{A3}"]
    it += [f"s_cmp_eq_u32 s{sJJ}, 0\ns_cselect_b32 s{SRS+2}, {WS_END}, 0",
           f"s_lshr_b32 s{sRA}, s{sXB}, 15",
           f"s_lshl_b32 s{sRA}, s{sRA}, 8",
           f"s_lshl_b32 s{sRB}, s{sG}, 14",
           f"s_add_u32 s{sRA}, s{sRA}, s{sRB}",
           f"s_add_u32 s{sRA}, s{sRA}, {STATS}",
           f"v_mov_b32 v{A4}, v{MEAN}",
           f"v_mov_b32 v{A5}, v{RSTD}",
           f"v_lshlrev_b32 v{A6}, 3, v{RHO}",
           f"buffer_store_dwordx2 {vr(A4,2)}, v{A6}, {srd(SRS)}, s{sRA} offen sc1"]
    for k in range(4):
        it.append(f"v_lshl_or_b32 v{BIA+2*k}, v{BIA+2*k}, 16, v{BIA+2*k}")
    LR, LI, ZR, ZV = ACB, ACB + 1, ACB + 2, ACB + 3
    it += [f"v_lshlrev_b32 v{LR}, 16, v{PA}",
           f"v_lshlrev_b32 v{LI}, 16, v{PA+1}",
           f"v_lshlrev_b32 v{A0}, 16, v{PC}",
           f"v_mul_f32 v{A0}, {f32(math.log2(math.e))}, v{A0}",
           f"v_exp_f32 v{A0}, v{A0}",
           f"v_cvt_f32_u32 v{A2}, v{HH}",
           f"v_cvt_pk_bf16_f32 v{A0}, v{A0}, v{A0}",
           f"v_and_b32 v{A0}, 0xffff0000, v{A0}",
           f"v_mul_f32 v{ZR}, v{A0}, v{LR}",
           f"v_mul_f32 v{ZV}, v{A0}, v{LI}",
           f"v_mul_f32 v{ZR}, {f32(math.log2(math.e))}, v{ZR}",
           f"v_mul_f32 v{ZV}, 0.15915494, v{ZV}"]
    it += cpow(PA, 1, ZR, ZV, A0, A1)
    it += cpow(PA16, 16, ZR, ZV, A0, A1)
    it += cpow(PA256, 256, ZR, ZV, A0, A1)
    it += [f"v_mul_f32 v{A3}, {f32(128.0)}, v{A2}"]
    it += cpow(PAH, f"v{A3}", ZR, ZV, A0, A1)
    it += [f"s_lshl_b32 s{sRA}, s{sW}, 1",
           f"v_add_u32 v{A3}, s{sRA}, v{HH}",
           f"v_cvt_f32_u32 v{A3}, v{A3}",
           f"v_mul_f32 v{A3}, {f32(16.0)}, v{A3}"]
    it += cpow(PAS, f"v{A3}", ZR, ZV, A0, A1)
    it += [f"v_mul_f32 v{A0}, v{LR}, v{LR}",
           f"v_fmac_f32 v{A0}, v{LI}, v{LI}",
           f"v_rcp_f32 v{A0}, v{A0}",
           f"v_add_f32 v{A1}, -1.0, v{PA}",
           f"v_mul_f32 v{A2}, v{A1}, v{LR}",
           f"v_fmac_f32 v{A2}, v{PA+1}, v{LI}",
           f"v_mul_f32 v{A3}, v{PA+1}, v{LR}",
           f"v_fma_f32 v{A3}, -v{A1}, v{LI}, v{A3}",
           f"v_add_f32 v{A0}, v{A0}, v{A0}",
           f"v_mul_f32 v{PC}, v{A2}, v{A0}",
           f"v_mul_f32 v{PC+1}, v{A3}, v{A0}"]
    APK, ARS, AET, ARW = VQ, VQ + 1, VQ + 2, VQ + 3
    it += [f"s_mul_i32 s{sRA}, s{sW}, {7*KB}",
           f"s_add_u32 s{sRA}, s{sRA}, {PARK}",
           f"v_add_u32 v{APK}, s{sRA}, v{L16}",
           f"s_add_u32 s{sRA}, s{sRA}, {6*KB}",
           f"v_lshl_add_u32 v{ARS}, v{HH}, 6, s{sRA}",
           f"v_lshl_add_u32 v{ARW}, v{T+9}, 2, s{sRA}",
           f"s_lshl_b32 s{sRA}, s{sW}, 9",
           f"s_add_u32 s{sRA}, s{sRA}, {ETAB}",
           f"v_lshl_add_u32 v{AET}, v{LN}, 3, s{sRA}"]
    return it


def fill_u1():
    APK, ARS, AET, ARW = VQ, VQ + 1, VQ + 2, VQ + 3
    RSB = (RDS, VW)
    Q0, Q1 = T + 10, KEEP
    t0, t1 = T + 1, T + 2
    E0, E1 = T + 4, PP
    Z = T + 8
    it = [f"ds_write_b32 v{ARW}, v{RSTD}",
          f"ds_read_b128 {vr(RSB[0],4)}, v{ARS}",
          f"ds_read_b128 {vr(RSB[1],4)}, v{ARS} offset:16",
          f"v_mov_b32 v{Z}, 0", f"v_mov_b32 v{Z+1}, 0",
          f"ds_write_b64 v{AET}, {vr(Z,2)}"]
    cur = None
    for i in range(16):
        if i in (4, 8):
            it.append(f"ds_read_b128 {vr(RSB[(i//4+1)&1],4)}, v{ARS} offset:{4*i+16}")
        RS = RSB[(i >> 2) & 1]
        q = (Q0, Q1)[(i >> 1) & 1] + 2 * (i & 1)
        it += [f"v_mul_f32 v{t0}, v{ACA+i}, v{RS+(i&3)}",
               f"v_mul_f32 v{t1}, v{ACA+16+i}, v{RS+(i&3)}",
               f"v_mul_f32 v{q}, v{PC}, v{t0}",
               f"v_mul_f32 v{q+1}, v{PC}, v{t1}",
               f"v_fma_f32 v{q}, -v{PC+1}, v{t1}, v{q}",
               f"v_fmac_f32 v{q+1}, v{PC+1}, v{t0}"]
        if i == 0:
            cur = q
        else:
            nx = E0 if i & 1 else E1
            it += [f"v_fma_f32 v{nx}, v{PA}, v{cur}, v{q}",
                   f"v_fma_f32 v{nx+1}, v{PA}, v{cur+1}, v{q+1}",
                   f"v_fma_f32 v{nx}, -v{PA+1}, v{cur+1}, v{nx}",
                   f"v_fmac_f32 v{nx+1}, v{PA+1}, v{cur}"]
            cur = nx
        if i & 1 and i < 15:
            it.append(f"ds_write_b128 v{APK}, {vr(q-2,4)} offset:{(i>>1)*1024}")
    assert cur == E0
    it.append(f"ds_write_b64 v{AET}, {vr(E0,2)} offset:2048")
    return it


def gelu_plain(regs, tmp):
    it = []
    n = len(regs)
    for r, t in zip(regs, tmp):
        it.append(f"v_mul_f32 v{t}, v{r}, v{r}")
    for r, t in zip(regs, tmp):
        it.append(f"v_fma_f32 v{t}, v{t}, v{K1}, v{K0}")
    for r, t in zip(regs, tmp):
        it.append(f"v_mul_f32 v{t}, v{t}, v{r}")
    for r, t in zip(regs, tmp):
        it.append(f"v_exp_f32 v{t}, v{t}")
    for r, t in zip(regs, tmp):
        it.append(f"v_fma_f32 v{t}, v{t}, v{IR2}, v{IR2}")
    for r, t in zip(regs, tmp):
        it.append(f"v_rcp_f32 v{t}, v{t}")
    for r, t in zip(regs, tmp):
        it.append(f"v_mul_f32 v{r}, v{r}, v{t}")
    return it


def gelu_packed(base, tmp):
    it = []
    kk = vr(K0, 2)
    ii = vr(RSTD, 2)
    for p in (0, 2):
        it.append(f"v_pk_mul_f32 {vr(tmp+p,2)}, {vr(base+p,2)}, {vr(base+p,2)}")
    for p in (0, 2):
        it.append(f"v_pk_fma_f32 {vr(tmp+p,2)}, {vr(tmp+p,2)}, {kk}, {kk} op_sel:[0,1,0] op_sel_hi:[1,1,0]")
    for p in (0, 2):
        it.append(f"v_pk_mul_f32 {vr(tmp+p,2)}, {vr(tmp+p,2)}, {vr(base+p,2)}")
    for p in range(4):
        it.append(f"v_exp_f32 v{tmp+p}, v{tmp+p}")
    for p in (0, 2):
        it.append(f"v_pk_fma_f32 {vr(tmp+p,2)}, {vr(tmp+p,2)}, {ii}, {ii} op_sel:[0,1,1] op_sel_hi:[1,1,1]")
    for p in range(4):
        it.append(f"v_rcp_f32 v{tmp+p}, v{tmp+p}")
    for p in (0, 2):
        it.append(f"v_pk_mul_f32 {vr(base+p,2)}, {vr(base+p,2)}, {vr(tmp+p,2)}")
    return it


def pack_store(base, s, soff, off):
    it = [f"v_cvt_pk_bf16_f32 v{base+n}, v{base+2*n}, v{base+2*n+1}" for n in range(4)]
    it.append((f"buffer_store_dwordx4 {vr(base,4)}, v{L16}, {srd(s)}, s{soff} offen offset:{off} sc1", "HS"))
    return it


def cfma(dst, m, x, add):
    return [f"v_fma_f32 v{dst}, v{m}, v{x}, v{add}",
            f"v_fma_f32 v{dst+1}, v{m}, v{x+1}, v{add+1}",
            f"v_fma_f32 v{dst}, -v{m+1}, v{x+1}, v{dst}",
            f"v_fmac_f32 v{dst+1}, v{m+1}, v{x}"]


def poll(a, name, val, addr, s, soff, first_issued=True):
    ld = f"buffer_load_dword v{val}, v{addr}, {srd(s)}, {soff} offen sc1"
    a.need([f"v{val}"])
    a.I(f"v_cmp_eq_u32 vcc, 0, v{val}")
    a.I(f"s_mov_b32 s{sT2}, 0")
    a.nop(4)
    a.I(f"s_cbranch_vccz {name}_done")
    save, pos = list(a.vmq), a.pos
    a.label(name)
    a.I(ld, track=False)
    a.wait_vm_all()
    a.I(f"v_cmp_eq_u32 vcc, 0, v{val}")
    a.I(f"s_add_u32 s{sT2}, s{sT2}, 1")
    a.I(f"s_cmp_ge_u32 s{sT2}, {SPIN_MAX}")
    a.I(f"s_cbranch_scc1 {name}_done")
    a.nop(3)
    a.I(f"s_cbranch_vccnz {name}")
    a.vmq, a.pos = save, pos
    a.label(name + "_done")


def xlds(c):
    return 32 * KB * (1 + (c >> 1)) + 4 * KB * (c & 1)


def xgroup(c):
    return dma4(VQ, SX, sT0, [f"s_add_u32 m0, s{sWL}, {xlds(c)}", f"s_xor_b32 s{sT0}, s{sXB}, {c<<7}"], f"x{c}")


def wgroup(n, half):
    tag = f"H{n}"
    pre = [f"s_add_u32 m0, s{sWL}, {H[n] + 4*KB*half}"]
    if n < 2:
        pre += [f"s_xor_b32 s{sT0}, s{sCS}, {512*(n&1)}"]
        return dma4(VQ, SBI if half else SBR, sT0, pre, tag)
    off = 32 * 3584 * half + (128 if n >= 4 else 0)
    pre += [f"s_add_u32 s{sT0}, s{sCM1 if n&1 else sCM0}, {off}"]
    return dma4(VW, SW1B if n >= 4 else SW1, sT0, pre, tag)


def phase1(a, kname):
    I = a.I
    load_kernargs(a)
    TA, TB, TC, TD = T + 1, T + 2, ACB + 31, T + 4
    SG, PI, VR = T + 8, T + 9, T + 5
    I(f"v_lshrrev_b32 v{TA}, 6, v0")
    I(f"v_and_b32 v{LN}, 63, v0")
    I(f"v_readfirstlane_b32 s{sW}, v{TA}")
    I(f"s_lshr_b32 s{sT0}, s2, 3")
    I(f"s_and_b32 s{sT1}, s{sT0}, 7")
    I(f"s_lshr_b32 s{sJJ}, s{sT0}, 3")
    I(f"s_and_b32 s{sR}, s2, 1")
    I(f"s_lshl_b32 s{sR}, s{sR}, 3")
    I(f"s_add_u32 s{sR}, s{sR}, s{sT1}")
    I(f"s_bfe_u32 s{sG}, s2, 0x20001")
    I(f"s_lshl_b32 s{sJ}, s{sG}, 2")
    I(f"s_add_u32 s{sJ}, s{sJ}, s{sJJ}")
    I(f"s_lshl_b32 s{sROT}, s{sJJ}, 1")
    I(f"s_add_u32 s{sROT}, s{sROT}, s{sT1}")
    I(f"s_and_b32 s{sT0}, s{sG}, 1")
    I(f"s_add_u32 s{sROT}, s{sROT}, s{sT0}")
    I(f"s_and_b32 s{sROT}, s{sROT}, 7")
    I(f"s_lshl_b32 s{sXB}, s{sR}, 2")
    I(f"s_add_u32 s{sXB}, s{sXB}, s{sW}")
    I(f"s_mul_i32 s{sHB}, s{sXB}, {RT_STRIDE}")
    I(f"s_mul_i32 s{sT0}, s{sG}, {G_STRIDE}")
    I(f"s_add_u32 s{sHB}, s{sHB}, s{sT0}")
    I(f"s_lshl_b32 s{sT0}, s{sJJ}, 12")
    I(f"s_add_u32 s{sHB}, s{sHB}, s{sT0}")
    I(f"s_lshl_b32 s{sXB}, s{sXB}, 15")
    I(f"s_lshl_b32 s{sT0}, s{sROT}, 7")
    I(f"s_or_b32 s{sXB}, s{sXB}, s{sT0}")
    I(f"s_mul_i32 s{sUB}, s{sG}, 7")
    I(f"s_lshl_b32 s{sT0}, s{sJJ}, 1")
    I(f"s_add_u32 s{sUB}, s{sUB}, s{sT0}")
    I(f"s_lshl_b32 s{sUB}, s{sUB}, 7")
    I(f"s_lshl_b32 s{sWL}, s{sW}, 13")
    I(f"v_lshlrev_b32 v{L16}, 4, v{LN}")
    I(f"v_lshrrev_b32 v{TA}, 3, v{LN}")
    I(f"v_and_b32 v{TB}, 7, v{LN}")
    I(f"v_lshrrev_b32 v{TC}, 1, v{TA}")
    I(f"v_xor_b32 v{TC}, v{TB}, v{TC}")
    I(f"v_lshlrev_b32 v{TC}, 4, v{TC}")
    I(f"v_and_b32 v{TD}, 3, v{TA}")
    I(f"v_lshl_or_b32 v{TC}, v{TD}, 10, v{TC}")
    I(f"v_lshrrev_b32 v{TD}, 2, v{TA}")
    I(f"v_lshl_or_b32 v{VQ}, v{TD}, 14, v{TC}")
    I(f"v_xor_b32 v{VQ+1}, 64, v{VQ}")
    I(f"v_add_u32 v{VQ+2}, {2*3072}, v{VQ}")
    I(f"v_add_u32 v{VQ+3}, {3*3072}, v{VQ+1}")
    I(f"v_add_u32 v{VQ+1}, 3072, v{VQ+1}")
    I(f"v_and_b32 v{TC}, 2, v{TA}")
    I(f"v_lshlrev_b32 v{TC}, 1, v{TC}")
    I(f"v_xor_b32 v{TC}, v{TB}, v{TC}")
    I(f"v_lshlrev_b32 v{TC}, 4, v{TC}")
    I(f"v_lshl_or_b32 v{VR}, v{TA}, 10, v{TC}")
    I(f"v_mul_u32_u24 v{TD}, 3584, v{TA}")
    I(f"v_add_u32 v{VW}, v{TD}, v{TC}")
    I(f"v_lshrrev_b32 v{HH}, 5, v{LN}")
    I(f"v_and_b32 v{RHO}, 31, v{LN}")
    I(f"v_and_b32 v{TA}, 19, v{RHO}")
    I(f"v_bfe_u32 v{TB}, v{RHO}, 2, 1")
    I(f"v_lshl_or_b32 v{TA}, v{TB}, 3, v{TA}")
    I(f"v_bfe_u32 v{TC}, v{RHO}, 3, 1")
    I(f"v_lshl_or_b32 v{SG}, v{TC}, 2, v{TA}")
    I(f"v_and_b32 v{TA}, 3, v{RHO}")
    I(f"v_lshrrev_b32 v{TC}, 3, v{RHO}")
    I(f"v_lshl_or_b32 v{TA}, v{TC}, 2, v{TA}")
    I(f"v_lshl_or_b32 v{PI}, v{TB}, 4, v{TA}")
    a.wait_lg_all()
    I(stamp("start"))
    RR = ACA
    if OPT["tlb"]:
        I(f"v_mov_b32 v{ACB}, 0")
        for n, ptr in enumerate((pX, pW2, pCRE, pCIM, pW1, pBRE, pBIM, pLRE, pLIM, pLDT, pB1, pDSK, pB2, pDBG)):
            I(f"global_load_dword v{ACB+1+n}, v{ACB}, {sp(ptr)}", track=False)
        I(f"v_mov_b32 v{ACB}, {EOFF-128}")
        I(f"global_load_dword v{ACB+15}, v{ACB}, {sp(pWS)}", track=False)
        I(stamp("tlb issued"))
        if OPT["tlb"] > 1:
            a.wait_vm_all()
            I(stamp("tlb done"))
    mk_srd(a, SX, pX, 2048 * 1024)
    mk_srd(a, SWS, pWS, WS_END)
    I(f"s_lshl_b32 s{sT0}, s{sW}, 8")
    I(f"s_xor_b32 s{sT0}, s{sT0}, 0x300")
    I(f"s_or_b32 s{sINI}, s{sT0}, s2")
    I(f"s_cmp_ge_u32 s{sINI}, 16")
    I("s_cbranch_scc1 L_noinit")
    for k in range(4):
        I(f"v_mov_b32 v{RR+k}, -1")
        I(f"v_mov_b32 v{RR+4+k}, 0")
    I(f"s_lshl_b32 s{sT0}, s2, 12")
    I(f"s_add_u32 s{sT0}, s{sT0}, {EOFF}")
    for k in range(4):
        I(f"buffer_store_dwordx4 {vr(RR,4)}, v{L16}, {srd(SWS)}, s{sT0} offen offset:{1024*k} sc1", tag="INIT", track=False)
    I(f"s_lshl_b32 s{sT0}, s2, 10")
    I(f"s_add_u32 s{sT0}, s{sT0}, {HFLAG}")
    I(f"buffer_store_dwordx4 {vr(RR+4,4)}, v{L16}, {srd(SWS)}, s{sT0} offen sc1", tag="INIT", track=False)
    I(f"s_lshl_b32 s{sT0}, s2, 8")
    I(f"s_add_u32 s{sT0}, s{sT0}, {BFLAG}")
    I(f"v_lshlrev_b32 v{TA}, 2, v{LN}")
    I(f"buffer_store_dword v{RR+4}, v{TA}, {srd(SWS)}, s{sT0} offen sc1", tag="INIT", track=False)
    a.label("L_noinit")
    a.vmq = []
    a.run(xgroup(0))
    I(stamp("x0 issued"))
    mk_srd(a, SRS, pWS, WS_END)
    I(f"s_cmp_ge_u32 s{sW}, 2")
    I("s_cbranch_scc1 L_role23")
    I(f"s_lshl_b32 s{sT0}, s2, 1")
    I(f"s_add_u32 s{sT0}, s{sT0}, s{sW}")
    mk_srd(a, SR, pW2, 1792 * 1024)
    I(f"s_cmp_lt_u32 s{sT0}, 448")
    I(f"s_cselect_b32 s{SR+2}, s{SR+2}, 0")
    I(f"s_cselect_b32 s{SRS+2}, s{SRS+2}, 0")
    I(f"s_cselect_b32 s{sT0}, s{sT0}, 0")
    I(f"s_and_b32 s{sT1}, s{sT0}, 7")
    I(f"s_lshr_b32 s{sT0}, s{sT0}, 3")
    I(f"s_lshl_b32 s{sT2}, s{sT0}, 15")
    I(f"s_lshl_b32 s{sRA}, s{sT1}, 7")
    I(f"s_add_u32 s{sT2}, s{sT2}, s{sRA}")
    I(f"s_add_u32 s{sRA}, s{sWL}, {xlds(7)}")
    for q in range(4):
        I(f"s_add_u32 m0, s{sRA}, {q*1024}")
        if q:
            I(f"s_add_u32 s{sT2}, s{sT2}, 8192")
        I(f"buffer_load_dwordx4 v{VR}, {srd(SR)}, s{sT2} offen lds", tag="R", track=False)
    I(f"s_mul_i32 s{sRA}, s{sT1}, {2*RT_STRIDE}")
    I(f"s_and_b32 s{sT2}, s{sT0}, 1")
    I(f"s_lshl_b32 s{sT2}, s{sT2}, 11")
    I(f"s_add_u32 s{sRA}, s{sRA}, s{sT2}")
    I(f"s_lshl_b32 s{sFL}, s{sT1}, 9")
    I(f"s_lshl_b32 s{sT2}, s{sT0}, 2")
    I(f"s_add_u32 s{sFL}, s{sFL}, s{sT2}")
    I(f"s_lshr_b32 s{sT0}, s{sT0}, 1")
    I(f"s_mul_i32 s{sT1}, s{sT0}, 37")
    I(f"s_lshr_b32 s{sT1}, s{sT1}, 8")
    I(f"s_mul_i32 s{sT2}, s{sT1}, {128-56}")
    I(f"s_add_u32 s{sFL}, s{sFL}, s{sT2}")
    I(f"s_mul_i32 s{sT2}, s{sT1}, {G_STRIDE}")
    I(f"s_add_u32 s{sRA}, s{sRA}, s{sT2}")
    I(f"s_mul_i32 s{sT1}, s{sT1}, 7")
    I(f"s_sub_u32 s{sT0}, s{sT0}, s{sT1}")
    I(f"s_lshr_b32 s{sT1}, s{sT0}, 1")
    I(f"s_and_b32 s{sT0}, s{sT0}, 1")
    I(f"s_lshl_b32 s{sT0}, s{sT0}, 2")
    I(f"s_add_u32 s{sT0}, s{sT0}, s{sT1}")
    I(f"s_lshl_b32 s{sT0}, s{sT0}, 12")
    I(f"s_add_u32 s{sRA}, s{sRA}, s{sT0}")
    I(f"s_add_u32 s{sRA}, s{sRA}, {BW}")
    I(f"s_add_u32 s{sRB}, s{sRA}, {RT_STRIDE}")
    I("s_branch L_rolejoin")
    a.label("L_role23")
    I(f"s_cmp_eq_u32 s{sW}, 3")
    I("s_cbranch_scc1 L_role3")
    I(f"s_and_b32 s{sT0}, s2, 1")
    I(f"s_cmp_eq_u32 s{sT0}, 0")
    I(f"s_cselect_b32 s{SR}, s{pCRE}, s{pCIM}")
    I(f"s_cselect_b32 s{SR+1}, s{pCRE+1}, s{pCIM+1}")
    I(f"s_mov_b32 s{SR+2}, {512*1024}")
    I(f"s_mov_b32 s{SR+3}, 0x20000")
    I(f"s_bfe_u32 s{sT1}, s2, 0x30001")
    I(f"s_lshr_b32 s{sT2}, s2, 4")
    I(f"s_lshl_b32 s{sRA}, s{sT2}, 15")
    I(f"s_lshl_b32 s{sRB}, s{sT1}, 7")
    I(f"s_add_u32 s{sRA}, s{sRA}, s{sRB}")
    I(f"v_lshlrev_b32 v{TA}, 4, v{HH}")
    I(f"v_lshl_or_b32 v{TA}, v{SG}, 10, v{TA}")
    for k in range(4):
        I(f"buffer_load_dwordx4 {vr(RR+4*k,4)}, v{TA}, {srd(SR)}, s{sRA} offen offset:{32*k}", tag="R", track=False)
    I(f"s_lshr_b32 s{sFL}, s{sT2}, 1")
    I(f"s_lshl_b32 s{sFL}, s{sFL}, 9")
    I(f"s_lshr_b32 s{sRA}, s{sT1}, 1")
    I(f"s_lshl_b32 s{sRA}, s{sRA}, 7")
    I(f"s_add_u32 s{sFL}, s{sFL}, s{sRA}")
    I(f"s_and_b32 s{sRA}, s{sT2}, 1")
    I(f"s_lshl_b32 s{sRA}, s{sRA}, 4")
    I(f"s_add_u32 s{sFL}, s{sFL}, s{sRA}")
    I(f"s_and_b32 s{sRA}, s2, 3")
    I(f"s_lshl_b32 s{sRA}, s{sRA}, 2")
    I(f"s_add_u32 s{sFL}, s{sFL}, s{sRA}")
    I(f"s_add_u32 s{sFL}, s{sFL}, 56")
    I(f"s_mul_i32 s{sRA}, s{sT2}, {RT_STRIDE}")
    I(f"s_lshr_b32 s{sT2}, s{sT1}, 1")
    I(f"s_mul_i32 s{sT2}, s{sT2}, {G_STRIDE}")
    I(f"s_add_u32 s{sRA}, s{sRA}, s{sT2}")
    I(f"s_and_b32 s{sT1}, s{sT1}, 1")
    I(f"s_lshl_b32 s{sT1}, s{sT1}, 13")
    I(f"s_add_u32 s{sRA}, s{sRA}, s{sT1}")
    I(f"s_lshl_b32 s{sT0}, s{sT0}, 11")
    I(f"s_add_u32 s{sRA}, s{sRA}, s{sT0}")
    I(f"s_add_u32 s{sRA}, s{sRA}, {BW + 28*KB}")
    I(f"s_add_u32 s{sRB}, s{sRA}, 4096")
    I("s_branch L_rolejoin")
    a.label("L_role3")
    a.vmq = [e for e in a.vmq if e.track]
    if OPT["touch"]:
        I("s_getpc_b64 s[68:69]")
        a.label("L_pc")
        I(f"s_lshr_b32 s{sT0}, s2, 3")
        I(f"s_lshl_b32 s{sT0}, s{sT0}, 10")
        I(f"v_and_b32 v{TA}, 7, v{LN}")
        I(f"v_lshl_add_u32 v{TA}, v{TA}, 7, s{sT0}")
        I(f"v_min_u32 v{TA}, L_end-L_pc, v{TA}")
        I(f"v_mov_b32 v{RR+9}, s69")
        I(f"v_add_co_u32 v{RR+8}, vcc, s68, v{TA}")
        I(f"v_addc_co_u32 v{RR+9}, vcc, 0, v{RR+9}, vcc")
        I(f"global_load_dword v{RR+10}, {vr(RR+8,2)}, off", tag="R", track=False)
        I(f"s_lshr_b32 s{sT1}, s{sR}, 3")
        I(f"s_lshl_b32 s{sT0}, s{sROT}, 1")
        I(f"s_add_u32 s{sT0}, s{sT0}, s{sT1}")
        I(f"s_mul_i32 s{sT0}, s{sT0}, {32*3584}")
        I(f"s_add_u32 s{sT0}, s{sT0}, s{sUB}")
        I(f"s_cmp_lt_u32 s{sJJ}, 3")
        I(f"s_cselect_b32 s{sT2}, 128, 0")
        I(f"v_mul_u32_u24 v{TA}, 3584, v{RHO}")
        I(f"v_mul_u32_u24 v{TB}, s{sT2}, v{HH}")
        I(f"v_add3_u32 v{TA}, v{TA}, v{TB}, s{sT0}")
        I(f"global_load_dword v{RR+11}, v{TA}, {sp(pW1)}", tag="R", track=False)
        I(f"s_cmp_eq_u32 s{sT1}, 0")
        I(f"s_cselect_b32 s68, s{pBRE}, s{pBIM}")
        I(f"s_cselect_b32 s69, s{pBRE+1}, s{pBIM+1}")
        I(f"s_lshl_b32 s{sT0}, s{sJ}, 15")
        I(f"s_lshl_b32 s{sT1}, s{sROT}, 7")
        I(f"s_add_u32 s{sT0}, s{sT0}, s{sT1}")
        I(f"v_lshl_add_u32 v{TA}, v{RHO}, 10, s{sT0}")
        I(f"global_load_dword v{RR+12}, v{TA}, s[68:69]", tag="R", track=False)
        I(f"s_bfe_u32 s{sT0}, s2, 0x30003")
        I(f"s_lshl_b32 s{sT0}, s{sT0}, 7")
        I(f"v_mov_b32 v{TA}, s{sT0}")
        I(f"global_load_dword v{RR+13}, v{TA}, {sp(pDSK)}", tag="R", track=False)
        I(f"global_load_dword v{RR+14}, v{TA}, {sp(pB2)}", tag="R", track=False)
    I(f"s_mov_b32 s{SRS+2}, 0")
    I(f"s_mov_b32 s{sRA}, 0")
    I(f"s_mov_b32 s{sRB}, 0")
    I(f"s_mov_b32 s{sFL}, 0")
    a.label("L_rolejoin")
    I(stamp("role done"))
    I(f"s_lshl_b32 s{sT0}, s{sJ}, 6")
    I(f"s_add_u32 s{sT1}, s{sUB}, 128")
    I(f"v_lshl_add_u32 v{TA}, v{PI}, 1, s{sT0}")
    I(f"global_load_ushort v{PA}, v{TA}, {sp(pLRE)}")
    I(stamp("p1"))
    I(f"global_load_ushort v{PA+1}, v{TA}, {sp(pLIM)}")
    I(f"global_load_ushort v{PC}, v{TA}, {sp(pLDT)}")
    I(stamp("p3"))
    I(f"v_lshl_add_u32 v{TA}, v{SG}, 1, s{sUB}")
    I(f"global_load_ushort v{BIA}, v{TA}, {sp(pB1)}")
    I(f"global_load_ushort v{BIA+2}, v{TA}, {sp(pB1)} offset:64")
    I(stamp("p5"))
    I(f"s_min_u32 s{sT1}, s{sT1}, {27*128}")
    I(f"v_lshl_add_u32 v{TA}, v{SG}, 1, s{sT1}")
    I(f"global_load_ushort v{BIA+4}, v{TA}, {sp(pB1)}")
    I(f"global_load_ushort v{BIA+6}, v{TA}, {sp(pB1)} offset:64")
    I(stamp("win1 issued"))
    mk_srd(a, SBR, pBRE, 512 * 1024)
    mk_srd(a, SBI, pBIM, 512 * 1024)
    mk_srd(a, SW1, pW1, 512 * 3584)
    mk_srd(a, SW1B, pW1, 512 * 3584)
    mk_srd(a, SWS2, pWS, WS_END)
    mk_srd(a, SDBG, pDBG, 256)
    mk_srd(a, SOUT, pOUT, 2048 * 2048)
    I(f"s_cmp_lt_u32 s{sJJ}, 3")
    I(f"s_cselect_b32 s{SW1B+2}, s{SW1B+2}, 0")
    I(f"s_cselect_b32 s{SWS2+2}, s{SWS2+2}, 0")
    I(f"s_lshl_b32 s{sT0}, s{sJ}, 12")
    I(f"s_add_u32 s{sT0}, s{sT0}, {EOFF}")
    I(f"s_add_u32 s{SE}, s{pWS}, s{sT0}")
    I(f"s_addc_u32 s{SE+1}, s{pWS+1}, 0")
    I(f"s_mov_b32 s{SE+2}, 4096")
    I(f"s_mov_b32 s{SE+3}, 0x20000")
    I(f"s_mov_b32 s{sONE}, 0x3f803f80")
    I(f"s_add_u32 s{sFL}, s{sFL}, {BFLAG}")
    I(f"s_xor_b32 s{sT0}, s{sW}, s{sROT}")
    I(f"s_lshl_b32 s{sCS}, s{sT0}, 7")
    I(f"s_lshl_b32 s{sT1}, s{sJ}, 15")
    I(f"s_or_b32 s{sCS}, s{sCS}, s{sT1}")
    I(f"s_mul_i32 s{sCM0}, s{sT0}, {64*3584}")
    I(f"s_add_u32 s{sCM0}, s{sCM0}, s{sUB}")
    I(f"s_xor_b32 s{sT0}, s{sT0}, 4")
    I(f"s_mul_i32 s{sCM1}, s{sT0}, {64*3584}")
    I(f"s_add_u32 s{sCM1}, s{sCM1}, s{sUB}")
    I(f"s_lshr_b32 s{sHF}, s{sXB}, 16")
    I(f"s_lshl_b32 s{sHF}, s{sHF}, 2")
    I(f"s_add_u32 s{sHF}, s{sHF}, s{sG}")
    I(f"s_lshl_b32 s{sHF}, s{sHF}, 5")
    I(f"s_and_b32 s{sT0}, s{sW}, 1")
    I(f"s_lshl_b32 s{sT0}, s{sT0}, 2")
    I(f"s_add_u32 s{sHF}, s{sHF}, s{sT0}")
    I(f"s_add_u32 s{sHF}, s{sHF}, s{sJJ}")
    I(f"s_lshl_b32 s{sHF}, s{sHF}, 2")
    I(f"s_add_u32 s{sHF}, s{sHF}, {HFLAG}")
    p2_index(a)
    for q in range(1, 4):
        I(f"v_add_u32 v{VW+q}, {q*(8*3584-1024)}, v{VW}")
    I(f"v_bfe_u32 v{TA}, v{RHO}, 1, 3")
    I(f"v_xor_b32 v{TA}, v{TA}, v{HH}")
    I(f"v_lshlrev_b32 v{TA}, 4, v{TA}")
    I(f"v_lshl_or_b32 v{TA}, v{RHO}, 7, v{TA}")
    I(f"v_add_u32 v{RDS}, s{sWL}, v{TA}")
    I(f"v_add_u32 v{RDS}, {32*KB}, v{RDS}")
    for k in range(1, 4):
        I(f"v_xor_b32 v{RDS+k}, {32*k}, v{RDS}")
    I(f"v_bfe_u32 v{TA}, v{LN}, 2, 2")
    I(f"v_lshl_or_b32 v{TB}, v{HH}, 3, v{TA}")
    I(f"v_lshlrev_b32 v{TB}, 7, v{TB}")
    I(f"v_lshrrev_b32 v{TA}, 1, v{TA}")
    I(f"v_lshl_or_b32 v{TB}, v{TA}, 6, v{TB}")
    I(f"v_bfe_u32 v{TA}, v{LN}, 4, 1")
    I(f"v_lshl_or_b32 v{TB}, v{TA}, 5, v{TB}")
    I(f"v_and_b32 v{TA}, 1, v{LN}")
    I(f"v_lshl_or_b32 v{TB}, v{TA}, 4, v{TB}")
    I(f"v_bfe_u32 v{TA}, v{LN}, 1, 1")
    I(f"v_lshl_or_b32 v{RDT}, v{TA}, 3, v{TB}")
    I(f"v_xor_b32 v{RDT+1}, 64, v{RDT}")
    SEL = ACB + 16
    GOA, GOV = ACB + 24, ACB + 25
    I(f"v_bfe_u32 v{TA}, v{SG}, 3, 1")
    I(f"v_cmp_eq_u32 vcc, v{TA}, v{HH}")
    I(f"v_and_b32 v{TA}, 1, v{SG}")
    I(f"v_lshlrev_b32 v{TA}, 4, v{TA}")
    I(f"v_mov_b32 v{TB}, 0x3f80")
    I(f"v_lshlrev_b32 v{TA}, v{TA}, v{TB}")
    I(f"v_cndmask_b32 v{TA}, 0, v{TA}, vcc")
    I(f"v_bfe_u32 v{TB}, v{SG}, 1, 2")
    I(f"v_lshrrev_b32 v{TC}, 4, v{SG}")
    I(f"v_lshl_or_b32 v{TB}, v{TC}, 2, v{TB}")
    extra = [f"v_mov_b32 v{BIA+k}, 0" for k in (1, 3, 5, 7, 9, 10, 11)]
    extra += [f"v_mov_b32 v{MEAN}, 0", f"v_mov_b32 v{RSTD}, 0", f"v_and_b32 v{GOA}, 15, v{LN}",
              f"v_lshlrev_b32 v{GOA}, 2, v{GOA}", f"v_min_u32 v{KEEP}, 21, v{LN}", f"v_lshlrev_b32 v{KEEP}, 2, v{KEEP}",
              f"v_mov_b32 v{KEEP+2}, 1", f"v_mov_b32 v{KEEP+3}, 0"]
    for k in range(8):
        I(f"v_cmp_eq_u32 vcc, {k}, v{TB}")
        a.run(extra[2 * k:2 * k + 2])
        I(f"v_cndmask_b32 v{SEL+k}, 0, v{TA}, vcc")
    I(stamp("valu done"))
    I(f"s_cmp_ge_u32 s{sINI}, 16")
    I("s_cbranch_scc1 L_nogo")
    a.raw(f"    s_waitcnt vmcnt({4 + 7 + (5 if OPT['touch'] else 0)})")
    I(f"s_lshl_b32 s{sT0}, s2, 2")
    I(f"buffer_store_dword v{KEEP+2}, v{KEEP+3}, {srd(SDBG)}, s{sT0} offen sc1", track=False)
    a.label("L_nogo")
    for c in (1, 2):
        a.run(xgroup(c))
    I(stamp("setup done"))
    a.wait_vm("R")
    I(stamp("R landed"))
    I(f"s_cmp_ge_u32 s{sW}, 2")
    I("s_cbranch_scc1 L_rpjoin")
    I(f"s_add_u32 s{sT0}, s{sWL}, {xlds(7)}")
    I(f"v_add_u32 v{TA}, s{sT0}, v{RDT}")
    I(f"v_add_u32 v{TB}, s{sT0}, v{RDT+1}")
    for dt in range(2):
        for ph in range(2):
            for e in range(2):
                I(f"ds_read_b64_tr_b16 {vr(RR+8*dt+4*ph+2*e,2)}, v{TA+dt} offset:{ph*2048+e*512}", track=False)
    a.label("L_rpjoin")

    def stats(c):
        it = [lambda a: a.need([vr(X + 16 * c, 16)])]
        for k in range(16):
            it.append(f"v_dot2c_f32_bf16 v{MEAN}, s{sONE}, v{X+16*c+k}")
            it.append(f"v_dot2c_f32_bf16 v{RSTD}, v{X+16*c+k}, v{X+16*c+k}")
        return it

    for c in range(8):
        if c + 3 < 8:
            a.run(xgroup(c + 3))
            if c == 4:
                for k in range(4):
                    I(f"buffer_store_dwordx4 {vr(RR+4*k,4)}, v{L16}, {srd(SRS)}, s{sRB if k>=2 else sRA} offen offset:{1024*(k&1)} sc1", tag="RS")
        elif c < 7:
            a.run(wgroup(0, c - 5))
            if c == 5:
                I(f"buffer_load_dword v{GOV}, v{GOA}, {srd(SDBG)}, 0 offen sc1")
        else:
            a.run(wgroup(1, 0))
        if c == 4:
            for k in range(4):
                I(f"v_add_u32 v{RDS+k}, {64*KB}, v{RDS+k}")
        a.wait_vm(f"x{c}")
        if c in (1, 4, 7):
            I(stamp(f"x{c} landed"))
        for k in range(4):
            I(f"ds_read_b128 {vr(X+16*c+4*k,4)}, v{RDS+k} offset:{(xlds(c)-32*KB) % (64*KB)}")
        if c:
            a.run(stats(c - 1))
    a.run(wgroup(1, 1))
    a.run(stats(7))
    NEGM = ACB
    I(f"v_mov_b32 v{TA}, v{MEAN}")
    I(f"v_mov_b32 v{TB}, v{RSTD}")
    I(f"s_add_u32 s{sT0}, s{sWL}, {96*KB}")
    I(f"v_permlane32_swap_b32 v{TA}, v{MEAN}")
    I(f"v_permlane32_swap_b32 v{TB}, v{RSTD}")
    I(f"v_add_f32 v{MEAN}, v{TA}, v{MEAN}")
    I(f"v_add_f32 v{RSTD}, v{TB}, v{RSTD}")
    I(f"v_mul_f32 v{NEGM}, {f32(-1/512)}, v{MEAN}")
    for k in range(1, 16):
        I(f"v_mov_b32 v{NEGM+k}, v{NEGM}")
    for k in range(4):
        I(f"v_subrev_u32 v{RDS+k}, s{sT0}, v{RDS+k}")
    I(stamp("stats done"))

    fill = wgroup(2, 0) + wgroup(2, 1) + wgroup(3, 0) + wgroup(3, 1)
    per = [fill[(len(fill) * i) // 12:(len(fill) * (i + 1)) // 12] for i in range(12)]
    for i in range(17):
        if i < 16:
            D = ACA + 16 * (i & 1)
            I(f"v_mfma_f32_32x32x16_bf16 {vr(D,16)}, {vr(SEL,4)}, {vr(X+8*i,4)}, {vr(NEGM,16)}")
            I(f"v_mfma_f32_32x32x16_bf16 {vr(D,16)}, {vr(SEL+4,4)}, {vr(X+8*i+4,4)}, {vr(D,16)}")
        if i == 4:
            poll(a, "L_go", GOV, GOA, SDBG, 0)
            I(f"buffer_store_dword v{KEEP+2}, v{KEEP+3}, {srd(SRS)}, s{sFL} offen sc1")
        if 1 <= i < 13:
            a.run(per[i - 1])
        if i == 15:
            a.wait_vm("H0")
            I("s_barrier")
            a.run(frag_reads(0))
        if i:
            D = ACA + 16 * ((i - 1) & 1)
            for n in range(8):
                I(f"v_cvt_pk_bf16_f32 v{X+8*(i-1)+n}, v{D+2*n}, v{D+2*n+1}")

    bl = b_loads()
    n1, n2, n3 = OPT["b1"], OPT["b2"], OPT["b3"]
    flat = lambda ll: [x for l in ll for x in l]
    fl2, tail_items = fill_u2()
    bpoll = [f"s_lshl_b32 s{sP0}, s{sN}, 2\ns_add_u32 s{sP0}, s{sP0}, s{sW}\ns_lshl_b32 s{sP0}, s{sP0}, 7\ns_add_u32 s{sP0}, s{sP0}, {BFLAG}",
             f"buffer_load_dword v{KEEP+1}, v{KEEP}, {srd(SWS)}, s{sP0} offen sc1"]
    plan = [
        [(fill_u0(), 1, 62), (wgroup(4, 0) + wgroup(4, 1), 1, 24), (bpoll + wgroup(5, 0) + wgroup(5, 1), 29, 50)],
        [(fill_u1(), 1, 60), (flat(bl[:n1]), 0, 64)],
        [(fl2, 1, 64), (flat(bl[n1:n2]), 0, 64)],
    ]
    for u in range(3):
        a.comment(f"---- GEMM unit {u} ----")
        I(stamp(f"U{u} start"))
        main = []
        for d in range(16):
            n = 16 * u + d
            pre = [lambda a, n=n: a.need(stage_regs(n))]
            if n + 1 < 48 and (n + 1) % 8 == 0:
                hn = (n + 1) // 8
                pre += [lambda a: a.wait_lg_all() if a.lgq else None, lambda a, hn=hn: a.wait_vm(f"H{hn}"), "s_barrier"]
            if n + 1 == 16:
                pre += [f"v_add_u32 v{RDT}, {H[2]}, v{RDT}", f"v_add_u32 v{RDT+1}, {H[2]}, v{RDT+1}"]
            if n + 1 == 32:
                pre += [f"v_add_u32 v{RDT}, {H[4]-H[2]}, v{RDT}", f"v_add_u32 v{RDT+1}, {H[4]-H[2]}, v{RDT+1}"]
            if n + 1 == 40:
                pre += [f"v_subrev_u32 v{RDT}, {H[4]}, v{RDT}", f"v_subrev_u32 v{RDT+1}, {H[4]}, v{RDT+1}"]
            ms = mfmas(n)
            rd = frag_reads(n + 1) if n + 1 < 48 else []
            h = min(len(rd), 5)
            main.append(pre + ms[0] + rd[:h])
            main.append(ms[1] + rd[h:])
            main.append(ms[2])
            main.append(ms[3])
        if u == 0:
            main[63] = main[63] + [lambda a: poll(a, "L_bf", KEEP + 1, KEEP, SWS, f"s{sP0}"), stamp("B flags")]
        wts = []
        for i in range(64):
            nrd = sum(1 for it in main[i] if isinstance(it, str) and it.startswith("ds_read"))
            wts.append(max(6 - nrd - (1 if i % 4 == 0 else 0), 0.01))
        gaps = [[] for _ in range(64)]
        for items, g0, g1 in plan[u]:
            tot = sum(wts[g0:g1])
            acc, done = 0, 0
            for i in range(g0, g1):
                acc += wts[i]
                upto = len(items) if i == g1 - 1 else int(len(items) * acc / tot)
                gaps[i] += items[done:upto]
                done = upto
        for i in range(64):
            a.run(main[i])
            a.run(gaps[i])
    I(stamp("tail start"))
    a.run(merge(tail_items, flat(bl[n2:n3])))
    I(stamp("tail issued"))
    I("s_barrier")
    I(f"v_mov_b32 v{T+1}, 1")
    I(f"v_mov_b32 v{T+2}, 0")
    a.run(flat(bl[n3:n3 + OPT["b4"]]))
    a.wait_vm("HS")
    I(f"buffer_store_dword v{T+1}, v{T+2}, {srd(SWS)}, s{sHF} offen sc1")
    I(stamp("flag out"))
    a.run(flat(bl[n3 + OPT["b4"]:]))


def merge(fl, mem):
    if not mem:
        return list(fl)
    res = []
    n, m = len(fl), len(mem)
    j = 0
    for i in range(n):
        while j < m and j * n <= i * m:
            res.append(mem[j])
            j += 1
        res.append(fl[i])
    res += mem[j:]
    return res


def fill_u2():
    APK, ARS, AET, ARW = VQ, VQ + 1, VQ + 2, VQ + 3
    E0 = T + 4
    it = []
    slots = [RDS, RDS + 2, VW, VW + 2, T + 8, T + 10, T + 12]
    for m in range(6, -1, -1):
        it.append(f"ds_read_b64 {vr(slots[m],2)}, v{AET} offset:{(7-m)*256}")
    it += [f"s_lshl_b32 s{sRA}, s{sR}, 8",
           f"s_movk_i32 s{sRB}, 4096\ns_cmp_eq_u32 s{sW}, 3\ns_cselect_b32 s{sRB}, 256, s{sRB}",
           f"v_lshlrev_b32 v{T+1}, 3, v{LN}",
           f"v_subrev_u32 v{T+1}, s{sRB}, v{T+1}",
           f"v_cmp_gt_i32 vcc, 0, v{T+1}",
           f"v_add_u32 v{T+2}, s{sRA}, v{T+1}"]
    cur = slots[6]
    for m in range(5, -1, -1):
        dst = PP if m == 0 else slots[m]
        it += cfma(dst, PA16, cur, slots[m])
        cur = dst
    it += [f"v_cndmask_b32 v{T+1}, v{T+2}, v{T+1}, vcc"]
    it += cfma(E0, PA16, PP, E0)
    it += [f"buffer_store_dwordx2 {vr(E0,2)}, v{T+1}, {srd(SE)}, 0 offen sc1"]
    tmp = [T + 8 + i for i in range(4)]
    nq = OPT["gelu_shadow"]
    for qd in range(nq):
        it += gelu_plain([ACB + 4 * qd + i for i in range(4)], tmp)
        if qd & 1:
            it += pack_store(ACB + 8 * (qd >> 1), SWS, sHB, 1024 * (qd >> 1))
    tl = []
    EL = [BIA + 2 * n for n in range(6)] + [RDS, RDS + 2]
    EA, EB = VW + 2, VW + 3
    tl += [f"s_lshl_b32 s{sRA}, s{sR}, 8",
           f"s_sub_u32 s{sRA}, s{sRA}, 256",
           f"v_lshlrev_b32 v{EA}, 3, v{RHO}",
           f"v_lshlrev_b32 v{EB}, 8, v{HH}",
           f"v_sub_u32 v{EA}, v{EA}, v{EB}",
           f"v_add_u32 v{EA}, s{sRA}, v{EA}"]
    eloads = []
    for n in range(8):
        if n:
            eloads.append(f"v_subrev_u32 v{EB}, {512*n}, v{EA}")
        eloads.append(f"buffer_load_dwordx2 {vr(EL[n],2)}, v{EB if n else EA}, {srd(SE)}, 0 offen sc1")
    for qd in range(nq, 8):
        tl += gelu_packed(ACB + 4 * qd, T + 8)
        if qd & 1:
            tl += pack_store(ACB + 8 * (qd >> 1), SWS, sHB, 1024 * (qd >> 1))
    U = ACB
    tl += [f"s_add_u32 s{sRB}, s{sHB}, {16*KB}"]
    for qd in range(8):
        tl += gelu_packed(ACA + 4 * qd, T + 8)
        if qd & 1:
            tl += pack_store(ACA + 8 * (qd >> 1), SWS2, sRB, 1024 * (qd >> 1))
        if qd == OPT["eload_at"]:
            tl += eloads
        if qd == 5:
            for n in range(7):
                tl.append(f"ds_read_b128 {vr(U+4*n,4)}, v{APK} offset:{n*1024}")
    for k in range(4):
        tl.append(f"v_mov_b32 v{U+28+k}, v{KEEP+k}")
    TW, TR = VW, VW + 1
    tl += [f"s_mul_i32 s{sRA}, s{sW}, 5120",
           f"s_add_u32 s{sRA}, s{sRA}, {TRB}",
           f"v_mul_u32_u24 v{TW}, 80, v{RHO}",
           f"v_lshl_add_u32 v{TW}, v{HH}, 5, v{TW}",
           f"v_add_u32 v{TW}, s{sRA}, v{TW}",
           f"v_bfe_u32 v{T+1}, v{LN}, 2, 2",
           f"v_lshl_add_u32 v{T+1}, v{HH}, 4, v{T+1}",
           f"v_mul_u32_u24 v{TR}, 80, v{T+1}",
           f"v_and_b32 v{T+1}, 1, v{LN}",
           f"v_lshl_add_u32 v{TR}, v{T+1}, 5, v{TR}",
           f"v_bfe_u32 v{T+1}, v{LN}, 4, 1",
           f"v_lshl_add_u32 v{TR}, v{T+1}, 4, v{TR}",
           f"v_bfe_u32 v{T+1}, v{LN}, 1, 1",
           f"v_lshl_add_u32 v{TR}, v{T+1}, 3, v{TR}",
           f"v_add_u32 v{TR}, s{sRA}, v{TR}"]
    er = [r + h for r in EL for h in range(2)]

    def epoll(a):
        a.need([vr(r, 2) for r in EL])
        a.I(f"s_mov_b32 s{sT2}, 0")
        a.label("L_epoll")
        a.I(f"v_max3_u32 v{T+1}, v{er[0]}, v{er[1]}, v{er[2]}")
        for n in range(3, 15, 2):
            a.I(f"v_max3_u32 v{T+1}, v{T+1}, v{er[n]}, v{er[n+1]}")
        a.I(f"v_max_u32 v{T+1}, v{T+1}, v{er[15]}")
        a.I(f"v_cmp_eq_u32 vcc, -1, v{T+1}")
        a.I(f"s_add_u32 s{sT2}, s{sT2}, 1")
        a.I(f"s_cmp_ge_u32 s{sT2}, {SPIN_MAX}")
        a.I("s_cbranch_scc1 L_epoll_done")
        a.nop(2)
        a.I("s_cbranch_vccz L_epoll_done")
        save, pos = list(a.vmq), a.pos
        for l in eloads:
            a.I(l, track=False)
        a.wait_vm_all()
        a.I("s_branch L_epoll")
        a.vmq, a.pos = save, pos
        a.label("L_epoll_done")
    tl.append(stamp("gelu done"))
    tl.append(epoll)
    tl.append(stamp("E seen"))
    cur = EL[7]
    for n in range(6, -1, -1):
        tl += cfma(EL[n], PA256, cur, EL[n])
        cur = EL[n]
    S, S0, S1 = EL[0], EL[1], EL[2]
    tl += [f"v_mul_f32 v{S0}, v{PAH}, v{S}",
           f"v_mul_f32 v{S0+1}, v{PAH}, v{S+1}",
           f"v_fma_f32 v{S0}, -v{PAH+1}, v{S+1}, v{S0}",
           f"v_fmac_f32 v{S0+1}, v{PAH+1}, v{S}",
           f"v_mov_b32 v{S1}, v{S0}",
           f"v_mov_b32 v{S1+1}, v{S0+1}",
           f"v_permlane32_swap_b32 v{S0}, v{S1}",
           f"v_permlane32_swap_b32 v{S0+1}, v{S1+1}",
           f"v_add_f32 v{S0}, v{S0}, v{S1}",
           f"v_add_f32 v{S0+1}, v{S0+1}, v{S1+1}"]
    tl += cfma(PP, PAS, S0, PP)
    prev = PP
    aa = vr(PA, 2)
    RE, IM = ACA, ACA + 8
    for i in range(16):
        u = U + 2 * i
        tl += [f"v_pk_fma_f32 {vr(u,2)}, {vr(prev,2)}, {aa}, {vr(u,2)} op_sel:[0,0,0] op_sel_hi:[1,0,1]",
               f"v_pk_fma_f32 {vr(u,2)}, {vr(prev,2)}, {aa}, {vr(u,2)} op_sel:[1,1,0] op_sel_hi:[0,1,1] neg_lo:[0,1,0]"]
        prev = u
        if i & 1:
            tl += [f"v_cvt_pk_bf16_f32 v{RE+(i>>1)}, v{u-2}, v{u}",
                   f"v_cvt_pk_bf16_f32 v{IM+(i>>1)}, -v{u-1}, -v{u+1}"]
        if i in (7, 15):
            hf = i >> 3
            for p, R in enumerate((RE, IM)):
                tl.append(f"ds_write_b128 v{TW}, {vr(R+4*hf,4)} offset:{p*2560+16*hf}")
    FR = ACA + 16
    for p in range(2):
        for k in range(2):
            for e in range(2):
                tl.append(f"ds_read_b64_tr_b16 {vr(FR+8*p+4*k+2*e,2)}, v{TR} offset:{p*2560+(8*e+4*k)*80}")
    tl += [f"s_add_u32 s{sRB}, s{sHB}, {28*KB}"]
    for f in range(4):
        tl.append((f"buffer_store_dwordx4 {vr(FR+4*f,4)}, v{L16}, {srd(SWS)}, s{sRB} offen offset:{1024*f} sc1", "HS"))
    return it, tl


ACC2 = 128


def wreg(k, dt):
    return ar(8 * k + 4 * dt, 4) if k < 28 else vr(8 * (k - 28) + 4 * dt, 4)


def hreg(k, tt):
    if k < 4:
        return ar(224 + 8 * k + 4 * tt, 4)
    if k < 8:
        return vr(208 + 8 * (k - 4) + 4 * tt, 4)
    return wreg(k - 8, tt)


def p2_index(a):
    I = a.I
    I(f"s_and_b32 s{sI2}, s2, 7")
    I(f"s_lshl_b32 s{sI2}, s{sI2}, 2")
    I(f"s_lshr_b32 s{sT0}, s2, 6")
    I(f"s_add_u32 s{sI2}, s{sI2}, s{sT0}")
    I(f"s_bfe_u32 s{sN}, s2, 0x30003")
    I(f"s_mul_i32 s{sT0}, s{sW}, {G_STRIDE}")
    I(f"s_mul_i32 s{sA0}, s{sI2}, {2*RT_STRIDE}")
    I(f"s_add_u32 s{sA0}, s{sA0}, s{sT0}")
    I(f"s_mul_i32 s{sB0}, s{sN}, {2*RT_STRIDE}")
    I(f"s_add_u32 s{sB0}, s{sB0}, s{sT0}")
    I(f"s_add_u32 s{sB0}, s{sB0}, {BW}")
    for s in range(11):
        I(f"s_mov_b32 s{sUO+s}, {s*4096}")


def stream_loads(base, reg):
    res = []
    for k in range(44):
        for t in range(2):
            it = []
            if k % 4 == 0 and t == 0:
                it += [f"s_add_u32 s{sP0}, s{base}, s{sUO+k//4}", f"s_add_u32 s{sP1}, s{sP0}, {RT_STRIDE}"]
            it.append(f"buffer_load_dwordx4 {reg(k,t)}, v{L16}, {srd(SWS)}, s{sP0+t} offen offset:{(k&3)*1024} sc1")
            res.append(it)
    return res


def b_loads():
    return stream_loads(sB0, wreg)


def phase2(a):
    I = a.I
    I(f"s_lshl_b32 s{sT0}, s{sI2}, 2")
    I(f"s_add_u32 s{sT0}, s{sT0}, s{sW}")
    I(f"s_lshl_b32 s{sT0}, s{sT0}, 7")
    I(f"s_add_u32 s{sT0}, s{sT0}, {HFLAG}")
    I(f"v_and_b32 v{T+4}, 7, v{LN}")
    I(f"v_lshlrev_b32 v{T+4}, 2, v{T+4}")
    I(f"buffer_load_dword v{T+5}, v{T+4}, {srd(SWS)}, s{sT0} offen sc1")
    poll(a, "L_hf", T + 5, T + 4, SWS, f"s{sT0}")
    I(stamp("H flags"))
    al = stream_loads(sA0, hreg)
    LOOK = 7
    for k in range(LOOK):
        a.run(al[2 * k] + al[2 * k + 1])
    XA, OA, SA = 192, 193, 194
    TA, TB, TC = 195, 196, 197
    WA, RA = 198, 202
    XV, ST, BASE = 208, 216, 224
    DK, BB, DF, BF = 204, 240, 246, 250
    prep = []
    prep += [f"s_lshr_b32 s{sT2}, s{sW}, 1",
             f"s_lshl_b32 s{sT2}, s{sT2}, 5",
             f"s_and_b32 s{sG}, s{sW}, 1",
             f"s_lshl_b32 s{sG}, s{sG}, 3",
             f"s_add_u32 s{sT2}, s{sT2}, s{sG}",
             f"s_lshl_b32 s{sG}, s{sI2}, 6",
             f"s_add_u32 s{sT2}, s{sT2}, s{sG}",
             f"v_lshrrev_b32 v{TA}, 4, v{LN}",
             f"v_and_b32 v{TB}, 15, v{LN}",
             f"v_add_u32 v{TC}, s{sT2}, v{TA}",
             f"s_lshl_b32 s{sG}, s{sN}, 7",
             f"v_lshl_add_u32 v{SA}, v{TB}, 3, s{sG}",
             f"global_load_dwordx2 {vr(DK,2)}, v{SA}, {sp(pDSK)}",
             f"global_load_dwordx2 {vr(BB,2)}, v{SA}, {sp(pB2)}",
             f"v_lshl_add_u32 v{XA}, v{TC}, 10, v{SA}",
             f"v_lshlrev_b32 v{OA}, 1, v{XA}",
             f"s_lshl_b32 s{sG}, s{sW}, 14",
             f"s_lshl_b32 s{sJJ}, s{sI2}, 9",
             f"s_add_u32 s{sG}, s{sG}, s{sJJ}",
             f"s_lshl_b32 s{sJJ}, s{sW}, 7",
             f"s_add_u32 s{sG}, s{sG}, s{sJJ}",
             f"s_add_u32 s{sG}, s{sG}, {STATS}",
             f"v_lshlrev_b32 v{SA}, 3, v{TA}"]
    rowoff = lambda it: 16 * (it & 1) + 4 * (it >> 1)
    for it in range(4):
        prep += [f"s_mov_b32 s{sJJ}, {rowoff(it)*1024}",
                 f"buffer_load_dwordx2 {vr(XV+2*it,2)}, v{XA}, {srd(SX)}, s{sJJ} offen",
                 f"buffer_load_dwordx2 {vr(ST+2*it,2)}, v{SA}, {srd(SWS)}, s{sG} offen offset:{32*it} sc1"]
    prep += [f"v_and_b32 v{TC}, 31, v{LN}",
             f"v_lshrrev_b32 v{WA}, 5, v{LN}",
             f"v_lshlrev_b32 v{WA}, 1, v{WA}",
             f"v_and_b32 v{WA+1}, 7, v{LN}",
             f"v_xor_b32 v{WA}, v{WA}, v{WA+1}",
             f"v_lshlrev_b32 v{WA}, 4, v{WA}",
             f"v_lshl_or_b32 v{WA}, v{TC}, 8, v{WA}",
             f"s_lshl_b32 s{sJJ}, s{sW}, 14",
             f"v_add_u32 v{WA}, s{sJJ}, v{WA}",
             f"v_xor_b32 v{WA+1}, 16, v{WA}",
             f"v_xor_b32 v{WA+2}, 64, v{WA}",
             f"v_xor_b32 v{WA+3}, 80, v{WA}",
             f"v_xor_b32 v{RA}, v{TA}, v{TB}",
             f"v_lshlrev_b32 v{RA}, 4, v{RA}",
             f"v_lshl_or_b32 v{RA}, v{TA}, 8, v{RA}",
             f"s_lshl_b32 s{sJJ}, s{sW}, 12",
             f"v_add_u32 v{RA}, s{sJJ}, v{RA}",
             f"v_xor_b32 v{RA+1}, 64, v{RA}"]
    prep2 = []
    for h in range(2):
        prep2 += [f"v_lshlrev_b32 v{DF+2*h}, 16, v{DK+h}", f"v_and_b32 v{DF+2*h+1}, 0xffff0000, v{DK+h}",
                  f"v_lshlrev_b32 v{BF+2*h}, 16, v{BB+h}", f"v_and_b32 v{BF+2*h+1}, 0xffff0000, v{BB+h}"]
    for it in range(4):
        for c in range(4):
            b = BASE + 4 * it + c
            src = XV + 2 * it + (c >> 1)
            prep2 += [f"v_lshlrev_b32 v{b}, 16, v{src}" if c % 2 == 0 else f"v_and_b32 v{b}, 0xffff0000, v{src}",
                      f"v_sub_f32 v{TA}, v{b}, v{ST+2*it}",
                      f"v_mul_f32 v{TA}, v{TA}, v{ST+2*it+1}",
                      f"v_add_f32 v{b}, v{b}, v{BF+c}",
                      f"v_fmac_f32 v{b}, v{TA}, v{DF+c}"]
    for k in range(44):
        ms = []
        for dt in range(2):
            for tt in range(2):
                D = vr(ACC2 + 32 * dt + 16 * tt, 16)
                ms.append(f"v_mfma_f32_32x32x16_bf16 {D}, {wreg(k,dt)}, {hreg(k,tt)}, {D if k else '0'}")
        a.need([hreg(k, 0), hreg(k, 1), wreg(k, 0), wreg(k, 1)])
        if k in (0, 11, 22, 33):
            I(stamp(f"k{k}"))
        I(ms[0])
        if k + LOOK < 44:
            a.run(al[2 * (k + LOOK)] + al[2 * (k + LOOK) + 1])
        fl = []
        if 10 <= k < 16:
            fl = prep[(len(prep) * (k - 10)) // 6:(len(prep) * (k - 9)) // 6]
        if 26 <= k < 34:
            fl = prep2[(len(prep2) * (k - 26)) // 8:(len(prep2) * (k - 25)) // 8]
        n3 = (len(fl) + 2) // 3
        for i in range(1, 4):
            I(ms[i])
            a.run(fl[(i - 1) * n3:i * n3])
    I(stamp("mfma done"))
    for dt in range(2):
        for tt in range(2):
            for gq in range(4):
                I(f"ds_write_b128 v{WA+gq}, {vr(ACC2+32*dt+16*tt+4*gq,4)} offset:{tt*8192+dt*128}")
    a.wait_lg_all()
    I("s_barrier")
    I(stamp("red barrier"))
    PR = 0
    for it in range(4):
        for q in range(4):
            I(f"ds_read_b128 {vr(PR+16*it+4*q,4)}, v{RA+(it&1)} offset:{q*16384+it*1024}")
    for it in range(4):
        b = BASE + 4 * it
        p = PR + 16 * it
        a.need([vr(p, 16)])
        for h in (0, 2):
            I(f"v_pk_add_f32 {vr(p+h,2)}, {vr(p+h,2)}, {vr(p+4+h,2)}")
        for h in (0, 2):
            I(f"v_pk_add_f32 {vr(p+8+h,2)}, {vr(p+8+h,2)}, {vr(p+12+h,2)}")
        for h in (0, 2):
            I(f"v_pk_add_f32 {vr(b+h,2)}, {vr(b+h,2)}, {vr(p+h,2)}")
        I(f"s_mov_b32 s{sJJ}, {rowoff(it)*2048}")
        for h in (0, 2):
            I(f"v_pk_add_f32 {vr(b+h,2)}, {vr(b+h,2)}, {vr(p+8+h,2)}")
        I(f"buffer_store_dwordx4 {vr(b,4)}, v{OA}, {srd(SOUT)}, s{sJJ} offen {OPT['outflags']}")
    I(stamp("out issued"))
    if DEBUG:
        a.wait_vm_all()
    I(stamp("out done"))


import os
HEADER = open(os.path.dirname(os.path.abspath(__file__)) + "/header.txt").read()


def kd(name):
    return f""".amdhsa_kernel {name}
  .amdhsa_next_free_vgpr 512
  .amdhsa_next_free_sgpr 102
  .amdhsa_accum_offset 256
  .amdhsa_group_segment_fixed_size 0
  .amdhsa_float_denorm_mode_32 3
  .amdhsa_kernarg_size 136
  .amdhsa_user_sgpr_count 2
  .amdhsa_user_sgpr_kernarg_segment_ptr 1
  .amdhsa_system_sgpr_workgroup_id_x 1
.end_amdhsa_kernel
"""


OPT = dict(spin=0, tlb=0, touch=1, b1=24, b2=48, b3=70, b4=8, gelu_shadow=4, eload_at=2, outflags="")


def build():
    a = Asm()
    k1 = NAME + "_kernel"
    a.raw(HEADER.rstrip())
    a.raw("; @launch grid=(256,1,1) block=(256,1,1) lds=163840")
    a.raw('.amdgcn_target "amdgcn-amd-amdhsa--gfx950"\n.text')
    a.raw(f".globl {k1}\n.p2align 8\n.type {k1},@function\n{k1}:")
    a.I("s_cmp_ge_u32 s2, 256")
    a.I("s_cbranch_scc1 L_end")
    if OPT["spin"]:
        a.I("s_memrealtime s[70:71]") if OPT["spin"] == 1 else None
    phase1(a, k1)
    phase2(a)
    if OPT["spin"]:
        a.I("s_cmp_lg_u32 s2, 100\ns_cbranch_scc1 L_end")
        a.I(f"s_cmp_lg_u32 s{sW}, 3\ns_cbranch_scc1 L_end")
        a.I("s_mov_b32 s4, 0")
        a.label("L_spin")
        a.I("s_memrealtime s[6:7]")
        a.wait_lg_all()
        a.I("s_sub_u32 s6, s6, s70\ns_add_u32 s4, s4, 1\ns_cmp_ge_u32 s4, 20000\ns_cbranch_scc1 L_end\ns_cmp_lt_u32 s6, 6000\ns_cbranch_scc1 L_spin")
    stamp_flush(a, 0)
    a.label("L_end")
    a.I("s_endpgm")
    a.raw('.section .rodata,"a"\n.p2align 6')
    a.raw(kd(k1))
    print(f"instructions: {a.count}, nops {a.nops}", file=sys.stderr)
    return a.text()


if __name__ == "__main__":
    out = sys.argv[1] if len(sys.argv) > 1 else f"cdna_kernels/{NAME}.s"
    DEBUG = "-d" in sys.argv
    for arg in sys.argv[2:]:
        if "=" in arg:
            k, v = arg.split("=", 1)
            OPT[k] = type(OPT[k])(v)
    txt = build()
    if DEBUG:
        txt += "; STAMPS " + ",".join(STAMPS) + "\n"
    open(out, "w").write(txt)
```

```python
import re

TRANS = ("v_exp_f32", "v_log_f32", "v_rcp_f32", "v_rsq_f32", "v_sqrt_f32", "v_sin_f32", "v_cos_f32")
RMW = ("v_fmac_f32", "v_dot2c_f32_bf16", "v_fmac_f32_e32", "v_dot2c_f32_bf16_e32")


def regs_of(op):
    op = op.strip()
    op = op.lstrip("-")
    m = re.fullmatch(r"abs\((.*)\)|\|(.*)\|", op)
    if m:
        op = m.group(1) or m.group(2)
    m = re.fullmatch(r"([vas])\[(\d+):(\d+)\]", op)
    if m:
        return [f"{m.group(1)}{i}" for i in range(int(m.group(2)), int(m.group(3)) + 1)]
    m = re.fullmatch(r"([vas])(\d+)", op)
    if m:
        return [op]
    if op == "vcc":
        return ["vcc"]
    if op == "exec":
        return ["exec"]
    if op == "m0":
        return ["m0"]
    return []


class Ins:
    __slots__ = ("text", "mn", "kind", "rd", "wr", "srcc", "wide_store", "tag", "track", "lds_dma", "sdata")

    def __init__(self, text, tag=None, track=True):
        self.text = text
        self.tag = tag
        self.track = track
        t = text.split(";")[0].strip()
        parts = t.split(None, 1)
        self.mn = mn = parts[0]
        rest = parts[1] if len(parts) > 1 else ""
        ops = [o.strip() for o in rest.split(",")] if rest else []
        cleaned = []
        for o in ops:
            cleaned.append(o.split()[0] if o.split() else o)
        ops = cleaned
        self.rd, self.wr, self.srcc = [], [], []
        self.wide_store = False
        self.lds_dma = False
        self.sdata = []
        R = lambda i: regs_of(ops[i]) if i < len(ops) else []
        if mn.startswith("v_mfma"):
            self.kind = "mfma"
            self.wr = R(0)
            self.rd = R(1) + R(2)
            self.srcc = R(3)
        elif mn.startswith("v_"):
            self.kind = "valu"
            if mn.startswith("v_permlane"):
                self.wr = R(0) + R(1)
                self.rd = R(0) + R(1)
            elif mn.startswith("v_add_co") or mn.startswith("v_addc_co") or mn.startswith("v_sub_co"):
                self.wr = R(0) + R(1)
                self.rd = sum((R(i) for i in range(2, len(ops))), [])
            else:
                self.wr = R(0)
                self.rd = sum((R(i) for i in range(1, len(ops))), [])
                if mn in RMW:
                    self.rd += R(0)
        elif mn.startswith("ds_read"):
            self.kind = "ds"
            self.wr = R(0)
            self.rd = R(1)
        elif mn.startswith("ds_write"):
            self.kind = "ds"
            self.rd = sum((R(i) for i in range(len(ops))), [])
        elif mn.startswith("buffer_load"):
            self.kind = "vm"
            if re.search(r"\blds\b", t):
                self.lds_dma = True
                self.rd = R(0) + R(1) + R(2) + ["m0"]
            else:
                self.wr = R(0)
                self.rd = R(1) + R(2) + R(3)
        elif mn.startswith("buffer_store"):
            self.kind = "vm"
            self.rd = R(0) + R(1) + R(2) + R(3)
            self.wide_store = mn.endswith("x4") or mn.endswith("x3")
            self.sdata = R(0)
        elif mn.startswith("global_load"):
            self.kind = "vm"
            self.wr = R(0)
            self.rd = R(1) + R(2)
        elif mn.startswith("global_store"):
            self.kind = "vm"
            self.rd = R(0) + R(1) + R(2)
            self.wide_store = mn.endswith("x4") or mn.endswith("x3")
            self.sdata = R(1)
        elif mn.startswith("s_load") or mn.startswith("s_mem"):
            self.kind = "smem"
            self.wr = R(0)
            self.rd = R(1)
        elif mn in ("s_waitcnt", "s_nop", "s_barrier", "s_endpgm", "s_sleep", "s_setprio") or mn.startswith("s_cbranch") or mn == "s_branch":
            self.kind = "ctl"
        elif mn.startswith("s_cmp"):
            self.kind = "salu"
            self.rd = R(0) + R(1)
        elif mn.startswith("s_"):
            self.kind = "salu"
            self.wr = R(0)
            self.rd = sum((R(i) for i in range(1, len(ops))), [])
        else:
            raise ValueError("unknown instruction: " + text)


class Asm:
    def __init__(self):
        self.out = []
        self.reset_state()
        self.nops = 0
        self.count = 0

    def reset_state(self):
        self.pos = 0
        self.vmq = []
        self.lgq = []
        self.last = {}

    def raw(self, text):
        self.out.append(text)

    def comment(self, text):
        self.out.append("    ; " + text)

    def label(self, name, settle=True):
        self.out.append(name + ":")
        if settle:
            self.settle()

    def settle(self, n=None):
        pass

    def _put(self, text, states=1):
        self.out.append("    " + text)
        self.pos += states
        self.count += 1

    def nop(self, n):
        while n > 0:
            k = min(n, 16)
            self._put(f"s_nop {k-1}", k)
            self.nops += 1
            n -= k

    def _wait_vm_idx(self, idx):
        while sum(1 for e in self.vmq[idx + 1:] if e.track) > 63:
            idx += 1
        n = sum(1 for e in self.vmq[idx + 1:] if e.track)
        self._put(f"s_waitcnt vmcnt({n})")
        self.vmq = self.vmq[idx + 1:]

    def _wait_lg_idx(self, idx):
        if any(e.kind == "smem" for e in self.lgq):
            self._put("s_waitcnt lgkmcnt(0)")
            self.lgq = []
            return
        while sum(1 for e in self.lgq[idx + 1:] if e.track) > 15:
            idx += 1
        n = sum(1 for e in self.lgq[idx + 1:] if e.track)
        self._put(f"s_waitcnt lgkmcnt({n})")
        self.lgq = self.lgq[idx + 1:]

    def wait_vm(self, tag):
        idx = max((i for i, e in enumerate(self.vmq) if e.tag == tag), default=-1)
        if idx >= 0:
            self._wait_vm_idx(idx)

    def wait_lg(self, tag):
        idx = max((i for i, e in enumerate(self.lgq) if e.tag == tag), default=-1)
        if idx >= 0:
            self._wait_lg_idx(idx)

    def wait_vm_all(self):
        self._put("s_waitcnt vmcnt(0)")
        self.vmq = []

    def wait_lg_all(self):
        self._put("s_waitcnt lgkmcnt(0)")
        self.lgq = []

    def need(self, regs):
        rs = set(sum((regs_of(r) for r in regs), []))
        self._dep_wait(rs)

    def _dep_wait(self, rs):
        idx = max((i for i, e in enumerate(self.vmq) if rs & set(e.wr)), default=-1)
        if idx >= 0:
            self._wait_vm_idx(idx)
        idx = max((i for i, e in enumerate(self.lgq) if rs & set(e.wr)), default=-1)
        if idx >= 0:
            self._wait_lg_idx(idx)

    def I(self, text, tag=None, track=True):
        if callable(text):
            text(self)
            return
        if isinstance(text, tuple):
            text, tag = text
        for line in text.split("\n"):
            line = line.strip()
            if line:
                self._one(Ins(line, tag, track))

    def run(self, items):
        for it in items:
            self.I(it)

    def _one(self, ins):
        allr = ins.rd + ins.srcc
        self._dep_wait(set(allr) | set(ins.wr))
        need = 0
        L = self.last

        def req(kind, regs, ws):
            nonlocal need
            for r in regs:
                p = L.get((kind, r))
                if p is not None:
                    need = max(need, ws - (self.pos - p - 1))

        k = ins.kind
        is_trans = ins.mn.replace("_e32", "").replace("_e64", "") in TRANS
        is_dot = ins.mn.startswith("v_dot")
        if k == "mfma":
            req("valu_w", allr, 2)
            req("mfma_w", ins.rd, 12)
            blk = tuple(ins.srcc)
            for r in ins.srcc:
                p = L.get(("mfma_w", r))
                if p is not None and L.get(("mfma_blk", r)) != blk:
                    need = max(need, 10 - (self.pos - p - 1))
            for r in ins.wr:
                p = L.get(("mfma_w", r))
                if p is not None and r not in ins.srcc:
                    pass
            req("dot_w", allr + ins.wr, 3)
        else:
            if k in ("valu", "vm", "ds"):
                req("mfma_w", allr + ins.wr, 12)
            if k == "valu":
                req("mfma_c", ins.wr, 7)
                if not is_trans:
                    req("trans_w", ins.rd, 1)
                else:
                    req("trans_w", ins.rd, 1)
                if ins.mn.startswith("v_permlane") or "dpp" in ins.mn:
                    req("valu_w", ins.rd, 2)
                if ins.mn.startswith("v_readlane") or ins.mn.startswith("v_readfirstlane"):
                    req("valu_w", ins.rd, 1)
                srd = [r for r in ins.rd if r[0] == "s" or r == "vcc"]
                req("valu_w", srd, 2)
                req("store_d", ins.wr, 2)
                if is_dot:
                    src = [r for r in ins.rd if r not in ins.wr]
                    req("dot_w", src, 3)
                else:
                    req("dot_w", ins.rd + ins.wr, 3)
            if k == "vm":
                req("valu_w", [r for r in ins.rd if r[0] == "s"], 5)
                if ins.lds_dma:
                    req("salu_w", ["m0"], 1)
                req("store_d", ins.wr, 2)
                req("trans_w", ins.rd, 1)
                req("dot_w", ins.rd, 3)
            if k == "ds":
                req("store_d", ins.wr, 2)
                req("trans_w", ins.rd, 1)
                req("dot_w", ins.rd, 3)
            if k in ("salu", "smem"):
                req("valu_w", ins.rd, 2)
        if need > 0:
            self.nop(need)
        here = self.pos
        st = 1
        if ins.mn == "s_nop":
            st = int(ins.text.split()[1], 0) + 1
        self._put(ins.text, st)
        if ins.mn == "s_waitcnt":
            raise ValueError("use the wait helpers")
        if k == "mfma":
            for r in ins.wr:
                L[("mfma_w", r)] = here
                L[("mfma_blk", r)] = tuple(ins.wr)
            for r in ins.srcc:
                L[("mfma_c", r)] = here
        elif k == "valu":
            for r in ins.wr:
                L[("valu_w", r)] = here
                L.pop(("mfma_w", r), None)
                if is_trans:
                    L[("trans_w", r)] = here
                if is_dot:
                    L[("dot_w", r)] = here
        elif k == "salu":
            for r in ins.wr:
                L[("salu_w", r)] = here
        elif k == "vm":
            if ins.wide_store:
                for r in ins.sdata:
                    L[("store_d", r)] = here
            self.vmq.append(ins)
        elif k in ("ds", "smem"):
            self.lgq.append(ins)

    def text(self):
        return "\n".join(self.out) + "\n"


def interleave(main, fill, start=0, end=None):
    n = len(main)
    end = n if end is None else end
    span = max(end - start, 1)
    res = []
    done = 0
    for i, g in enumerate(main):
        res += g
        if start <= i < end:
            upto = (len(fill) * (i - start + 1)) // span
            res += fill[done:upto]
            done = upto
    res += fill[done:]
    return res
```

```python
import sys, math, struct
from asmlib import Asm, TRANS

NAME = "parallel_sum__ssm_conv_s5__mixer_channel_mlp__prompt"
KB = 1024
RT_STRIDE = 176 * KB
G_STRIDE = 44 * KB
HID = 0
BW = 64 * RT_STRIDE
EOFF = BW + 16 * RT_STRIDE
STATS = EOFF + 64 * KB
BFLAG = STATS + 64 * KB
HFLAG = BFLAG + 4 * KB
WS_END = HFLAG + 16 * KB
SPIN_MAX = 4000

H = [0, 32 * KB, 64 * KB, 96 * KB, 128 * KB, 0]
PARK = H[1]
ETAB = H[1] + 28 * KB
TRB = H[2]


def f32(x):
    return "0x%08x" % struct.unpack("<I", struct.pack("<f", x))[0]


pX, pLRE, pLIM, pBRE, pBIM, pCRE, pCIM, pLDT = [4 + 2 * i for i in range(8)]
pDSK, pBX, pW1, pB1, pW2, pB2, pOUT, pDBG = [20 + 2 * i for i in range(8)]
pWS = 36
SX, SBR, SBI, SW1, SW1B, SWS, SWS2, SR, SRS, SOUT, SDBG, SE = [40 + 4 * i for i in range(12)]
sW, sR, sJ, sJJ, sG, sROT, sT0, sT1, sT2, sRA, sRB, sHB, sONE, sFL = range(88, 102)
sXB = 38
sUB = 39
sWL = 3
sUO = 4
sI2, sN, sB0, sA0, sP0, sP1 = 15, 16, 17, 18, 24, 25
sCS, sCM0, sCM1 = 26, 27, 28
sHF = 29
sRS = 1
sINI = 0


def srd(n):
    return f"s[{n}:{n+3}]"


def sp(n):
    return f"s[{n}:{n+1}]"


def vr(n, c=1):
    return f"v{n}" if c == 1 else f"v[{n}:{n+c-1}]"


def ar(n, c=1):
    return f"a{n}" if c == 1 else f"a[{n}:{n+c-1}]"


X = 0
ACA, ACB = 128, 160
VQ, VW, RDS, RDT = 192, 196, 200, 204
L16 = 206
MEAN, RSTD, IR2, K0, K1 = 207, 208, 209, 210, 211
PA, PC, PA16, PAS, PAH, PA256, PP = 212, 214, 216, 218, 220, 222, 224
BIA = 226
SB = 234
KEEP = 238
T = 242
STG = 192


DEBUG = False
STAMPV = T + 3
STAMPS = []
DBGOFF = 15 * 1024 * KB


def stamp(name):
    def f(a):
        if not DEBUG:
            return
        n = len(STAMPS)
        STAMPS.append(name)
        if name.endswith("start") and name[0] in "sk":
            a.I("s_memrealtime s[22:23]")
            a.wait_lg_all()
            a.I(f"v_writelane_b32 v{STAMPV}, s22, 62")
        a.I("s_memtime s[22:23]")
        if OPT["rt"]:
            a.I("s_memrealtime vcc")
        a.wait_lg_all()
        a.I(f"v_writelane_b32 v{STAMPV}, s22, {n}")
        if OPT["rt"]:
            a.I(f"v_writelane_b32 v{STAMPV}, vcc_lo, {32+n}")
    return f


def stamp_flush(a, which):
    if not DEBUG:
        return
    a.I("s_memrealtime s[22:23]")
    a.wait_lg_all()
    a.I(f"v_writelane_b32 v{STAMPV}, s22, 63")
    a.I(f"s_lshl_b32 s22, s2, 2\ns_add_u32 s22, s22, s{sW}\ns_lshl_b32 s22, s22, 8\ns_add_u32 s22, s22, {DBGOFF + which*256*KB}")
    a.I(f"s_mov_b32 s{SWS+2}, {16*1024*KB}")
    a.I(f"v_mbcnt_lo_u32_b32 v0, -1, 0\nv_mbcnt_hi_u32_b32 v0, -1, v0\nv_lshlrev_b32 v0, 2, v0")
    a.I(f"buffer_store_dword v{STAMPV}, v0, {srd(SWS)}, s22 offen")


def mk_srd(a, n, ptr, size):
    a.I(f"s_mov_b32 s{n}, s{ptr}")
    a.I(f"s_mov_b32 s{n+1}, s{ptr+1}")
    a.I(f"s_mov_b32 s{n+2}, {size}")
    a.I(f"s_mov_b32 s{n+3}, 0x20000")


def load_kernargs(a):
    a.I("s_load_dwordx16 s[4:19], s[0:1], 0")
    a.I("s_load_dwordx16 s[20:35], s[0:1], 64")
    a.I("s_load_dwordx2 s[36:37], s[0:1], 128")


def dma4(vbase, s, soff, m0expr, tag):
    it = list(m0expr)
    for q in range(4):
        it.append((f"buffer_load_dwordx4 v{vbase+q}, {srd(s)}, s{soff} offen offset:{q*1024} lds", tag))
    return it


def stage_regs(n):
    return [ar(STG + 16 * (n & 3), 16)]


def frag_reads(n):
    u, d = divmod(n, 16)
    it = []
    for s in range(2):
        k = 2 * d + s
        base = STG + 16 * (n & 3) + 8 * s
        if u == 0:
            for part in range(2):
                it.append(f"ds_read_b128 {ar(base+4*part,4)}, v{RDS+(k&3)} offset:{(k>>2)*8192+part*4096}")
        else:
            kk = k if u == 1 else (k & 15)
            for t in range(2):
                for e in range(2):
                    it.append(f"ds_read_b64_tr_b16 {ar(base+4*t+2*e,2)}, v{RDT+t} offset:{kk*2048+e*512}")
    return it


def mfmas(n):
    u, d = divmod(n, 16)
    res = []
    acc = (ACA, ACB, ACA)[u]
    for s in range(2):
        k = 2 * d + s
        base = STG + 16 * (n & 3) + 8 * s
        for t in range(2):
            D = vr(acc + 16 * t, 16)
            g = []
            if u == 0:
                c = D if k else "0"
                g.append(f"v_mfma_f32_32x32x16_bf16 {D}, {vr(X+4*k,4)}, {ar(base+4*t,4)}, {c}")
            else:
                if k == 0:
                    g.append(f"v_mfma_f32_32x32x16_bf16 {D}, {vr(BIA+2*(2*(u-1)+t),4)}, {vr(SB,4)}, 0")
                g.append(f"v_mfma_f32_32x32x16_bf16 {D}, {ar(base+4*t,4)}, {vr(X+4*k,4)}, {D}")
            res.append(g)
    return res


LN, HH, RHO = T, T + 6, T + 7


def cpow(dst, nreg_or_const, zr, zv, t0, t1):
    it = []
    n = nreg_or_const
    if n == 1:
        it += [f"v_exp_f32 v{t0}, v{zr}", f"v_fract_f32 v{t1}, v{zv}"]
    else:
        src = n if isinstance(n, str) else f32(float(n))
        it += [f"v_mul_f32 v{t0}, {src}, v{zr}", f"v_mul_f32 v{t1}, {src}, v{zv}",
               f"v_exp_f32 v{t0}, v{t0}", f"v_fract_f32 v{t1}, v{t1}"]
    it += [f"v_cos_f32 v{dst}, v{t1}", f"v_sin_f32 v{dst+1}, v{t1}",
           f"v_mul_f32 v{dst}, v{dst}, v{t0}", f"v_mul_f32 v{dst+1}, v{dst+1}, v{t0}"]
    return it


def fill_u0():
    it = []
    A0, A1, A2, A3, A4, A5, A6, A7 = [ACB + 24 + i for i in range(8)]
    EPS = f32(1e-5)
    k0 = -2.0 * math.log2(math.e) * math.sqrt(2.0 / math.pi)
    k1 = k0 * 0.044715
    it += [f"v_mul_f32 v{MEAN}, {f32(1/512)}, v{MEAN}",
           f"v_mul_f32 v{A0}, {f32(1/512)}, v{RSTD}",
           f"v_fma_f32 v{A0}, -v{MEAN}, v{MEAN}, v{A0}",
           f"v_max_f32 v{A0}, 0, v{A0}",
           f"v_add_f32 v{A1}, {EPS}, v{A0}",
           f"v_rsq_f32 v{RSTD}, v{A1}",
           f"v_fmac_f32 v{A0}, {EPS}, v{A1}",
           f"v_rsq_f32 v{A2}, v{A0}",
           f"v_sqrt_f32 v{IR2}, v{A0}",
           f"v_mul_f32 v{K0}, {f32(k0)}, v{A2}",
           f"v_mul_f32 v{A3}, v{A2}, v{A2}",
           f"v_mul_f32 v{A3}, {f32(0.044715)}, v{A3}",
           f"v_mul_f32 v{K1}, v{K0}, v{A3}",
           f"v_mul_f32 v{A1}, 0.5, v{IR2}",
           f"v_cvt_pk_bf16_f32 v{A2}, v{A1}, v{A1}",
           f"v_and_b32 v{A3}, 0xffff0000, v{A2}",
           f"v_sub_f32 v{A3}, v{A1}, v{A3}",
           f"v_cvt_pk_bf16_f32 v{SB}, v{A1}, v{A3}"]
    it += [f"s_cmp_eq_u32 s{sJJ}, 0\ns_cselect_b32 s{SRS+2}, {WS_END}, 0",
           f"s_lshr_b32 s{sRA}, s{sXB}, 15",
           f"s_lshl_b32 s{sRA}, s{sRA}, 8",
           f"s_lshl_b32 s{sRB}, s{sG}, 14",
           f"s_add_u32 s{sRA}, s{sRA}, s{sRB}",
           f"s_add_u32 s{sRA}, s{sRA}, {STATS}",
           f"v_mov_b32 v{A4}, v{MEAN}",
           f"v_mov_b32 v{A5}, v{RSTD}",
           f"v_lshlrev_b32 v{A6}, 3, v{RHO}",
           f"buffer_store_dwordx2 {vr(A4,2)}, v{A6}, {srd(SRS)}, s{sRA} offen sc1"]
    for k in range(4):
        it.append(f"v_lshl_or_b32 v{BIA+2*k}, v{BIA+2*k}, 16, v{BIA+2*k}")
    LR, LI, ZR, ZV = ACB, ACB + 1, ACB + 2, ACB + 3
    it += [f"v_lshlrev_b32 v{LR}, 16, v{PA}",
           f"v_lshlrev_b32 v{LI}, 16, v{PA+1}",
           f"v_lshlrev_b32 v{A0}, 16, v{PC}",
           f"v_mul_f32 v{A0}, {f32(math.log2(math.e))}, v{A0}",
           f"v_exp_f32 v{A0}, v{A0}",
           f"v_cvt_f32_u32 v{A2}, v{HH}",
           f"v_cvt_pk_bf16_f32 v{A0}, v{A0}, v{A0}",
           f"v_and_b32 v{A0}, 0xffff0000, v{A0}",
           f"v_mul_f32 v{ZR}, v{A0}, v{LR}",
           f"v_mul_f32 v{ZV}, v{A0}, v{LI}",
           f"v_mul_f32 v{ZR}, {f32(math.log2(math.e))}, v{ZR}",
           f"v_mul_f32 v{ZV}, 0.15915494, v{ZV}"]
    it += cpow(PA, 1, ZR, ZV, A0, A1)
    it += cpow(PA16, 16, ZR, ZV, A0, A1)
    it += cpow(PA256, 256, ZR, ZV, A0, A1)
    it += [f"v_mul_f32 v{A3}, {f32(128.0)}, v{A2}"]
    it += cpow(PAH, f"v{A3}", ZR, ZV, A0, A1)
    it += [f"s_lshl_b32 s{sRA}, s{sW}, 1",
           f"v_add_u32 v{A3}, s{sRA}, v{HH}",
           f"v_cvt_f32_u32 v{A3}, v{A3}",
           f"v_mul_f32 v{A3}, {f32(16.0)}, v{A3}"]
    it += cpow(PAS, f"v{A3}", ZR, ZV, A0, A1)
    it += [f"v_mul_f32 v{A0}, v{LR}, v{LR}",
           f"v_fmac_f32 v{A0}, v{LI}, v{LI}",
           f"v_rcp_f32 v{A0}, v{A0}",
           f"v_add_f32 v{A1}, -1.0, v{PA}",
           f"v_mul_f32 v{A2}, v{A1}, v{LR}",
           f"v_fmac_f32 v{A2}, v{PA+1}, v{LI}",
           f"v_mul_f32 v{A3}, v{PA+1}, v{LR}",
           f"v_fma_f32 v{A3}, -v{A1}, v{LI}, v{A3}",
           f"v_add_f32 v{A0}, v{A0}, v{A0}",
           f"v_mul_f32 v{PC}, v{A2}, v{A0}",
           f"v_mul_f32 v{PC+1}, v{A3}, v{A0}"]
    APK, ARS, AET, ARW = VQ, VQ + 1, VQ + 2, VQ + 3
    it += [f"s_mul_i32 s{sRA}, s{sW}, {7*KB}",
           f"s_add_u32 s{sRA}, s{sRA}, {PARK}",
           f"v_add_u32 v{APK}, s{sRA}, v{L16}",
           f"s_add_u32 s{sRA}, s{sRA}, {6*KB}",
           f"v_lshl_add_u32 v{ARS}, v{HH}, 6, s{sRA}",
           f"v_lshl_add_u32 v{ARW}, v{T+9}, 2, s{sRA}",
           f"s_lshl_b32 s{sRA}, s{sW}, 9",
           f"s_add_u32 s{sRA}, s{sRA}, {ETAB}",
           f"v_lshl_add_u32 v{AET}, v{LN}, 3, s{sRA}"]
    return it


def fill_u1():
    APK, ARS, AET, ARW = VQ, VQ + 1, VQ + 2, VQ + 3
    RSB = (RDS, VW)
    Q0, Q1 = T + 10, KEEP
    t0, t1 = T + 1, T + 2
    E0, E1 = T + 4, PP
    Z = T + 8
    it = [f"ds_write_b32 v{ARW}, v{RSTD}",
          f"ds_read_b128 {vr(RSB[0],4)}, v{ARS}",
          f"ds_read_b128 {vr(RSB[1],4)}, v{ARS} offset:16",
          f"v_mov_b32 v{Z}, 0", f"v_mov_b32 v{Z+1}, 0",
          f"ds_write_b64 v{AET}, {vr(Z,2)}"]
    cur = None
    for i in range(16):
        if i in (4, 8):
            it.append(f"ds_read_b128 {vr(RSB[(i//4+1)&1],4)}, v{ARS} offset:{4*i+16}")
        RS = RSB[(i >> 2) & 1]
        q = (Q0, Q1)[(i >> 1) & 1] + 2 * (i & 1)
        it += [f"v_mul_f32 v{t0}, v{ACA+i}, v{RS+(i&3)}",
               f"v_mul_f32 v{t1}, v{ACA+16+i}, v{RS+(i&3)}",
               f"v_mul_f32 v{q}, v{PC}, v{t0}",
               f"v_mul_f32 v{q+1}, v{PC}, v{t1}",
               f"v_fma_f32 v{q}, -v{PC+1}, v{t1}, v{q}",
               f"v_fmac_f32 v{q+1}, v{PC+1}, v{t0}"]
        if i == 0:
            cur = q
        else:
            nx = E0 if i & 1 else E1
            it += [f"v_fma_f32 v{nx}, v{PA}, v{cur}, v{q}",
                   f"v_fma_f32 v{nx+1}, v{PA}, v{cur+1}, v{q+1}",
                   f"v_fma_f32 v{nx}, -v{PA+1}, v{cur+1}, v{nx}",
                   f"v_fmac_f32 v{nx+1}, v{PA+1}, v{cur}"]
            cur = nx
        if i & 1 and i < 15:
            it.append(f"ds_write_b128 v{APK}, {vr(q-2,4)} offset:{(i>>1)*1024}")
    assert cur == E0
    it.append((f"ds_write_b64 v{AET}, {vr(E0,2)} offset:2048", "E"))
    return it


def gelu_plain(regs, tmp):
    it = []
    n = len(regs)
    for r, t in zip(regs, tmp):
        it.append(f"v_mul_f32 v{t}, v{r}, v{r}")
    for r, t in zip(regs, tmp):
        it.append(f"v_fma_f32 v{t}, v{t}, v{K1}, v{K0}")
    for r, t in zip(regs, tmp):
        it.append(f"v_mul_f32 v{t}, v{t}, v{r}")
    for r, t in zip(regs, tmp):
        it.append(f"v_exp_f32 v{t}, v{t}")
    for r, t in zip(regs, tmp):
        it.append(f"v_fma_f32 v{t}, v{t}, v{IR2}, v{IR2}")
    for r, t in zip(regs, tmp):
        it.append(f"v_rcp_f32 v{t}, v{t}")
    for r, t in zip(regs, tmp):
        it.append(f"v_mul_f32 v{r}, v{r}, v{t}")
    return it


def gelu_packed(base, tmp):
    it = []
    kk = vr(K0, 2)
    ii = vr(RSTD, 2)
    for p in (0, 2):
        it.append(f"v_pk_mul_f32 {vr(tmp+p,2)}, {vr(base+p,2)}, {vr(base+p,2)}")
    for p in (0, 2):
        it.append(f"v_pk_fma_f32 {vr(tmp+p,2)}, {vr(tmp+p,2)}, {kk}, {kk} op_sel:[0,1,0] op_sel_hi:[1,1,0]")
    for p in (0, 2):
        it.append(f"v_pk_mul_f32 {vr(tmp+p,2)}, {vr(tmp+p,2)}, {vr(base+p,2)}")
    for p in range(4):
        it.append(f"v_exp_f32 v{tmp+p}, v{tmp+p}")
    for p in (0, 2):
        it.append(f"v_pk_fma_f32 {vr(tmp+p,2)}, {vr(tmp+p,2)}, {ii}, {ii} op_sel:[0,1,1] op_sel_hi:[1,1,1]")
    for p in range(4):
        it.append(f"v_rcp_f32 v{tmp+p}, v{tmp+p}")
    for p in (0, 2):
        it.append(f"v_pk_mul_f32 {vr(base+p,2)}, {vr(base+p,2)}, {vr(tmp+p,2)}")
    return it


def pack_store(base, s, soff, off, tag):
    it = [f"v_cvt_pk_bf16_f32 v{base+n}, v{base+2*n}, v{base+2*n+1}" for n in range(4)]
    if OPT["x_nostore"] == 1:
        return it
    it.append((f"buffer_store_dwordx4 {vr(base,4)}, v{L16}, {srd(s)}, s{soff} offen offset:{off} {OPT['hsflags']}", tag))
    return it


def cfma(dst, m, x, add):
    return [f"v_fma_f32 v{dst}, v{m}, v{x}, v{add}",
            f"v_fma_f32 v{dst+1}, v{m}, v{x+1}, v{add+1}",
            f"v_fma_f32 v{dst}, -v{m+1}, v{x+1}, v{dst}",
            f"v_fmac_f32 v{dst+1}, v{m+1}, v{x}"]


def poll(a, name, val, addr, s, soff, first_issued=True):
    ld = f"buffer_load_dword v{val}, v{addr}, {srd(s)}, {soff} offen sc1"
    a.need([f"v{val}"])
    a.I(f"v_cmp_eq_u32 vcc, 0, v{val}")
    a.I(f"s_mov_b32 s{sT2}, 0")
    a.nop(4)
    a.I(f"s_cbranch_vccz {name}_done")
    save, pos = list(a.vmq), a.pos
    a.label(name)
    a.I(ld, track=False)
    a.wait_vm_all()
    a.I(f"v_cmp_eq_u32 vcc, 0, v{val}")
    a.I(f"s_add_u32 s{sT2}, s{sT2}, 1")
    a.I(f"s_cmp_ge_u32 s{sT2}, {SPIN_MAX}")
    a.I(f"s_cbranch_scc1 {name}_done")
    a.nop(3)
    a.I(f"s_cbranch_vccnz {name}")
    a.vmq, a.pos = save, pos
    a.label(name + "_done")


def xlds(c):
    return 32 * KB * (1 + (c >> 1)) + 4 * KB * (c & 1)


def xgroup(c):
    return dma4(VQ, SX, sT0, [f"s_add_u32 m0, s{sWL}, {xlds(c)}", f"s_xor_b32 s{sT0}, s{sXB}, {c<<7}"], f"x{c}")


def wgroup(n, half):
    tag = f"H{n}"
    pre = [f"s_add_u32 m0, s{sWL}, {H[n] + 4*KB*half}"]
    if n < 2:
        pre += [f"s_xor_b32 s{sT0}, s{sCS}, {512*(n&1)}"]
        return dma4(VQ, SBI if half else SBR, sT0, pre, tag)
    off = 32 * 3584 * half + (128 if n >= 4 else 0)
    pre += [f"s_add_u32 s{sT0}, s{sCM1 if n&1 else sCM0}, {off}"]
    return dma4(VW, SW1B if n >= 4 else SW1, sT0, pre, tag)


def cost(it):
    if callable(it):
        return 1
    if isinstance(it, tuple):
        it = it[0]
    c = 0
    for l in it.split("\n"):
        mn = l.split()[0]
        if mn in TRANS or mn.startswith("v_mfma"):
            c += 2
        elif mn == "ds_write_b128":
            c += 6
        elif mn.startswith("ds_write"):
            c += 4
        elif mn == "buffer_store_dwordx4":
            c += 7
        elif mn.startswith("buffer_") or mn.startswith("global_"):
            c += 3
        else:
            c += 1
    return c


def spread(main, plans):
    load = [sum(map(cost, g)) for g in main]
    gaps = [[] for _ in main]
    for items, g0, g1, *uni in plans:
        if not items:
            continue
        if uni:
            for j, grp in enumerate(items):
                i = g0 + (j * (g1 - g0)) // len(items)
                gaps[i] += grp
                load[i] += sum(map(cost, grp))
            continue
        tot = sum(load[g0:g1]) + sum(map(cost, items))
        acc, j = 0, 0
        for i in range(g0, g1):
            acc += load[i]
            target = tot * (i - g0 + 1) / (g1 - g0)
            while j < len(items) and (acc + cost(items[j]) / 2 <= target or i == g1 - 1):
                gaps[i].append(items[j])
                acc += cost(items[j])
                load[i] += cost(items[j])
                j += 1
    return [m + g for m, g in zip(main, gaps)]


def phase1(a, kname):
    I = a.I
    load_kernargs(a)
    TA, TB, TC, TD = T + 1, T + 2, ACB + 31, T + 4
    SG, PI, VR = T + 8, T + 9, T + 5
    RR = ACA
    I(f"v_lshrrev_b32 v{TA}, 6, v0")
    I(f"v_and_b32 v{LN}, 63, v0")
    I(f"v_readfirstlane_b32 s{sW}, v{TA}")
    I(f"s_getpc_b64 s[{SR}:{SR+1}]")
    a.label("L_pc")
    I(f"s_and_b32 s{sT0}, s2, 0xf8")
    I(f"v_lshrrev_b32 v{TB}, 5, v0")
    I(f"v_add_u32 v{TB}, s{sT0}, v{TB}")
    I(f"v_lshlrev_b32 v{TB}, 7, v{TB}")
    I(f"v_min_u32 v{TB}, L_end-L_pc, v{TB}")
    I(f"v_mov_b32 v{RR+9}, s{SR+1}")
    I(f"v_add_co_u32 v{RR+8}, vcc, s{SR}, v{TB}")
    I(f"s_and_b32 s{sT0}, s2, 0x78")
    I(f"s_cmp_eq_u32 s{sW}, 0")
    I(f"v_addc_co_u32 v{RR+9}, vcc, 0, v{RR+9}, vcc")
    I(f"s_cselect_b32 s{sT0}, s{sT0}, 128")
    I(f"s_cselect_b32 s{sT1}, 0, 6")
    I(f"global_load_dword v{RR+10}, {vr(RR+8,2)}, off", track=False)
    I(f"s_cmp_eq_u32 s{sW}, 1")
    I(f"s_cselect_b32 s{sT0}, 112, s{sT0}")
    I(f"s_cselect_b32 s{sT1}, 1, s{sT1}")
    if OPT["tlb"]:
        I(f"s_load_dwordx2 s[{SR+2}:{SR+3}], s[0:1], s{sT0}")
    I(f"s_bfe_u32 s{sT0}, s2, 0x30003")
    I(f"s_min_u32 s{sT0}, s{sT0}, s{sT1}")
    I(f"s_lshl_b32 s{sT0}, s{sT0}, 21")
    I(f"v_mov_b32 v{RR+11}, s{sT0}")
    if OPT["arr"] == 84:
        I(f"s_lshr_b32 s{sT0}, s2, 3")
        I(f"s_and_b32 s{sT1}, s{sT0}, 7")
        I(f"s_lshr_b32 s{sJJ}, s{sT0}, 3")
        I(f"s_and_b32 s{sR}, s2, 1")
        I(f"s_lshl_b32 s{sR}, s{sR}, 3")
        I(f"s_add_u32 s{sR}, s{sR}, s{sT1}")
        I(f"s_bfe_u32 s{sG}, s2, 0x20001")
        I(f"s_lshl_b32 s{sJ}, s{sG}, 2")
        I(f"s_add_u32 s{sJ}, s{sJ}, s{sJJ}")
        I(f"s_lshl_b32 s{sROT}, s{sJJ}, 1")
        I(f"s_add_u32 s{sROT}, s{sROT}, s{sT1}")
        I(f"s_and_b32 s{sT0}, s{sG}, 1")
        I(f"s_add_u32 s{sROT}, s{sROT}, s{sT0}")
    else:
        I(f"s_bfe_u32 s{sT1}, s2, 0x20003")
        I(f"s_lshr_b32 s{sT0}, s2, 5")
        I(f"s_and_b32 s{sR}, s2, 3")
        I(f"s_lshl_b32 s{sR}, s{sR}, 2")
        I(f"s_add_u32 s{sR}, s{sR}, s{sT1}")
        I(f"s_and_b32 s{sJ}, s2, 4")
        I(f"s_lshl_b32 s{sJ}, s{sJ}, 1")
        I(f"s_add_u32 s{sJ}, s{sJ}, s{sT0}")
        I(f"s_lshr_b32 s{sG}, s{sJ}, 2")
        I(f"s_and_b32 s{sJJ}, s{sJ}, 3")
        I(f"s_lshl_b32 s{sROT}, s{sT1}, 1")
        I(f"s_add_u32 s{sROT}, s{sROT}, s{sT0}")
    I(f"s_and_b32 s{sROT}, s{sROT}, {OPT['rotmask']}")
    I(f"s_lshl_b32 s{sXB}, s{sR}, 2")
    I(f"s_add_u32 s{sXB}, s{sXB}, s{sW}")
    I(f"s_mov_b32 s{sHB}, s{sXB}")
    I(f"s_lshl_b32 s{sXB}, s{sXB}, 15")
    I(f"s_lshl_b32 s{sT0}, s{sROT}, 7")
    I(f"s_or_b32 s{sXB}, s{sXB}, s{sT0}")
    I(f"s_lshl_b32 s{sWL}, s{sW}, 13")
    I(f"v_lshlrev_b32 v{L16}, 4, v{LN}")
    I(f"v_lshrrev_b32 v{TA}, 3, v{LN}")
    I(f"v_and_b32 v{TB}, 7, v{LN}")
    I(f"v_lshrrev_b32 v{TC}, 1, v{TA}")
    I(f"v_xor_b32 v{TC}, v{TB}, v{TC}")
    I(f"v_lshlrev_b32 v{TC}, 4, v{TC}")
    I(f"v_and_b32 v{TD}, 3, v{TA}")
    I(f"v_lshl_or_b32 v{TC}, v{TD}, 10, v{TC}")
    I(f"v_lshrrev_b32 v{TD}, 2, v{TA}")
    I(f"v_lshl_or_b32 v{VQ}, v{TD}, 14, v{TC}")
    I(f"v_xor_b32 v{VQ+1}, 64, v{VQ}")
    I(f"v_add_u32 v{VQ+2}, {2*3072}, v{VQ}")
    I(f"v_add_u32 v{VQ+3}, {3*3072}, v{VQ+1}")
    I(f"v_add_u32 v{VQ+1}, 3072, v{VQ+1}")
    I(f"v_and_b32 v{TC}, 2, v{TA}")
    I(f"v_lshlrev_b32 v{TC}, 1, v{TC}")
    I(f"v_xor_b32 v{TC}, v{TB}, v{TC}")
    I(f"v_lshlrev_b32 v{TC}, 4, v{TC}")
    I(f"v_lshl_or_b32 v{VR}, v{TA}, 10, v{TC}")
    I(f"v_mul_u32_u24 v{TD}, 3584, v{TA}")
    I(f"v_add_u32 v{VW}, v{TD}, v{TC}")
    I(f"s_mov_b32 s{SX+2}, {2048*1024}")
    I(f"s_mov_b32 s{SX+3}, 0x20000")
    I(f"s_mov_b32 s{SWS+2}, {WS_END}")
    I(f"s_mov_b32 s{SWS+3}, 0x20000")
    a.wait_lg_all()
    I(stamp("start"))
    if OPT["tlb"]:
        I(f"global_load_dword v{RR+12}, v{RR+11}, s[{SR+2}:{SR+3}]", track=False)
    I(f"s_mov_b64 s[{SX}:{SX+1}], {sp(pX)}")
    I(f"s_mov_b64 s[{SWS}:{SWS+1}], {sp(pWS)}")
    I(f"s_lshl_b32 s{sT0}, s{sW}, 8")
    I(f"s_xor_b32 s{sT0}, s{sT0}, 0x300")
    I(f"s_or_b32 s{sINI}, s{sT0}, s2")
    I(f"s_cmp_ge_u32 s{sINI}, 16")
    I("s_cbranch_scc1 L_noinit")
    for k in range(4):
        I(f"v_mov_b32 v{RR+k}, -1")
        I(f"v_mov_b32 v{RR+4+k}, 0")
    I(f"s_lshl_b32 s{sT0}, s2, 12")
    I(f"s_add_u32 s{sT0}, s{sT0}, {EOFF}")
    for k in range(4):
        I(f"buffer_store_dwordx4 {vr(RR,4)}, v{L16}, {srd(SWS)}, s{sT0} offen offset:{1024*k} sc1", tag="INIT", track=False)
    I(f"s_lshl_b32 s{sT0}, s2, 10")
    I(f"s_add_u32 s{sT0}, s{sT0}, {HFLAG}")
    I(f"buffer_store_dwordx4 {vr(RR+4,4)}, v{L16}, {srd(SWS)}, s{sT0} offen sc1", tag="INIT", track=False)
    I(f"s_lshl_b32 s{sT0}, s2, 8")
    I(f"s_add_u32 s{sT0}, s{sT0}, {BFLAG}")
    I(f"v_lshlrev_b32 v{TA}, 2, v{LN}")
    I(f"buffer_store_dword v{RR+4}, v{TA}, {srd(SWS)}, s{sT0} offen sc1", tag="INIT", track=False)
    a.label("L_noinit")
    a.vmq = []
    for c in range(3):
        a.run(xgroup(c))
    I(stamp("x2 issued"))
    I(f"v_lshrrev_b32 v{HH}, 5, v{LN}")
    I(f"v_and_b32 v{RHO}, 31, v{LN}")
    I(f"v_and_b32 v{TA}, 19, v{RHO}")
    I(f"v_bfe_u32 v{TB}, v{RHO}, 2, 1")
    I(f"v_lshl_or_b32 v{TA}, v{TB}, 3, v{TA}")
    I(f"v_bfe_u32 v{TC}, v{RHO}, 3, 1")
    I(f"v_lshl_or_b32 v{SG}, v{TC}, 2, v{TA}")
    I(f"v_and_b32 v{TA}, 3, v{RHO}")
    I(f"v_lshrrev_b32 v{TC}, 3, v{RHO}")
    I(f"v_lshl_or_b32 v{TA}, v{TC}, 2, v{TA}")
    I(f"v_lshl_or_b32 v{PI}, v{TB}, 4, v{TA}")
    I(f"s_mul_i32 s{sHB}, s{sHB}, {RT_STRIDE}")
    I(f"s_mul_i32 s{sT0}, s{sG}, {G_STRIDE}")
    I(f"s_add_u32 s{sHB}, s{sHB}, s{sT0}")
    I(f"s_lshl_b32 s{sT0}, s{sJJ}, 12")
    I(f"s_add_u32 s{sHB}, s{sHB}, s{sT0}")
    I(f"s_mul_i32 s{sUB}, s{sG}, 7")
    I(f"s_lshl_b32 s{sT0}, s{sJJ}, 1")
    I(f"s_add_u32 s{sUB}, s{sUB}, s{sT0}")
    I(f"s_lshl_b32 s{sUB}, s{sUB}, 7")
    mk_srd(a, SRS, pWS, WS_END)
    I(f"s_cmp_ge_u32 s{sW}, 2")
    I("s_cbranch_scc1 L_role23")
    I(f"s_lshl_b32 s{sT0}, s2, 1")
    I(f"s_add_u32 s{sT0}, s{sT0}, s{sW}")
    mk_srd(a, SR, pW2, 1792 * 1024)
    I(f"s_cmp_lt_u32 s{sT0}, 448")
    I(f"s_cselect_b32 s{SR+2}, s{SR+2}, 0")
    I(f"s_cselect_b32 s{SRS+2}, s{SRS+2}, 0")
    I(f"s_cselect_b32 s{sT0}, s{sT0}, 0")
    I(f"s_and_b32 s{sT1}, s{sT0}, 7")
    I(f"s_lshr_b32 s{sT0}, s{sT0}, 3")
    I(f"s_lshl_b32 s{sRS}, s{sT0}, 15")
    I(f"s_lshl_b32 s{sRA}, s{sT1}, 7")
    I(f"s_add_u32 s{sRS}, s{sRS}, s{sRA}")
    I(f"s_mul_i32 s{sRA}, s{sT1}, {2*RT_STRIDE}")
    I(f"s_and_b32 s{sT2}, s{sT0}, 1")
    I(f"s_lshl_b32 s{sT2}, s{sT2}, 11")
    I(f"s_add_u32 s{sRA}, s{sRA}, s{sT2}")
    I(f"s_lshl_b32 s{sFL}, s{sT1}, 9")
    I(f"s_lshl_b32 s{sT2}, s{sT0}, 2")
    I(f"s_add_u32 s{sFL}, s{sFL}, s{sT2}")
    I(f"s_lshr_b32 s{sT0}, s{sT0}, 1")
    I(f"s_mul_i32 s{sT1}, s{sT0}, 37")
    I(f"s_lshr_b32 s{sT1}, s{sT1}, 8")
    I(f"s_mul_i32 s{sT2}, s{sT1}, {128-56}")
    I(f"s_add_u32 s{sFL}, s{sFL}, s{sT2}")
    I(f"s_mul_i32 s{sT2}, s{sT1}, {G_STRIDE}")
    I(f"s_add_u32 s{sRA}, s{sRA}, s{sT2}")
    I(f"s_mul_i32 s{sT1}, s{sT1}, 7")
    I(f"s_sub_u32 s{sT0}, s{sT0}, s{sT1}")
    I(f"s_lshr_b32 s{sT1}, s{sT0}, 1")
    I(f"s_and_b32 s{sT0}, s{sT0}, 1")
    I(f"s_lshl_b32 s{sT0}, s{sT0}, 2")
    I(f"s_add_u32 s{sT0}, s{sT0}, s{sT1}")
    I(f"s_lshl_b32 s{sT0}, s{sT0}, 12")
    I(f"s_add_u32 s{sRA}, s{sRA}, s{sT0}")
    I(f"s_add_u32 s{sRA}, s{sRA}, {BW}")
    I(f"s_add_u32 s{sRB}, s{sRA}, {RT_STRIDE}")
    I("s_branch L_rolejoin")
    a.label("L_role23")
    I(f"s_and_b32 s{sT0}, s2, 1")
    I(f"s_cmp_eq_u32 s{sT0}, 0")
    I(f"s_cselect_b32 s{SR}, s{pCRE}, s{pCIM}")
    I(f"s_cselect_b32 s{SR+1}, s{pCRE+1}, s{pCIM+1}")
    I(f"s_cmp_eq_u32 s{sW}, 2")
    I(f"s_cselect_b32 s{SR+2}, {512*1024}, 0")
    I(f"s_cselect_b32 s{SRS+2}, s{SRS+2}, 0")
    I(f"s_mov_b32 s{SR+3}, 0x20000")
    I(f"s_bfe_u32 s{sT1}, s2, 0x30001")
    I(f"s_lshr_b32 s{sT2}, s2, 4")
    I(f"s_lshl_b32 s{sRS}, s{sT2}, 15")
    I(f"s_lshl_b32 s{sRB}, s{sT1}, 7")
    I(f"s_add_u32 s{sRS}, s{sRS}, s{sRB}")
    I(f"v_lshlrev_b32 v{VR}, 4, v{HH}")
    I(f"v_lshl_or_b32 v{VR}, v{SG}, 10, v{VR}")
    I(f"s_lshr_b32 s{sFL}, s{sT2}, 1")
    I(f"s_lshl_b32 s{sFL}, s{sFL}, 9")
    I(f"s_lshr_b32 s{sRA}, s{sT1}, 1")
    I(f"s_lshl_b32 s{sRA}, s{sRA}, 7")
    I(f"s_add_u32 s{sFL}, s{sFL}, s{sRA}")
    I(f"s_and_b32 s{sRA}, s{sT2}, 1")
    I(f"s_lshl_b32 s{sRA}, s{sRA}, 4")
    I(f"s_add_u32 s{sFL}, s{sFL}, s{sRA}")
    I(f"s_and_b32 s{sRA}, s2, 3")
    I(f"s_lshl_b32 s{sRA}, s{sRA}, 2")
    I(f"s_add_u32 s{sFL}, s{sFL}, s{sRA}")
    I(f"s_add_u32 s{sFL}, s{sFL}, 56")
    I(f"s_mul_i32 s{sRA}, s{sT2}, {RT_STRIDE}")
    I(f"s_lshr_b32 s{sT2}, s{sT1}, 1")
    I(f"s_mul_i32 s{sT2}, s{sT2}, {G_STRIDE}")
    I(f"s_add_u32 s{sRA}, s{sRA}, s{sT2}")
    I(f"s_and_b32 s{sT1}, s{sT1}, 1")
    I(f"s_lshl_b32 s{sT1}, s{sT1}, 13")
    I(f"s_add_u32 s{sRA}, s{sRA}, s{sT1}")
    I(f"s_lshl_b32 s{sT0}, s{sT0}, 11")
    I(f"s_add_u32 s{sRA}, s{sRA}, s{sT0}")
    I(f"s_add_u32 s{sRA}, s{sRA}, {BW + 28*KB}")
    I(f"s_add_u32 s{sRB}, s{sRA}, 4096")
    a.label("L_rolejoin")
    mk_srd(a, SBR, pBRE, 512 * 1024)
    mk_srd(a, SBI, pBIM, 512 * 1024)
    mk_srd(a, SW1, pW1, 512 * 3584)
    mk_srd(a, SW1B, pW1, 512 * 3584)
    mk_srd(a, SWS2, pWS, WS_END)
    mk_srd(a, SDBG, pDBG, 256)
    mk_srd(a, SOUT, pOUT, 2048 * 2048)
    I(f"s_cmp_lt_u32 s{sJJ}, 3")
    I(f"s_cselect_b32 s{SW1B+2}, s{SW1B+2}, 0")
    I(f"s_cselect_b32 s{SWS2+2}, s{SWS2+2}, 0")
    I(f"s_lshl_b32 s{sT0}, s{sJ}, 12")
    I(f"s_add_u32 s{sT0}, s{sT0}, {EOFF}")
    I(f"s_add_u32 s{SE}, s{pWS}, s{sT0}")
    I(f"s_addc_u32 s{SE+1}, s{pWS+1}, 0")
    I(f"s_mov_b32 s{SE+2}, 4096")
    I(f"s_mov_b32 s{SE+3}, 0x20000")
    I(f"s_mov_b32 s{sONE}, 0x3f803f80")
    I(f"s_add_u32 s{sFL}, s{sFL}, {BFLAG}")
    for q in range(1, 4):
        I(f"v_add_u32 v{VW+q}, {q*(8*3584-1024)}, v{VW}")
    I(f"v_bfe_u32 v{TA}, v{RHO}, 1, 3")
    I(f"v_xor_b32 v{TA}, v{TA}, v{HH}")
    I(f"v_lshlrev_b32 v{TA}, 4, v{TA}")
    I(f"v_lshl_or_b32 v{TA}, v{RHO}, 7, v{TA}")
    I(f"v_add_u32 v{RDS}, s{sWL}, v{TA}")
    I(f"v_add_u32 v{RDS}, {32*KB}, v{RDS}")
    for k in range(1, 4):
        I(f"v_xor_b32 v{RDS+k}, {32*k}, v{RDS}")
    I(f"v_bfe_u32 v{TA}, v{LN}, 2, 2")
    I(f"v_lshl_or_b32 v{TB}, v{HH}, 3, v{TA}")
    I(f"v_lshlrev_b32 v{TB}, 7, v{TB}")
    I(f"v_lshrrev_b32 v{TA}, 1, v{TA}")
    I(f"v_lshl_or_b32 v{TB}, v{TA}, 6, v{TB}")
    I(f"v_bfe_u32 v{TA}, v{LN}, 4, 1")
    I(f"v_lshl_or_b32 v{TB}, v{TA}, 5, v{TB}")
    I(f"v_and_b32 v{TA}, 1, v{LN}")
    I(f"v_lshl_or_b32 v{TB}, v{TA}, 4, v{TB}")
    I(f"v_bfe_u32 v{TA}, v{LN}, 1, 1")
    I(f"v_lshl_or_b32 v{RDT}, v{TA}, 3, v{TB}")
    I(f"v_xor_b32 v{RDT+1}, 64, v{RDT}")
    SEL = ACB + 16
    GOA, GOV = ACB + 24, ACB + 25
    I(f"v_bfe_u32 v{TA}, v{SG}, 3, 1")
    I(f"v_cmp_eq_u32 vcc, v{TA}, v{HH}")
    I(f"v_and_b32 v{TA}, 1, v{SG}")
    I(f"v_lshlrev_b32 v{TA}, 4, v{TA}")
    I(f"v_mov_b32 v{TB}, 0x3f80")
    I(f"v_lshlrev_b32 v{TA}, v{TA}, v{TB}")
    I(f"v_cndmask_b32 v{TA}, 0, v{TA}, vcc")
    I(f"v_bfe_u32 v{TB}, v{SG}, 1, 2")
    I(f"v_lshrrev_b32 v{TC}, 4, v{SG}")
    I(f"v_lshl_or_b32 v{TB}, v{TC}, 2, v{TB}")
    extra = [f"v_mov_b32 v{BIA+k}, 0" for k in (1, 3, 5, 7, 9, 10, 11)]
    extra += [f"v_mov_b32 v{MEAN}, 0", f"v_mov_b32 v{RSTD}, 0", f"v_and_b32 v{GOA}, 15, v{LN}",
              f"v_lshlrev_b32 v{GOA}, 2, v{GOA}", f"v_min_u32 v{KEEP}, 21, v{LN}", f"v_lshlrev_b32 v{KEEP}, 2, v{KEEP}",
              f"v_mov_b32 v{KEEP+2}, 1", f"v_mov_b32 v{KEEP+3}, 0"]
    for k in range(8):
        I(f"v_cmp_eq_u32 vcc, {k}, v{TB}")
        a.run(extra[2 * k:2 * k + 2])
        I(f"v_cndmask_b32 v{SEL+k}, 0, v{TA}, vcc")
    I(f"s_cmp_ge_u32 s{sINI}, 16")
    I("s_cbranch_scc1 L_nogo")
    a.raw("    s_waitcnt vmcnt(12)")
    I(f"s_lshl_b32 s{sT0}, s2, 2")
    I(f"buffer_store_dword v{KEEP+2}, v{KEEP+3}, {srd(SDBG)}, s{sT0} offen sc1", track=False)
    a.label("L_nogo")
    I(stamp("setup done"))
    a.run(xgroup(3))

    def stats(c):
        it = [lambda a: a.need([vr(X + 16 * c, 16)])]
        for k in range(16):
            it.append(f"v_dot2c_f32_bf16 v{MEAN}, s{sONE}, v{X+16*c+k}")
            it.append(f"v_dot2c_f32_bf16 v{RSTD}, v{X+16*c+k}, v{X+16*c+k}")
        return it

    RSLOT = xlds(2)
    for c in range(8):
        if c < 4:
            a.run(xgroup(c + 4))
        elif c == 4:
            I(f"s_cmp_ge_u32 s{sW}, 2")
            I("s_cbranch_scc1 L_rl23")
            snap = list(a.vmq)
            for q in range(4):
                I(f"s_add_u32 m0, s{sWL}, {RSLOT + q*1024}")
                I(f"s_add_u32 s{sT0}, s{sRS}, {8192*q}")
                I(f"buffer_load_dwordx4 v{VR}, {srd(SR)}, s{sT0} offen lds", tag="R")
            I("s_branch L_rljoin")
            a.vmq = snap
            a.label("L_rl23")
            for k in range(4):
                I(f"buffer_load_dwordx4 {ar(4*k,4)}, v{VR}, {srd(SR)}, s{sRS} offen offset:{32*k}", tag="R")
            a.label("L_rljoin")
            I(f"s_lshl_b32 s{sT0}, s{sJ}, 6")
            I(f"s_add_u32 s{sT1}, s{sUB}, 128")
            I(f"v_lshl_add_u32 v{TA}, v{PI}, 1, s{sT0}")
            I(f"global_load_ushort v{PA}, v{TA}, {sp(pLRE)}")
            I(f"global_load_ushort v{PA+1}, v{TA}, {sp(pLIM)}")
            I(f"global_load_ushort v{PC}, v{TA}, {sp(pLDT)}")
            I(f"v_lshl_add_u32 v{TA}, v{SG}, 1, s{sUB}")
            I(f"global_load_ushort v{BIA}, v{TA}, {sp(pB1)}")
            I(f"global_load_ushort v{BIA+2}, v{TA}, {sp(pB1)} offset:64")
            I(f"s_min_u32 s{sT1}, s{sT1}, {27*128}")
            I(f"v_lshl_add_u32 v{TA}, v{SG}, 1, s{sT1}")
            I(f"global_load_ushort v{BIA+4}, v{TA}, {sp(pB1)}")
            I(f"global_load_ushort v{BIA+6}, v{TA}, {sp(pB1)} offset:64")
            I(f"buffer_load_dword v{GOV}, v{GOA}, {srd(SDBG)}, 0 offen sc1")
            I(f"s_xor_b32 s{sT0}, s{sW}, s{sROT}")
            I(f"s_lshl_b32 s{sCS}, s{sT0}, 7")
            I(f"s_lshl_b32 s{sT1}, s{sJ}, 15")
            I(f"s_or_b32 s{sCS}, s{sCS}, s{sT1}")
            I(f"s_mul_i32 s{sCM0}, s{sT0}, {64*3584}")
            I(f"s_add_u32 s{sCM0}, s{sCM0}, s{sUB}")
            I(f"s_xor_b32 s{sT0}, s{sT0}, 4")
            I(f"s_mul_i32 s{sCM1}, s{sT0}, {64*3584}")
            I(f"s_add_u32 s{sCM1}, s{sCM1}, s{sUB}")
            I(f"s_lshr_b32 s{sHF}, s{sXB}, 16")
            I(f"s_lshl_b32 s{sHF}, s{sHF}, 2")
            I(f"s_add_u32 s{sHF}, s{sHF}, s{sG}")
            I(f"s_lshl_b32 s{sHF}, s{sHF}, 5")
            I(f"s_and_b32 s{sT0}, s{sW}, 1")
            I(f"s_lshl_b32 s{sT0}, s{sT0}, 2")
            I(f"s_add_u32 s{sHF}, s{sHF}, s{sT0}")
            I(f"s_add_u32 s{sHF}, s{sHF}, s{sJJ}")
            I(f"s_lshl_b32 s{sHF}, s{sHF}, 2")
            I(f"s_add_u32 s{sHF}, s{sHF}, {HFLAG}")
            p2_index(a)
            for k in range(4):
                I(f"v_add_u32 v{RDS+k}, {64*KB}, v{RDS+k}")
        elif c < 7:
            a.run(wgroup(0, c - 5))
        else:
            a.run(wgroup(1, 0))
        a.wait_vm(f"x{c}")
        if c in (0, 4, 7):
            I(stamp(f"x{c} landed"))
        for k in range(4):
            I(f"ds_read_b128 {vr(X+16*c+4*k,4)}, v{RDS+k} offset:{(xlds(c)-32*KB) % (64*KB)}")
        if c:
            a.run(stats(c - 1))
    a.run(stats(7))
    NEGM = ACB
    I(f"v_mov_b32 v{TA}, v{MEAN}")
    I(f"v_mov_b32 v{TB}, v{RSTD}")
    I(f"s_add_u32 s{sT0}, s{sWL}, {96*KB}")
    I(f"v_permlane32_swap_b32 v{TA}, v{MEAN}")
    I(f"v_permlane32_swap_b32 v{TB}, v{RSTD}")
    I(f"v_add_f32 v{MEAN}, v{TA}, v{MEAN}")
    I(f"v_add_f32 v{RSTD}, v{TB}, v{RSTD}")
    I(f"v_mul_f32 v{NEGM}, {f32(-1/512)}, v{MEAN}")
    I(f"v_mul_f32 v{NEGM+1}, {f32(-1/512)}, v{MEAN}")
    for k in range(2, 16, 2):
        I(f"v_pk_mul_f32 {vr(NEGM+k,2)}, {vr(NEGM,2)}, 1.0 op_sel_hi:[1,0]")
    I(stamp("stats done"))


    def rpick(a):
        a.wait_vm("R")
        I(f"s_cmp_ge_u32 s{sW}, 2")
        I("s_cbranch_scc1 L_rpjoin")
        pos = a.pos
        I(f"s_add_u32 s{sT0}, s{sWL}, {RSLOT}")
        I(f"v_add_u32 v{TA}, s{sT0}, v{RDT}")
        I(f"v_add_u32 v{TB}, s{sT0}, v{RDT+1}")
        for dt in range(2):
            for ph in range(2):
                for e in range(2):
                    I(f"ds_read_b64_tr_b16 {ar(8*dt+4*ph+2*e,2)}, v{TA+dt} offset:{ph*2048+e*512}", track=False)
        a.pos = pos
        a.label("L_rpjoin")

    rs = [lambda a: a.wait_lg_all()]
    rs += [(f"buffer_store_dwordx4 {ar(4*k,4)}, v{L16}, {srd(SRS)}, s{sRB if k>=2 else sRA} offen offset:{1024*(k&1)} sc1", "RS") for k in range(4)]
    per = {0: [f"v_subrev_u32 v{RDS+k}, s{sT0}, v{RDS+k}" for k in range(4)] + [rpick], 1: wgroup(1, 1)[:4], 2: wgroup(1, 1)[4:], 3: rs[:3], 4: rs[3:],
           6: [lambda a: poll(a, "L_go", GOV, GOA, SDBG, 0)]}
    fill = wgroup(2, 0) + wgroup(2, 1)
    for i in range(7, 13):
        per[i] = fill[2 * (i - 7):2 * (i - 6)]
    per[14] = [lambda a: a.wait_vm("H0"), "s_barrier"] + frag_reads(0)
    per[15] = frag_reads(1)
    for i in range(17):
        if i < 16:
            D = ACA + 16 * (i & 1)
            I(f"v_mfma_f32_32x32x16_bf16 {vr(D,16)}, {vr(SEL,4)}, {vr(X+8*i,4)}, {vr(NEGM,16)}")
            I(f"v_mfma_f32_32x32x16_bf16 {vr(D,16)}, {vr(SEL+4,4)}, {vr(X+8*i+4,4)}, {vr(D,16)}")
        a.run(per.get(i, []))
        if i:
            D = ACA + 16 * ((i - 1) & 1)
            for n in range(8):
                I(f"v_cvt_pk_bf16_f32 v{X+8*(i-1)+n}, v{D+2*n}, v{D+2*n+1}")

    bl = b_loads()
    n1, n2, n3 = OPT["b1"], OPT["b2"], OPT["b3"]
    assert n1 <= 48 and n2 <= 78
    for j in range(max(n1, 48), n2):
        assert ((j - n1) * 64) // (n2 - n1) >= 4 * ((j - 48) // 2 + 1), j
    flat = lambda ll: [x for l in ll for x in l]
    fl2, tail_items = fill_u2()
    bflag = [lambda a: a.wait_vm("RS"), f"buffer_store_dword v{KEEP+2}, v{KEEP+3}, {srd(SRS)}, s{sFL} offen sc1"]
    bpoll = [f"s_lshl_b32 s{sP0}, s{sN}, 2", f"s_add_u32 s{sP0}, s{sP0}, s{sW}", f"s_lshl_b32 s{sP0}, s{sP0}, 7", f"s_add_u32 s{sP0}, s{sP0}, {BFLAG}",
             f"buffer_load_dword v{KEEP+1}, v{KEEP}, {srd(SWS)}, s{sP0} offen sc1"]
    def grp(items):
        res, cur = [], []
        for it in items:
            cur.append(it)
            if not (isinstance(it, str) and it.startswith("s_")):
                res.append(cur)
                cur = []
        return res
    plan = [
        [(bflag, 1, 2), (grp(wgroup(3, 0) + wgroup(3, 1) + wgroup(4, 0) + wgroup(4, 1)), 2, 40, 1),
         (grp(bpoll + wgroup(5, 0) + wgroup(5, 1)), 40, 62, 1), (fill_u0(), 2, 62)],
        [(bl[:n1], 0, 64, 1), (fill_u1(), 1, 64)],
        [(bl[n1:n2], 0, 64, 1), (fl2, 1, 64)],
    ]
    if OPT["x_nofill"]:
        isw = lambda it: (it[0] if isinstance(it, tuple) else it).startswith("ds_write_b128")
        if OPT["x_nofill"] == 1:
            plan[1][1] = ([], 1, 64)
        else:
            plan[1][1] = ([it for it in fill_u1() if not isw(it)], 1, 64)
    for u in range(3):
        a.comment(f"---- GEMM unit {u} ----")
        I(stamp(f"U{u} start"))
        main = []
        for d in range(16):
            n = 16 * u + d
            pre = [lambda a, n=n: a.need(stage_regs(n))]
            if n + 2 < 48 and (n + 2) % 8 == 0:
                pre += [lambda a, hn=(n + 2) // 8: a.wait_vm(f"H{hn}"), "s_barrier"]
            if n in (7, 15):
                pre += ["s_barrier"]
            if n == 32:
                pre += [lambda a: a.wait_lg("E"), "s_barrier"]
            if n + 2 == 16:
                pre += [f"v_add_u32 v{RDT}, {H[2]}, v{RDT}", f"v_add_u32 v{RDT+1}, {H[2]}, v{RDT+1}"]
            if n + 2 == 32:
                pre += [f"v_add_u32 v{RDT}, {H[4]-H[2]}, v{RDT}", f"v_add_u32 v{RDT+1}, {H[4]-H[2]}, v{RDT+1}"]
            if n + 2 == 40:
                pre += [f"v_subrev_u32 v{RDT}, {H[4]}, v{RDT}", f"v_subrev_u32 v{RDT+1}, {H[4]}, v{RDT+1}"]
            ms = mfmas(n)
            rd = frag_reads(n + 2) if n + 2 < 48 else []
            h = len(rd) // 4
            for i in range(4):
                main.append((pre if i == 0 else []) + ms[i] + rd[i * h:(i + 1) * h])
        if u == 0:
            main[63] = main[63] + [lambda a: poll(a, "L_bf", KEEP + 1, KEEP, SWS, f"s{sP0}"), stamp("B flags")]
        for g in spread(main, plan[u]):
            a.run(g)
    I(stamp("tail start"))
    mk = tail_items.index("MARK")
    a.run(merge(tail_items[:mk], flat(bl[n2:])))
    a.run(tail_items[mk + 1:])
    I(stamp("tail issued"))
    I("s_barrier")


def merge(fl, mem):
    if not mem:
        return list(fl)
    res = []
    n, m = len(fl), len(mem)
    j = 0
    for i in range(n):
        while j < m and j * n <= i * m:
            res.append(mem[j])
            j += 1
        res.append(fl[i])
    res += mem[j:]
    return res


FONE, FZERO = T + 12, T + 13


sHP = SBR
sHV = SBI


def hload(stage):
    return f"s_load_dwordx8 s[{sHV}:{sHV+7}], s[{sHP}:{sHP+1}], {32*stage} glc"


def hpoll(stage):
    def f(a):
        name = f"L_hf{stage}"
        a.I(f"s_mov_b32 s{sT2}, 0")
        a.label(name)
        a.wait_lg_all()
        a.I(f"s_and_b64 s[{sHV}:{sHV+1}], s[{sHV}:{sHV+1}], s[{sHV+2}:{sHV+3}]")
        a.I(f"s_and_b64 s[{sHV+4}:{sHV+5}], s[{sHV+4}:{sHV+5}], s[{sHV+6}:{sHV+7}]")
        a.I(f"s_and_b64 s[{sHV}:{sHV+1}], s[{sHV}:{sHV+1}], s[{sHV+4}:{sHV+5}]")
        a.I(f"s_and_b32 s{sHV}, s{sHV}, s{sHV+1}")
        a.I(f"s_cbranch_scc1 {name}_done")
        pos = a.pos
        a.I(f"s_add_u32 s{sT2}, s{sT2}, 1")
        a.I(f"s_cmp_ge_u32 s{sT2}, {SPIN_MAX}")
        a.I(f"s_cbranch_scc1 {name}_done")
        a.I(hload(stage))
        a.I(f"s_branch {name}")
        a.lgq, a.pos = [], pos
        a.label(name + "_done")
    return f


LOOK = 7


def hflag(stage):
    return [lambda a: a.wait_vm(f"HS{stage}"),
            f"buffer_store_dword v{FONE}, v{FZERO}, {srd(SWS)}, s{sHF} offen offset:{32*stage} sc1"]


def fill_u2():
    APK, ARS, AET, ARW = VQ, VQ + 1, VQ + 2, VQ + 3
    E0 = T + 4
    it = []
    slots = [RDS, RDS + 2, VW, VW + 2, T + 8, T + 10, T + 12]
    for m in range(6, -1, -1):
        it.append(f"ds_read_b64 {vr(slots[m],2)}, v{AET} offset:{(7-m)*256}")
    it += [f"s_lshl_b32 s{sRA}, s{sR}, 8",
           f"s_movk_i32 s{sRB}, 4096\ns_cmp_eq_u32 s{sW}, 3\ns_cselect_b32 s{sRB}, 256, s{sRB}",
           f"v_lshlrev_b32 v{T+1}, 3, v{LN}",
           f"v_subrev_u32 v{T+1}, s{sRB}, v{T+1}",
           f"v_cmp_gt_i32 vcc, 0, v{T+1}",
           f"v_add_u32 v{T+2}, s{sRA}, v{T+1}"]
    it.append(lambda a: a.need([vr(x, 2) for x in slots]))
    cur = slots[6]
    for m in range(5, -1, -1):
        dst = PP if m == 0 else slots[m]
        it += cfma(dst, PA16, cur, slots[m])
        cur = dst
    it += [f"v_cndmask_b32 v{T+1}, v{T+2}, v{T+1}, vcc"]
    it += cfma(E0, PA16, PP, E0)
    it += [f"buffer_store_dwordx2 {vr(E0,2)}, v{T+1}, {srd(SE)}, 0 offen sc1"]
    tmp = [T + 8 + i for i in range(4)]
    nq = OPT["gelu_shadow"]
    for qd in range(nq):
        it += gelu_plain([ACB + 4 * qd + i for i in range(4)], tmp)
        if qd & 1:
            it += pack_store(ACB + 8 * (qd >> 1), SWS, sHB, 1024 * (qd >> 1), "HS0")
    tl = [f"v_mov_b32 v{FONE}, 1", f"v_mov_b32 v{FZERO}, 0"]
    EL = [BIA + 2 * n for n in range(6)] + [RDS, RDS + 2]
    EA, EB = VW + 2, VW + 3
    tl += [f"s_lshl_b32 s{sRA}, s{sR}, 8",
           f"s_sub_u32 s{sRA}, s{sRA}, 256",
           f"v_lshlrev_b32 v{EA}, 3, v{RHO}",
           f"v_lshlrev_b32 v{EB}, 8, v{HH}",
           f"v_sub_u32 v{EA}, v{EA}, v{EB}",
           f"v_add_u32 v{EA}, s{sRA}, v{EA}"]
    eloads = []
    for n in range(8):
        if n:
            eloads.append(f"v_subrev_u32 v{EB}, {512*n}, v{EA}")
        eloads.append(f"buffer_load_dwordx2 {vr(EL[n],2)}, v{EB if n else EA}, {srd(SE)}, 0 offen sc1")
    for qd in range(nq, 8):
        tl += gelu_packed(ACB + 4 * qd, T + 8)
        if qd & 1:
            tl += pack_store(ACB + 8 * (qd >> 1), SWS, sHB, 1024 * (qd >> 1), "HS0")
    U = ACB
    tl += [f"s_add_u32 s{sRB}, s{sHB}, {16*KB}"]
    for qd in range(8):
        tl += gelu_packed(ACA + 4 * qd, T + 8)
        if qd & 1:
            tl += pack_store(ACA + 8 * (qd >> 1), SWS2, sRB, 1024 * (qd >> 1), "HS1")
        if qd == OPT["flag0_at"]:
            tl += hflag(0) + [stamp("flag0")]
        if qd == OPT["eload_at"]:
            tl += eloads
        if qd == 5:
            for n in range(7):
                tl.append(f"ds_read_b128 {vr(U+4*n,4)}, v{APK} offset:{n*1024}")
    for k in range(4):
        tl.append(f"v_mov_b32 v{U+28+k}, v{KEEP+k}")
    TW, TR = VW, VW + 1
    tl += [f"s_mul_i32 s{sRA}, s{sW}, 5120",
           f"s_add_u32 s{sRA}, s{sRA}, {TRB}",
           f"v_mul_u32_u24 v{TW}, 80, v{RHO}",
           f"v_lshl_add_u32 v{TW}, v{HH}, 5, v{TW}",
           f"v_add_u32 v{TW}, s{sRA}, v{TW}",
           f"v_bfe_u32 v{T+1}, v{LN}, 2, 2",
           f"v_lshl_add_u32 v{T+1}, v{HH}, 4, v{T+1}",
           f"v_mul_u32_u24 v{TR}, 80, v{T+1}",
           f"v_and_b32 v{T+1}, 1, v{LN}",
           f"v_lshl_add_u32 v{TR}, v{T+1}, 5, v{TR}",
           f"v_bfe_u32 v{T+1}, v{LN}, 4, 1",
           f"v_lshl_add_u32 v{TR}, v{T+1}, 4, v{TR}",
           f"v_bfe_u32 v{T+1}, v{LN}, 1, 1",
           f"v_lshl_add_u32 v{TR}, v{T+1}, 3, v{TR}",
           f"v_add_u32 v{TR}, s{sRA}, v{TR}"]
    er = [r + h for r in EL for h in range(2)]

    def epoll(a):
        a.need([vr(r, 2) for r in EL])
        a.I(f"s_mov_b32 s{sT2}, 0")
        a.label("L_epoll")
        a.I(f"v_max3_u32 v{T+1}, v{er[0]}, v{er[1]}, v{er[2]}")
        for n in range(3, 15, 2):
            a.I(f"v_max3_u32 v{T+1}, v{T+1}, v{er[n]}, v{er[n+1]}")
        a.I(f"v_max_u32 v{T+1}, v{T+1}, v{er[15]}")
        a.I(f"v_cmp_eq_u32 vcc, -1, v{T+1}")
        a.I(f"s_add_u32 s{sT2}, s{sT2}, 1")
        a.I(f"s_cmp_ge_u32 s{sT2}, {SPIN_MAX}")
        a.I("s_cbranch_scc1 L_epoll_done")
        a.nop(2)
        a.I("s_cbranch_vccz L_epoll_done")
        save, pos = list(a.vmq), a.pos
        for l in eloads:
            a.I(l, track=False)
        a.wait_vm_all()
        a.I("s_branch L_epoll")
        a.vmq, a.pos = save, pos
        a.label("L_epoll_done")
    tl.append(stamp("gelu done"))
    tl.append(epoll)
    tl.append(stamp("E seen"))
    cur = EL[7]
    for n in range(6, -1, -1):
        tl += cfma(EL[n], PA256, cur, EL[n])
        cur = EL[n]
    S, S0, S1 = EL[0], EL[1], EL[2]
    tl += [f"v_mul_f32 v{S0}, v{PAH}, v{S}",
           f"v_mul_f32 v{S0+1}, v{PAH}, v{S+1}",
           f"v_fma_f32 v{S0}, -v{PAH+1}, v{S+1}, v{S0}",
           f"v_fmac_f32 v{S0+1}, v{PAH+1}, v{S}",
           f"v_mov_b32 v{S1}, v{S0}",
           f"v_mov_b32 v{S1+1}, v{S0+1}",
           f"v_permlane32_swap_b32 v{S0}, v{S1}",
           f"v_permlane32_swap_b32 v{S0+1}, v{S1+1}",
           f"v_add_f32 v{S0}, v{S0}, v{S1}",
           f"v_add_f32 v{S0+1}, v{S0+1}, v{S1+1}"]
    tl += cfma(PP, PAS, S0, PP)
    tl.append("MARK")
    tl += [f"s_lshl_b32 s{sT0}, s{sI2}, 2",
           f"s_add_u32 s{sT0}, s{sT0}, s{sW}",
           f"s_lshl_b32 s{sT0}, s{sT0}, 7",
           f"s_add_u32 s{sT0}, s{sT0}, {HFLAG}",
           f"s_add_u32 s{sHP}, s{pWS}, s{sT0}\ns_addc_u32 s{sHP+1}, s{pWS+1}, 0",
           lambda a: a.need([vr(U, 28)]),
           hload(0)]
    prev = PP
    aa = vr(PA, 2)
    RE, IM = ACA, ACA + 8
    for i in range(16):
        u = U + 2 * i
        tl += [f"v_pk_fma_f32 {vr(u,2)}, {vr(prev,2)}, {aa}, {vr(u,2)} op_sel:[0,0,0] op_sel_hi:[1,0,1]",
               f"v_pk_fma_f32 {vr(u,2)}, {vr(prev,2)}, {aa}, {vr(u,2)} op_sel:[1,1,0] op_sel_hi:[0,1,1] neg_lo:[0,1,0]"]
        prev = u
        if i & 1:
            tl += [f"v_cvt_pk_bf16_f32 v{RE+(i>>1)}, v{u-2}, v{u}",
                   f"v_cvt_pk_bf16_f32 v{IM+(i>>1)}, -v{u-1}, -v{u+1}"]
        if i in (7, 15):
            hf = i >> 3
            for p, R in enumerate((RE, IM)):
                tl.append(f"ds_write_b128 v{TW}, {vr(R+4*hf,4)} offset:{p*2560+16*hf}")
    FR = ACA + 16
    for p in range(2):
        for k in range(2):
            for e in range(2):
                tl.append(f"ds_read_b64_tr_b16 {vr(FR+8*p+4*k+2*e,2)}, v{TR} offset:{p*2560+(8*e+4*k)*80}")
    tl += [f"s_add_u32 s{sRB}, s{sHB}, {28*KB}"]
    tl += [stamp("scan done")] + hflag(1) + [stamp("flag1")]
    al = stream_loads(sA0, hreg)
    na = OPT["a_first"]
    hs2 = [lambda a: a.need([vr(FR, 16)])]
    for f in range(4):
        hs2.append((f"buffer_store_dwordx4 {vr(FR+4*f,4)}, v{L16}, {srd(SWS)}, s{sRB} offen offset:{1024*f} sc1", "HS2"))
    if na == 0:
        tl += hs2
    tl += [hpoll(0), stamp("H flags")]
    for k in range(na):
        tl += al[k]
    if na:
        tl += hs2
    for k in range(na, 2 * LOOK):
        tl += al[k]
    return it, tl


ACC2 = 128


def wreg(k, dt):
    return ar(8 * k + 4 * dt, 4) if k < 28 else vr(8 * (k - 28) + 4 * dt, 4)


def hreg(k, tt):
    if k < 4:
        return ar(224 + 8 * k + 4 * tt, 4)
    if k < 8:
        return vr(208 + 8 * (k - 4) + 4 * tt, 4)
    return wreg(k - 8, tt)


def p2_index(a):
    I = a.I
    if OPT["arr2"] == 48:
        I(f"s_and_b32 s{sI2}, s2, 7")
        I(f"s_lshl_b32 s{sI2}, s{sI2}, 2")
        I(f"s_lshr_b32 s{sT0}, s2, 6")
        I(f"s_add_u32 s{sI2}, s{sI2}, s{sT0}")
        I(f"s_bfe_u32 s{sN}, s2, 0x30003")
    else:
        I(f"s_and_b32 s{sI2}, s2, 3")
        I(f"s_lshl_b32 s{sI2}, s{sI2}, 3")
        I(f"s_bfe_u32 s{sT0}, s2, 0x30003")
        I(f"s_add_u32 s{sI2}, s{sI2}, s{sT0}")
        I(f"s_and_b32 s{sN}, s2, 4")
        I(f"s_lshr_b32 s{sT0}, s2, 6")
        I(f"s_add_u32 s{sN}, s{sN}, s{sT0}")
    I(f"s_mul_i32 s{sT0}, s{sW}, {G_STRIDE}")
    I(f"s_mul_i32 s{sA0}, s{sI2}, {2*RT_STRIDE}")
    I(f"s_add_u32 s{sA0}, s{sA0}, s{sT0}")
    I(f"s_mul_i32 s{sB0}, s{sN}, {2*RT_STRIDE}")
    I(f"s_add_u32 s{sB0}, s{sB0}, s{sT0}")
    I(f"s_add_u32 s{sB0}, s{sB0}, {BW}")
    for s in range(11):
        I(f"s_mov_b32 s{sUO+s}, {s*4096}")


def stream_loads(base, reg):
    res = []
    for k in range(44):
        for t in range(2):
            it = []
            if k % 4 == 0 and t == 0:
                it += [f"s_add_u32 s{sP0}, s{base}, s{sUO+k//4}", f"s_add_u32 s{sP1}, s{sP0}, {RT_STRIDE}"]
            it.append(f"buffer_load_dwordx4 {reg(k,t)}, v{L16}, {srd(SWS)}, s{sP0+t} offen offset:{(k&3)*1024} sc1")
            res.append(it)
    return res


def b_loads():
    l = stream_loads(sB0, wreg)
    return l[:48] + l[56:] + l[48:56]


def phase2(a):
    I = a.I
    al = stream_loads(sA0, hreg)
    XA, OA, SA = 192, 193, 194
    TA, TB, TC = 195, 196, 197
    WA, RA = 198, 202
    XV, ST, BASE = 208, 216, 224
    DK, BB, DF, BF = 204, 240, 246, 250
    sT2 = sROT
    prep = []
    prep += [f"s_lshr_b32 s{sT2}, s{sW}, 1",
             f"s_lshl_b32 s{sT2}, s{sT2}, 5",
             f"s_and_b32 s{sG}, s{sW}, 1",
             f"s_lshl_b32 s{sG}, s{sG}, 3",
             f"s_add_u32 s{sT2}, s{sT2}, s{sG}",
             f"s_lshl_b32 s{sG}, s{sI2}, 6",
             f"s_add_u32 s{sT2}, s{sT2}, s{sG}",
             f"v_lshrrev_b32 v{TA}, 4, v{LN}",
             f"v_and_b32 v{TB}, 15, v{LN}",
             f"v_add_u32 v{TC}, s{sT2}, v{TA}",
             f"s_lshl_b32 s{sG}, s{sN}, 7",
             f"v_lshl_add_u32 v{SA}, v{TB}, 3, s{sG}",
             f"global_load_dwordx2 {vr(DK,2)}, v{SA}, {sp(pDSK)}",
             f"global_load_dwordx2 {vr(BB,2)}, v{SA}, {sp(pB2)}",
             f"v_lshl_add_u32 v{XA}, v{TC}, 10, v{SA}",
             f"v_lshlrev_b32 v{OA}, 1, v{XA}",
             f"s_lshl_b32 s{sG}, s{sW}, 14",
             f"s_lshl_b32 s{sJJ}, s{sI2}, 9",
             f"s_add_u32 s{sG}, s{sG}, s{sJJ}",
             f"s_lshl_b32 s{sJJ}, s{sW}, 7",
             f"s_add_u32 s{sG}, s{sG}, s{sJJ}",
             f"s_add_u32 s{sG}, s{sG}, {STATS}",
             f"v_lshlrev_b32 v{SA}, 3, v{TA}"]
    rowoff = lambda it: 16 * (it & 1) + 4 * (it >> 1)
    for it in range(4):
        prep += [f"s_mov_b32 s{sJJ}, {rowoff(it)*1024}",
                 f"buffer_load_dwordx2 {vr(XV+2*it,2)}, v{XA}, {srd(SX)}, s{sJJ} offen",
                 f"buffer_load_dwordx2 {vr(ST+2*it,2)}, v{SA}, {srd(SWS)}, s{sG} offen offset:{32*it} sc1"]
    prep += [f"v_and_b32 v{TC}, 31, v{LN}",
             f"v_lshrrev_b32 v{WA}, 5, v{LN}",
             f"v_lshlrev_b32 v{WA}, 1, v{WA}",
             f"v_and_b32 v{WA+1}, 7, v{LN}",
             f"v_xor_b32 v{WA}, v{WA}, v{WA+1}",
             f"v_lshlrev_b32 v{WA}, 4, v{WA}",
             f"v_lshl_or_b32 v{WA}, v{TC}, 8, v{WA}",
             f"s_lshl_b32 s{sJJ}, s{sW}, 14",
             f"v_add_u32 v{WA}, s{sJJ}, v{WA}",
             f"v_xor_b32 v{WA+1}, 16, v{WA}",
             f"v_xor_b32 v{WA+2}, 64, v{WA}",
             f"v_xor_b32 v{WA+3}, 80, v{WA}",
             f"v_xor_b32 v{RA}, v{TA}, v{TB}",
             f"v_lshlrev_b32 v{RA}, 4, v{RA}",
             f"v_lshl_or_b32 v{RA}, v{TA}, 8, v{RA}",
             f"s_lshl_b32 s{sJJ}, s{sW}, 12",
             f"v_add_u32 v{RA}, s{sJJ}, v{RA}",
             f"v_xor_b32 v{RA+1}, 64, v{RA}"]
    prep2 = []
    for h in range(2):
        prep2 += [f"v_lshlrev_b32 v{DF+2*h}, 16, v{DK+h}", f"v_and_b32 v{DF+2*h+1}, 0xffff0000, v{DK+h}",
                  f"v_lshlrev_b32 v{BF+2*h}, 16, v{BB+h}", f"v_and_b32 v{BF+2*h+1}, 0xffff0000, v{BB+h}"]
    for it in range(4):
        for c in range(4):
            b = BASE + 4 * it + c
            src = XV + 2 * it + (c >> 1)
            prep2 += [f"v_lshlrev_b32 v{b}, 16, v{src}" if c % 2 == 0 else f"v_and_b32 v{b}, 0xffff0000, v{src}",
                      f"v_sub_f32 v{TA}, v{b}, v{ST+2*it}",
                      f"v_mul_f32 v{TA}, v{TA}, v{ST+2*it+1}",
                      f"v_add_f32 v{b}, v{b}, v{BF+c}",
                      f"v_fmac_f32 v{b}, v{TA}, v{DF+c}"]
    for k in range(44):
        ms = []
        for dt in range(2):
            for tt in range(2):
                D = vr(ACC2 + 32 * dt + 16 * tt, 16)
                ms.append(f"v_mfma_f32_32x32x16_bf16 {D}, {wreg(k,dt)}, {hreg(k,tt)}, {D if k else '0'}")
        a.need([hreg(k, 0), hreg(k, 1), wreg(k, 0), wreg(k, 1)])
        if k in (0, 11, 22, 33):
            I(stamp(f"k{k}"))
        I(ms[0])
        if k == OPT["flag2_at"]:
            a.run(hflag(2))
        if k + LOOK in (16, 28):
            I(hpoll(1 if k + LOOK == 16 else 2))
        if k + LOOK + OPT["plead"] in (16, 28):
            I(hload(1 if k + LOOK + OPT["plead"] == 16 else 2))
        if k + LOOK < 44:
            a.run(al[2 * (k + LOOK)] + al[2 * (k + LOOK) + 1])
        fl = []
        if 10 <= k < 16:
            fl = prep[(len(prep) * (k - 10)) // 6:(len(prep) * (k - 9)) // 6]
        if 26 <= k < 34:
            fl = prep2[(len(prep2) * (k - 26)) // 8:(len(prep2) * (k - 25)) // 8]
        n3 = (len(fl) + 2) // 3
        for i in range(1, 4):
            I(ms[i])
            a.run(fl[(i - 1) * n3:i * n3])
    I(stamp("mfma done"))
    for dt in range(2):
        for tt in range(2):
            for gq in range(4):
                I(f"ds_write_b128 v{WA+gq}, {vr(ACC2+32*dt+16*tt+4*gq,4)} offset:{tt*8192+dt*128}")
    a.wait_lg_all()
    I("s_barrier")
    I(stamp("red barrier"))
    PR = 0
    for it in range(4):
        for q in range(4):
            I(f"ds_read_b128 {vr(PR+16*it+4*q,4)}, v{RA+(it&1)} offset:{q*16384+it*1024}")
    for it in range(4):
        b = BASE + 4 * it
        p = PR + 16 * it
        a.need([vr(p, 16)])
        for h in (0, 2):
            I(f"v_pk_add_f32 {vr(p+h,2)}, {vr(p+h,2)}, {vr(p+4+h,2)}")
        for h in (0, 2):
            I(f"v_pk_add_f32 {vr(p+8+h,2)}, {vr(p+8+h,2)}, {vr(p+12+h,2)}")
        for h in (0, 2):
            I(f"v_pk_add_f32 {vr(b+h,2)}, {vr(b+h,2)}, {vr(p+h,2)}")
        I(f"s_mov_b32 s{sJJ}, {rowoff(it)*2048}")
        for h in (0, 2):
            I(f"v_pk_add_f32 {vr(b+h,2)}, {vr(b+h,2)}, {vr(p+8+h,2)}")
        I(f"buffer_store_dwordx4 {vr(b,4)}, v{OA}, {srd(SOUT)}, s{sJJ} offen {OPT['outflags']}")
    I(stamp("out issued"))
    if DEBUG:
        a.wait_vm_all()
    I(stamp("out done"))


import os
HEADER = open(os.path.dirname(os.path.abspath(__file__)) + "/header.txt").read()


def kd(name):
    return f""".amdhsa_kernel {name}
  .amdhsa_next_free_vgpr 512
  .amdhsa_next_free_sgpr 102
  .amdhsa_accum_offset 256
  .amdhsa_group_segment_fixed_size 0
  .amdhsa_float_denorm_mode_32 3
  .amdhsa_kernarg_size 136
  .amdhsa_user_sgpr_count 2
  .amdhsa_user_sgpr_kernarg_segment_ptr 1
  .amdhsa_system_sgpr_workgroup_id_x 1
.end_amdhsa_kernel
"""


OPT = dict(plead=4, a_first=14, flag2_at=5, arr2=48, x_nostore=0, x_nofill=0, hsflags='sc1', rt=0, arr=48, rotmask=0, spin=0, tlb=1, flag0_at=3, b1=32, b2=64, b3=88, gelu_shadow=2, eload_at=2, outflags="")


def build():
    a = Asm()
    k1 = NAME + "_kernel"
    a.raw(HEADER.rstrip())
    a.raw("; @launch grid=(256,1,1) block=(256,1,1) lds=163840")
    a.raw('.amdgcn_target "amdgcn-amd-amdhsa--gfx950"\n.text')
    a.raw(f".globl {k1}\n.p2align 8\n.type {k1},@function\n{k1}:")
    a.I("s_cmp_ge_u32 s2, 256")
    a.I("s_cbranch_scc1 L_end")
    if OPT["spin"]:
        a.I("s_memrealtime s[70:71]") if OPT["spin"] == 1 else None
    phase1(a, k1)
    phase2(a)
    if OPT["spin"]:
        a.I("s_cmp_lg_u32 s2, 100\ns_cbranch_scc1 L_end")
        a.I(f"s_cmp_lg_u32 s{sW}, 3\ns_cbranch_scc1 L_end")
        a.I("s_mov_b32 s4, 0")
        a.label("L_spin")
        a.I("s_memrealtime s[6:7]")
        a.wait_lg_all()
        a.I("s_sub_u32 s6, s6, s70\ns_add_u32 s4, s4, 1\ns_cmp_ge_u32 s4, 20000\ns_cbranch_scc1 L_end\ns_cmp_lt_u32 s6, 6000\ns_cbranch_scc1 L_spin")
    stamp_flush(a, 0)
    a.label("L_end")
    a.I("s_endpgm")
    a.raw('.section .rodata,"a"\n.p2align 6')
    a.raw(kd(k1))
    print(f"instructions: {a.count}, nops {a.nops}", file=sys.stderr)
    return a.text()


if __name__ == "__main__":
    out = sys.argv[1] if len(sys.argv) > 1 else f"cdna_kernels/{NAME}.s"
    DEBUG = "-d" in sys.argv
    for arg in sys.argv[2:]:
        if "=" in arg:
            k, v = arg.split("=", 1)
            OPT[k] = type(OPT[k])(v)
    txt = build()
    if DEBUG:
        txt += "; STAMPS " + ",".join(STAMPS) + "\n"
    open(out, "w").write(txt)
```

```python
import sys, math, struct
from asmlib import Asm, TRANS

NAME = "parallel_sum__ssm_conv_s5__mixer_channel_mlp__prompt"
KB = 1024
RT_STRIDE = 176 * KB
G_STRIDE = 44 * KB
HID = 0
BW = 64 * RT_STRIDE
EOFF = BW + 16 * RT_STRIDE
STATS = EOFF + 64 * KB
BFLAG = STATS + 64 * KB
HFLAG = BFLAG + 4 * KB
WS_END = HFLAG + 16 * KB
SPIN_MAX = 4000

H = [0, 32 * KB, 64 * KB, 96 * KB, 128 * KB, 0]
PARK = H[1]
ETAB = H[1] + 28 * KB
TRB = H[2]


def f32(x):
    return "0x%08x" % struct.unpack("<I", struct.pack("<f", x))[0]


pX, pLRE, pLIM, pBRE, pBIM, pCRE, pCIM, pLDT = [4 + 2 * i for i in range(8)]
pDSK, pBX, pW1, pB1, pW2, pB2, pOUT, pDBG = [20 + 2 * i for i in range(8)]
pWS = 36
SX, SBR, SBI, SW1, SW1B, SWS, SWS2, SR, SRS, SOUT, SDBG, SE = [40 + 4 * i for i in range(12)]
sW, sR, sJ, sJJ, sG, sROT, sT0, sT1, sT2, sRA, sRB, sHB, sONE, sFL = range(88, 102)
sXB = 38
sUB = 39
sWL = 3
sUO = 4
sI2, sN, sB0, sA0, sP0, sP1 = 15, 16, 17, 18, 24, 25
sCS, sCM0, sCM1 = 26, 27, 28
sHF = 29
sRS = 1
sINI = 0


def srd(n):
    return f"s[{n}:{n+3}]"


def sp(n):
    return f"s[{n}:{n+1}]"


def vr(n, c=1):
    return f"v{n}" if c == 1 else f"v[{n}:{n+c-1}]"


def ar(n, c=1):
    return f"a{n}" if c == 1 else f"a[{n}:{n+c-1}]"


X = 0
ACA, ACB = 128, 160
VQ, VW, RDS, RDT = 192, 196, 200, 204
L16 = 206
MEAN, RSTD, IR2, K0, K1 = 207, 208, 209, 210, 211
PA, PC, PA16, PAS, PAH, PA256, PP = 212, 214, 216, 218, 220, 222, 224
BIA = 226
SB = 234
KEEP = 238
T = 242
STG = 192


DEBUG = False
STAMPV = T + 3
STAMPS = []
DBGOFF = 15 * 1024 * KB


def stamp(name):
    def f(a):
        if not DEBUG:
            return
        n = len(STAMPS)
        STAMPS.append(name)
        if name.endswith("start") and name[0] in "sk":
            a.I("s_memrealtime s[22:23]")
            a.wait_lg_all()
            a.I(f"v_writelane_b32 v{STAMPV}, s22, 62")
        a.I("s_memtime s[22:23]")
        if OPT["rt"]:
            a.I("s_memrealtime vcc")
        a.wait_lg_all()
        a.I(f"v_writelane_b32 v{STAMPV}, s22, {n}")
        if OPT["rt"]:
            a.I(f"v_writelane_b32 v{STAMPV}, vcc_lo, {32+n}")
    return f


def stamp_flush(a, which):
    if not DEBUG:
        return
    a.I("s_memrealtime s[22:23]")
    a.wait_lg_all()
    a.I(f"v_writelane_b32 v{STAMPV}, s22, 63")
    a.I(f"s_lshl_b32 s22, s2, 2\ns_add_u32 s22, s22, s{sW}\ns_lshl_b32 s22, s22, 8\ns_add_u32 s22, s22, {DBGOFF + which*256*KB}")
    a.I(f"s_mov_b32 s{SWS+2}, {16*1024*KB}")
    a.I(f"v_mbcnt_lo_u32_b32 v0, -1, 0\nv_mbcnt_hi_u32_b32 v0, -1, v0\nv_lshlrev_b32 v0, 2, v0")
    a.I(f"buffer_store_dword v{STAMPV}, v0, {srd(SWS)}, s22 offen")


def mk_srd(a, n, ptr, size):
    a.I(f"s_mov_b32 s{n}, s{ptr}")
    a.I(f"s_mov_b32 s{n+1}, s{ptr+1}")
    a.I(f"s_mov_b32 s{n+2}, {size}")
    a.I(f"s_mov_b32 s{n+3}, 0x20000")


def load_kernargs(a):
    a.I("s_load_dwordx16 s[4:19], s[0:1], 0")
    a.I("s_load_dwordx16 s[20:35], s[0:1], 64")
    a.I("s_load_dwordx2 s[36:37], s[0:1], 128")


def dma4(vbase, s, soff, m0expr, tag):
    it = list(m0expr)
    for q in range(4):
        it.append((f"buffer_load_dwordx4 v{vbase+q}, {srd(s)}, s{soff} offen offset:{q*1024} lds", tag))
    return it


def stage_regs(n):
    return [ar(STG + 16 * (n & 3), 16)]


def frag_reads(n):
    u, d = divmod(n, 16)
    it = []
    for s in range(2):
        k = 2 * d + s
        base = STG + 16 * (n & 3) + 8 * s
        if u == 0:
            for part in range(2):
                it.append(f"ds_read_b128 {ar(base+4*part,4)}, v{RDS+(k&3)} offset:{(k>>2)*8192+part*4096}")
        else:
            kk = k if u == 1 else (k & 15)
            for t in range(2):
                for e in range(2):
                    it.append(f"ds_read_b64_tr_b16 {ar(base+4*t+2*e,2)}, v{RDT+t} offset:{kk*2048+e*512}")
    return it


def mfmas(n):
    u, d = divmod(n, 16)
    res = []
    acc = (ACA, ACB, ACA)[u]
    for s in range(2):
        k = 2 * d + s
        base = STG + 16 * (n & 3) + 8 * s
        for t in range(2):
            D = vr(acc + 16 * t, 16)
            g = []
            if u == 0:
                c = D if k else "0"
                g.append(f"v_mfma_f32_32x32x16_bf16 {D}, {vr(X+4*k,4)}, {ar(base+4*t,4)}, {c}")
            else:
                if k == 0:
                    g.append(f"v_mfma_f32_32x32x16_bf16 {D}, {vr(BIA+2*(2*(u-1)+t),4)}, {vr(SB,4)}, 0")
                g.append(f"v_mfma_f32_32x32x16_bf16 {D}, {ar(base+4*t,4)}, {vr(X+4*k,4)}, {D}")
            res.append(g)
    return res


LN, HH, RHO = T, T + 6, T + 7


def cpow(dst, nreg_or_const, zr, zv, t0, t1):
    it = []
    n = nreg_or_const
    if n == 1:
        it += [f"v_exp_f32 v{t0}, v{zr}", f"v_fract_f32 v{t1}, v{zv}"]
    else:
        src = n if isinstance(n, str) else f32(float(n))
        it += [f"v_mul_f32 v{t0}, {src}, v{zr}", f"v_mul_f32 v{t1}, {src}, v{zv}",
               f"v_exp_f32 v{t0}, v{t0}", f"v_fract_f32 v{t1}, v{t1}"]
    it += [f"v_cos_f32 v{dst}, v{t1}", f"v_sin_f32 v{dst+1}, v{t1}",
           f"v_mul_f32 v{dst}, v{dst}, v{t0}", f"v_mul_f32 v{dst+1}, v{dst+1}, v{t0}"]
    return it


def fill_u0():
    it = []
    A0, A1, A2, A3, A4, A5, A6, A7 = [ACB + 24 + i for i in range(8)]
    EPS = f32(1e-5)
    k0 = -2.0 * math.log2(math.e) * math.sqrt(2.0 / math.pi)
    k1 = k0 * 0.044715
    it += [f"v_mul_f32 v{MEAN}, {f32(1/512)}, v{MEAN}",
           f"v_mul_f32 v{A0}, {f32(1/512)}, v{RSTD}",
           f"v_fma_f32 v{A0}, -v{MEAN}, v{MEAN}, v{A0}",
           f"v_max_f32 v{A0}, 0, v{A0}",
           f"v_add_f32 v{A1}, {EPS}, v{A0}",
           f"v_rsq_f32 v{RSTD}, v{A1}",
           f"v_fmac_f32 v{A0}, {EPS}, v{A1}",
           f"v_rsq_f32 v{A2}, v{A0}",
           f"v_sqrt_f32 v{IR2}, v{A0}",
           f"v_mul_f32 v{K0}, {f32(k0)}, v{A2}",
           f"v_mul_f32 v{A3}, v{A2}, v{A2}",
           f"v_mul_f32 v{A3}, {f32(0.044715)}, v{A3}",
           f"v_mul_f32 v{K1}, v{K0}, v{A3}",
           f"v_mul_f32 v{A1}, 0.5, v{IR2}",
           f"v_cvt_pk_bf16_f32 v{A2}, v{A1}, v{A1}",
           f"v_and_b32 v{A3}, 0xffff0000, v{A2}",
           f"v_sub_f32 v{A3}, v{A1}, v{A3}",
           f"v_cvt_pk_bf16_f32 v{SB}, v{A1}, v{A3}"]
    it += [f"s_cmp_eq_u32 s{sJJ}, 0\ns_cselect_b32 s{SRS+2}, {WS_END}, 0",
           f"s_lshr_b32 s{sRA}, s{sXB}, 15",
           f"s_lshl_b32 s{sRA}, s{sRA}, 8",
           f"s_lshl_b32 s{sRB}, s{sG}, 14",
           f"s_add_u32 s{sRA}, s{sRA}, s{sRB}",
           f"s_add_u32 s{sRA}, s{sRA}, {STATS}",
           f"v_mov_b32 v{A4}, v{MEAN}",
           f"v_mov_b32 v{A5}, v{RSTD}",
           f"v_lshlrev_b32 v{A6}, 3, v{RHO}",
           f"buffer_store_dwordx2 {vr(A4,2)}, v{A6}, {srd(SRS)}, s{sRA} offen sc1"]
    for k in range(4):
        it.append(f"v_lshl_or_b32 v{BIA+2*k}, v{BIA+2*k}, 16, v{BIA+2*k}")
    LR, LI, ZR, ZV = ACB, ACB + 1, ACB + 2, ACB + 3
    it += [f"v_lshlrev_b32 v{LR}, 16, v{PA}",
           f"v_lshlrev_b32 v{LI}, 16, v{PA+1}",
           f"v_lshlrev_b32 v{A0}, 16, v{PC}",
           f"v_mul_f32 v{A0}, {f32(math.log2(math.e))}, v{A0}",
           f"v_exp_f32 v{A0}, v{A0}",
           f"v_cvt_f32_u32 v{A2}, v{HH}",
           f"v_cvt_pk_bf16_f32 v{A0}, v{A0}, v{A0}",
           f"v_and_b32 v{A0}, 0xffff0000, v{A0}",
           f"v_mul_f32 v{ZR}, v{A0}, v{LR}",
           f"v_mul_f32 v{ZV}, v{A0}, v{LI}",
           f"v_mul_f32 v{ZR}, {f32(math.log2(math.e))}, v{ZR}",
           f"v_mul_f32 v{ZV}, 0.15915494, v{ZV}"]
    it += cpow(PA, 1, ZR, ZV, A0, A1)
    it += cpow(PA16, 16, ZR, ZV, A0, A1)
    it += cpow(PA256, 256, ZR, ZV, A0, A1)
    it += [f"v_mul_f32 v{A3}, {f32(128.0)}, v{A2}"]
    it += cpow(PAH, f"v{A3}", ZR, ZV, A0, A1)
    it += [f"s_lshl_b32 s{sRA}, s{sW}, 1",
           f"v_add_u32 v{A3}, s{sRA}, v{HH}",
           f"v_cvt_f32_u32 v{A3}, v{A3}",
           f"v_mul_f32 v{A3}, {f32(16.0)}, v{A3}"]
    it += cpow(PAS, f"v{A3}", ZR, ZV, A0, A1)
    it += [f"v_mul_f32 v{A0}, v{LR}, v{LR}",
           f"v_fmac_f32 v{A0}, v{LI}, v{LI}",
           f"v_rcp_f32 v{A0}, v{A0}",
           f"v_add_f32 v{A1}, -1.0, v{PA}",
           f"v_mul_f32 v{A2}, v{A1}, v{LR}",
           f"v_fmac_f32 v{A2}, v{PA+1}, v{LI}",
           f"v_mul_f32 v{A3}, v{PA+1}, v{LR}",
           f"v_fma_f32 v{A3}, -v{A1}, v{LI}, v{A3}",
           f"v_add_f32 v{A0}, v{A0}, v{A0}",
           f"v_mul_f32 v{PC}, v{A2}, v{A0}",
           f"v_mul_f32 v{PC+1}, v{A3}, v{A0}"]
    APK, ARS, AET, ARW = VQ, VQ + 1, VQ + 2, VQ + 3
    it += [f"s_mul_i32 s{sRA}, s{sW}, {7*KB}",
           f"s_add_u32 s{sRA}, s{sRA}, {PARK}",
           f"v_add_u32 v{APK}, s{sRA}, v{L16}",
           f"s_add_u32 s{sRA}, s{sRA}, {6*KB}",
           f"v_lshl_add_u32 v{ARS}, v{HH}, 6, s{sRA}",
           f"v_lshl_add_u32 v{ARW}, v{T+9}, 2, s{sRA}",
           f"s_lshl_b32 s{sRA}, s{sW}, 9",
           f"s_add_u32 s{sRA}, s{sRA}, {ETAB}",
           f"v_lshl_add_u32 v{AET}, v{LN}, 3, s{sRA}"]
    return it


def fill_u1():
    APK, ARS, AET, ARW = VQ, VQ + 1, VQ + 2, VQ + 3
    RSB = (RDS, VW)
    Q0, Q1 = T + 10, KEEP
    t0, t1 = T + 1, T + 2
    E0, E1 = T + 4, PP
    Z = T + 8
    it = [f"ds_write_b32 v{ARW}, v{RSTD}",
          f"ds_read_b128 {vr(RSB[0],4)}, v{ARS}",
          f"ds_read_b128 {vr(RSB[1],4)}, v{ARS} offset:16",
          f"v_mov_b32 v{Z}, 0", f"v_mov_b32 v{Z+1}, 0",
          f"ds_write_b64 v{AET}, {vr(Z,2)}"]
    cur = None
    for i in range(16):
        if i in (4, 8):
            it.append(f"ds_read_b128 {vr(RSB[(i//4+1)&1],4)}, v{ARS} offset:{4*i+16}")
        RS = RSB[(i >> 2) & 1]
        q = (Q0, Q1)[(i >> 1) & 1] + 2 * (i & 1)
        it += [f"v_mul_f32 v{t0}, v{ACA+i}, v{RS+(i&3)}",
               f"v_mul_f32 v{t1}, v{ACA+16+i}, v{RS+(i&3)}",
               f"v_mul_f32 v{q}, v{PC}, v{t0}",
               f"v_mul_f32 v{q+1}, v{PC}, v{t1}",
               f"v_fma_f32 v{q}, -v{PC+1}, v{t1}, v{q}",
               f"v_fmac_f32 v{q+1}, v{PC+1}, v{t0}"]
        if i == 0:
            cur = q
        else:
            nx = E0 if i & 1 else E1
            it += [f"v_fma_f32 v{nx}, v{PA}, v{cur}, v{q}",
                   f"v_fma_f32 v{nx+1}, v{PA}, v{cur+1}, v{q+1}",
                   f"v_fma_f32 v{nx}, -v{PA+1}, v{cur+1}, v{nx}",
                   f"v_fmac_f32 v{nx+1}, v{PA+1}, v{cur}"]
            cur = nx
        if i & 1 and i < 15:
            it.append(f"ds_write_b128 v{APK}, {vr(q-2,4)} offset:{(i>>1)*1024}")
    assert cur == E0
    it.append((f"ds_write_b64 v{AET}, {vr(E0,2)} offset:2048", "E"))
    return it


def gelu_plain(regs, tmp):
    it = []
    n = len(regs)
    for r, t in zip(regs, tmp):
        it.append(f"v_mul_f32 v{t}, v{r}, v{r}")
    for r, t in zip(regs, tmp):
        it.append(f"v_fma_f32 v{t}, v{t}, v{K1}, v{K0}")
    for r, t in zip(regs, tmp):
        it.append(f"v_mul_f32 v{t}, v{t}, v{r}")
    for r, t in zip(regs, tmp):
        it.append(f"v_exp_f32 v{t}, v{t}")
    for r, t in zip(regs, tmp):
        it.append(f"v_fma_f32 v{t}, v{t}, v{IR2}, v{IR2}")
    for r, t in zip(regs, tmp):
        it.append(f"v_rcp_f32 v{t}, v{t}")
    for r, t in zip(regs, tmp):
        it.append(f"v_mul_f32 v{r}, v{r}, v{t}")
    return it


def gelu_packed(base, tmp):
    it = []
    kk = vr(K0, 2)
    ii = vr(RSTD, 2)
    for p in (0, 2):
        it.append(f"v_pk_mul_f32 {vr(tmp+p,2)}, {vr(base+p,2)}, {vr(base+p,2)}")
    for p in (0, 2):
        it.append(f"v_pk_fma_f32 {vr(tmp+p,2)}, {vr(tmp+p,2)}, {kk}, {kk} op_sel:[0,1,0] op_sel_hi:[1,1,0]")
    for p in (0, 2):
        it.append(f"v_pk_mul_f32 {vr(tmp+p,2)}, {vr(tmp+p,2)}, {vr(base+p,2)}")
    for p in range(4):
        it.append(f"v_exp_f32 v{tmp+p}, v{tmp+p}")
    for p in (0, 2):
        it.append(f"v_pk_fma_f32 {vr(tmp+p,2)}, {vr(tmp+p,2)}, {ii}, {ii} op_sel:[0,1,1] op_sel_hi:[1,1,1]")
    for p in range(4):
        it.append(f"v_rcp_f32 v{tmp+p}, v{tmp+p}")
    for p in (0, 2):
        it.append(f"v_pk_mul_f32 {vr(base+p,2)}, {vr(base+p,2)}, {vr(tmp+p,2)}")
    return it


def pack_store(base, s, soff, off, tag):
    it = [f"v_cvt_pk_bf16_f32 v{base+n}, v{base+2*n}, v{base+2*n+1}" for n in range(4)]
    if OPT["x_nostore"] == 1:
        return it
    it.append((f"buffer_store_dwordx4 {vr(base,4)}, v{L16}, {srd(s)}, s{soff} offen offset:{off} {OPT['hsflags']}", tag))
    return it


def cfma(dst, m, x, add):
    return [f"v_fma_f32 v{dst}, v{m}, v{x}, v{add}",
            f"v_fma_f32 v{dst+1}, v{m}, v{x+1}, v{add+1}",
            f"v_fma_f32 v{dst}, -v{m+1}, v{x+1}, v{dst}",
            f"v_fmac_f32 v{dst+1}, v{m+1}, v{x}"]


def poll(a, name, val, addr, s, soff, first_issued=True):
    ld = f"buffer_load_dword v{val}, v{addr}, {srd(s)}, {soff} offen sc1"
    a.need([f"v{val}"])
    a.I(f"v_cmp_eq_u32 vcc, 0, v{val}")
    a.I(f"s_mov_b32 s{sT2}, 0")
    a.nop(4)
    a.I(f"s_cbranch_vccz {name}_done")
    save, pos = list(a.vmq), a.pos
    a.label(name)
    a.I(ld, track=False)
    a.wait_vm_all()
    a.I(f"v_cmp_eq_u32 vcc, 0, v{val}")
    a.I(f"s_add_u32 s{sT2}, s{sT2}, 1")
    a.I(f"s_cmp_ge_u32 s{sT2}, {SPIN_MAX}")
    a.I(f"s_cbranch_scc1 {name}_done")
    a.nop(3)
    a.I(f"s_cbranch_vccnz {name}")
    a.vmq, a.pos = save, pos
    a.label(name + "_done")


def xlds(c):
    return 32 * KB * (1 + (c >> 1)) + 4 * KB * (c & 1)


def xgroup(c):
    return dma4(VQ, SX, sT0, [f"s_add_u32 m0, s{sWL}, {xlds(c)}", f"s_xor_b32 s{sT0}, s{sXB}, {c<<7}"], f"x{c}")


def wgroup(n, half):
    tag = f"H{n}"
    pre = [f"s_add_u32 m0, s{sWL}, {H[n] + 4*KB*half}"]
    if n < 2:
        pre += [f"s_xor_b32 s{sT0}, s{sCS}, {512*(n&1)}"]
        return dma4(VQ, SBI if half else SBR, sT0, pre, tag)
    off = 32 * 3584 * half + (128 if n >= 4 else 0)
    pre += [f"s_add_u32 s{sT0}, s{sCM1 if n&1 else sCM0}, {off}"]
    return dma4(VW, SW1B if n >= 4 else SW1, sT0, pre, tag)


def cost(it):
    if callable(it):
        return 1
    if isinstance(it, tuple):
        it = it[0]
    c = 0
    for l in it.split("\n"):
        mn = l.split()[0]
        if mn in TRANS or mn.startswith("v_mfma"):
            c += 2
        elif mn == "ds_write_b128":
            c += 6
        elif mn.startswith("ds_write"):
            c += 4
        elif mn == "buffer_store_dwordx4":
            c += 7
        elif mn.startswith("buffer_") or mn.startswith("global_"):
            c += 3
        else:
            c += 1
    return c


def spread(main, plans):
    load = [sum(map(cost, g)) for g in main]
    gaps = [[] for _ in main]
    for items, g0, g1, *uni in plans:
        if not items:
            continue
        if uni:
            for j, grp in enumerate(items):
                i = g0 + (j * (g1 - g0)) // len(items)
                gaps[i] += grp
                load[i] += sum(map(cost, grp))
            continue
        tot = sum(load[g0:g1]) + sum(map(cost, items))
        acc, j = 0, 0
        for i in range(g0, g1):
            acc += load[i]
            target = tot * (i - g0 + 1) / (g1 - g0)
            while j < len(items) and (acc + cost(items[j]) / 2 <= target or i == g1 - 1):
                gaps[i].append(items[j])
                acc += cost(items[j])
                load[i] += cost(items[j])
                j += 1
    return [m + g for m, g in zip(main, gaps)]


def phase1(a, kname):
    I = a.I
    load_kernargs(a)
    TA, TB, TC, TD = T + 1, T + 2, ACB + 31, T + 4
    SG, PI, VR = T + 8, T + 9, T + 5
    RR = ACA
    I(f"v_lshrrev_b32 v{TA}, 6, v0")
    I(f"v_and_b32 v{LN}, 63, v0")
    I(f"v_readfirstlane_b32 s{sW}, v{TA}")
    I(f"s_getpc_b64 s[{SR}:{SR+1}]")
    a.label("L_pc")
    I(f"s_and_b32 s{sT0}, s2, 0xf8")
    I(f"v_lshrrev_b32 v{TB}, 5, v0")
    I(f"v_add_u32 v{TB}, s{sT0}, v{TB}")
    I(f"v_lshlrev_b32 v{TB}, 7, v{TB}")
    I(f"v_min_u32 v{TB}, L_end-L_pc, v{TB}")
    I(f"v_mov_b32 v{RR+9}, s{SR+1}")
    I(f"v_add_co_u32 v{RR+8}, vcc, s{SR}, v{TB}")
    I(f"s_and_b32 s{sT0}, s2, 0x78")
    I(f"s_cmp_eq_u32 s{sW}, 0")
    I(f"v_addc_co_u32 v{RR+9}, vcc, 0, v{RR+9}, vcc")
    I(f"s_cselect_b32 s{sT0}, s{sT0}, 128")
    I(f"s_cselect_b32 s{sT1}, 0, 6")
    I(f"global_load_dword v{RR+10}, {vr(RR+8,2)}, off", track=False)
    I(f"s_cmp_eq_u32 s{sW}, 1")
    I(f"s_cselect_b32 s{sT0}, 112, s{sT0}")
    I(f"s_cselect_b32 s{sT1}, 1, s{sT1}")
    if OPT["tlb"]:
        I(f"s_load_dwordx2 s[{SR+2}:{SR+3}], s[0:1], s{sT0}")
    I(f"s_bfe_u32 s{sT0}, s2, 0x30003")
    I(f"s_min_u32 s{sT0}, s{sT0}, s{sT1}")
    I(f"s_lshl_b32 s{sT0}, s{sT0}, 21")
    I(f"v_mov_b32 v{RR+11}, s{sT0}")
    if OPT["arr"] == 84:
        I(f"s_lshr_b32 s{sT0}, s2, 3")
        I(f"s_and_b32 s{sT1}, s{sT0}, 7")
        I(f"s_lshr_b32 s{sJJ}, s{sT0}, 3")
        I(f"s_and_b32 s{sR}, s2, 1")
        I(f"s_lshl_b32 s{sR}, s{sR}, 3")
        I(f"s_add_u32 s{sR}, s{sR}, s{sT1}")
        I(f"s_bfe_u32 s{sG}, s2, 0x20001")
        I(f"s_lshl_b32 s{sJ}, s{sG}, 2")
        I(f"s_add_u32 s{sJ}, s{sJ}, s{sJJ}")
        I(f"s_lshl_b32 s{sROT}, s{sJJ}, 1")
        I(f"s_add_u32 s{sROT}, s{sROT}, s{sT1}")
        I(f"s_and_b32 s{sT0}, s{sG}, 1")
        I(f"s_add_u32 s{sROT}, s{sROT}, s{sT0}")
    else:
        I(f"s_bfe_u32 s{sT1}, s2, 0x20003")
        I(f"s_lshr_b32 s{sT0}, s2, 5")
        I(f"s_and_b32 s{sR}, s2, 3")
        I(f"s_lshl_b32 s{sR}, s{sR}, 2")
        I(f"s_add_u32 s{sR}, s{sR}, s{sT1}")
        I(f"s_and_b32 s{sJ}, s2, 4")
        I(f"s_lshl_b32 s{sJ}, s{sJ}, 1")
        I(f"s_add_u32 s{sJ}, s{sJ}, s{sT0}")
        I(f"s_lshr_b32 s{sG}, s{sJ}, 2")
        I(f"s_and_b32 s{sJJ}, s{sJ}, 3")
        I(f"s_lshl_b32 s{sROT}, s{sT1}, 1")
        I(f"s_add_u32 s{sROT}, s{sROT}, s{sT0}")
    I(f"s_and_b32 s{sROT}, s{sROT}, {OPT['rotmask']}")
    I(f"s_lshl_b32 s{sXB}, s{sR}, 2")
    I(f"s_add_u32 s{sXB}, s{sXB}, s{sW}")
    I(f"s_mov_b32 s{sHB}, s{sXB}")
    I(f"s_lshl_b32 s{sXB}, s{sXB}, 15")
    I(f"s_lshl_b32 s{sT0}, s{sROT}, 7")
    I(f"s_or_b32 s{sXB}, s{sXB}, s{sT0}")
    I(f"s_lshl_b32 s{sWL}, s{sW}, 13")
    I(f"v_lshlrev_b32 v{L16}, 4, v{LN}")
    I(f"v_lshrrev_b32 v{TA}, 3, v{LN}")
    I(f"v_and_b32 v{TB}, 7, v{LN}")
    I(f"v_lshrrev_b32 v{TC}, 1, v{TA}")
    I(f"v_xor_b32 v{TC}, v{TB}, v{TC}")
    I(f"v_lshlrev_b32 v{TC}, 4, v{TC}")
    I(f"v_and_b32 v{TD}, 3, v{TA}")
    I(f"v_lshl_or_b32 v{TC}, v{TD}, 10, v{TC}")
    I(f"v_lshrrev_b32 v{TD}, 2, v{TA}")
    I(f"v_lshl_or_b32 v{VQ}, v{TD}, 14, v{TC}")
    I(f"v_xor_b32 v{VQ+1}, 64, v{VQ}")
    I(f"v_add_u32 v{VQ+2}, {2*3072}, v{VQ}")
    I(f"v_add_u32 v{VQ+3}, {3*3072}, v{VQ+1}")
    I(f"v_add_u32 v{VQ+1}, 3072, v{VQ+1}")
    I(f"v_and_b32 v{TC}, 2, v{TA}")
    I(f"v_lshlrev_b32 v{TC}, 1, v{TC}")
    I(f"v_xor_b32 v{TC}, v{TB}, v{TC}")
    I(f"v_lshlrev_b32 v{TC}, 4, v{TC}")
    I(f"v_lshl_or_b32 v{VR}, v{TA}, 10, v{TC}")
    I(f"v_mul_u32_u24 v{TD}, 3584, v{TA}")
    I(f"v_add_u32 v{VW}, v{TD}, v{TC}")
    I(f"s_mov_b32 s{SX+2}, {2048*1024}")
    I(f"s_mov_b32 s{SX+3}, 0x20000")
    I(f"s_mov_b32 s{SWS+2}, {WS_END}")
    I(f"s_mov_b32 s{SWS+3}, 0x20000")
    a.wait_lg_all()
    I(stamp("start"))
    if OPT["lat"]:
        I(f"s_lshl_b32 s{sT0}, s2, 2\ns_add_u32 s{sT0}, s{sT0}, s{sW}\ns_lshl_b32 s{sT0}, s{sT0}, 8\nv_mov_b32 v{ACB}, s{sT0}")
        a.wait_vm_all()
        I(stamp("l0"))
        for nm, ptr in (("x", pX), ("w1", pW1), ("ws", pWS)):
            for rep in range(2):
                I(f"global_load_dword v{ACB+1}, v{ACB}, {sp(ptr)} offset:{128*rep}")
                a.wait_vm_all()
                I(stamp(f"{nm}{rep}"))
    if OPT["tlb"]:
        I(f"global_load_dword v{RR+12}, v{RR+11}, s[{SR+2}:{SR+3}]", track=False)
    I(f"s_mov_b64 s[{SX}:{SX+1}], {sp(pX)}")
    I(f"s_mov_b64 s[{SWS}:{SWS+1}], {sp(pWS)}")
    I(f"s_lshl_b32 s{sT0}, s{sW}, 8")
    I(f"s_xor_b32 s{sT0}, s{sT0}, 0x300")
    I(f"s_or_b32 s{sINI}, s{sT0}, s2")
    I(f"s_cmp_ge_u32 s{sINI}, 16")
    I("s_cbranch_scc1 L_noinit")
    for k in range(4):
        I(f"v_mov_b32 v{RR+k}, -1")
        I(f"v_mov_b32 v{RR+4+k}, 0")
    I(f"s_lshl_b32 s{sT0}, s2, 12")
    I(f"s_add_u32 s{sT0}, s{sT0}, {EOFF}")
    for k in range(4):
        I(f"buffer_store_dwordx4 {vr(RR,4)}, v{L16}, {srd(SWS)}, s{sT0} offen offset:{1024*k} sc1", tag="INIT", track=False)
    I(f"s_lshl_b32 s{sT0}, s2, 10")
    I(f"s_add_u32 s{sT0}, s{sT0}, {HFLAG}")
    I(f"buffer_store_dwordx4 {vr(RR+4,4)}, v{L16}, {srd(SWS)}, s{sT0} offen sc1", tag="INIT", track=False)
    I(f"s_lshl_b32 s{sT0}, s2, 8")
    I(f"s_add_u32 s{sT0}, s{sT0}, {BFLAG}")
    I(f"v_lshlrev_b32 v{TA}, 2, v{LN}")
    I(f"buffer_store_dword v{RR+4}, v{TA}, {srd(SWS)}, s{sT0} offen sc1", tag="INIT", track=False)
    a.label("L_noinit")
    a.vmq = []
    for c in range(OPT["x_first"]):
        a.run(xgroup(c))
    I(stamp("x2 issued"))
    I(f"v_lshrrev_b32 v{HH}, 5, v{LN}")
    I(f"v_and_b32 v{RHO}, 31, v{LN}")
    I(f"v_and_b32 v{TA}, 19, v{RHO}")
    I(f"v_bfe_u32 v{TB}, v{RHO}, 2, 1")
    I(f"v_lshl_or_b32 v{TA}, v{TB}, 3, v{TA}")
    I(f"v_bfe_u32 v{TC}, v{RHO}, 3, 1")
    I(f"v_lshl_or_b32 v{SG}, v{TC}, 2, v{TA}")
    I(f"v_and_b32 v{TA}, 3, v{RHO}")
    I(f"v_lshrrev_b32 v{TC}, 3, v{RHO}")
    I(f"v_lshl_or_b32 v{TA}, v{TC}, 2, v{TA}")
    I(f"v_lshl_or_b32 v{PI}, v{TB}, 4, v{TA}")
    I(f"s_mul_i32 s{sHB}, s{sHB}, {RT_STRIDE}")
    I(f"s_mul_i32 s{sT0}, s{sG}, {G_STRIDE}")
    I(f"s_add_u32 s{sHB}, s{sHB}, s{sT0}")
    I(f"s_lshl_b32 s{sT0}, s{sJJ}, 12")
    I(f"s_add_u32 s{sHB}, s{sHB}, s{sT0}")
    I(f"s_mul_i32 s{sUB}, s{sG}, 7")
    I(f"s_lshl_b32 s{sT0}, s{sJJ}, 1")
    I(f"s_add_u32 s{sUB}, s{sUB}, s{sT0}")
    I(f"s_lshl_b32 s{sUB}, s{sUB}, 7")
    mk_srd(a, SRS, pWS, WS_END)
    I(f"s_cmp_ge_u32 s{sW}, 2")
    I("s_cbranch_scc1 L_role23")
    I(f"s_lshl_b32 s{sT0}, s2, 1")
    I(f"s_add_u32 s{sT0}, s{sT0}, s{sW}")
    mk_srd(a, SR, pW2, 1792 * 1024)
    I(f"s_cmp_lt_u32 s{sT0}, 448")
    I(f"s_cselect_b32 s{SR+2}, s{SR+2}, 0")
    I(f"s_cselect_b32 s{SRS+2}, s{SRS+2}, 0")
    I(f"s_cselect_b32 s{sT0}, s{sT0}, 0")
    I(f"s_and_b32 s{sT1}, s{sT0}, 7")
    I(f"s_lshr_b32 s{sT0}, s{sT0}, 3")
    I(f"s_lshl_b32 s{sRS}, s{sT0}, 15")
    I(f"s_lshl_b32 s{sRA}, s{sT1}, 7")
    I(f"s_add_u32 s{sRS}, s{sRS}, s{sRA}")
    I(f"s_mul_i32 s{sRA}, s{sT1}, {2*RT_STRIDE}")
    I(f"s_and_b32 s{sT2}, s{sT0}, 1")
    I(f"s_lshl_b32 s{sT2}, s{sT2}, 11")
    I(f"s_add_u32 s{sRA}, s{sRA}, s{sT2}")
    I(f"s_lshl_b32 s{sFL}, s{sT1}, 9")
    I(f"s_lshl_b32 s{sT2}, s{sT0}, 2")
    I(f"s_add_u32 s{sFL}, s{sFL}, s{sT2}")
    I(f"s_lshr_b32 s{sT0}, s{sT0}, 1")
    I(f"s_mul_i32 s{sT1}, s{sT0}, 37")
    I(f"s_lshr_b32 s{sT1}, s{sT1}, 8")
    I(f"s_mul_i32 s{sT2}, s{sT1}, {128-56}")
    I(f"s_add_u32 s{sFL}, s{sFL}, s{sT2}")
    I(f"s_mul_i32 s{sT2}, s{sT1}, {G_STRIDE}")
    I(f"s_add_u32 s{sRA}, s{sRA}, s{sT2}")
    I(f"s_mul_i32 s{sT1}, s{sT1}, 7")
    I(f"s_sub_u32 s{sT0}, s{sT0}, s{sT1}")
    I(f"s_lshr_b32 s{sT1}, s{sT0}, 1")
    I(f"s_and_b32 s{sT0}, s{sT0}, 1")
    I(f"s_lshl_b32 s{sT0}, s{sT0}, 2")
    I(f"s_add_u32 s{sT0}, s{sT0}, s{sT1}")
    I(f"s_lshl_b32 s{sT0}, s{sT0}, 12")
    I(f"s_add_u32 s{sRA}, s{sRA}, s{sT0}")
    I(f"s_add_u32 s{sRA}, s{sRA}, {BW}")
    I(f"s_add_u32 s{sRB}, s{sRA}, {RT_STRIDE}")
    I("s_branch L_rolejoin")
    a.label("L_role23")
    I(f"s_and_b32 s{sT0}, s2, 1")
    I(f"s_cmp_eq_u32 s{sT0}, 0")
    I(f"s_cselect_b32 s{SR}, s{pCRE}, s{pCIM}")
    I(f"s_cselect_b32 s{SR+1}, s{pCRE+1}, s{pCIM+1}")
    I(f"s_cmp_eq_u32 s{sW}, 2")
    I(f"s_cselect_b32 s{SR+2}, {512*1024}, 0")
    I(f"s_cselect_b32 s{SRS+2}, s{SRS+2}, 0")
    I(f"s_mov_b32 s{SR+3}, 0x20000")
    I(f"s_bfe_u32 s{sT1}, s2, 0x30001")
    I(f"s_lshr_b32 s{sT2}, s2, 4")
    I(f"s_lshl_b32 s{sRS}, s{sT2}, 15")
    I(f"s_lshl_b32 s{sRB}, s{sT1}, 7")
    I(f"s_add_u32 s{sRS}, s{sRS}, s{sRB}")
    I(f"v_lshlrev_b32 v{VR}, 4, v{HH}")
    I(f"v_lshl_or_b32 v{VR}, v{SG}, 10, v{VR}")
    I(f"s_lshr_b32 s{sFL}, s{sT2}, 1")
    I(f"s_lshl_b32 s{sFL}, s{sFL}, 9")
    I(f"s_lshr_b32 s{sRA}, s{sT1}, 1")
    I(f"s_lshl_b32 s{sRA}, s{sRA}, 7")
    I(f"s_add_u32 s{sFL}, s{sFL}, s{sRA}")
    I(f"s_and_b32 s{sRA}, s{sT2}, 1")
    I(f"s_lshl_b32 s{sRA}, s{sRA}, 4")
    I(f"s_add_u32 s{sFL}, s{sFL}, s{sRA}")
    I(f"s_and_b32 s{sRA}, s2, 3")
    I(f"s_lshl_b32 s{sRA}, s{sRA}, 2")
    I(f"s_add_u32 s{sFL}, s{sFL}, s{sRA}")
    I(f"s_add_u32 s{sFL}, s{sFL}, 56")
    I(f"s_mul_i32 s{sRA}, s{sT2}, {RT_STRIDE}")
    I(f"s_lshr_b32 s{sT2}, s{sT1}, 1")
    I(f"s_mul_i32 s{sT2}, s{sT2}, {G_STRIDE}")
    I(f"s_add_u32 s{sRA}, s{sRA}, s{sT2}")
    I(f"s_and_b32 s{sT1}, s{sT1}, 1")
    I(f"s_lshl_b32 s{sT1}, s{sT1}, 13")
    I(f"s_add_u32 s{sRA}, s{sRA}, s{sT1}")
    I(f"s_lshl_b32 s{sT0}, s{sT0}, 11")
    I(f"s_add_u32 s{sRA}, s{sRA}, s{sT0}")
    I(f"s_add_u32 s{sRA}, s{sRA}, {BW + 28*KB}")
    I(f"s_add_u32 s{sRB}, s{sRA}, 4096")
    a.label("L_rolejoin")
    mk_srd(a, SBR, pBRE, 512 * 1024)
    mk_srd(a, SBI, pBIM, 512 * 1024)
    mk_srd(a, SW1, pW1, 512 * 3584)
    mk_srd(a, SW1B, pW1, 512 * 3584)
    mk_srd(a, SWS2, pWS, WS_END)
    mk_srd(a, SDBG, pDBG, 256)
    mk_srd(a, SOUT, pOUT, 2048 * 2048)
    I(f"s_cmp_lt_u32 s{sJJ}, 3")
    I(f"s_cselect_b32 s{SW1B+2}, s{SW1B+2}, 0")
    I(f"s_cselect_b32 s{SWS2+2}, s{SWS2+2}, 0")
    I(f"s_lshl_b32 s{sT0}, s{sJ}, 12")
    I(f"s_add_u32 s{sT0}, s{sT0}, {EOFF}")
    I(f"s_add_u32 s{SE}, s{pWS}, s{sT0}")
    I(f"s_addc_u32 s{SE+1}, s{pWS+1}, 0")
    I(f"s_mov_b32 s{SE+2}, 4096")
    I(f"s_mov_b32 s{SE+3}, 0x20000")
    I(f"s_mov_b32 s{sONE}, 0x3f803f80")
    I(f"s_add_u32 s{sFL}, s{sFL}, {BFLAG}")
    for q in range(1, 4):
        I(f"v_add_u32 v{VW+q}, {q*(8*3584-1024)}, v{VW}")
    I(f"v_bfe_u32 v{TA}, v{RHO}, 1, 3")
    I(f"v_xor_b32 v{TA}, v{TA}, v{HH}")
    I(f"v_lshlrev_b32 v{TA}, 4, v{TA}")
    I(f"v_lshl_or_b32 v{TA}, v{RHO}, 7, v{TA}")
    I(f"v_add_u32 v{RDS}, s{sWL}, v{TA}")
    I(f"v_add_u32 v{RDS}, {32*KB}, v{RDS}")
    for k in range(1, 4):
        I(f"v_xor_b32 v{RDS+k}, {32*k}, v{RDS}")
    I(f"v_bfe_u32 v{TA}, v{LN}, 2, 2")
    I(f"v_lshl_or_b32 v{TB}, v{HH}, 3, v{TA}")
    I(f"v_lshlrev_b32 v{TB}, 7, v{TB}")
    I(f"v_lshrrev_b32 v{TA}, 1, v{TA}")
    I(f"v_lshl_or_b32 v{TB}, v{TA}, 6, v{TB}")
    I(f"v_bfe_u32 v{TA}, v{LN}, 4, 1")
    I(f"v_lshl_or_b32 v{TB}, v{TA}, 5, v{TB}")
    I(f"v_and_b32 v{TA}, 1, v{LN}")
    I(f"v_lshl_or_b32 v{TB}, v{TA}, 4, v{TB}")
    I(f"v_bfe_u32 v{TA}, v{LN}, 1, 1")
    I(f"v_lshl_or_b32 v{RDT}, v{TA}, 3, v{TB}")
    I(f"v_xor_b32 v{RDT+1}, 64, v{RDT}")
    SEL = ACB + 16
    GOA, GOV = ACB + 24, ACB + 25
    I(f"v_bfe_u32 v{TA}, v{SG}, 3, 1")
    I(f"v_cmp_eq_u32 vcc, v{TA}, v{HH}")
    I(f"v_and_b32 v{TA}, 1, v{SG}")
    I(f"v_lshlrev_b32 v{TA}, 4, v{TA}")
    I(f"v_mov_b32 v{TB}, 0x3f80")
    I(f"v_lshlrev_b32 v{TA}, v{TA}, v{TB}")
    I(f"v_cndmask_b32 v{TA}, 0, v{TA}, vcc")
    I(f"v_bfe_u32 v{TB}, v{SG}, 1, 2")
    I(f"v_lshrrev_b32 v{TC}, 4, v{SG}")
    I(f"v_lshl_or_b32 v{TB}, v{TC}, 2, v{TB}")
    extra = [f"v_mov_b32 v{BIA+k}, 0" for k in (1, 3, 5, 7, 9, 10, 11)]
    extra += [f"v_mov_b32 v{MEAN}, 0", f"v_mov_b32 v{RSTD}, 0", f"v_and_b32 v{GOA}, 15, v{LN}",
              f"v_lshlrev_b32 v{GOA}, 2, v{GOA}", f"v_min_u32 v{KEEP}, 21, v{LN}", f"v_lshlrev_b32 v{KEEP}, 2, v{KEEP}",
              f"v_mov_b32 v{KEEP+2}, 1", f"v_mov_b32 v{KEEP+3}, 0"]
    for k in range(8):
        I(f"v_cmp_eq_u32 vcc, {k}, v{TB}")
        a.run(extra[2 * k:2 * k + 2])
        I(f"v_cndmask_b32 v{SEL+k}, 0, v{TA}, vcc")
    I(f"s_cmp_ge_u32 s{sINI}, 16")
    I("s_cbranch_scc1 L_nogo")
    a.raw(f"    s_waitcnt vmcnt({4*OPT['x_first']})")
    I(f"s_lshl_b32 s{sT0}, s2, 2")
    I(f"buffer_store_dword v{KEEP+2}, v{KEEP+3}, {srd(SDBG)}, s{sT0} offen sc1", track=False)
    a.label("L_nogo")
    I(stamp("setup done"))
    RSLOT = H[0] if OPT["r_at"] < 2 else xlds(2)

    def rloads():
        I(f"s_cmp_ge_u32 s{sW}, 2")
        I("s_cbranch_scc1 L_rl23")
        snap = list(a.vmq)
        for q in range(4):
            I(f"s_add_u32 m0, s{sWL}, {RSLOT + q*1024}")
            I(f"s_add_u32 s{sT0}, s{sRS}, {8192*q}")
            I(f"buffer_load_dwordx4 v{VR}, {srd(SR)}, s{sT0} offen lds", tag="R")
        I("s_branch L_rljoin")
        a.vmq = snap
        a.label("L_rl23")
        for k in range(4):
            I(f"buffer_load_dwordx4 {ar(4*k,4)}, v{VR}, {srd(SR)}, s{sRS} offen offset:{32*k}", tag="R")
        a.label("L_rljoin")

    def params():
        I(f"s_lshl_b32 s{sT0}, s{sJ}, 6")
        I(f"s_add_u32 s{sT1}, s{sUB}, 128")
        I(f"v_lshl_add_u32 v{TA}, v{PI}, 1, s{sT0}")
        I(f"global_load_ushort v{PA}, v{TA}, {sp(pLRE)}")
        I(f"global_load_ushort v{PA+1}, v{TA}, {sp(pLIM)}")
        I(f"global_load_ushort v{PC}, v{TA}, {sp(pLDT)}")
        I(f"v_lshl_add_u32 v{TA}, v{SG}, 1, s{sUB}")
        I(f"global_load_ushort v{BIA}, v{TA}, {sp(pB1)}")
        I(f"global_load_ushort v{BIA+2}, v{TA}, {sp(pB1)} offset:64")
        I(f"s_min_u32 s{sT1}, s{sT1}, {27*128}")
        I(f"v_lshl_add_u32 v{TA}, v{SG}, 1, s{sT1}")
        I(f"global_load_ushort v{BIA+4}, v{TA}, {sp(pB1)}")
        I(f"global_load_ushort v{BIA+6}, v{TA}, {sp(pB1)} offset:64")

    def wtouch():
        I(f"s_lshl_b32 s{sT0}, s{sR}, 2")
        I(f"s_add_u32 s{sT0}, s{sT0}, s{sW}")
        I(f"s_mul_i32 s{sT0}, s{sT0}, {8*3584}")
        I(f"s_add_u32 s{sT0}, s{sT0}, s{sUB}")
        I(f"v_and_b32 v{TA}, 7, v{LN}")
        I(f"v_mul_u32_u24 v{TB}, 3584, v{TA}")
        I(f"v_lshl_add_u32 v{TB}, v{HH}, 7, v{TB}")
        I(f"buffer_load_dword v{ACA+13}, v{TB}, {srd(SW1)}, s{sT0} offen")
        I(f"s_lshl_b32 s{sT0}, s{sJ}, 4")
        I(f"s_add_u32 s{sT0}, s{sT0}, s{sR}")
        I(f"s_lshl_b32 s{sT0}, s{sT0}, 11")
        I(f"s_lshl_b32 s{sT1}, s{sW}, 9")
        I(f"s_add_u32 s{sT0}, s{sT0}, s{sT1}")
        I(f"v_and_b32 v{TA}, 3, v{LN}")
        I(f"v_lshlrev_b32 v{TA}, 7, v{TA}")
        I(f"buffer_load_dword v{ACA+14}, v{TA}, {srd(SBR)}, s{sT0} offen")
        I(f"buffer_load_dword v{ACA+15}, v{TA}, {srd(SBI)}, s{sT0} offen")

    def extras(c):
        if OPT["t_at"] == c:
            wtouch()
        if OPT["r_at"] == c:
            rloads()
        if OPT["p_at"] == c:
            params()

    def rpick(a):
        a.wait_vm("R")
        I(f"s_cmp_ge_u32 s{sW}, 2")
        I("s_cbranch_scc1 L_rpjoin")
        pos = a.pos
        I(f"s_add_u32 s{sT0}, s{sWL}, {RSLOT}")
        I(f"v_add_u32 v{TA}, s{sT0}, v{RDT}")
        I(f"v_add_u32 v{TB}, s{sT0}, v{RDT+1}")
        for dt in range(2):
            for ph in range(2):
                for e in range(2):
                    I(f"ds_read_b64_tr_b16 {ar(8*dt+4*ph+2*e,2)}, v{TA+dt} offset:{ph*2048+e*512}", track=False)
        a.pos = pos
        a.label("L_rpjoin")

    rs = [lambda a: a.need([ar(0, 16)])]
    rs += [(f"buffer_store_dwordx4 {ar(4*k,4)}, v{L16}, {srd(SRS)}, s{sRB if k>=2 else sRA} offen offset:{1024*(k&1)} sc1", "RS") for k in range(4)]
    early = OPT["r_at"] < 2
    extras(-1)
    for c in range(OPT["x_first"], 4):
        a.run(xgroup(c))

    def stats(c):
        it = [lambda a: a.need([vr(X + 16 * c, 16)])]
        for k in range(16):
            it.append(f"v_dot2c_f32_bf16 v{MEAN}, s{sONE}, v{X+16*c+k}")
            it.append(f"v_dot2c_f32_bf16 v{RSTD}, v{X+16*c+k}, v{X+16*c+k}")
        return it

    for c in range(8):
        if c < 4:
            a.run(xgroup(c + 4))
            extras(c)
        elif c == 4:
            extras(c)
            I(f"buffer_load_dword v{GOV}, v{GOA}, {srd(SDBG)}, 0 offen sc1")
            I(f"s_xor_b32 s{sT0}, s{sW}, s{sROT}")
            I(f"s_lshl_b32 s{sCS}, s{sT0}, 7")
            I(f"s_lshl_b32 s{sT1}, s{sJ}, 15")
            I(f"s_or_b32 s{sCS}, s{sCS}, s{sT1}")
            I(f"s_mul_i32 s{sCM0}, s{sT0}, {64*3584}")
            I(f"s_add_u32 s{sCM0}, s{sCM0}, s{sUB}")
            I(f"s_xor_b32 s{sT0}, s{sT0}, 4")
            I(f"s_mul_i32 s{sCM1}, s{sT0}, {64*3584}")
            I(f"s_add_u32 s{sCM1}, s{sCM1}, s{sUB}")
            I(f"s_lshr_b32 s{sHF}, s{sXB}, 16")
            I(f"s_lshl_b32 s{sHF}, s{sHF}, 2")
            I(f"s_add_u32 s{sHF}, s{sHF}, s{sG}")
            I(f"s_lshl_b32 s{sHF}, s{sHF}, 5")
            I(f"s_and_b32 s{sT0}, s{sW}, 1")
            I(f"s_lshl_b32 s{sT0}, s{sT0}, 2")
            I(f"s_add_u32 s{sHF}, s{sHF}, s{sT0}")
            I(f"s_add_u32 s{sHF}, s{sHF}, s{sJJ}")
            I(f"s_lshl_b32 s{sHF}, s{sHF}, 2")
            I(f"s_add_u32 s{sHF}, s{sHF}, {HFLAG}")
            p2_index(a)
            for k in range(4):
                I(f"v_add_u32 v{RDS+k}, {64*KB}, v{RDS+k}")
        elif c < 7:
            a.run(wgroup(0, c - 5))
        else:
            a.run(wgroup(1, 0))
        a.wait_vm(f"x{c}")
        if c in (0, 4, 7):
            I(stamp(f"x{c} landed"))
        for k in range(4):
            I(f"ds_read_b128 {vr(X+16*c+4*k,4)}, v{RDS+k} offset:{(xlds(c)-32*KB) % (64*KB)}")
        if early and c == 3:
            rpick(a)
        if c:
            a.run(stats(c - 1))
        if early and c == 4:
            a.run(rs)
    a.run(stats(7))
    NEGM = ACB
    I(f"v_mov_b32 v{TA}, v{MEAN}")
    I(f"v_mov_b32 v{TB}, v{RSTD}")
    I(f"s_add_u32 s{sT0}, s{sWL}, {96*KB}")
    I(f"v_permlane32_swap_b32 v{TA}, v{MEAN}")
    I(f"v_permlane32_swap_b32 v{TB}, v{RSTD}")
    I(f"v_add_f32 v{MEAN}, v{TA}, v{MEAN}")
    I(f"v_add_f32 v{RSTD}, v{TB}, v{RSTD}")
    I(f"v_mul_f32 v{NEGM}, {f32(-1/512)}, v{MEAN}")
    I(f"v_mul_f32 v{NEGM+1}, {f32(-1/512)}, v{MEAN}")
    for k in range(2, 16, 2):
        I(f"v_pk_mul_f32 {vr(NEGM+k,2)}, {vr(NEGM,2)}, 1.0 op_sel_hi:[1,0]")
    I(stamp("stats done"))

    per = {0: [f"v_subrev_u32 v{RDS+k}, s{sT0}, v{RDS+k}" for k in range(4)] + ([] if early else [rpick]), 1: wgroup(1, 1)[:4], 2: wgroup(1, 1)[4:],
           3: [] if early else rs[:3], 4: [] if early else rs[3:],
           6: [lambda a: poll(a, "L_go", GOV, GOA, SDBG, 0)]}
    fill = wgroup(2, 0) + wgroup(2, 1)
    for i in range(7, 13):
        per[i] = fill[2 * (i - 7):2 * (i - 6)]
    per[14] = [lambda a: a.wait_vm("H0"), "s_barrier"] + frag_reads(0)
    per[15] = frag_reads(1)
    for i in range(17):
        if i < 16:
            D = ACA + 16 * (i & 1)
            I(f"v_mfma_f32_32x32x16_bf16 {vr(D,16)}, {vr(SEL,4)}, {vr(X+8*i,4)}, {vr(NEGM,16)}")
            I(f"v_mfma_f32_32x32x16_bf16 {vr(D,16)}, {vr(SEL+4,4)}, {vr(X+8*i+4,4)}, {vr(D,16)}")
        a.run(per.get(i, []))
        if i:
            D = ACA + 16 * ((i - 1) & 1)
            for n in range(8):
                I(f"v_cvt_pk_bf16_f32 v{X+8*(i-1)+n}, v{D+2*n}, v{D+2*n+1}")

    bl = b_loads()
    n1, n2, n3 = OPT["b1"], OPT["b2"], OPT["b3"]
    assert n1 <= 48 and n2 <= 78
    for j in range(max(n1, 48), n2):
        assert ((j - n1) * 64) // (n2 - n1) >= 4 * ((j - 48) // 2 + 1), j
    flat = lambda ll: [x for l in ll for x in l]
    fl2, tail_items = fill_u2()
    bflag = [lambda a: a.wait_vm("RS"), f"buffer_store_dword v{KEEP+2}, v{KEEP+3}, {srd(SRS)}, s{sFL} offen sc1"]
    bpoll = [f"s_lshl_b32 s{sP0}, s{sN}, 2", f"s_add_u32 s{sP0}, s{sP0}, s{sW}", f"s_lshl_b32 s{sP0}, s{sP0}, 7", f"s_add_u32 s{sP0}, s{sP0}, {BFLAG}",
             f"buffer_load_dword v{KEEP+1}, v{KEEP}, {srd(SWS)}, s{sP0} offen sc1"]
    def grp(items):
        res, cur = [], []
        for it in items:
            cur.append(it)
            if not (isinstance(it, str) and it.startswith("s_")):
                res.append(cur)
                cur = []
        return res
    plan = [
        [(bflag, 1, 2), (grp(wgroup(3, 0) + wgroup(3, 1) + wgroup(4, 0) + wgroup(4, 1)), 2, 40, 1),
         (grp(bpoll + wgroup(5, 0) + wgroup(5, 1)), 40, 62, 1), (fill_u0(), 2, 62)],
        [(bl[:n1], 0, 64, 1), (fill_u1(), 1, 64)],
        [(bl[n1:n2], 0, 64, 1), (fl2, 1, 64)],
    ]
    if OPT["x_nofill"]:
        isw = lambda it: (it[0] if isinstance(it, tuple) else it).startswith("ds_write_b128")
        if OPT["x_nofill"] == 1:
            plan[1][1] = ([], 1, 64)
        else:
            plan[1][1] = ([it for it in fill_u1() if not isw(it)], 1, 64)
    for u in range(3):
        a.comment(f"---- GEMM unit {u} ----")
        I(stamp(f"U{u} start"))
        main = []
        for d in range(16):
            n = 16 * u + d
            pre = [lambda a, n=n: a.need(stage_regs(n))]
            if n + 2 < 48 and (n + 2) % 8 == 0:
                pre += [lambda a, hn=(n + 2) // 8: a.wait_vm(f"H{hn}"), "s_barrier"]
            if n in (7, 15):
                pre += ["s_barrier"]
            if n == 32:
                pre += [lambda a: a.wait_lg("E"), "s_barrier"]
            if n + 2 == 16:
                pre += [f"v_add_u32 v{RDT}, {H[2]}, v{RDT}", f"v_add_u32 v{RDT+1}, {H[2]}, v{RDT+1}"]
            if n + 2 == 32:
                pre += [f"v_add_u32 v{RDT}, {H[4]-H[2]}, v{RDT}", f"v_add_u32 v{RDT+1}, {H[4]-H[2]}, v{RDT+1}"]
            if n + 2 == 40:
                pre += [f"v_subrev_u32 v{RDT}, {H[4]}, v{RDT}", f"v_subrev_u32 v{RDT+1}, {H[4]}, v{RDT+1}"]
            ms = mfmas(n)
            rd = frag_reads(n + 2) if n + 2 < 48 else []
            h = len(rd) // 4
            for i in range(4):
                main.append((pre if i == 0 else []) + ms[i] + rd[i * h:(i + 1) * h])
        if u == 0:
            main[63] = main[63] + [lambda a: poll(a, "L_bf", KEEP + 1, KEEP, SWS, f"s{sP0}"), stamp("B flags")]
        for g in spread(main, plan[u]):
            a.run(g)
    I(stamp("tail start"))
    mk = tail_items.index("MARK")
    a.run(merge(tail_items[:mk], flat(bl[n2:])))
    a.run(tail_items[mk + 1:])
    I(stamp("tail issued"))
    I("s_barrier")


def merge(fl, mem):
    if not mem:
        return list(fl)
    res = []
    n, m = len(fl), len(mem)
    j = 0
    for i in range(n):
        while j < m and j * n <= i * m:
            res.append(mem[j])
            j += 1
        res.append(fl[i])
    res += mem[j:]
    return res


FONE, FZERO = T + 12, T + 13


sHP = SBR
sHV = SBI


def hload(stage):
    return f"s_load_dwordx8 s[{sHV}:{sHV+7}], s[{sHP}:{sHP+1}], {32*stage} glc"


def hpoll(stage):
    def f(a):
        name = f"L_hf{stage}"
        a.I(f"s_mov_b32 s{sT2}, 0")
        a.label(name)
        a.wait_lg_all()
        a.I(f"s_and_b64 s[{sHV}:{sHV+1}], s[{sHV}:{sHV+1}], s[{sHV+2}:{sHV+3}]")
        a.I(f"s_and_b64 s[{sHV+4}:{sHV+5}], s[{sHV+4}:{sHV+5}], s[{sHV+6}:{sHV+7}]")
        a.I(f"s_and_b64 s[{sHV}:{sHV+1}], s[{sHV}:{sHV+1}], s[{sHV+4}:{sHV+5}]")
        a.I(f"s_and_b32 s{sHV}, s{sHV}, s{sHV+1}")
        a.I(f"s_cbranch_scc1 {name}_done")
        pos = a.pos
        a.I(f"s_add_u32 s{sT2}, s{sT2}, 1")
        a.I(f"s_cmp_ge_u32 s{sT2}, {SPIN_MAX}")
        a.I(f"s_cbranch_scc1 {name}_done")
        a.I(hload(stage))
        a.I(f"s_branch {name}")
        a.lgq, a.pos = [], pos
        a.label(name + "_done")
    return f


LOOK = 7


def hflag(stage):
    return [lambda a: a.wait_vm(f"HS{stage}"),
            f"buffer_store_dword v{FONE}, v{FZERO}, {srd(SWS)}, s{sHF} offen offset:{32*stage} sc1"]


def fill_u2():
    APK, ARS, AET, ARW = VQ, VQ + 1, VQ + 2, VQ + 3
    E0 = T + 4
    it = []
    slots = [RDS, RDS + 2, VW, VW + 2, T + 8, T + 10, T + 12]
    for m in range(6, -1, -1):
        it.append(f"ds_read_b64 {vr(slots[m],2)}, v{AET} offset:{(7-m)*256}")
    it += [f"s_lshl_b32 s{sRA}, s{sR}, 8",
           f"s_movk_i32 s{sRB}, 4096\ns_cmp_eq_u32 s{sW}, 3\ns_cselect_b32 s{sRB}, 256, s{sRB}",
           f"v_lshlrev_b32 v{T+1}, 3, v{LN}",
           f"v_subrev_u32 v{T+1}, s{sRB}, v{T+1}",
           f"v_cmp_gt_i32 vcc, 0, v{T+1}",
           f"v_add_u32 v{T+2}, s{sRA}, v{T+1}"]
    it.append(lambda a: a.need([vr(x, 2) for x in slots]))
    cur = slots[6]
    for m in range(5, -1, -1):
        dst = PP if m == 0 else slots[m]
        it += cfma(dst, PA16, cur, slots[m])
        cur = dst
    it += [f"v_cndmask_b32 v{T+1}, v{T+2}, v{T+1}, vcc"]
    it += cfma(E0, PA16, PP, E0)
    it += [f"buffer_store_dwordx2 {vr(E0,2)}, v{T+1}, {srd(SE)}, 0 offen sc1"]
    tmp = [T + 8 + i for i in range(4)]
    nq = OPT["gelu_shadow"]
    for qd in range(nq):
        it += gelu_plain([ACB + 4 * qd + i for i in range(4)], tmp)
        if qd & 1:
            it += pack_store(ACB + 8 * (qd >> 1), SWS, sHB, 1024 * (qd >> 1), "HS0")
    tl = [f"v_mov_b32 v{FONE}, 1", f"v_mov_b32 v{FZERO}, 0"]
    EL = [BIA + 2 * n for n in range(6)] + [RDS, RDS + 2]
    EA, EB = VW + 2, VW + 3
    tl += [f"s_lshl_b32 s{sRA}, s{sR}, 8",
           f"s_sub_u32 s{sRA}, s{sRA}, 256",
           f"v_lshlrev_b32 v{EA}, 3, v{RHO}",
           f"v_lshlrev_b32 v{EB}, 8, v{HH}",
           f"v_sub_u32 v{EA}, v{EA}, v{EB}",
           f"v_add_u32 v{EA}, s{sRA}, v{EA}"]
    eloads = []
    for n in range(8):
        if n:
            eloads.append(f"v_subrev_u32 v{EB}, {512*n}, v{EA}")
        eloads.append(f"buffer_load_dwordx2 {vr(EL[n],2)}, v{EB if n else EA}, {srd(SE)}, 0 offen sc1")
    for qd in range(nq, 8):
        tl += gelu_packed(ACB + 4 * qd, T + 8)
        if qd & 1:
            tl += pack_store(ACB + 8 * (qd >> 1), SWS, sHB, 1024 * (qd >> 1), "HS0")
    U = ACB
    tl += [f"s_add_u32 s{sRB}, s{sHB}, {16*KB}"]
    for qd in range(8):
        tl += gelu_packed(ACA + 4 * qd, T + 8)
        if qd & 1:
            tl += pack_store(ACA + 8 * (qd >> 1), SWS2, sRB, 1024 * (qd >> 1), "HS1")
        if qd == OPT["flag0_at"]:
            tl += hflag(0) + [stamp("flag0")]
        if qd == OPT["eload_at"]:
            tl += eloads
        if qd == 5:
            for n in range(7):
                tl.append(f"ds_read_b128 {vr(U+4*n,4)}, v{APK} offset:{n*1024}")
    for k in range(4):
        tl.append(f"v_mov_b32 v{U+28+k}, v{KEEP+k}")
    TW, TR = VW, VW + 1
    tl += [f"s_mul_i32 s{sRA}, s{sW}, 5120",
           f"s_add_u32 s{sRA}, s{sRA}, {TRB}",
           f"v_mul_u32_u24 v{TW}, 80, v{RHO}",
           f"v_lshl_add_u32 v{TW}, v{HH}, 5, v{TW}",
           f"v_add_u32 v{TW}, s{sRA}, v{TW}",
           f"v_bfe_u32 v{T+1}, v{LN}, 2, 2",
           f"v_lshl_add_u32 v{T+1}, v{HH}, 4, v{T+1}",
           f"v_mul_u32_u24 v{TR}, 80, v{T+1}",
           f"v_and_b32 v{T+1}, 1, v{LN}",
           f"v_lshl_add_u32 v{TR}, v{T+1}, 5, v{TR}",
           f"v_bfe_u32 v{T+1}, v{LN}, 4, 1",
           f"v_lshl_add_u32 v{TR}, v{T+1}, 4, v{TR}",
           f"v_bfe_u32 v{T+1}, v{LN}, 1, 1",
           f"v_lshl_add_u32 v{TR}, v{T+1}, 3, v{TR}",
           f"v_add_u32 v{TR}, s{sRA}, v{TR}"]
    er = [r + h for r in EL for h in range(2)]

    def epoll(a):
        a.need([vr(r, 2) for r in EL])
        a.I(f"s_mov_b32 s{sT2}, 0")
        a.label("L_epoll")
        a.I(f"v_max3_u32 v{T+1}, v{er[0]}, v{er[1]}, v{er[2]}")
        for n in range(3, 15, 2):
            a.I(f"v_max3_u32 v{T+1}, v{T+1}, v{er[n]}, v{er[n+1]}")
        a.I(f"v_max_u32 v{T+1}, v{T+1}, v{er[15]}")
        a.I(f"v_cmp_eq_u32 vcc, -1, v{T+1}")
        a.I(f"s_add_u32 s{sT2}, s{sT2}, 1")
        a.I(f"s_cmp_ge_u32 s{sT2}, {SPIN_MAX}")
        a.I("s_cbranch_scc1 L_epoll_done")
        a.nop(2)
        a.I("s_cbranch_vccz L_epoll_done")
        save, pos = list(a.vmq), a.pos
        for l in eloads:
            a.I(l, track=False)
        a.wait_vm_all()
        a.I("s_branch L_epoll")
        a.vmq, a.pos = save, pos
        a.label("L_epoll_done")
    tl.append(stamp("gelu done"))
    tl.append(epoll)
    tl.append(stamp("E seen"))
    cur = EL[7]
    for n in range(6, -1, -1):
        tl += cfma(EL[n], PA256, cur, EL[n])
        cur = EL[n]
    S, S0, S1 = EL[0], EL[1], EL[2]
    tl += [f"v_mul_f32 v{S0}, v{PAH}, v{S}",
           f"v_mul_f32 v{S0+1}, v{PAH}, v{S+1}",
           f"v_fma_f32 v{S0}, -v{PAH+1}, v{S+1}, v{S0}",
           f"v_fmac_f32 v{S0+1}, v{PAH+1}, v{S}",
           f"v_mov_b32 v{S1}, v{S0}",
           f"v_mov_b32 v{S1+1}, v{S0+1}",
           f"v_permlane32_swap_b32 v{S0}, v{S1}",
           f"v_permlane32_swap_b32 v{S0+1}, v{S1+1}",
           f"v_add_f32 v{S0}, v{S0}, v{S1}",
           f"v_add_f32 v{S0+1}, v{S0+1}, v{S1+1}"]
    tl += cfma(PP, PAS, S0, PP)
    tl.append("MARK")
    tl += [f"s_lshl_b32 s{sT0}, s{sI2}, 2",
           f"s_add_u32 s{sT0}, s{sT0}, s{sW}",
           f"s_lshl_b32 s{sT0}, s{sT0}, 7",
           f"s_add_u32 s{sT0}, s{sT0}, {HFLAG}",
           f"s_add_u32 s{sHP}, s{pWS}, s{sT0}\ns_addc_u32 s{sHP+1}, s{pWS+1}, 0",
           lambda a: a.need([vr(U, 28)]),
           hload(0)]
    prev = PP
    aa = vr(PA, 2)
    RE, IM = ACA, ACA + 8
    for i in range(16):
        u = U + 2 * i
        tl += [f"v_pk_fma_f32 {vr(u,2)}, {vr(prev,2)}, {aa}, {vr(u,2)} op_sel:[0,0,0] op_sel_hi:[1,0,1]",
               f"v_pk_fma_f32 {vr(u,2)}, {vr(prev,2)}, {aa}, {vr(u,2)} op_sel:[1,1,0] op_sel_hi:[0,1,1] neg_lo:[0,1,0]"]
        prev = u
        if i & 1:
            tl += [f"v_cvt_pk_bf16_f32 v{RE+(i>>1)}, v{u-2}, v{u}",
                   f"v_cvt_pk_bf16_f32 v{IM+(i>>1)}, -v{u-1}, -v{u+1}"]
        if i in (7, 15):
            hf = i >> 3
            for p, R in enumerate((RE, IM)):
                tl.append(f"ds_write_b128 v{TW}, {vr(R+4*hf,4)} offset:{p*2560+16*hf}")
    FR = ACA + 16
    for p in range(2):
        for k in range(2):
            for e in range(2):
                tl.append(f"ds_read_b64_tr_b16 {vr(FR+8*p+4*k+2*e,2)}, v{TR} offset:{p*2560+(8*e+4*k)*80}")
    tl += [f"s_add_u32 s{sRB}, s{sHB}, {28*KB}"]
    tl += [stamp("scan done")] + hflag(1) + [stamp("flag1")]
    al = stream_loads(sA0, hreg)
    na = OPT["a_first"]
    hs2 = [lambda a: a.need([vr(FR, 16)])]
    for f in range(4):
        hs2.append((f"buffer_store_dwordx4 {vr(FR+4*f,4)}, v{L16}, {srd(SWS)}, s{sRB} offen offset:{1024*f} sc1", "HS2"))
    if na == 0:
        tl += hs2
    tl += [hpoll(0), stamp("H flags")]
    for k in range(na):
        tl += al[k]
    if na:
        tl += hs2
    for k in range(na, 2 * LOOK):
        tl += al[k]
    return it, tl


ACC2 = 128


def wreg(k, dt):
    return ar(8 * k + 4 * dt, 4) if k < 28 else vr(8 * (k - 28) + 4 * dt, 4)


def hreg(k, tt):
    if k < 4:
        return ar(224 + 8 * k + 4 * tt, 4)
    if k < 8:
        return vr(208 + 8 * (k - 4) + 4 * tt, 4)
    return wreg(k - 8, tt)


def p2_index(a):
    I = a.I
    if OPT["arr2"] == 48:
        I(f"s_and_b32 s{sI2}, s2, 7")
        I(f"s_lshl_b32 s{sI2}, s{sI2}, 2")
        I(f"s_lshr_b32 s{sT0}, s2, 6")
        I(f"s_add_u32 s{sI2}, s{sI2}, s{sT0}")
        I(f"s_bfe_u32 s{sN}, s2, 0x30003")
    else:
        I(f"s_and_b32 s{sI2}, s2, 3")
        I(f"s_lshl_b32 s{sI2}, s{sI2}, 3")
        I(f"s_bfe_u32 s{sT0}, s2, 0x30003")
        I(f"s_add_u32 s{sI2}, s{sI2}, s{sT0}")
        I(f"s_and_b32 s{sN}, s2, 4")
        I(f"s_lshr_b32 s{sT0}, s2, 6")
        I(f"s_add_u32 s{sN}, s{sN}, s{sT0}")
    I(f"s_mul_i32 s{sT0}, s{sW}, {G_STRIDE}")
    I(f"s_mul_i32 s{sA0}, s{sI2}, {2*RT_STRIDE}")
    I(f"s_add_u32 s{sA0}, s{sA0}, s{sT0}")
    I(f"s_mul_i32 s{sB0}, s{sN}, {2*RT_STRIDE}")
    I(f"s_add_u32 s{sB0}, s{sB0}, s{sT0}")
    I(f"s_add_u32 s{sB0}, s{sB0}, {BW}")
    for s in range(11):
        I(f"s_mov_b32 s{sUO+s}, {s*4096}")


def stream_loads(base, reg):
    res = []
    for k in range(44):
        for t in range(2):
            it = []
            if k % 4 == 0 and t == 0:
                it += [f"s_add_u32 s{sP0}, s{base}, s{sUO+k//4}", f"s_add_u32 s{sP1}, s{sP0}, {RT_STRIDE}"]
            it.append(f"buffer_load_dwordx4 {reg(k,t)}, v{L16}, {srd(SWS)}, s{sP0+t} offen offset:{(k&3)*1024} sc1")
            res.append(it)
    return res


def b_loads():
    l = stream_loads(sB0, wreg)
    return l[:48] + l[56:] + l[48:56]


def phase2(a):
    I = a.I
    al = stream_loads(sA0, hreg)
    XA, OA, SA = 192, 193, 194
    TA, TB, TC = 195, 196, 197
    WA, RA = 198, 202
    XV, ST, BASE = 208, 216, 224
    DK, BB, DF, BF = 204, 240, 246, 250
    sT2 = sROT
    prep = []
    prep += [f"s_lshr_b32 s{sT2}, s{sW}, 1",
             f"s_lshl_b32 s{sT2}, s{sT2}, 5",
             f"s_and_b32 s{sG}, s{sW}, 1",
             f"s_lshl_b32 s{sG}, s{sG}, 3",
             f"s_add_u32 s{sT2}, s{sT2}, s{sG}",
             f"s_lshl_b32 s{sG}, s{sI2}, 6",
             f"s_add_u32 s{sT2}, s{sT2}, s{sG}",
             f"v_lshrrev_b32 v{TA}, 4, v{LN}",
             f"v_and_b32 v{TB}, 15, v{LN}",
             f"v_add_u32 v{TC}, s{sT2}, v{TA}",
             f"s_lshl_b32 s{sG}, s{sN}, 7",
             f"v_lshl_add_u32 v{SA}, v{TB}, 3, s{sG}",
             f"global_load_dwordx2 {vr(DK,2)}, v{SA}, {sp(pDSK)}",
             f"global_load_dwordx2 {vr(BB,2)}, v{SA}, {sp(pB2)}",
             f"v_lshl_add_u32 v{XA}, v{TC}, 10, v{SA}",
             f"v_lshlrev_b32 v{OA}, 1, v{XA}",
             f"s_lshl_b32 s{sG}, s{sW}, 14",
             f"s_lshl_b32 s{sJJ}, s{sI2}, 9",
             f"s_add_u32 s{sG}, s{sG}, s{sJJ}",
             f"s_lshl_b32 s{sJJ}, s{sW}, 7",
             f"s_add_u32 s{sG}, s{sG}, s{sJJ}",
             f"s_add_u32 s{sG}, s{sG}, {STATS}",
             f"v_lshlrev_b32 v{SA}, 3, v{TA}"]
    rowoff = lambda it: 16 * (it & 1) + 4 * (it >> 1)
    for it in range(4):
        prep += [f"s_mov_b32 s{sJJ}, {rowoff(it)*1024}",
                 f"buffer_load_dwordx2 {vr(XV+2*it,2)}, v{XA}, {srd(SX)}, s{sJJ} offen",
                 f"buffer_load_dwordx2 {vr(ST+2*it,2)}, v{SA}, {srd(SWS)}, s{sG} offen offset:{32*it} sc1"]
    prep += [f"v_and_b32 v{TC}, 31, v{LN}",
             f"v_lshrrev_b32 v{WA}, 5, v{LN}",
             f"v_lshlrev_b32 v{WA}, 1, v{WA}",
             f"v_and_b32 v{WA+1}, 7, v{LN}",
             f"v_xor_b32 v{WA}, v{WA}, v{WA+1}",
             f"v_lshlrev_b32 v{WA}, 4, v{WA}",
             f"v_lshl_or_b32 v{WA}, v{TC}, 8, v{WA}",
             f"s_lshl_b32 s{sJJ}, s{sW}, 14",
             f"v_add_u32 v{WA}, s{sJJ}, v{WA}",
             f"v_xor_b32 v{WA+1}, 16, v{WA}",
             f"v_xor_b32 v{WA+2}, 64, v{WA}",
             f"v_xor_b32 v{WA+3}, 80, v{WA}",
             f"v_xor_b32 v{RA}, v{TA}, v{TB}",
             f"v_lshlrev_b32 v{RA}, 4, v{RA}",
             f"v_lshl_or_b32 v{RA}, v{TA}, 8, v{RA}",
             f"s_lshl_b32 s{sJJ}, s{sW}, 12",
             f"v_add_u32 v{RA}, s{sJJ}, v{RA}",
             f"v_xor_b32 v{RA+1}, 64, v{RA}"]
    prep2 = []
    for h in range(2):
        prep2 += [f"v_lshlrev_b32 v{DF+2*h}, 16, v{DK+h}", f"v_and_b32 v{DF+2*h+1}, 0xffff0000, v{DK+h}",
                  f"v_lshlrev_b32 v{BF+2*h}, 16, v{BB+h}", f"v_and_b32 v{BF+2*h+1}, 0xffff0000, v{BB+h}"]
    for it in range(4):
        for c in range(4):
            b = BASE + 4 * it + c
            src = XV + 2 * it + (c >> 1)
            prep2 += [f"v_lshlrev_b32 v{b}, 16, v{src}" if c % 2 == 0 else f"v_and_b32 v{b}, 0xffff0000, v{src}",
                      f"v_sub_f32 v{TA}, v{b}, v{ST+2*it}",
                      f"v_mul_f32 v{TA}, v{TA}, v{ST+2*it+1}",
                      f"v_add_f32 v{b}, v{b}, v{BF+c}",
                      f"v_fmac_f32 v{b}, v{TA}, v{DF+c}"]
    for k in range(44):
        ms = []
        for dt in range(2):
            for tt in range(2):
                D = vr(ACC2 + 32 * dt + 16 * tt, 16)
                ms.append(f"v_mfma_f32_32x32x16_bf16 {D}, {wreg(k,dt)}, {hreg(k,tt)}, {D if k else '0'}")
        a.need([hreg(k, 0), hreg(k, 1), wreg(k, 0), wreg(k, 1)])
        if k in (0, 11, 22, 33):
            I(stamp(f"k{k}"))
        I(ms[0])
        if k == OPT["flag2_at"]:
            a.run(hflag(2))
        if k + LOOK in (16, 28):
            I(hpoll(1 if k + LOOK == 16 else 2))
        if k + LOOK + OPT["plead"] in (16, 28):
            I(hload(1 if k + LOOK + OPT["plead"] == 16 else 2))
        if k + LOOK < 44:
            a.run(al[2 * (k + LOOK)] + al[2 * (k + LOOK) + 1])
        fl = []
        if 10 <= k < 16:
            fl = prep[(len(prep) * (k - 10)) // 6:(len(prep) * (k - 9)) // 6]
        if 26 <= k < 34:
            fl = prep2[(len(prep2) * (k - 26)) // 8:(len(prep2) * (k - 25)) // 8]
        n3 = (len(fl) + 2) // 3
        for i in range(1, 4):
            I(ms[i])
            a.run(fl[(i - 1) * n3:i * n3])
    I(stamp("mfma done"))
    for dt in range(2):
        for tt in range(2):
            for gq in range(4):
                I(f"ds_write_b128 v{WA+gq}, {vr(ACC2+32*dt+16*tt+4*gq,4)} offset:{tt*8192+dt*128}")
    a.wait_lg_all()
    I("s_barrier")
    I(stamp("red barrier"))
    PR = 0
    for it in range(4):
        for q in range(4):
            I(f"ds_read_b128 {vr(PR+16*it+4*q,4)}, v{RA+(it&1)} offset:{q*16384+it*1024}")
    for it in range(4):
        b = BASE + 4 * it
        p = PR + 16 * it
        a.need([vr(p, 16)])
        for h in (0, 2):
            I(f"v_pk_add_f32 {vr(p+h,2)}, {vr(p+h,2)}, {vr(p+4+h,2)}")
        for h in (0, 2):
            I(f"v_pk_add_f32 {vr(p+8+h,2)}, {vr(p+8+h,2)}, {vr(p+12+h,2)}")
        for h in (0, 2):
            I(f"v_pk_add_f32 {vr(b+h,2)}, {vr(b+h,2)}, {vr(p+h,2)}")
        I(f"s_mov_b32 s{sJJ}, {rowoff(it)*2048}")
        for h in (0, 2):
            I(f"v_pk_add_f32 {vr(b+h,2)}, {vr(b+h,2)}, {vr(p+8+h,2)}")
        I(f"buffer_store_dwordx4 {vr(b,4)}, v{OA}, {srd(SOUT)}, s{sJJ} offen {OPT['outflags']}")
    I(stamp("out issued"))
    if DEBUG:
        a.wait_vm_all()
    I(stamp("out done"))


import os
HEADER = open(os.path.dirname(os.path.abspath(__file__)) + "/header.txt").read()


def kd(name):
    return f""".amdhsa_kernel {name}
  .amdhsa_next_free_vgpr 512
  .amdhsa_next_free_sgpr 102
  .amdhsa_accum_offset 256
  .amdhsa_group_segment_fixed_size 0
  .amdhsa_float_denorm_mode_32 3
  .amdhsa_kernarg_size 136
  .amdhsa_user_sgpr_count 2
  .amdhsa_user_sgpr_kernarg_segment_ptr 1
  .amdhsa_system_sgpr_workgroup_id_x 1
.end_amdhsa_kernel
"""


OPT = dict(x_first=3, t_at=9, r_at=4, p_at=4, lat=0, plead=4, a_first=14, flag2_at=5, arr2=48, x_nostore=0, x_nofill=0, hsflags='sc1', rt=0, arr=48, rotmask=0, spin=0, tlb=1, flag0_at=3, b1=32, b2=64, b3=88, gelu_shadow=2, eload_at=2, outflags="sc1")


def build():
    a = Asm()
    k1 = NAME + "_kernel"
    a.raw(HEADER.rstrip())
    a.raw("; @launch grid=(256,1,1) block=(256,1,1) lds=163840")
    a.raw('.amdgcn_target "amdgcn-amd-amdhsa--gfx950"\n.text')
    a.raw(f".globl {k1}\n.p2align 8\n.type {k1},@function\n{k1}:")
    a.I("s_cmp_ge_u32 s2, 256")
    a.I("s_cbranch_scc1 L_end")
    if OPT["spin"]:
        a.I("s_memrealtime s[70:71]") if OPT["spin"] == 1 else None
    phase1(a, k1)
    phase2(a)
    if OPT["spin"]:
        a.I("s_cmp_lg_u32 s2, 100\ns_cbranch_scc1 L_end")
        a.I(f"s_cmp_lg_u32 s{sW}, 3\ns_cbranch_scc1 L_end")
        a.I("s_mov_b32 s4, 0")
        a.label("L_spin")
        a.I("s_memrealtime s[6:7]")
        a.wait_lg_all()
        a.I("s_sub_u32 s6, s6, s70\ns_add_u32 s4, s4, 1\ns_cmp_ge_u32 s4, 20000\ns_cbranch_scc1 L_end\ns_cmp_lt_u32 s6, 6000\ns_cbranch_scc1 L_spin")
    stamp_flush(a, 0)
    a.label("L_end")
    a.I("s_endpgm")
    a.raw('.section .rodata,"a"\n.p2align 6')
    a.raw(kd(k1))
    print(f"instructions: {a.count}, nops {a.nops}", file=sys.stderr)
    return a.text()


if __name__ == "__main__":
    out = sys.argv[1] if len(sys.argv) > 1 else f"cdna_kernels/{NAME}.s"
    DEBUG = "-d" in sys.argv
    for arg in sys.argv[2:]:
        if "=" in arg:
            k, v = arg.split("=", 1)
            OPT[k] = type(OPT[k])(v)
    txt = build()
    if DEBUG:
        txt += "; STAMPS " + ",".join(STAMPS) + "\n"
    open(out, "w").write(txt)
```

```python
import re

TRANS = ("v_exp_f32", "v_log_f32", "v_rcp_f32", "v_rsq_f32", "v_sqrt_f32", "v_sin_f32", "v_cos_f32")
RMW = ("v_fmac_f32", "v_dot2c_f32_bf16", "v_fmac_f32_e32", "v_dot2c_f32_bf16_e32")


def regs_of(op):
    op = op.strip()
    op = op.lstrip("-")
    m = re.fullmatch(r"abs\((.*)\)|\|(.*)\|", op)
    if m:
        op = m.group(1) or m.group(2)
    m = re.fullmatch(r"([vas])\[(\d+):(\d+)\]", op)
    if m:
        return [f"{m.group(1)}{i}" for i in range(int(m.group(2)), int(m.group(3)) + 1)]
    m = re.fullmatch(r"([vas])(\d+)", op)
    if m:
        return [op]
    if op == "vcc":
        return ["vcc"]
    if op == "exec":
        return ["exec"]
    if op == "m0":
        return ["m0"]
    return []


class Ins:
    __slots__ = ("text", "mn", "kind", "rd", "wr", "srcc", "wide_store", "tag", "track", "lds_dma", "sdata")

    def __init__(self, text, tag=None, track=True):
        self.text = text
        self.tag = tag
        self.track = track
        t = text.split(";")[0].strip()
        parts = t.split(None, 1)
        self.mn = mn = parts[0]
        rest = parts[1] if len(parts) > 1 else ""
        ops = [o.strip() for o in rest.split(",")] if rest else []
        cleaned = []
        for o in ops:
            cleaned.append(o.split()[0] if o.split() else o)
        ops = cleaned
        self.rd, self.wr, self.srcc = [], [], []
        self.wide_store = False
        self.lds_dma = False
        self.sdata = []
        R = lambda i: regs_of(ops[i]) if i < len(ops) else []
        if mn.startswith("v_mfma"):
            self.kind = "mfma"
            self.wr = R(0)
            self.rd = R(1) + R(2)
            self.srcc = R(3)
        elif mn.startswith("v_"):
            self.kind = "valu"
            if mn.startswith("v_permlane"):
                self.wr = R(0) + R(1)
                self.rd = R(0) + R(1)
            elif mn.startswith("v_add_co") or mn.startswith("v_addc_co") or mn.startswith("v_sub_co"):
                self.wr = R(0) + R(1)
                self.rd = sum((R(i) for i in range(2, len(ops))), [])
            else:
                self.wr = R(0)
                self.rd = sum((R(i) for i in range(1, len(ops))), [])
                if mn in RMW:
                    self.rd += R(0)
        elif mn.startswith("ds_read"):
            self.kind = "ds"
            self.wr = R(0)
            self.rd = R(1)
        elif mn.startswith("ds_write"):
            self.kind = "ds"
            self.rd = sum((R(i) for i in range(len(ops))), [])
        elif mn.startswith("buffer_load"):
            self.kind = "vm"
            if re.search(r"\blds\b", t):
                self.lds_dma = True
                self.rd = R(0) + R(1) + R(2) + ["m0"]
            else:
                self.wr = R(0)
                self.rd = R(1) + R(2) + R(3)
        elif mn.startswith("buffer_store"):
            self.kind = "vm"
            self.rd = R(0) + R(1) + R(2) + R(3)
            self.wide_store = mn.endswith("x4") or mn.endswith("x3")
            self.sdata = R(0)
        elif mn.startswith("global_load_lds"):
            self.kind = "vm"
            self.lds_dma = True
            self.rd = R(0) + R(1) + ["m0"]
        elif mn.startswith("global_load"):
            self.kind = "vm"
            self.wr = R(0)
            self.rd = R(1) + R(2)
        elif mn.startswith("global_store"):
            self.kind = "vm"
            self.rd = R(0) + R(1) + R(2)
            self.wide_store = mn.endswith("x4") or mn.endswith("x3")
            self.sdata = R(1)
        elif mn.startswith("s_load") or mn.startswith("s_mem"):
            self.kind = "smem"
            self.wr = R(0)
            self.rd = R(1)
        elif mn in ("s_waitcnt", "s_nop", "s_barrier", "s_endpgm", "s_sleep", "s_setprio") or mn.startswith("s_cbranch") or mn == "s_branch":
            self.kind = "ctl"
        elif mn.startswith("s_cmp") or mn.startswith("s_bitcmp"):
            self.kind = "salu"
            self.rd = R(0) + R(1)
        elif mn.startswith("s_"):
            self.kind = "salu"
            self.wr = R(0)
            self.rd = sum((R(i) for i in range(1, len(ops))), [])
        else:
            raise ValueError("unknown instruction: " + text)


class Asm:
    def __init__(self):
        self.out = []
        self.reset_state()
        self.nops = 0
        self.count = 0

    def reset_state(self):
        self.pos = 0
        self.vmq = []
        self.lgq = []
        self.last = {}

    def raw(self, text):
        self.out.append(text)

    def comment(self, text):
        self.out.append("    ; " + text)

    def label(self, name, settle=True):
        self.out.append(name + ":")
        if settle:
            self.settle()

    def settle(self, n=None):
        pass

    def _put(self, text, states=1):
        self.out.append("    " + text)
        self.pos += states
        self.count += 1

    def nop(self, n):
        while n > 0:
            k = min(n, 16)
            self._put(f"s_nop {k-1}", k)
            self.nops += 1
            n -= k

    def _wait_vm_idx(self, idx):
        while sum(1 for e in self.vmq[idx + 1:] if e.track) > 63:
            idx += 1
        n = sum(1 for e in self.vmq[idx + 1:] if e.track)
        self._put(f"s_waitcnt vmcnt({n})")
        self.vmq = self.vmq[idx + 1:]

    def _wait_lg_idx(self, idx):
        if self.lgq[idx].kind == "smem":
            self._put("s_waitcnt lgkmcnt(0)")
            self.lgq = []
            return
        cnt = lambda i: sum(1 for e in self.lgq[i + 1:] if e.track and e.kind != "smem")
        while cnt(idx) > 15:
            idx += 1
        n = cnt(idx)
        self._put(f"s_waitcnt lgkmcnt({n})")
        self.lgq = [] if n == 0 else [e for e in self.lgq[:idx + 1] if e.kind == "smem"] + self.lgq[idx + 1:]

    def wait_vm(self, tag):
        idx = max((i for i, e in enumerate(self.vmq) if e.tag == tag), default=-1)
        if idx >= 0:
            self._wait_vm_idx(idx)

    def wait_lg(self, tag):
        idx = max((i for i, e in enumerate(self.lgq) if e.tag == tag), default=-1)
        if idx >= 0:
            self._wait_lg_idx(idx)

    def wait_vm_all(self):
        self._put("s_waitcnt vmcnt(0)")
        self.vmq = []

    def wait_lg_all(self):
        self._put("s_waitcnt lgkmcnt(0)")
        self.lgq = []

    def need(self, regs):
        rs = set(sum((regs_of(r) for r in regs), []))
        self._dep_wait(rs)

    def _dep_wait(self, rs):
        idx = max((i for i, e in enumerate(self.vmq) if rs & set(e.wr)), default=-1)
        if idx >= 0:
            self._wait_vm_idx(idx)
        hit = [i for i, e in enumerate(self.lgq) if rs & set(e.wr)]
        if hit:
            sm = [i for i in hit if self.lgq[i].kind == "smem"]
            self._wait_lg_idx(sm[0] if sm else max(hit))

    def I(self, text, tag=None, track=True):
        if callable(text):
            text(self)
            return
        if isinstance(text, tuple):
            text, tag = text
        for line in text.split("\n"):
            line = line.strip()
            if line:
                self._one(Ins(line, tag, track))

    def run(self, items):
        for it in items:
            self.I(it)

    def _one(self, ins):
        allr = ins.rd + ins.srcc
        self._dep_wait(set(allr) | set(ins.wr))
        need = 0
        L = self.last

        def req(kind, regs, ws):
            nonlocal need
            for r in regs:
                p = L.get((kind, r))
                if p is not None:
                    need = max(need, ws - (self.pos - p - 1))

        k = ins.kind
        is_trans = ins.mn.replace("_e32", "").replace("_e64", "") in TRANS
        is_dot = ins.mn.startswith("v_dot")
        if k == "mfma":
            req("valu_w", allr, 2)
            req("mfma_w", ins.rd, 12)
            blk = tuple(ins.srcc)
            for r in ins.srcc:
                p = L.get(("mfma_w", r))
                if p is not None and L.get(("mfma_blk", r)) != blk:
                    need = max(need, 10 - (self.pos - p - 1))
            for r in ins.wr:
                p = L.get(("mfma_w", r))
                if p is not None and r not in ins.srcc:
                    pass
            req("dot_w", allr + ins.wr, 3)
        else:
            if k in ("valu", "vm", "ds"):
                req("mfma_w", allr + ins.wr, 12)
            if k == "valu":
                req("mfma_c", ins.wr, 7)
                if not is_trans:
                    req("trans_w", ins.rd, 1)
                else:
                    req("trans_w", ins.rd, 1)
                if ins.mn.startswith("v_permlane") or "dpp" in ins.mn:
                    req("valu_w", ins.rd, 2)
                if ins.mn.startswith("v_readlane") or ins.mn.startswith("v_readfirstlane"):
                    req("valu_w", ins.rd, 1)
                srd = [r for r in ins.rd if r[0] == "s" or r == "vcc"]
                req("valu_w", srd, 2)
                req("store_d", ins.wr, 2)
                if is_dot:
                    src = [r for r in ins.rd if r not in ins.wr]
                    req("dot_w", src, 3)
                else:
                    req("dot_w", ins.rd + ins.wr, 3)
            if k == "vm":
                req("valu_w", [r for r in ins.rd if r[0] == "s"], 5)
                if ins.lds_dma:
                    req("salu_w", ["m0"], 1)
                req("store_d", ins.wr, 2)
                req("trans_w", ins.rd, 1)
                req("dot_w", ins.rd, 3)
            if k == "ds":
                if "addtid" in ins.mn:
                    req("salu_w", ["m0"], 1)
                req("store_d", ins.wr, 2)
                req("trans_w", ins.rd, 1)
                req("dot_w", ins.rd, 3)
            if k in ("salu", "smem"):
                req("valu_w", ins.rd, 2)
        if need > 0:
            self.nop(need)
        here = self.pos
        st = 1
        if ins.mn == "s_nop":
            st = int(ins.text.split()[1], 0) + 1
        self._put(ins.text, st)
        if ins.mn == "s_waitcnt":
            raise ValueError("use the wait helpers")
        if k == "mfma":
            short = 6 if "4x4x4" in ins.mn else 0
            for r in ins.wr:
                L[("mfma_w", r)] = here - short
                L[("mfma_blk", r)] = tuple(ins.wr) if not short else None
            for r in ins.srcc:
                L[("mfma_c", r)] = max(here - short, L.get(("mfma_c", r), -99))
        elif k == "valu":
            for r in ins.wr:
                L[("valu_w", r)] = here
                L.pop(("mfma_w", r), None)
                if is_trans:
                    L[("trans_w", r)] = here
                if is_dot:
                    L[("dot_w", r)] = here
        elif k == "salu":
            for r in ins.wr:
                L[("salu_w", r)] = here
        elif k == "vm":
            if ins.wide_store:
                for r in ins.sdata:
                    L[("store_d", r)] = here
            self.vmq.append(ins)
        elif k in ("ds", "smem"):
            self.lgq.append(ins)

    def text(self):
        return "\n".join(self.out) + "\n"


def interleave(main, fill, start=0, end=None):
    n = len(main)
    end = n if end is None else end
    span = max(end - start, 1)
    res = []
    done = 0
    for i, g in enumerate(main):
        res += g
        if start <= i < end:
            upto = (len(fill) * (i - start + 1)) // span
            res += fill[done:upto]
            done = upto
    res += fill[done:]
    return res
```

```python
import sys, math, struct
from asmlib import Asm, TRANS

NAME = "parallel_sum__ssm_conv_s5__mixer_channel_mlp__prompt"
KB = 1024
RT_STRIDE = 176 * KB
G_STRIDE = 44 * KB
HID = 0
BW = 64 * RT_STRIDE
EOFF = BW + 16 * RT_STRIDE
HFLAG = EOFF + 64 * KB
XFLAG = HFLAG + 64 * KB
BFLAG = XFLAG + 32 * KB
XCH = 16 * 1024 * KB
WS_END = XCH + 2048 * KB
SPIN_MAX = 4000

H = [0, 32 * KB, 64 * KB, 96 * KB, 128 * KB, 0]
PARK = H[1]
ETAB = H[1] + 28 * KB
TRB = H[2]


def f32(x):
    return "0x%08x" % struct.unpack("<I", struct.pack("<f", x))[0]


pX, pLRE, pLIM, pBRE, pBIM, pCRE, pCIM, pLDT = [4 + 2 * i for i in range(8)]
pDSK, pBX, pW1, pB1, pW2, pB2, pOUT, pDBG = [20 + 2 * i for i in range(8)]
pWS = 36
SX, SBR, SBI, SW1, SW1B, SWS, SWS2, SR, SRS, SOUT, SDBG, SE = [40 + 4 * i for i in range(12)]
sW, sR, sJ, sJJ, sG, sROT, sT0, sT1, sT2, sRA, sRB, sHB, sONE, sFL = range(88, 102)
sXB = 38
sUB = 39
sWL = 3
sA1, sXF, sHP, sXP, sXI, sXS = 6, 7, 8, 10, 12, 13
sI2, sN, sB0, sA0, sG2, sP0, sP1 = 15, 16, 17, 18, 19, 24, 25
sCS, sCM0, sCM1 = 26, 27, 28
sHF = 29
sRS = 1
sINI = 0


def srd(n):
    return f"s[{n}:{n+3}]"


def sp(n):
    return f"s[{n}:{n+1}]"


def vr(n, c=1):
    return f"v{n}" if c == 1 else f"v[{n}:{n+c-1}]"


def ar(n, c=1):
    return f"a{n}" if c == 1 else f"a[{n}:{n+c-1}]"


X = 0
ACA, ACB = 128, 160
VQ, VW, RDS, RDT = 192, 196, 200, 204
L16 = 206
MEAN, RSTD, IR2, K0, K1 = 207, 208, 209, 210, 211
PA, PC, PA16, PAS, PAH, PA256, PP = 212, 214, 216, 218, 220, 222, 224
BIA = 226
KEEP = 238
T = 242
STASH = 176
aTW, aTR, aXD, aAA, aES, aEA, aARS, aARW, aAET = 176, 177, 178, 179, 181, 182, 183, 184, 185
STG = 192


DEBUG = False
STAMPV = T + 3
STAMPS = []
DBGOFF = 15 * 1024 * KB


def stamp(name):
    def f(a):
        if not DEBUG:
            return
        if OPT["only"] and name not in ("start", "out done") and name not in OPT["only"].split(","):
            return
        n = len(STAMPS)
        STAMPS.append(name)
        if name.endswith("start") and name[0] in "sk":
            a.I("s_memrealtime s[22:23]")
            a.wait_lg_all()
            a.I(f"v_writelane_b32 v{STAMPV}, s22, 62")
            a.I(f"v_writelane_b32 v{STAMPV}, s86, 61")
        a.I("s_memtime s[22:23]")
        a.wait_lg_all()
        a.I(f"v_writelane_b32 v{STAMPV}, s22, {n}")
        if OPT["rt"]:
            a.I("s_memrealtime s[22:23]")
            a.wait_lg_all()
            a.I(f"v_writelane_b32 v{STAMPV}, s22, {32+n}")
    return f


def stamp_flush(a, which):
    if not DEBUG:
        return
    a.I("s_memrealtime s[22:23]")
    a.wait_lg_all()
    a.I(f"v_writelane_b32 v{STAMPV}, s22, 63")
    a.I(f"s_lshl_b32 s22, s2, 2\ns_add_u32 s22, s22, s{sW}\ns_lshl_b32 s22, s22, 8\ns_add_u32 s22, s22, {DBGOFF + which*256*KB}")
    a.I(f"v_mbcnt_lo_u32_b32 v0, -1, 0\nv_mbcnt_hi_u32_b32 v0, -1, v0\nv_lshlrev_b32 v0, 2, v0")
    a.I(f"buffer_store_dword v{STAMPV}, v0, {srd(SWS)}, s22 offen")


def mk_srd(a, n, ptr, size):
    a.I(f"s_mov_b64 s[{n}:{n+1}], s[{ptr}:{ptr+1}]")
    a.I(f"s_mov_b32 s{n+2}, {size}")
    a.I(f"s_mov_b32 s{n+3}, 0x20000")


def load_kernargs(a):
    a.I("s_load_dwordx16 s[4:19], s[0:1], 0")
    a.I("s_load_dwordx16 s[20:35], s[0:1], 64")
    a.I("s_load_dwordx2 s[36:37], s[0:1], 128")


def dma4(vbase, s, soff, m0expr, tag):
    it = list(m0expr)
    for q in range(4):
        it.append((f"buffer_load_dwordx4 v{vbase+q}, {srd(s)}, s{soff} offen offset:{q*1024} lds", tag))
    return it


def stage_regs(n):
    return [ar(STG + 16 * (n & 3), 16)]


def frag_reads(n):
    u, d = divmod(n, 16)
    it = []
    for s in range(2):
        k = 2 * d + s
        base = STG + 16 * (n & 3) + 8 * s
        if u == 1:
            for part in range(2):
                it.append(f"ds_read_b128 {ar(base+4*part,4)}, v{RDS+(k&3)} offset:{(k>>2)*8192+part*4096}")
        else:
            kk = k if u == 0 else (k & 15)
            for t in range(2):
                for e in range(2):
                    it.append(f"ds_read_b64_tr_b16 {ar(base+4*t+2*e,2)}, v{RDT+t} offset:{kk*2048+e*512}")
    return it


def mfmas(n):
    u, d = divmod(n, 16)
    res = []
    for s in range(2):
        k = 2 * d + s
        base = STG + 16 * (n & 3) + 8 * s
        for t in range(2):
            D = vr((ACA, ACB, ACA)[u] + 16 * t, 16)
            c = D if k else "0"
            bias = f"v_mfma_f32_32x32x16_bf16 {D}, {vr(BIA+u,4)}, {vr(BIA+4+4*t,4)}, {c}"
            g = []
            if u == 1:
                g.append(f"v_mfma_f32_32x32x16_bf16 {D}, {vr(X+4*k,4)}, {ar(base+4*t,4)}, {c}")
            else:
                if u == 2 and k == 0:
                    g.append(bias)
                    c = D
                g.append(f"v_mfma_f32_32x32x16_bf16 {D}, {ar(base+4*t,4)}, {vr(X+4*k,4)}, {c}")
                if u == 0 and k == 31:
                    g.append(bias)
            res.append(g)
    return res


LN, HH, RHO = T, T + 6, T + 7


def cpow(dst, nreg_or_const, zr, zv, t0, t1):
    it = []
    n = nreg_or_const
    if n == 1:
        it += [f"v_exp_f32 v{t0}, v{zr}", f"v_fract_f32 v{t1}, v{zv}"]
    else:
        src = n if isinstance(n, str) else f32(float(n))
        it += [f"v_mul_f32 v{t0}, {src}, v{zr}", f"v_mul_f32 v{t1}, {src}, v{zv}",
               f"v_exp_f32 v{t0}, v{t0}", f"v_fract_f32 v{t1}, v{t1}"]
    it += [f"v_cos_f32 v{dst}, v{t1}", f"v_sin_f32 v{dst+1}, v{t1}",
           f"v_mul_f32 v{dst}, v{dst}, v{t0}", f"v_mul_f32 v{dst+1}, v{dst+1}, v{t0}"]
    return it


def fill_u0():
    it = []
    A0, A1, A2, A3 = [ACB + 8 + i for i in range(4)]
    EPS = f32(1e-5)
    k0 = -2.0 * math.log2(math.e) * math.sqrt(2.0 / math.pi)
    k1 = k0 * 0.044715
    it += [f"v_mul_f32 v{MEAN}, {f32(1/512)}, v{MEAN}",
           f"v_mul_f32 v{A0}, {f32(1/512)}, v{RSTD}",
           f"v_fma_f32 v{A0}, -v{MEAN}, v{MEAN}, v{A0}",
           f"v_max_f32 v{A0}, 0, v{A0}",
           f"v_add_f32 v{A1}, {EPS}, v{A0}",
           f"v_rsq_f32 v{RSTD}, v{A1}",
           f"v_fmac_f32 v{A0}, {EPS}, v{A1}",
           f"v_rsq_f32 v{A2}, v{A0}",
           f"v_sqrt_f32 v{IR2}, v{A0}",
           f"v_mul_f32 v{K0}, {f32(k0)}, v{A2}",
           f"v_mul_f32 v{A3}, v{A2}, v{A2}",
           f"v_mul_f32 v{A3}, {f32(0.044715)}, v{A3}",
           f"v_mul_f32 v{K1}, v{K0}, v{A3}",
           f"v_cvt_pk_bf16_f32 v{A2}, v{IR2}, v{IR2}",
           f"v_and_b32 v{A3}, 0xffff0000, v{A2}",
           f"v_sub_f32 v{A3}, v{IR2}, v{A3}",
           f"v_cvt_pk_bf16_f32 v{A2}, v{IR2}, v{A3}",
           f"v_mul_lo_u32 v{BIA+8}, v{A2}, v{HH}",
           f"v_sub_u32 v{BIA+4}, v{A2}, v{BIA+8}"]
    return it


def ssm_params():
    it = []
    A0, A1, A2, A3 = [ACB + 8 + i for i in range(4)]
    for k in range(2):
        it.append(f"v_lshl_or_b32 v{BIA+2*k}, v{BIA+2*k}, 16, v{BIA+2*k}")
    LR, LI, ZR, ZV = [ACB + 12 + i for i in range(4)]
    it += [f"v_lshlrev_b32 v{LR}, 16, v{PA}",
           f"v_lshlrev_b32 v{LI}, 16, v{PA+1}",
           f"v_lshlrev_b32 v{A0}, 16, v{PC}",
           f"v_mul_f32 v{A0}, {f32(math.log2(math.e))}, v{A0}",
           f"v_exp_f32 v{A0}, v{A0}",
           f"v_cvt_f32_u32 v{A2}, v{HH}",
           f"v_cvt_pk_bf16_f32 v{A0}, v{A0}, v{A0}",
           f"v_and_b32 v{A0}, 0xffff0000, v{A0}",
           f"v_mul_f32 v{ZR}, v{A0}, v{LR}",
           f"v_mul_f32 v{ZV}, v{A0}, v{LI}",
           f"v_mul_f32 v{ZR}, {f32(math.log2(math.e))}, v{ZR}",
           f"v_mul_f32 v{ZV}, 0.15915494, v{ZV}"]
    it += cpow(PA, 1, ZR, ZV, A0, A1)
    it += cpow(PA16, 16, ZR, ZV, A0, A1)
    it += cpow(PA256, 256, ZR, ZV, A0, A1)
    it += [f"v_mul_f32 v{A3}, {f32(128.0)}, v{A2}"]
    it += cpow(PAH, f"v{A3}", ZR, ZV, A0, A1)
    it += [f"s_lshl_b32 s{sROT}, s{sW}, 1",
           f"v_add_u32 v{A3}, s{sROT}, v{HH}",
           f"v_cvt_f32_u32 v{A3}, v{A3}",
           f"v_mul_f32 v{A3}, {f32(16.0)}, v{A3}"]
    it += cpow(PAS, f"v{A3}", ZR, ZV, A0, A1)
    it += [f"v_mul_f32 v{A0}, v{LR}, v{LR}",
           f"v_fmac_f32 v{A0}, v{LI}, v{LI}",
           f"v_rcp_f32 v{A0}, v{A0}",
           f"v_add_f32 v{A1}, -1.0, v{PA}",
           f"v_mul_f32 v{A2}, v{A1}, v{LR}",
           f"v_fmac_f32 v{A2}, v{PA+1}, v{LI}",
           f"v_mul_f32 v{A3}, v{PA+1}, v{LR}",
           f"v_fma_f32 v{A3}, -v{A1}, v{LI}, v{A3}",
           f"v_add_f32 v{A0}, v{A0}, v{A0}",
           f"v_mul_f32 v{PC}, v{A2}, v{A0}",
           f"v_mul_f32 v{PC+1}, v{A3}, v{A0}"]
    return it


def xready():
    return [lambda a: a.wait_vm("XP"), f"buffer_store_dword v{FONE}, v{FZERO}, {srd(SWS)}, s{sXF} offen sc1"]


ARS, AET, ARW = VQ + 1, VQ + 2, VQ + 3
E0 = T + 4


def unstash(dst, src):
    return f"v_accvgpr_read_b32 v{dst}, a{src}"


def ureg(i):
    return ACB + i if i % 2 == 0 else ACB + 15 + i


def fill_u1():
    Z = T + 8
    it = [unstash(ARW, aARW), unstash(AET, aAET), unstash(ARS, aARS),
          f"v_mov_b32 v{Z}, 0", f"v_mov_b32 v{Z+1}, 0",
          f"ds_write_b32 v{ARW}, v{RSTD}",
          f"ds_write_b32 v{ARW}, v{MEAN} offset:512",
          f"ds_write_b64 v{AET}, {vr(Z,2)}"]
    tmp = [T + 10 + i for i in range(4)]
    for qd in range(8):
        it += gelu_plain([ACA + 4 * qd + i for i in range(4)], tmp)
        if qd & 1:
            it += pack_store(ACA + 8 * (qd >> 1), SWS, sHB, 1024 * (qd >> 1), "HS0")
    it.insert(len(it) - 12, f"ds_read_b128 {vr(RDS,4)}, v{ARS}")
    return it


def fill_u2a():
    RS = RDS
    t = T + 10
    E1 = PP
    it = []
    cur = None
    for i0 in range(0, 16, 2):
        for h in range(2):
            i = i0 + h
            it += [f"v_mul_f32 v{t+2*h}, v{ACB+i}, v{RS+(i&3)}",
                   f"v_mul_f32 v{t+2*h+1}, v{ACB+16+i}, v{RS+(i&3)}"]
        if i0 in (2, 6, 10):
            it.append(f"ds_read_b128 {vr(RS,4)}, v{ARS} offset:{4*i0+8}")
        for h in range(2):
            i = i0 + h
            q, t0, t1 = ureg(i), t + 2 * h, t + 2 * h + 1
            it += [f"v_mul_f32 v{q}, v{PC}, v{t0}",
                   f"v_mul_f32 v{q+1}, v{PC}, v{t1}",
                   f"v_fma_f32 v{q}, -v{PC+1}, v{t1}, v{q}",
                   f"v_fmac_f32 v{q+1}, v{PC+1}, v{t0}"]
            if i == 0:
                cur = q
            else:
                nx = E0 if i & 1 else E1
                it += cfma(nx, PA, cur, q)
                cur = nx
    assert cur == E0
    it.append((f"ds_write_b64 v{AET}, {vr(E0,2)} offset:2048", "E"))
    return it


def fill_u2b():
    it = []
    slots = [RDS, RDS + 2, VW, VW + 2, T + 8, T + 10, T + 12]
    for m in range(6, -1, -1):
        it.append(f"ds_read_b64 {vr(slots[m],2)}, v{AET} offset:{(7-m)*256}")
    XD, AA, ES = T + 1, PC, T + 2
    it += [unstash(XD, aXD), unstash(AA, aAA), unstash(AA + 1, aAA + 1), unstash(ES, aES)]
    it.append(lambda a: a.need([vr(x, 2) for x in slots]))
    cur = slots[6]
    for m in range(5, -1, -1):
        dst = PP if m == 0 else slots[m]
        it += cfma(dst, PA16, cur, slots[m])
        cur = dst
    it += cfma(E0, PA16, PP, E0)
    it += [f"buffer_store_dwordx2 {vr(E0,2)}, v{ES}, {srd(SE)}, 0 offen sc1"]
    for tt in range(2):
        it += [f"s_add_u32 m0, s{sAX}, {1024*tt}\ns_add_u32 s{sT0}, s{sXO}, {32768*tt}",
               (f"buffer_load_dwordx4 v{XD}, {srd(SX)}, s{sT0} offen lds", "AUX")]
    it += [f"s_add_u32 m0, s{sAX}, 2048\ns_add_u32 s{sRA}, s{sHB}, {16*KB}", (f"global_load_lds_dwordx4 {vr(AA,2)}, off", "AUX")]
    return it


def gelu_plain(regs, tmp):
    it = []
    n = len(regs)
    for r, t in zip(regs, tmp):
        it.append(f"v_mul_f32 v{t}, v{r}, v{r}")
    for r, t in zip(regs, tmp):
        it.append(f"v_fma_f32 v{t}, v{t}, v{K1}, v{K0}")
    for r, t in zip(regs, tmp):
        it.append(f"v_mul_f32 v{t}, v{t}, v{r}")
    for r, t in zip(regs, tmp):
        it.append(f"v_exp_f32 v{t}, v{t}")
    for r, t in zip(regs, tmp):
        it.append(f"v_fma_f32 v{t}, v{t}, v{IR2}, v{IR2}")
    for r, t in zip(regs, tmp):
        it.append(f"v_rcp_f32 v{t}, v{t}")
    for r, t in zip(regs, tmp):
        it.append(f"v_mul_f32 v{r}, v{r}, v{t}")
    return it


def gelu_packed(base, tmp):
    it = []
    kk = vr(K0, 2)
    ii = vr(RSTD, 2)
    for p in (0, 2):
        it.append(f"v_pk_mul_f32 {vr(tmp+p,2)}, {vr(base+p,2)}, {vr(base+p,2)}")
    for p in (0, 2):
        it.append(f"v_pk_fma_f32 {vr(tmp+p,2)}, {vr(tmp+p,2)}, {kk}, {kk} op_sel:[0,1,0] op_sel_hi:[1,1,0]")
    for p in (0, 2):
        it.append(f"v_pk_mul_f32 {vr(tmp+p,2)}, {vr(tmp+p,2)}, {vr(base+p,2)}")
    for p in range(4):
        it.append(f"v_exp_f32 v{tmp+p}, v{tmp+p}")
    for p in (0, 2):
        it.append(f"v_pk_fma_f32 {vr(tmp+p,2)}, {vr(tmp+p,2)}, {ii}, {ii} op_sel:[0,1,1] op_sel_hi:[1,1,1]")
    for p in range(4):
        it.append(f"v_rcp_f32 v{tmp+p}, v{tmp+p}")
    for p in (0, 2):
        it.append(f"v_pk_mul_f32 {vr(base+p,2)}, {vr(base+p,2)}, {vr(tmp+p,2)}")
    return it


def pack_store(base, s, soff, off, tag):
    it = [f"v_cvt_pk_bf16_f32 v{base+n}, v{base+2*n}, v{base+2*n+1}" for n in range(4)]
    if OPT["x_nostore"] == 1:
        return it
    it.append((f"buffer_store_dwordx4 {vr(base,4)}, v{L16}, {srd(s)}, s{soff} offen offset:{off} {OPT['hsflags']}", tag))
    return it


def cfma(dst, m, x, add):
    return [f"v_fma_f32 v{dst}, v{m}, v{x}, v{add}",
            f"v_fma_f32 v{dst+1}, v{m}, v{x+1}, v{add+1}",
            f"v_fma_f32 v{dst}, -v{m+1}, v{x+1}, v{dst}",
            f"v_fmac_f32 v{dst+1}, v{m+1}, v{x}"]


def poll(a, name, val, addr, s, soff, m="vcc"):
    ld = f"buffer_load_dword v{val}, v{addr}, {srd(s)}, {soff} offen sc1"
    a.need([f"v{val}"])
    a.I(f"v_cmp_eq_u32 {m}, 0, v{val}")
    a.I(f"s_mov_b32 s{sT2}, 0")
    a.I(f"s_cmp_eq_u64 {m}, 0")
    a.I(f"s_cbranch_scc1 {name}_done")
    save, pos = list(a.vmq), a.pos
    a.label(name)
    a.I(ld, track=False)
    a.wait_vm_all()
    a.I(f"v_cmp_eq_u32 {m}, 0, v{val}")
    a.I(f"s_add_u32 s{sT2}, s{sT2}, 1")
    a.I(f"s_cmp_ge_u32 s{sT2}, {SPIN_MAX}")
    a.I(f"s_cbranch_scc1 {name}_done")
    a.I(f"s_cmp_eq_u64 {m}, 0")
    a.I(f"s_cbranch_scc0 {name}")
    a.vmq, a.pos = save, pos
    a.label(name + "_done")
    if DEBUG and not OPT["rt"]:
        CNTS.append(name)
        a.I(f"v_writelane_b32 v{STAMPV}, s{sT2}, {39+len(CNTS)}")


def xlds(c):
    return 32 * KB * (1 + (c >> 1)) + 4 * KB * (c & 1)


def xgroup(c):
    return dma4(VQ, SX, sT0, [f"s_add_u32 m0, s{sWL}, {xlds(c)}", f"s_xor_b32 s{sT0}, s{sXB}, {c<<7}"], f"x{c}")


def wgroup(n, half):
    tag = f"H{n}"
    pre = [f"s_add_u32 m0, s{sWL}, {H[n] + 4*KB*half}"]
    if n in (2, 3):
        pre += [f"s_xor_b32 s{sT0}, s{sCS}, {512*(n&1)}"]
        return dma4(VQ, SBI if half else SBR, sT0, pre, tag)
    off = 32 * 3584 * half + (128 if n >= 4 else 0)
    pre += [f"s_add_u32 s{sT0}, s{sCM1 if n&1 else sCM0}, {off}"]
    return dma4(VW, SW1B if n >= 4 else SW1, sT0, pre, tag)


def cost(it):
    if callable(it):
        return 1
    if isinstance(it, tuple):
        it = it[0]
    c = 0
    for l in it.split("\n"):
        mn = l.split()[0]
        if mn in TRANS or mn.startswith("v_mfma"):
            c += 2
        elif mn == "ds_write_b128":
            c += 6
        elif mn.startswith("ds_write_addtid"):
            c += 2
        elif mn.startswith("ds_write"):
            c += 4
        elif mn == "buffer_store_dwordx4":
            c += 7
        elif mn.startswith("buffer_") or mn.startswith("global_"):
            c += 3
        else:
            c += 1
    return c


def grp(items):
    res, cur = [], []
    for it in items:
        cur.append(it)
        if not (isinstance(it, str) and it.startswith("s_")):
            res.append(cur)
            cur = []
    return res


def spread(main, plans):
    load = [sum(map(cost, g)) for g in main]
    gaps = [[] for _ in main]
    for items, g0, g1, *uni in plans:
        if not items:
            continue
        if uni:
            for j, grp in enumerate(items):
                i = g0 + (j * (g1 - g0)) // len(items)
                gaps[i] += grp
                load[i] += sum(map(cost, grp))
            continue
        tot = sum(load[g0:g1]) + sum(map(cost, items))
        acc, j = 0, 0
        for i in range(g0, g1):
            acc += load[i]
            target = tot * (i - g0 + 1) / (g1 - g0)
            while j < len(items) and (acc + cost(items[j]) / 2 <= target or i == g1 - 1):
                gaps[i].append(items[j])
                acc += cost(items[j])
                load[i] += cost(items[j])
                j += 1
    return [m + g for m, g in zip(main, gaps)]


NEGM, IDM, CD = ACB, ACB + 4, ACB + 16


def unpack(i):
    return [f"v_mfma_f32_4x4x4_16b_bf16 {vr(CD+4*q,4)}, {vr(IDM,2)}, {vr(X+8*i+2*q,2)}, {vr(NEGM,4)}" for q in range(4)]


def repack(i):
    return [f"v_cvt_pk_bf16_f32 v{X+8*i+n}, v{CD+2*n}, v{CD+2*n+1}" for n in range(8)]


def phase1(a, kname):
    I = a.I
    load_kernargs(a)
    TA, TB, TC, TD = T + 1, T + 2, ACB + 31, T + 4
    SG, PI = T + 8, T + 9
    RR = ACA
    I(f"v_lshrrev_b32 v{TA}, 6, v0")
    I(f"v_and_b32 v{LN}, 63, v0")
    I(f"v_readfirstlane_b32 s{sW}, v{TA}")
    I(f"s_getpc_b64 s[{SR}:{SR+1}]")
    a.label("L_pc")
    I(f"s_and_b32 s{sT0}, s2, 0xf8")
    I(f"v_lshrrev_b32 v{TB}, 5, v0")
    I(f"v_add_lshl_u32 v{RR+8}, s{sT0}, v{TB}, 7")
    I(f"v_mov_b32 v{RR+9}, 0")
    I(f"v_min_u32 v{RR+8}, L_end-L_pc, v{RR+8}")
    I(f"v_lshl_add_u64 {vr(RR+8,2)}, {vr(RR+8,2)}, 0, s[{SR}:{SR+1}]")
    I(f"global_load_dword v{RR+10}, {vr(RR+8,2)}, off", track=False)
    I(f"s_bfe_u32 s{sT1}, s2, 0x20003")
    I(f"s_lshr_b32 s{sT0}, s2, 5")
    I(f"s_and_b32 s{sR}, s2, 3")
    I(f"s_lshl2_add_u32 s{sR}, s{sR}, s{sT1}")
    I(f"s_lshl1_add_u32 s{sROT}, s{sT1}, s{sT0}")
    I(f"s_and_b32 s{sROT}, s{sROT}, {OPT['rotmask']}")
    I(f"s_and_b32 s{sJ}, s2, 4")
    I(f"s_lshl1_add_u32 s{sJ}, s{sJ}, s{sT0}")
    I(f"s_lshl2_add_u32 s{sHB}, s{sR}, s{sW}")
    I(f"s_lshl_b32 s{sXB}, s{sHB}, 8")
    I(f"s_or_b32 s{sXB}, s{sXB}, s{sROT}")
    I(f"s_lshl_b32 s{sXB}, s{sXB}, 7")
    I(f"s_lshl_b32 s{sWL}, s{sW}, 13")
    I(f"v_lshrrev_b32 v{TC}, 4, v{LN}")
    I(f"v_xor_b32 v{TC}, v{LN}, v{TC}")
    I(f"v_and_b32 v{TC}, 7, v{TC}")
    I(f"v_lshlrev_b32 v{TC}, 4, v{TC}")
    I(f"v_bfe_u32 v{TD}, v{LN}, 3, 2")
    I(f"v_lshl_or_b32 v{TC}, v{TD}, 10, v{TC}")
    I(f"v_lshrrev_b32 v{HH}, 5, v{LN}")
    I(f"v_lshl_or_b32 v{VQ}, v{HH}, 14, v{TC}")
    I(f"v_xor_b32 v{VQ+1}, 64, v{VQ}")
    I(f"v_add_u32 v{VQ+2}, {2*3072}, v{VQ}")
    I(f"v_add_u32 v{VQ+3}, {3*3072}, v{VQ+1}")
    I(f"v_add_u32 v{VQ+1}, 3072, v{VQ+1}")
    I(f"s_mov_b32 s{SX+2}, {2048*1024}")
    I(f"s_mov_b32 s{SX+3}, 0x20000")
    x0 = xgroup(0)
    a.run(x0[:2])
    I(f"s_lshl2_add_u32 s{sT1}, s2, s{sW}")
    I(f"s_xor_b32 s{sT1}, s{sT1}, 3")
    I(f"s_and_b32 s{sONE}, s{sT1}, 0x1f")
    a.wait_lg_all()
    I(stamp("start"))
    I(f"s_mov_b64 s[{SX}:{SX+1}], {sp(pX)}")
    I(f"s_cmp_eq_u32 s{sONE}, 0")
    I("s_cbranch_scc1 L_init")
    a.label("L_initdone")
    a.vmq = []
    a.run(x0[2:])
    I(stamp("x0 issued"))
    if OPT["x_w0"]:
        a.raw("    s_waitcnt vmcnt(0)")
        I(stamp("x0 alone"))
    for c in range(1, OPT["x_first"]):
        a.run(xgroup(c))
    I(f"v_and_b32 v{RHO}, 31, v{LN}")
    I(f"v_lshlrev_b32 v{L16}, 4, v{LN}")
    I(f"s_lshr_b32 s{sG}, s{sJ}, 2")
    I(f"s_and_b32 s{sJJ}, s{sJ}, 3")
    I(f"s_mul_i32 s{sUB}, s{sG}, 7")
    I(f"s_lshl1_add_u32 s{sUB}, s{sJJ}, s{sUB}")
    I(f"s_lshl_b32 s{sUB}, s{sUB}, 7")
    mk_srd(a, SWS, pWS, WS_END)
    I(f"s_lshl2_add_u32 s{sT0}, s2, s{sW}")
    I(f"s_lshl_b32 s{sT0}, s{sT0}, 11")
    I(f"s_xor_b32 s{sT0}, s{sT0}, {XCH + 4*8192}")
    for k in range(4):
        I(f"v_accvgpr_write_b32 a{188+k}, -1")
    xp = [(f"buffer_store_dwordx4 {ar(188,4)}, v{L16}, {srd(SWS)}, s{sT0 if OPT['xp_at'] < 0 else sXS} offen offset:{1024*k} sc1", "XP") for k in range(2)]
    if OPT["xp_at"] < 0:
        a.run(xp)
    sBK = sRS
    SCH = dict((e.split(":")[0], [int(v) for v in e.split(":")[1:]]) for e in OPT["sch"].split(","))
    early = "R" not in SCH
    RSLOT = H[0] if early else xlds(6)
    I(f"s_lshl1_add_u32 s{sBK}, s2, s{sW}")
    I(f"s_cmp_lt_u32 s{sBK}, 448")
    I(f"s_cselect_b32 s{SR+2}, {1792*1024}, 0")
    I(f"s_cselect_b32 s{sBK}, s{sBK}, 0")
    I(f"s_bitcmp0_b32 s2, 0")
    I(f"s_cselect_b64 s[{SR}:{SR+1}], {sp(pCRE)}, {sp(pCIM)}")
    I(f"s_lshr_b32 s{sT0}, s2, 1")
    I(f"s_cmp_lt_u32 s{sW}, 2")
    I(f"s_cselect_b64 s[{SR}:{SR+1}], {sp(pW2)}, s[{SR}:{SR+1}]")
    I(f"s_cselect_b32 s{SR+2}, s{SR+2}, {512*1024}")
    I(f"s_cselect_b32 s{sBK}, s{sBK}, s{sT0}")
    I(f"s_mov_b32 s{SR+3}, 0x20000")
    I(f"s_lshr_b32 s{sT0}, s{sBK}, 3")
    I(f"s_lshl_b32 s{sT0}, s{sT0}, 8")
    I(f"s_and_b32 s{sT1}, s{sBK}, 7")
    I(f"s_or_b32 s{sT0}, s{sT0}, s{sT1}")
    I(f"s_lshl_b32 s{sINI}, s{sT0}, 7")
    rl = dma4(VQ, SR, sINI, [f"s_add_u32 m0, s{sWL}, {RSLOT}"], "R")
    I(f"s_cmp_eq_u32 s{sW}, 3")
    I("s_cbranch_scc1 L_role3")
    snap = list(a.vmq)
    if early:
        for it in rl:
            I(it, track=False)
    I("s_branch L_rolejoin")
    a.label("L_init")
    mk_srd(a, SWS, pWS, WS_END)
    I(f"v_lshlrev_b32 v{L16}, 4, v{LN}")
    for k in range(4):
        I(f"v_mov_b32 v{RR+k}, -1")
        I(f"v_mov_b32 v{RR+4+k}, 0")
    I(f"s_lshl_b32 s{sT1}, s2, 8")
    I(f"s_add_u32 s{sT1}, s{sT1}, {EOFF}")
    for k in range(2):
        I(f"buffer_store_dwordx4 {vr(RR,4)}, v{L16}, {srd(SWS)}, s{sT1} offen offset:{1024*k} sc1")
    I(f"s_lshl_b32 s{sT1}, s2, 9")
    I(f"s_add_u32 s{sT1}, s{sT1}, {HFLAG}")
    for k in range(4):
        I(f"buffer_store_dwordx4 {vr(RR+4,4)}, v{L16}, {srd(SWS)}, s{sT1} offen offset:{1024*k} sc1")
    I("s_branch L_initdone")
    a.vmq = snap
    a.label("L_role3")
    I(f"s_mov_b32 s{SR+2}, 0")
    I(f"s_lshl4_add_u32 s{sT0}, s{sJ}, s{sR}")
    I(f"s_lshl_b32 s{sT0}, s{sT0}, 11")
    I(f"v_and_b32 v{TA}, 15, v{LN}")
    I(f"v_lshl_add_u32 v{TA}, v{TA}, 7, s{sT0}")
    I(f"global_load_dword v{RR+12}, v{TA}, {sp(pBRE)}", track=False)
    I(f"global_load_dword v{RR+13}, v{TA}, {sp(pBIM)}", track=False)
    I(f"s_bitcmp0_b32 s2, 3")
    I(f"s_cselect_b64 s[{SR}:{SR+1}], {sp(pDSK)}, {sp(pB2)}")
    I(f"v_and_b32 v{TA}, 0x380, v{L16}")
    I(f"global_load_dword v{RR+14}, v{TA}, s[{SR}:{SR+1}]", tag="R" if early else None, track=False)
    a.label("L_rolejoin")
    VT = T + 5
    I(f"s_mul_i32 s{sT0}, s{sHB}, {8*3584}")
    I(f"s_add_u32 s{sT0}, s{sT0}, s{sUB}")
    I(f"s_cmp_lt_u32 s{sJJ}, 3")
    I(f"s_cselect_b32 s{sT1}, 128, 0")
    I(f"v_and_b32 v{TA}, 7, v{LN}")
    I(f"v_mul_u32_u24 v{TA}, 3584, v{TA}")
    I(f"v_mul_u32_u24 v{TB}, s{sT1}, v{HH}")
    I(f"v_add3_u32 v{VT}, v{TA}, v{TB}, s{sT0}")
    if "T1" not in SCH:
        I(f"global_load_dword v{RR+11}, v{VT}, {sp(pW1)}")
    I(f"v_bfe_u32 v{TB}, v{RHO}, 2, 1")
    I(f"v_and_b32 v{TA}, 3, v{RHO}")
    I(f"v_lshrrev_b32 v{TC}, 3, v{RHO}")
    I(f"v_lshl_or_b32 v{TA}, v{TC}, 2, v{TA}")
    I(f"v_lshl_or_b32 v{PI}, v{TB}, 4, v{TA}")
    I(f"s_lshl_b32 s{sT0}, s{sJ}, 6")
    I(f"v_lshl_add_u32 v{TA}, v{PI}, 1, s{sT0}")
    I(f"global_load_ushort v{PA}, v{TA}, {sp(pLRE)}")
    I(f"global_load_ushort v{PA+1}, v{TA}, {sp(pLIM)}")
    I(f"global_load_ushort v{PC}, v{TA}, {sp(pLDT)}")
    I(f"v_and_b32 v{TA}, 19, v{RHO}")
    I(f"v_lshl_or_b32 v{TA}, v{TB}, 3, v{TA}")
    I(f"v_bfe_u32 v{TC}, v{RHO}, 3, 1")
    I(f"v_lshl_or_b32 v{SG}, v{TC}, 2, v{TA}")
    I(f"v_lshl_or_b32 v{TA}, v{HH}, 5, v{SG}")
    I(f"s_add_u32 s{sT1}, s{sUB}, 128")
    I(f"s_min_u32 s{sT1}, s{sT1}, {27*128}")
    I(f"v_lshl_add_u32 v{TB}, v{TA}, 1, s{sUB}")
    I(f"v_lshl_add_u32 v{TA}, v{TA}, 1, s{sT1}")
    I(f"global_load_ushort v{BIA}, v{TB}, {sp(pB1)}")
    I(f"global_load_ushort v{BIA+2}, v{TA}, {sp(pB1)}")
    for c in range(OPT["x_first"], OPT["x_second"]):
        a.run(xgroup(c))
    I(stamp("win1 issued"))
    I(f"s_mul_i32 s{sHB}, s{sHB}, {RT_STRIDE}")
    I(f"s_mul_i32 s{sT0}, s{sG}, 11")
    I(f"s_add_u32 s{sT0}, s{sT0}, s{sJJ}")
    I(f"s_lshl_b32 s{sT0}, s{sT0}, 12")
    I(f"s_add_u32 s{sHB}, s{sHB}, s{sT0}")
    mk_srd(a, SRS, pWS, WS_END)
    I(f"s_cmp_eq_u32 s{SR+2}, 0")
    I(f"s_cselect_b32 s{SRS+2}, 0, s{SRS+2}")
    I(f"s_and_b32 s{sT1}, s{sBK}, 7")
    I(f"s_lshr_b32 s{sT0}, s{sBK}, 3")
    I(f"s_cmp_ge_u32 s{sW}, 2")
    I("s_cbranch_scc1 L_dst2")
    I(f"s_mul_i32 s{sRA}, s{sT1}, {2*176}")
    I(f"s_and_b32 s{sT2}, s{sT0}, 1")
    I(f"s_lshl1_add_u32 s{sRA}, s{sT2}, s{sRA}")
    I(f"s_lshl3_add_u32 s{sFL}, s{sT1}, s{sT2}")
    I(f"s_lshr_b32 s{sT0}, s{sT0}, 1")
    I(f"s_lshl4_add_u32 s{sFL}, s{sFL}, s{sT0}")
    I(f"s_mul_i32 s{sT1}, s{sT0}, 37")
    I(f"s_lshr_b32 s{sT1}, s{sT1}, 8")
    I(f"s_mul_i32 s{sT2}, s{sT1}, {32-7}")
    I(f"s_add_u32 s{sFL}, s{sFL}, s{sT2}")
    I(f"s_mul_i32 s{sT2}, s{sT1}, 44")
    I(f"s_add_u32 s{sRA}, s{sRA}, s{sT2}")
    I(f"s_mul_i32 s{sT1}, s{sT1}, 7")
    I(f"s_sub_u32 s{sT0}, s{sT0}, s{sT1}")
    I(f"s_lshr_b32 s{sT1}, s{sT0}, 1")
    I(f"s_and_b32 s{sT0}, s{sT0}, 1")
    I(f"s_lshl2_add_u32 s{sT0}, s{sT0}, s{sT1}")
    I(f"s_lshl2_add_u32 s{sRA}, s{sT0}, s{sRA}")
    I(f"s_movk_i32 s{sRB}, 176")
    I("s_branch L_dstjoin")
    a.label("L_dst2")
    I(f"s_lshr_b32 s{sFL}, s{sT0}, 1")
    I(f"s_lshr_b32 s{sT2}, s{sT1}, 1")
    I(f"s_lshl2_add_u32 s{sFL}, s{sFL}, s{sT2}")
    I(f"s_and_b32 s{sRA}, s2, 1")
    I(f"s_lshl1_add_u32 s{sFL}, s{sFL}, s{sRA}")
    I(f"s_and_b32 s{sRA}, s{sT0}, 1")
    I(f"s_lshl3_add_u32 s{sFL}, s{sFL}, s{sRA}")
    I(f"s_and_b32 s{sRA}, s{sT1}, 1")
    I(f"s_lshl1_add_u32 s{sFL}, s{sFL}, s{sRA}")
    I(f"s_add_u32 s{sFL}, s{sFL}, 7")
    I(f"s_mul_i32 s{sRA}, s{sT0}, 176")
    I(f"s_mul_i32 s{sT2}, s{sT2}, 44")
    I(f"s_add_u32 s{sRA}, s{sRA}, s{sT2}")
    I(f"s_and_b32 s{sT1}, s{sT1}, 1")
    I(f"s_lshl3_add_u32 s{sRA}, s{sT1}, s{sRA}")
    I(f"s_and_b32 s{sT1}, s2, 1")
    I(f"s_lshl1_add_u32 s{sRA}, s{sT1}, s{sRA}")
    I(f"s_add_u32 s{sRA}, s{sRA}, 28")
    I(f"s_movk_i32 s{sRB}, 4")
    a.label("L_dstjoin")
    I(f"s_add_u32 s{sRA}, s{sRA}, {BW//1024}")
    I(f"s_add_u32 s{sRB}, s{sRB}, s{sRA}")
    I(f"s_lshl_b32 s{sRA}, s{sRA}, 10")
    I(f"s_lshl_b32 s{sRB}, s{sRB}, 10")
    I(f"s_lshl2_add_u32 s{sFL}, s{sFL}, {BFLAG}")
    for n, ptr, size in ((SBR, pBRE, 512 * 1024), (SBI, pBIM, 512 * 1024), (SW1, pW1, 512 * 3584), (SW1B, pW1, 512 * 3584),
                         (SWS2, pWS, WS_END), (SDBG, pDBG, 256), (SOUT, pOUT, 2048 * 2048)):
        mk_srd(a, n, ptr, size)
    I(f"s_cmp_lt_u32 s{sJJ}, 3")
    I(f"s_cselect_b32 s{SW1B+2}, s{SW1B+2}, 0")
    I(f"s_cselect_b32 s{SWS2+2}, s{SWS2+2}, 0")
    I(f"s_lshl_b32 s{sT0}, s{sJ}, 12")
    I(f"s_add_u32 s{sT0}, s{sT0}, {EOFF}")
    I(f"s_add_u32 s{SE}, s{pWS}, s{sT0}")
    I(f"s_addc_u32 s{SE+1}, s{pWS+1}, 0")
    I(f"s_mov_b32 s{SE+2}, 4096")
    I(f"s_mov_b32 s{SE+3}, 0x20000")
    I(f"s_xor_b32 s{sT0}, s{sW}, s{sROT}")
    I(f"s_lshl_b32 s{sCS}, s{sJ}, 8")
    I(f"s_or_b32 s{sCS}, s{sCS}, s{sT0}")
    I(f"s_lshl_b32 s{sCS}, s{sCS}, 7")
    I(f"s_mul_i32 s{sCM0}, s{sT0}, {64*3584}")
    I(f"s_add_u32 s{sCM0}, s{sCM0}, s{sUB}")
    I(f"s_xor_b32 s{sT0}, s{sT0}, 4")
    I(f"s_mul_i32 s{sCM1}, s{sT0}, {64*3584}")
    I(f"s_add_u32 s{sCM1}, s{sCM1}, s{sUB}")
    I(f"s_lshl2_add_u32 s{sHF}, s{sR}, s{sG}")
    I(f"s_lshl4_add_u32 s{sHF}, s{sHF}, s{sW}")
    I(f"s_lshl2_add_u32 s{sHF}, s{sHF}, s{sJJ}")
    I(f"s_lshl2_add_u32 s{sHF}, s{sHF}, {HFLAG}")
    p2_index(a)
    I(f"v_lshrrev_b32 v{TA}, 3, v{LN}")
    I(f"v_and_b32 v{TC}, 0x70, v{L16}")
    I(f"v_bfe_u32 v{TB}, v{LN}, 4, 1")
    I(f"v_lshlrev_b32 v{TD}, 6, v{TB}")
    I(f"v_xor_b32 v{TC}, v{TC}, v{TD}")
    I(f"v_mul_u32_u24 v{TD}, 3584, v{TA}")
    I(f"v_add_u32 v{VW}, v{TD}, v{TC}")
    for q in range(1, 4):
        I(f"v_add_u32 v{VW+q}, {q*(8*3584-1024)}, v{VW}")
    I(f"v_bfe_u32 v{TA}, v{LN}, 2, 2")
    I(f"v_lshl_or_b32 v{TC}, v{HH}, 3, v{TA}")
    I(f"v_lshlrev_b32 v{TC}, 7, v{TC}")
    I(f"v_lshrrev_b32 v{TA}, 1, v{TA}")
    I(f"v_lshl_or_b32 v{TC}, v{TA}, 6, v{TC}")
    I(f"v_lshl_or_b32 v{TC}, v{TB}, 5, v{TC}")
    I(f"v_and_b32 v{TA}, 1, v{LN}")
    I(f"v_lshl_or_b32 v{TC}, v{TA}, 4, v{TC}")
    I(f"v_bfe_u32 v{TA}, v{LN}, 1, 1")
    I(f"v_lshl_or_b32 v{RDT}, v{TA}, 3, v{TC}")
    I(f"v_xor_b32 v{RDT+1}, 64, v{RDT}")
    I(f"v_bfe_u32 v{TA}, v{RHO}, 1, 3")
    I(f"v_xor_b32 v{TA}, v{TA}, v{HH}")
    I(f"v_lshlrev_b32 v{TA}, 4, v{TA}")
    I(f"v_lshl_or_b32 v{TA}, v{RHO}, 7, v{TA}")
    I(f"v_add_u32 v{RDS}, s{sWL}, v{TA}")
    for k in range(1, 4):
        I(f"v_xor_b32 v{RDS+k}, {32*k}, v{RDS}")
    AW = T + 10
    I(f"v_bfe_u32 v{TA}, v{LN}, 2, 2")
    I(f"v_lshl_or_b32 v{TA}, v{HH}, 4, v{TA}")
    I(f"s_add_u32 s{sT0}, s{sWL}, {RSLOT}")
    I(f"v_lshl_add_u32 v{AW}, v{TA}, 7, s{sT0}")
    I(f"v_and_b32 v{TA}, 1, v{LN}")
    I(f"v_lshl_or_b32 v{AW}, v{TA}, 5, v{AW}")
    I(f"v_bfe_u32 v{TA}, v{LN}, 3, 1")
    I(f"v_xor_b32 v{TA}, v{TA}, v{TB}")
    I(f"v_lshl_or_b32 v{AW}, v{TA}, 4, v{AW}")
    I(f"v_bfe_u32 v{TA}, v{LN}, 1, 1")
    I(f"v_lshl_or_b32 v{AW}, v{TA}, 3, v{AW}")
    for k in range(1, 4):
        I(f"v_xor_b32 v{AW+k}, {32*k}, v{AW}")
    I(f"s_cmp_lt_u32 s{sW}, 2")
    I("s_cbranch_scc1 L_awdone")
    for k in range(4):
        I(f"v_add_u32 v{AW+k}, {RSLOT}, v{RDS+k}")
    a.label("L_awdone")
    def stash(dst, src):
        I(f"v_accvgpr_write_b32 a{dst}, v{src}")
    I(f"s_lshl_b32 s{sT0}, s{sW}, 7")
    I(f"s_add_u32 s{sT0}, s{sT0}, {PARK}")
    I(f"v_lshl_add_u32 v{TA}, v{HH}, 6, s{sT0}")
    I(f"v_lshl_add_u32 v{TC}, v{PI}, 2, s{sT0}")
    stash(aARS, TA)
    stash(aARW, TC)
    I(f"s_lshl_b32 s{sT0}, s{sW}, 9")
    I(f"s_add_u32 s{sT0}, s{sT0}, {ETAB}")
    I(f"v_lshl_add_u32 v{TA}, v{LN}, 3, s{sT0}")
    stash(aAET, TA)
    I(f"s_lshl_b32 s{sT0}, s{sR}, 8")
    I(f"s_movk_i32 s{sT1}, 4096")
    I(f"s_cmp_eq_u32 s{sW}, 3")
    I(f"s_cselect_b32 s{sT1}, 256, s{sT1}")
    I(f"v_lshlrev_b32 v{TA}, 3, v{LN}")
    I(f"v_subrev_u32 v{TA}, s{sT1}, v{TA}")
    I(f"v_cmp_gt_i32 vcc, 0, v{TA}")
    I(f"v_add_u32 v{TC}, s{sT0}, v{TA}")
    I(f"s_sub_u32 s{sT0}, s{sT0}, 256")
    I(f"v_cndmask_b32 v{TA}, v{TC}, v{TA}, vcc")
    stash(aES, TA)
    I(f"v_lshlrev_b32 v{TA}, 3, v{RHO}")
    I(f"v_lshlrev_b32 v{TC}, 8, v{HH}")
    I(f"v_sub_u32 v{TA}, v{TA}, v{TC}")
    I(f"v_add_u32 v{TA}, s{sT0}, v{TA}")
    stash(aEA, TA)
    I(f"s_mul_i32 s{sT0}, s{sW}, 5120")
    I(f"s_add_u32 s{sT0}, s{sT0}, {TRB}")
    I(f"v_mul_u32_u24 v{TA}, 80, v{RHO}")
    I(f"v_lshl_add_u32 v{TA}, v{HH}, 5, v{TA}")
    I(f"v_add_u32 v{TA}, s{sT0}, v{TA}")
    stash(aTW, TA)
    I(f"v_bfe_u32 v{TA}, v{LN}, 2, 2")
    I(f"v_lshl_add_u32 v{TA}, v{HH}, 4, v{TA}")
    I(f"v_mul_u32_u24 v{TC}, 80, v{TA}")
    I(f"v_and_b32 v{TA}, 1, v{LN}")
    I(f"v_lshl_add_u32 v{TC}, v{TA}, 5, v{TC}")
    I(f"v_lshl_add_u32 v{TC}, v{TB}, 4, v{TC}")
    I(f"v_bfe_u32 v{TA}, v{LN}, 1, 1")
    I(f"v_lshl_add_u32 v{TC}, v{TA}, 3, v{TC}")
    I(f"v_add_u32 v{TC}, s{sT0}, v{TC}")
    stash(aTR, TC)
    I(f"s_mul_i32 s{sAX}, s{sW}, 3072")
    I(f"s_add_u32 s{sAX}, s{sAX}, {AUX}")
    I(f"s_lshl3_add_u32 s{sXO}, s{sI2}, s{sW}")
    I(f"s_lshl_b32 s{sXO}, s{sXO}, 13")
    I(f"s_lshl_b32 s{sT0}, s{sN}, 7")
    I(f"s_add_u32 s{sXO}, s{sXO}, s{sT0}")
    P0, P2 = ACB, ACB + 2
    I(f"v_mov_b32 v{P0}, s{pB2}")
    I(f"v_mov_b32 v{P0+1}, s{pB2+1}")
    I(f"v_cmp_gt_u32 vcc, 8, v{LN}")
    I(f"v_mov_b32 v{P2}, s{pDSK}")
    I(f"v_mov_b32 v{P2+1}, s{pDSK+1}")
    I(f"v_cndmask_b32 v{P0}, v{P0}, v{P2}, vcc")
    I(f"v_cndmask_b32 v{P0+1}, v{P0+1}, v{P2+1}, vcc")
    I(f"v_and_b32 v{TA}, 0x70, v{L16}")
    I(f"v_add_u32 v{P2}, s{sT0}, v{TA}")
    I(f"v_mov_b32 v{P2+1}, 0")
    I(f"v_lshl_add_u64 {vr(P0,2)}, {vr(P2,2)}, 0, {vr(P0,2)}")
    I(f"v_lshrrev_b32 v{TC}, 3, v{LN}")
    I(f"v_lshl_or_b32 v{TA}, v{TC}, 10, v{TA}")
    stash(aAA, P0)
    stash(aAA + 1, P0 + 1)
    stash(aXD, TA)
    I(f"v_and_b32 v{FREP}, 3, v{LN}")
    I(f"v_lshlrev_b32 v{FREP}, 14, v{FREP}")
    I(f"s_and_b32 s{sT0}, s{sN}, 3")
    I(f"s_lshl4_add_u32 s{sT0}, s{sT0}, s{sR}")
    I(f"s_lshl2_add_u32 s{sT0}, s{sT0}, s{sG2}")
    I(f"s_lshl_b32 s{sT0}, s{sT0}, 8")
    I(f"s_add_u32 s{sT0}, s{sT0}, {HFLAG}")
    I(f"s_add_u32 s{sHP}, s{pWS}, s{sT0}")
    I(f"s_addc_u32 s{sHP+1}, s{pWS+1}, 0")
    I(f"s_lshl2_add_u32 s{sT0}, s2, s{sW}")
    I(f"s_lshl_b32 s{sT0}, s{sT0}, 5")
    I(f"s_add_u32 s{sT0}, s{sT0}, {XFLAG}")
    I(f"s_add_u32 s{sXP}, s{pWS}, s{sT0}")
    I(f"s_addc_u32 s{sXP+1}, s{pWS+1}, 0")
    I(f"s_xor_b32 s{sXF}, s{sT0}, 512")
    I(f"s_and_b32 s{sT0}, s{sR}, 7")
    I(f"s_lshl3_add_u32 s{sT0}, s{sT0}, s{sN}")
    I(f"s_lshl2_add_u32 s{sT0}, s{sT0}, s{sG2}")
    I(f"s_and_b32 s{sT1}, s{sW}, 1")
    I(f"s_lshl1_add_u32 s{sT0}, s{sT0}, s{sT1}")
    I(f"s_lshl_b32 s{sT0}, s{sT0}, 6")
    I(f"s_add_u32 s{sT0}, s{sT0}, {BFLAG}")
    I(f"s_add_u32 s4, s{pWS}, s{sT0}")
    I(f"s_addc_u32 s5, s{pWS+1}, 0")
    GOA, GOV = T + 8, T + 9
    I(f"v_and_b32 v{TA}, 1, v{LN}")
    I(f"v_lshlrev_b32 v{TA}, 4, v{TA}")
    I(f"v_mov_b32 v{TB}, 0x3f80")
    I(f"v_lshlrev_b32 v{TA}, v{TA}, v{TB}")
    I(f"v_bfe_u32 v{TB}, v{LN}, 1, 1")
    I(f"v_mul_lo_u32 v{IDM+1}, v{TA}, v{TB}")
    I(f"v_sub_u32 v{IDM}, v{TA}, v{IDM+1}")
    a.run([f"v_mov_b32 v{BIA+k}, 0" for k in (1, 3, 5, 6, 7, 9, 10, 11)])
    a.run([f"v_mov_b32 v{MEAN}, 0", f"v_mov_b32 v{RSTD}, 0", f"v_lshlrev_b32 v{GOA}, 2, v{RHO}",
           f"v_and_b32 v{KEEP}, 7, v{LN}", f"v_lshlrev_b32 v{KEEP}, 12, v{KEEP}",
           f"v_mov_b32 v{KEEP+2}, 1", f"v_mov_b32 v{KEEP+3}, 0"])
    I(f"s_cmp_lg_u32 s{sONE}, 0")
    I("s_cbranch_scc1 L_nogo")
    a.raw(f"    s_waitcnt vmcnt({len(a.vmq)})")
    I(f"s_lshr_b32 s{sT1}, s2, 1")
    I(f"buffer_store_dword v{KEEP+2}, v{KEEP+3}, {srd(SDBG)}, s{sT1} offen sc1", track=False)
    a.label("L_nogo")
    I(f"s_mov_b32 s{sONE}, 0x3f803f80")
    I(stamp("setup done"))
    for c in range(OPT["x_second"], 4):
        a.run(xgroup(c))

    def rpick(a):
        a.wait_vm("R")
        pos = a.pos
        I(f"s_cmp_ge_u32 s{sW}, 2")
        I("s_cbranch_scc1 L_rp2")
        for dt in range(2):
            for ph in range(2):
                for e in range(2):
                    I(f"ds_read_b64_tr_b16 {ar(8*dt+4*ph+2*e,2)}, v{AW+2*(dt^e)+ph} offset:{e*1024+ph*512}", track=False)
        I("s_branch L_rpjoin")
        a.lgq = [e for e in a.lgq if e.track]
        a.label("L_rp2")
        for k in range(4):
            I(f"ds_read_b128 {ar(4*k,4)}, v{AW+k}", track=False)
        a.pos = pos + 6
        a.label("L_rpjoin")

    rs = [lambda a: a.need([ar(0, 16)])]
    rs += [(f"buffer_store_dwordx4 {ar(4*k,4)}, v{L16}, {srd(SRS)}, s{sRB if k>=2 else sRA} offen offset:{1024*(k&1)} sc1", "RS") for k in range(4)]

    def stats(c):
        it = [lambda a: a.need([vr(X + 16 * c, 16)])]
        for k in range(16):
            it.append(f"v_dot2c_f32_bf16 v{MEAN}, s{sONE}, v{X+16*c+k}")
            it.append(f"v_dot2c_f32_bf16 v{RSTD}, v{X+16*c+k}, v{X+16*c+k}")
        return it

    par = ssm_params()
    nw = OPT["w_loop"]
    for c in range(8):
        if c < 4:
            a.run(xgroup(c + 4))
        else:
            if c - 4 < nw:
                a.run(wgroup((c - 4) >> 1, c & 1))
            if c == OPT["go_at"]:
                I(f"buffer_load_dword v{GOV}, v{GOA}, {srd(SDBG)}, 0 offen sc1")
        if c == OPT["xp_at"]:
            a.run(xp)
        if c in (2, 6):
            for k in range(4):
                I(f"v_add_u32 v{RDS+k}, {64*KB}, v{RDS+k}")
        a.wait_vm(f"x{c}")
        if c in (0, 1, 4, 7):
            I(stamp(f"x{c} landed"))
        for k in range(4):
            I(f"ds_read_b128 {vr(X+16*c+4*k,4)}, v{RDS+k} offset:{xlds(c) % (64*KB)}")
        if c == 1 and early:
            rpick(a)
        if c:
            a.run(stats(c - 1))
        if c == 3 and early:
            a.run(rs[:1])
        if 1 <= c <= OPT["par_n"]:
            a.run(par[(len(par) * (c - 1)) // OPT["par_n"]:(len(par) * c) // OPT["par_n"]])
    a.run(stats(7))
    I(f"v_mov_b32 v{TA}, v{MEAN}")
    I(f"v_mov_b32 v{TB}, v{RSTD}")
    I(f"s_add_u32 s{sUB}, s{sWL}, {128*KB - H[2]}")
    I(f"v_permlane32_swap_b32 v{TA}, v{MEAN}")
    I(f"v_permlane32_swap_b32 v{TB}, v{RSTD}")
    I(f"v_add_f32 v{MEAN}, v{TA}, v{MEAN}")
    I(f"v_add_f32 v{RSTD}, v{TB}, v{RSTD}")
    for k in range(4):
        I(f"v_mul_f32 v{NEGM+k}, {f32(-1/512)}, v{MEAN}")
    I(stamp("stats done"))

    bflag = [lambda a: a.wait_vm("RS"), f"buffer_store_dword v{KEEP+2}, v{KEEP}, {srd(SRS)}, s{sFL} offen sc1"]
    bl = b_loads()
    bload = f"s_load_dwordx16 s[{sHV}:{sHV+15}], s[4:5], 0 glc"
    bpoll = [bload]
    hg = lambda n: grp(wgroup(n, 0) + wgroup(n, 1))
    events = dict(W=(hg(0) + hg(1))[4 * nw:], H2=hg(2), H3=hg(3), H4=hg(4), H5=hg(5), R=grp(rl), pick=[[rpick]],
                  RS=[rs[:2]] + grp(rs[2:]), bflag=[bflag], bpoll=[bpoll], B=bl[:OPT["b2"]], xr=[xready()],
                  xl=[[XLOAD]], xc=[[spoll("L_xr", XLOAD, 1)]], f0=[hflag(0)], hl0=[[hload(0)]],
                  T1=[[f"buffer_load_dword v{T+4}, v{VT}, {srd(SW1)}, 0 offen"]],
                  go=[[lambda a: poll(a, "L_go", GOV, GOA, SDBG, 0)]], XP=[[x] for x in xp],
                  bchk=[[spoll("L_bf", bload, 11), stamp("B flags")]])
    for name in OPT["x_drop"].split("/"):
        if name:
            events[name] = [[]]
    at = {}
    for name, pos in SCH.items():
        g0, g1 = pos[0], pos[-1] + 1
        for j, e in enumerate(events[name]):
            at.setdefault(g0 + (j * (g1 - g0)) // len(events[name]), []).extend(e)
    order = [x for x in ("R", "pick", "RS", "bflag", "bpoll", "bchk", "B") if x in SCH]
    assert all(SCH[x][-1] <= SCH[y][0] for x, y in zip(order, order[1:]))
    assert SCH["go"][0] < min(60, SCH["bflag"][0], SCH["xr"][0]) and SCH["H5"][0] > 28
    assert SCH["H5"][-1] < min(128, SCH["bpoll"][0]) and SCH["H3"][-1] < 64
    assert early or (SCH["RS"][0] < SCH["H4"][0] and SCH["pick"][0] < 60)
    assert SCH["bchk"][0] < SCH["xl"][0] < SCH["xc"][0] < SCH["hl0"][0] and SCH["f0"][0] >= 128
    assert ("XP" in SCH) == (OPT["xp_at"] > 7) and SCH.get("XP", [-99])[-1] < SCH["xr"][0]
    dm = sorted(SCH[x] for x in ("W", "H2", "H3", "H4", "H5", "R") if x in SCH)
    assert all(x[-1] < y[0] for x, y in zip(dm, dm[1:]))
    P = OPT["pre_pairs"]
    assert min(at) >= -P
    for i in range(P):
        u, r = unpack(i), repack(i)
        a.run(u + at.get(i - P, []))
        if i == P - 1:
            a.run([lambda a: a.wait_vm("H0"), "s_barrier"] + frag_reads(0))
        a.run(r)
    a.run(frag_reads(1) + (unpack(P) if P < 16 else []))

    n2 = OPT["b2"]
    flat = lambda ll: [x for l in ll for x in l]
    ge = 4 * OPT["e_win"]
    f0 = [f"v_subrev_u32 v{RDS+k}, s{sUB}, v{RDS+k}" for k in range(4)] + fill_u0() + (par if not OPT["par_n"] else [])
    plan = [[(f0, 2, 56)], [(fill_u1(), 1, 64)], [(fill_u2a(), 1, ge), (fill_u2b(), ge, 64)]]
    for u in range(3):
        a.comment(f"---- GEMM unit {u} ----")
        I(stamp(f"U{u} start"))
        main = []
        for d in range(16):
            n = 16 * u + d
            pre = [lambda a, n=n: a.need(stage_regs(n))] if n == 0 or not OPT["wshadow"] else []
            if OPT["only"] and n % 4 == 0 and d:
                pre.append(stamp(f"w{n}"))
            if n + 2 < 48 and (n + 2) % 8 == 0:
                pre += [lambda a, hn=(n + 2) // 8: a.wait_vm(f"H{hn}"), "s_barrier"]
            if n in (7, 15):
                pre += ["s_barrier"]
            if n == 32 + OPT["e_win"]:
                pre += [lambda a: a.wait_lg("E"), "s_barrier"]
            if n + 2 == 32:
                pre += [f"v_add_u32 v{RDT}, {H[4]}, v{RDT}", f"v_add_u32 v{RDT+1}, {H[4]}, v{RDT+1}"]
            if n + 2 == 40:
                pre += [f"v_subrev_u32 v{RDT}, {H[4]}, v{RDT}", f"v_subrev_u32 v{RDT+1}, {H[4]}, v{RDT+1}"]
            ms = mfmas(n)
            rd = frag_reads(n + 2) if n + 2 < 48 else []
            h = len(rd) // 4
            for i in range(4):
                post = [lambda a, n=n: a.need(stage_regs(n + 1))] if i == 3 and n < 47 and OPT["wshadow"] else []
                main.append((pre if i == 0 else []) + ms[i] + post + rd[i * h:(i + 1) * h])
        main = [m + at.get(64 * u + i, []) for i, m in enumerate(main)]
        last = {}
        if u == 0:
            for d in range(16 - P):
                r = repack(P + d)
                for i in range(4):
                    main[4 * d + i] = main[4 * d + i] + r[2 * i:2 * i + 2]
                if P + d + 1 < 16:
                    last[4 * d + 3] = unpack(P + d + 1)
        for i, g in enumerate(spread(main, plan[u])):
            a.run(g + last.get(i, []))
    I(stamp("tail start"))
    a.run(tail(flat(bl[n2:])))
    I(stamp("tail issued"))
    I("s_barrier")


def merge(fl, mem):
    if not mem:
        return list(fl)
    res = []
    n, m = len(fl), len(mem)
    j = 0
    for i in range(n):
        while j < m and j * n <= i * m:
            res.append(mem[j])
            j += 1
        res.append(fl[i])
    res += mem[j:]
    return res


FREP = KEEP + 1
FONE, FZERO = KEEP + 2, KEEP + 3


sHV = SBR


def hload(stage, retry=False):
    return f"s_load_dwordx16 s[{sHV}:{sHV+15}], s[{sHP}:{sHP+1}], {64*stage}" + (" glc" if retry or OPT["hglc"] else "")


XLOAD = f"s_load_dword s{sHV}, s[{sXP}:{sXP+1}], 0 glc"


def spoll(name, load, n, empty=None):
    def f(a):
        a.I(f"s_mov_b32 s{sT2}, 0")
        a.label(name)
        a.wait_lg_all()
        for k in range(2, n - 1, 2):
            a.I(f"s_and_b64 s[{sHV}:{sHV+1}], s[{sHV}:{sHV+1}], s[{sHV+k}:{sHV+k+1}]")
        if n > 1 and n & 1:
            a.I(f"s_and_b32 s{sHV}, s{sHV}, s{sHV+n-1}")
        if empty is None:
            a.I(f"s_and_b32 s{sHV}, s{sHV}, s{sHV+(1 if n > 1 else 0)}")
        else:
            a.I(f"s_cmp_lg_u32 s{sHV}, {empty}")
        a.I(f"s_cbranch_scc1 {name}_done")
        pos = a.pos
        a.I(f"s_add_u32 s{sT2}, s{sT2}, 1")
        a.I(f"s_cmp_ge_u32 s{sT2}, {SPIN_MAX}")
        a.I(f"s_cbranch_scc1 {name}_done")
        a.I(load)
        a.I(f"s_branch {name}")
        a.lgq, a.pos = [], pos
        a.label(name + "_done")
        if DEBUG and not OPT["rt"]:
            CNTS.append(name)
            a.I(f"v_writelane_b32 v{STAMPV}, s{sT2}, {39+len(CNTS)}")
    return f


CNTS = []


def hpoll(stage):
    return spoll(f"L_hf{stage}", hload(stage, True), 16)


def hflag(stage):
    return [lambda a: a.wait_vm(f"HS{stage}"),
            f"buffer_store_dword v{FONE}, v{FREP}, {srd(SWS)}, s{sHF} offen offset:{64*stage} sc1"]


def cfma_pk(dst, m, x, add):
    return [f"v_pk_fma_f32 {vr(dst,2)}, {vr(x,2)}, {vr(m,2)}, {vr(add,2)} op_sel:[0,0,0] op_sel_hi:[1,0,1]",
            f"v_pk_fma_f32 {vr(dst,2)}, {vr(x,2)}, {vr(m,2)}, {vr(dst,2)} op_sel:[1,1,0] op_sel_hi:[0,1,1] neg_lo:[0,1,0]"]


AUX = 112 * KB
sAX = pOUT
sXO = pOUT + 1


def tail(brest):
    RE, IM, FR = X, X + 8, X + 16
    EL = [X + 32 + 2 * n for n in range(8)]
    EA, EB, TW, TR = X + 48, X + 49, X + 50, X + 51
    eloads = []
    for n in range(8):
        if n:
            eloads.append(f"v_subrev_u32 v{EB}, {512*n}, v{EA}")
        eloads.append(f"buffer_load_dwordx2 {vr(EL[n],2)}, v{EB if n else EA}, {srd(SE)}, 0 offen sc1")
    al = a_loads()
    na, qs, qe = min(2 * OPT["pro"], OPT["pro_q"]), OPT["scan_q"], OPT["eload_q"]
    a0, a1 = [int(v) for v in OPT["a_q"].split("/")]

    def quad(qd):
        mem = []
        if qd == 0:
            mem += brest
        if qd == a0:
            mem += [hpoll(0), stamp("H flags")]
        if a0 <= qd < a1:
            for f in range((na * (qd - a0)) // (a1 - a0), (na * (qd - a0 + 1)) // (a1 - a0)):
                mem += al[f]
        if qd == qe:
            mem += eloads
        r = merge(gelu_packed(ACA + 4 * qd, T + 8), mem)
        if qd & 1:
            r += pack_store(ACA + 8 * (qd >> 1), SWS2, sRA, 1024 * (qd >> 1), "HS2")
        return r + [stamp(f"q{qd}")]

    tl = [unstash(EA, aEA), unstash(TW, aTW), unstash(TR, aTR)]
    for qd in range(qs):
        tl += quad(qd)
    er = [r + h for r in EL for h in range(2)]

    def epoll(a):
        a.need([vr(r, 2) for r in EL])
        a.I(f"s_mov_b32 s{sT2}, 0")
        a.label("L_epoll")
        a.I(f"v_max3_u32 v{EB}, v{er[0]}, v{er[1]}, v{er[2]}")
        for n in range(3, 15, 2):
            a.I(f"v_max3_u32 v{EB}, v{EB}, v{er[n]}, v{er[n+1]}")
        a.I(f"v_max_u32 v{EB}, v{EB}, v{er[15]}")
        a.I(f"v_cmp_eq_u32 vcc, -1, v{EB}")
        a.I(f"s_add_u32 s{sT2}, s{sT2}, 1")
        a.I(f"s_cmp_ge_u32 s{sT2}, {SPIN_MAX}")
        a.I("s_cbranch_scc1 L_epoll_done")
        a.nop(2)
        a.I("s_cbranch_vccz L_epoll_done")
        save, pos = list(a.vmq), a.pos
        for l in eloads:
            a.I(l, track=False)
        a.wait_vm_all()
        a.I("s_branch L_epoll")
        a.vmq, a.pos = save, pos
        a.label("L_epoll_done")
        if DEBUG and not OPT["rt"]:
            CNTS.append("epoll+1")
            a.I(f"v_writelane_b32 v{STAMPV}, s{sT2}, {39+len(CNTS)}")
    tl.append(epoll)
    tl.append(stamp("E seen"))
    cur = EL[7]
    for n in range(6, -1, -1):
        tl += cfma_pk(EL[n], PA256, cur, EL[n])
        cur = EL[n]
    S, S0, S1 = EL[0], EL[1], EL[2]
    tl += [f"v_pk_mul_f32 {vr(S0,2)}, {vr(S,2)}, {vr(PAH,2)} op_sel:[0,0] op_sel_hi:[1,0]",
           cfma_pk(S0, PAH, S, S0)[1],
           f"v_mov_b32 v{S1}, v{S0}",
           f"v_mov_b32 v{S1+1}, v{S0+1}",
           f"s_add_u32 s{sRB}, s{sHB}, {28*KB}",
           f"v_permlane32_swap_b32 v{S0}, v{S1}",
           f"v_permlane32_swap_b32 v{S0+1}, v{S1+1}",
           f"v_pk_add_f32 {vr(S0,2)}, {vr(S0,2)}, {vr(S1,2)}"]
    tl += cfma_pk(PP, PAS, S0, PP)
    prev = PP
    for i in range(16):
        u = ureg(i)
        nb = 2 * OPT["pro"] - na
        for f in range(na + (nb * i) // 16, na + (nb * (i + 1)) // 16):
            tl += al[f]
        tl += cfma_pk(u, PA, prev, u)
        if i & 1:
            tl += [f"v_cvt_pk_bf16_f32 v{RE+(i>>1)}, v{prev}, v{u}",
                   f"v_cvt_pk_bf16_f32 v{IM+(i>>1)}, -v{prev+1}, -v{u+1}"]
        prev = u
        if i in (7, 15):
            hf = i >> 3
            for p, R in enumerate((RE, IM)):
                tl.append(f"ds_write_b128 v{TW}, {vr(R+4*hf,4)} offset:{p*2560+16*hf}")
    for p in range(2):
        for k in range(2):
            for e in range(2):
                tl.append(f"ds_read_b64_tr_b16 {vr(FR+8*p+4*k+2*e,2)}, v{TR} offset:{p*2560+(8*e+4*k)*80}")
    tl.append(stamp("scan done"))
    if OPT["flag2_at"] < 0:
        assert qs == 8
        tl += hflag(2)
    hs = [lambda a: a.need([vr(FR, 16)])]
    hs += [(f"buffer_store_dwordx4 {vr(FR+4*f,4)}, v{L16}, {srd(SWS)}, s{sRB} offen offset:{1024*f} sc1", "HS1") for f in range(4)]
    rest = sum((quad(qd) for qd in range(qs, 8)), [])
    cut = min(12, len(rest))
    tl += rest[:cut] + merge(rest[cut:cut + 24], hs) + rest[cut + 24:]
    return tl


RED, RED_SRC, RED_DT, RED_TT = 40 * KB, 8448, 4224, 4 * 8448


def wreg(s, e, dt):
    return ar(16 * s + 8 * e + 4 * dt, 4)


def hreg(f):
    return ar(176 + 4 * ((f + 4) % 20), 4)


def steps():
    l = [(L, s) for s in range(4) for L in range(4)]
    s1, s2 = [7, 8, 9, 10], [4, 5, 6]
    if OPT["scan_q"] == 8:
        s1, s2 = s2, s1
    if OPT["ord"] == 0:
        l += [(L, s) for L in range(4) for s in s1 + s2]
    else:
        l += [(L, s) for s in s1 for L in range(2)] + [(L, s) for L in range(2) for s in s2]
        l += [(L, s) for L in range(2, 4) for s in s1 + s2]
    return l


def p2_index(a):
    I = a.I
    I(f"s_and_b32 s{sN}, s{sJ}, 7")
    I(f"s_lshr_b32 s{sT1}, s{sJ}, 3")
    I(f"s_lshl1_add_u32 s{sI2}, s{sR}, s{sT1}")
    I(f"s_lshr_b32 s{sT0}, s{sW}, 1")
    I(f"s_lshl1_add_u32 s{sG2}, s{sT1}, s{sT0}")
    I(f"s_mul_i32 s{sT0}, s{sG2}, {G_STRIDE//2048}")
    I(f"s_and_b32 s{sT1}, s{sW}, 1")
    I(f"s_add_u32 s{sT0}, s{sT0}, s{sT1}")
    I(f"s_lshl_b32 s{sT0}, s{sT0}, 11")
    I(f"s_mul_i32 s{sA1}, s{sI2}, {2*RT_STRIDE}")
    I(f"s_add_u32 s{sA1}, s{sA1}, s{sT0}")
    I(f"s_xor_b32 s{sA0}, s{sI2}, 1")
    I(f"s_mul_i32 s{sA0}, s{sA0}, {2*RT_STRIDE}")
    I(f"s_add_u32 s{sA0}, s{sA0}, s{sT0}")
    I(f"s_mul_i32 s{sB0}, s{sN}, {2*RT_STRIDE}")
    I(f"s_add_u32 s{sB0}, s{sB0}, s{sT0}")
    I(f"s_add_u32 s{sB0}, s{sB0}, {BW}")
    I(f"s_lshl2_add_u32 s{sXI}, s2, s{sW}")
    I(f"s_lshl_b32 s{sXI}, s{sXI}, 11")
    I(f"s_or_b32 s{sXI}, s{sXI}, {XCH}")
    I(f"s_xor_b32 s{sXS}, s{sXI}, {4*8192}")


def b_loads():
    l = []
    for s in range(11):
        for e in range(2):
            for t in range(2):
                it = []
                if e == 0:
                    it += [f"s_add_u32 s{sP0+t}, s{sB0}, {s*4096 + t*RT_STRIDE}"]
                it.append(f"buffer_load_dwordx4 {wreg(s,e,t)}, v{L16}, {srd(SWS)}, s{sP0+t} offen offset:{e*1024} sc1")
                l.append(it)
    return l


def a_loads():
    l = []
    for n, (L, s) in enumerate(steps()):
        for e in range(2):
            it = []
            if e == 0:
                it += [f"s_add_u32 s{sP0}, s{sA1 if L >= 2 else sA0}, {s*4096 + (L&1)*RT_STRIDE}"]
            it.append(f"buffer_load_dwordx4 {hreg(2*n+e)}, v{L16}, {srd(SWS)}, s{sP0} offen offset:{e*1024} sc1")
            l.append(it)
    return l


def phase2(a):
    I = a.I
    al = a_loads()
    st = steps()
    OA, RA, A1, A2, TA = 192, 193, 194, 195, 196
    DK, BB, DF, BF = 198, 200, 208, 212
    XIN, XV, MN, RS, BASE = 128, 144, 152, 156, 160
    prep = [lambda a: a.wait_vm("AUX"),
            f"v_lshl_add_u32 v{A1}, v{LN}, 3, s{sAX}",
            f"v_lshrrev_b32 v{TA}, 4, v{LN}",
            f"s_and_b32 s{sG}, s{sI2}, 1",
            f"s_lshl3_add_u32 s{sG}, s{sG}, s{sW}",
            f"s_lshl_b32 s{sG}, s{sG}, 5",
            f"v_lshl_add_u32 v{A2}, v{TA}, 2, s{sG}"]
    for n in range(4):
        o = PARK + 128 * (n >> 1) + 16 * (n & 1)
        prep += [f"ds_read_b64 {vr(XV+2*n,2)}, v{A1} offset:{512*n}",
                 f"ds_read_b32 v{RS+n}, v{A2} offset:{o}",
                 f"ds_read_b32 v{MN+n}, v{A2} offset:{o+512}"]
    prep += [f"v_and_b32 v{OA}, 15, v{LN}",
             f"v_lshl_add_u32 v{A1}, v{OA}, 3, s{sAX}",
             f"ds_read_b64 {vr(DK,2)}, v{A1} offset:2048",
             f"ds_read_b64 {vr(BB,2)}, v{A1} offset:{2048+128}",
             f"v_and_b32 v{RA}, 3, v{LN}",
             f"v_lshlrev_b32 v{RA}, 5, v{RA}",
             f"v_bfe_u32 v{A2}, v{LN}, 2, 1",
             f"v_lshl_or_b32 v{RA}, v{A2}, 4, v{RA}",
             f"v_lshl_or_b32 v{RA}, v{TA}, 8, v{RA}",
             f"v_bfe_u32 v{A2}, v{LN}, 3, 1",
             f"v_mul_u32_u24 v{A2}, {RED_DT}, v{A2}",
             f"s_and_b32 s{sG}, s{sW}, 1",
             f"s_lshr_b32 s{sJJ}, s{sW}, 1",
             f"s_lshl4_add_u32 s{sG}, s{sG}, s{sJJ}",
             f"s_lshl_b32 s{sG}, s{sG}, 7",
             f"s_add_u32 s{sG}, s{sG}, {RED}",
             f"v_add3_u32 v{RA}, v{RA}, v{A2}, s{sG}",
             f"v_lshlrev_b32 v{OA}, 4, v{OA}",
             f"v_lshl_or_b32 v{OA}, v{TA}, 11, v{OA}",
             f"s_lshl_b32 s{sXO}, s{sXO}, 1",
             f"s_add_u32 s{sXP}, s{pWS}, s{sXI}\ns_addc_u32 s{sXP+1}, s{pWS+1}, 0",
             f"s_mul_i32 s{sG}, s{sW}, {RED_SRC}"]
    prep2 = [lambda a: a.need([vr(DK, 4), vr(XV, 16)])]
    for h in range(2):
        prep2 += [f"v_lshlrev_b32 v{DF+2*h}, 16, v{DK+h}", f"v_and_b32 v{DF+2*h+1}, 0xffff0000, v{DK+h}",
                  f"v_lshlrev_b32 v{BF+2*h}, 16, v{BB+h}", f"v_and_b32 v{BF+2*h+1}, 0xffff0000, v{BB+h}"]
    for n in range(4):
        for c in range(4):
            b = BASE + 4 * n + c
            src = XV + 2 * n + (c >> 1)
            prep2 += [f"v_lshlrev_b32 v{b}, 16, v{src}" if c % 2 == 0 else f"v_and_b32 v{b}, 0xffff0000, v{src}",
                      f"v_sub_f32 v{TA}, v{b}, v{MN+n}",
                      f"v_mul_f32 v{TA}, v{TA}, v{RS+n}",
                      f"v_add_f32 v{b}, v{b}, v{BF+c}",
                      f"v_fmac_f32 v{b}, v{TA}, v{DF+c}"]

    def add4(x, y, packed):
        if packed:
            return [f"v_pk_add_f32 {vr(x+h,2)}, {vr(x+h,2)}, {vr(y+h,2)}" for h in (0, 2)]
        return [f"v_add_f32 v{x+c}, v{x+c}, v{y+c}" for c in range(4)]

    def reduce(L, packed):
        acc, tt = 32 * L, L & 1
        w = [f"s_add_u32 m0, s{sG}, {RED_TT*tt}"]
        for dt in range(2):
            for i in range(16):
                w.append((f"ds_write_addtid_b32 v{acc+16*dt+i} offset:{RED+dt*RED_DT+i*256}", "RW"))
        r = [lambda a: a.wait_lg("RW"), "s_barrier"]
        for it in range(2):
            for q in range(4):
                r.append(f"ds_read_b128 {vr(acc+16*it+4*q,4)}, v{RA} offset:{RED_TT*tt+q*RED_SRC+it*1024}")
        e = []
        for it in range(2):
            p = acc + 16 * it
            e.append(lambda a, p=p: a.need([vr(p, 16)]))
            if L < 2:
                e += add4(p, p + 4, packed) + add4(p + 8, p + 12, packed) + add4(p, p + 8, packed)
                e += [f"v_cvt_pk_bf16_f32 v{acc+4+2*it+h}, v{p+2*h}, v{p+2*h+1}" for h in range(2)]
                if it:
                    e.append(f"buffer_store_dwordx4 {vr(acc+4,4)}, v{L16}, {srd(SWS)}, s{sXS} offen offset:{1024*tt} sc1")
            else:
                b = BASE + 8 * tt + 4 * it
                e += add4(p, p + 4, packed) + add4(p + 8, p + 12, packed) + add4(b, p, packed) + add4(b, p + 8, packed)
        return w, r, e

    def xin(tt):
        return [f"buffer_load_dwordx4 {vr(XIN+4*tt,4)}, v{L16}, {srd(SWS)}, s{sXI} offen offset:{1024*tt} sc1"]

    def xcheck(tt):
        def f(a):
            x, name = XIN + 4 * tt, f"L_xc{tt}"
            a.need([vr(x, 4)])
            a.I(f"s_mov_b32 s{sT2}, 0")
            a.label(name)
            a.I(f"v_max3_u32 v{TA}, v{x}, v{x+1}, v{x+2}")
            a.I(f"v_max_u32 v{TA}, v{TA}, v{x+3}")
            a.I(f"v_cmp_eq_u32 vcc, -1, v{TA}")
            a.I(f"s_cmp_eq_u64 vcc, 0")
            a.I(f"s_cbranch_scc1 {name}_done")
            save, pos = list(a.vmq), a.pos
            a.I(f"s_add_u32 s{sT2}, s{sT2}, 1")
            a.I(f"s_cmp_ge_u32 s{sT2}, {SPIN_MAX}")
            a.I(f"s_cbranch_scc1 {name}_done")
            for l in xin(tt):
                a.I(l, track=False)
            a.wait_vm_all()
            a.I(f"s_branch {name}")
            a.vmq, a.pos = save, pos
            a.label(name + "_done")
            if DEBUG and not OPT["rt"]:
                CNTS.append(name)
                a.I(f"v_writelane_b32 v{STAMPV}, s{sT2}, {39+len(CNTS)}")
        return f

    def final(tt):
        e = [xcheck(tt)]
        for it in range(2):
            b = BASE + 8 * tt + 4 * it
            x, u = XIN + 4 * tt + 2 * it, XIN + 8
            for h in range(2):
                e += [f"v_lshlrev_b32 v{u+2*h}, 16, v{x+h}", f"v_and_b32 v{u+2*h+1}, 0xffff0000, v{x+h}"]
            e += [f"s_add_u32 s{sJJ}, s{sXO}, {(32*tt+4*it)*2048}"] + add4(b, u, True)
            e.append(f"buffer_store_dwordx4 {vr(b,4)}, v{OA}, {srd(SOUT)}, s{sJJ} offen {OPT['outflags']}")
        return e

    first = {1: min(n for n, (L, s) in enumerate(st) if s >= 7), 2: min(n for n, (L, s) in enumerate(st) if 4 <= s < 7)}
    done = [max(n for n, (L, s) in enumerate(st) if L == q) + 1 for q in range(4)]
    gate = {k: v - OPT["look"] for k, v in first.items()}
    issue, t, cnt = {}, 0, 0
    for f in range(2 * OPT["pro"], 88):
        m = f // 2
        lo = max([m - OPT["far"], 0] + [gate[k] for k in first if m >= first[k]])
        if lo > t:
            t, cnt = lo, 0
        if cnt >= OPT["rate"]:
            t, cnt = t + 1, 0
        assert t < m and OPT["far"] <= 9
        issue.setdefault(t, []).append(f)
        cnt += 1
    main = []
    for n, (L, s) in enumerate(st):
        ms = []
        for e in range(2):
            for dt in range(2):
                D = vr(32 * L + 16 * dt, 16)
                ms.append(f"v_mfma_f32_32x32x16_bf16 {D}, {hreg(2*n+e)}, {wreg(s,e,dt)}, {D if s or e else '0'}")
        regs = [hreg(2 * n), hreg(2 * n + 1), ar(16 * s, 16)]
        g0 = [lambda a, regs=regs: a.need(regs)]
        if n in (0, 4, 8, 12, 16, 23, 30, 37):
            g0.append(stamp(f"k{n}"))
        g0.append(ms[0])
        g1, g2, g3 = [ms[1]], [ms[2]], [ms[3]]
        for stage in (1, 2):
            if n == gate[stage]:
                g0.append(hpoll(stage))
        for stage in (1, 2):
            lead = OPT["plead"] if gate[stage] == min(gate.values()) else min(OPT["plead"], abs(gate[2] - gate[1]))
            if n + lead == gate[stage]:
                g1.append(hload(stage))
        ld = issue.get(n, [])
        for j, f in enumerate(ld):
            (g0, g2, g1, g3)[j if len(ld) <= 2 else (0, 2, 1, 3)[j]].extend(al[f])
        if n == OPT["flag2_at"]:
            g1 += hflag(2)
        if n == OPT["flag1_at"]:
            g1 += hflag(1)
        main += [g0, g1, g2, g3]
    plans = [(prep, 2, 14), (prep2, 16, 4 * done[0])]
    rw, rs1, rr, rs2, re = [int(v) for v in OPT["red"].split("/")]
    for L in range(3):
        w, r, e = reduce(L, False)
        g = 4 * done[L] + 2
        plans += [(w, g, g + rw), (r, g + rw + rs1, g + rw + rs1 + rr)]
        g += rw + rs1 + rr + rs2
        plans.append((e, g, min(g + re, 176)))
    xget = ([spoll("L_xp", XLOAD, 1, -1)] if OPT["peek"] else []) + xin(0) + xin(1)
    if OPT["peek"]:
        plans.append(([[XLOAD]], OPT["peek"], OPT["peek"] + 1, 1))
    late = OPT["xin"] >= 176
    if not late:
        plans.append(([xget], OPT["xin"], OPT["xin"] + 1, 1))
    if OPT["x_p2"] & 1:
        txt = lambda it: (it[0] if isinstance(it, tuple) else it) if not callable(it) and not isinstance(it, list) else ""
        plans = [([it for it in p[0] if not txt(it).startswith("s_barrier")],) + tuple(p[1:]) for p in plans]
    if OPT["x_p2"] & 2:
        txt = lambda it: (it[0] if isinstance(it, tuple) else it) if not callable(it) and not isinstance(it, list) else ""
        plans = [([it for it in p[0] if not txt(it).startswith("ds_write")],) + tuple(p[1:]) for p in plans]
    for g in spread(main, plans):
        a.run(g)
    I(stamp("mfma done"))
    w, r, e = reduce(3, True)
    a.run((xget if late else []) + w + r + final(0))
    I(stamp("fin0"))
    a.run(e + final(1))
    I(stamp("out issued"))
    if DEBUG:
        a.wait_vm_all()
    I(stamp("out done"))


import os
HEADER = open(os.path.dirname(os.path.abspath(__file__)) + "/header.txt").read()


def kd(name):
    return f""".amdhsa_kernel {name}
  .amdhsa_next_free_vgpr 512
  .amdhsa_next_free_sgpr 102
  .amdhsa_accum_offset 256
  .amdhsa_group_segment_fixed_size 0
  .amdhsa_float_denorm_mode_32 3
  .amdhsa_kernarg_size 136
  .amdhsa_user_sgpr_count 2
  .amdhsa_user_sgpr_kernarg_segment_ptr 1
  .amdhsa_system_sgpr_workgroup_id_x 1
.end_amdhsa_kernel
"""


OPT = dict(only='', x_drop='', x_w0=0, xp_at=9, pre_pairs=2, par_n=4, rt=0, x_p2=0, x_nostore=0, spin=0, hsflags='sc1', outflags='sc1', hglc=1,
           rotmask=7, x_first=1, x_second=1, w_loop=2, go_at=5,
           sch='W:-2:5,go:6,R:7:12,H2:14:28,pick:34,RS:36:44,H3:30:46,H4:48:62,H5:64:78,XP:80:84,bflag:66,xr:104,bpoll:90,bchk:110,B:111:190,xl:130,xc:152,f0:150,hl0:176',
           b2=44, e_win=11, scan_q=8, eload_q=4, a_q='1/8', flag1_at=6, flag2_at=-1,
           wshadow=1, pro=9, pro_q=10, far=9, rate=2, look=5, plead=4, ord=1, red='6/2/2/2/5', peek=0, xin=164)


def build():
    a = Asm()
    k1 = NAME + "_kernel"
    a.raw(HEADER.rstrip())
    a.raw("; @launch grid=(256,1,1) block=(256,1,1) lds=163840")
    a.raw('.amdgcn_target "amdgcn-amd-amdhsa--gfx950"\n.text')
    a.raw(f".globl {k1}\n.p2align 8\n.type {k1},@function\n{k1}:")
    a.I("s_cmp_ge_u32 s2, 256")
    a.I("s_cbranch_scc1 L_end")
    if DEBUG:
        a.I("s_memrealtime s[86:87]")
    phase1(a, k1)
    phase2(a)
    if OPT["spin"]:
        a.I("s_cmp_lg_u32 s2, 100\ns_cbranch_scc1 L_end")
        a.I(f"s_cmp_lg_u32 s{sW}, 3\ns_cbranch_scc1 L_end")
        a.I("s_mov_b32 s4, 0")
        a.label("L_spin")
        a.I("s_memrealtime s[6:7]")
        a.wait_lg_all()
        a.I("s_sub_u32 s6, s6, s70\ns_add_u32 s4, s4, 1\ns_cmp_ge_u32 s4, 20000\ns_cbranch_scc1 L_end\ns_cmp_lt_u32 s6, 6000\ns_cbranch_scc1 L_spin")
    stamp_flush(a, 0)
    a.label("L_end")
    a.I("s_endpgm")
    a.raw('.section .rodata,"a"\n.p2align 6')
    a.raw(kd(k1))
    print(f"instructions: {a.count}, nops {a.nops}", file=sys.stderr)
    return a.text()


if __name__ == "__main__":
    out = sys.argv[1] if len(sys.argv) > 1 else f"cdna_kernels/{NAME}.s"
    DEBUG = "-d" in sys.argv
    for arg in sys.argv[2:]:
        if "=" in arg:
            k, v = arg.split("=", 1)
            OPT[k] = type(OPT[k])(v)
    txt = build()
    if DEBUG:
        txt += "; STAMPS " + ",".join(STAMPS) + "\n; CNTS " + ",".join(CNTS) + "\n"
    open(out, "w").write(txt)
```

```python
import sys, math, struct
from asmlib import Asm, TRANS

NAME = "parallel_sum__ssm_conv_s5__mixer_channel_mlp__prompt"
KB = 1024
RT_STRIDE = 176 * KB
G_STRIDE = 44 * KB
HID = 0
BW = 64 * RT_STRIDE
EOFF = BW + 16 * RT_STRIDE
HFLAG = EOFF + 64 * KB
XFLAG = HFLAG + 64 * KB
BFLAG = XFLAG + 32 * KB
XCH = 16 * 1024 * KB
WS_END = XCH + 2048 * KB
SPIN_MAX = 4000

H = [0, 32 * KB, 64 * KB, 96 * KB, 128 * KB, 0]
PARK = H[1]
ETAB = H[1] + 1 * KB
EIN = 108 * KB
TRB = H[4]


def f32(x):
    return "0x%08x" % struct.unpack("<I", struct.pack("<f", x))[0]


pX, pLRE, pLIM, pBRE, pBIM, pCRE, pCIM, pLDT = [4 + 2 * i for i in range(8)]
pDSK, pBX, pW1, pB1, pW2, pB2, pOUT, pDBG = [20 + 2 * i for i in range(8)]
pWS = 36
SX, SBR, SBI, SW1, SR, SWS, SWS2, SW1B, SRS, SOUT, SDBG, SE = [40 + 4 * i for i in range(12)]
sW, sR, sJ, sJJ, sG, sROT, sT0, sT1, sT2, sRA, sRB, sHB, sONE, sFL = range(88, 102)
sXB = 38
sUB = 39
sWL = 3
sA1, sXF, sHP, sXP, sXI, sXS = 6, 7, 8, 10, 12, 13
sI2, sN, sB0, sA0, sG2, sP0, sP1 = 15, 16, 17, 18, 19, 24, 25
sCS, sCM0, sCM1 = 26, 27, 28
sHF = 29
sRS = 1
sINI = 0


def srd(n):
    return f"s[{n}:{n+3}]"


def sp(n):
    return f"s[{n}:{n+1}]"


def vr(n, c=1):
    return f"v{n}" if c == 1 else f"v[{n}:{n+c-1}]"


def ar(n, c=1):
    return f"a{n}" if c == 1 else f"a[{n}:{n+c-1}]"


X = 0
ACA, ACB = 128, 160
VQ, VW, RDS, RDT = 192, 196, 200, 204
L16 = 206
MEAN, RSTD, IR2, K0, K1 = 207, 208, 209, 210, 211
PA, PC, PA16, PAS, PAH, PA256, PP = 212, 214, 216, 218, 220, 222, 224
BIA = 226
KEEP = 238
T = 242
STASH = 176
aTW, aTR, aXD, aAA, aES, aEA, aARS, aARW, aAET = 176, 177, 178, 179, 181, 182, 183, 184, 185
STG = 192


DEBUG = False
STAMPV = T + 3
STAMPS = []
DBGOFF = 15 * 1024 * KB


def stamp(name):
    def f(a):
        if not DEBUG:
            return
        if OPT["only"] and name not in ("start", "out done") and name not in OPT["only"].split(","):
            return
        n = len(STAMPS)
        STAMPS.append(name)
        if name.endswith("start") and name[0] in "sk":
            a.I("s_memrealtime s[22:23]")
            a.wait_lg_all()
            a.I(f"v_writelane_b32 v{STAMPV}, s22, 62")
            a.I(f"v_writelane_b32 v{STAMPV}, s86, 61")
        a.I("s_memtime s[22:23]")
        a.wait_lg_all()
        a.I(f"v_writelane_b32 v{STAMPV}, s22, {n}")
        if OPT["rt"]:
            a.I("s_memrealtime s[22:23]")
            a.wait_lg_all()
            a.I(f"v_writelane_b32 v{STAMPV}, s22, {32+n}")
    return f


def stamp_flush(a, which):
    if not DEBUG:
        return
    a.I("s_memrealtime s[22:23]")
    a.wait_lg_all()
    a.I(f"v_writelane_b32 v{STAMPV}, s22, 63")
    a.I(f"s_lshl_b32 s22, s2, 2\ns_add_u32 s22, s22, s{sW}\ns_lshl_b32 s22, s22, 8\ns_add_u32 s22, s22, {DBGOFF + which*256*KB}")
    a.I(f"v_mbcnt_lo_u32_b32 v0, -1, 0\nv_mbcnt_hi_u32_b32 v0, -1, v0\nv_lshlrev_b32 v0, 2, v0")
    a.I(f"buffer_store_dword v{STAMPV}, v0, {srd(SWS)}, s22 offen")


def mk_srd(a, n, ptr, size):
    a.I(f"s_mov_b64 s[{n}:{n+1}], s[{ptr}:{ptr+1}]")
    a.I(f"s_mov_b32 s{n+2}, {size}")
    a.I(f"s_mov_b32 s{n+3}, 0x20000")


def load_kernargs(a):
    a.I("s_load_dwordx16 s[4:19], s[0:1], 0")
    a.I("s_load_dwordx16 s[20:35], s[0:1], 64")
    a.I("s_load_dwordx2 s[36:37], s[0:1], 128")


def dma4(vbase, s, soff, m0expr, tag):
    it = list(m0expr)
    for q in range(4):
        it.append((f"buffer_load_dwordx4 v{vbase+q}, {srd(s)}, s{soff} offen offset:{q*1024} lds", tag))
    return it


def stage_regs(n):
    return [ar(STG + 16 * (n & 3), 16)]


def frag_reads(n):
    u, d = divmod(n, 16)
    it = []
    for s in range(2):
        k = 2 * d + s
        base = STG + 16 * (n & 3) + 8 * s
        if u == 1:
            for part in range(2):
                it.append(f"ds_read_b128 {ar(base+4*part,4)}, v{RDS+(k&3)} offset:{(k>>2)*8192+part*4096}")
        else:
            kk = k if u == 0 else (k & 15)
            for t in range(2):
                for e in range(2):
                    it.append(f"ds_read_b64_tr_b16 {ar(base+4*t+2*e,2)}, v{RDT+t} offset:{kk*2048+e*512}")
    return it


def mfmas(n):
    u, d = divmod(n, 16)
    res = []
    for s in range(2):
        k = 2 * d + s
        base = STG + 16 * (n & 3) + 8 * s
        for t in range(2):
            D = vr((ACA, ACB, ACA)[u] + 16 * t, 16)
            c = D if k else "0"
            bias = f"v_mfma_f32_32x32x16_bf16 {D}, {vr(BIA+u,4)}, {vr(BIA+4+4*t,4)}, {c}"
            g = []
            if u == 1:
                g.append(f"v_mfma_f32_32x32x16_bf16 {D}, {vr(X+4*k,4)}, {ar(base+4*t,4)}, {c}")
            else:
                if u == 2 and k == 0:
                    g.append(bias)
                    c = D
                g.append(f"v_mfma_f32_32x32x16_bf16 {D}, {ar(base+4*t,4)}, {vr(X+4*k,4)}, {c}")
                if u == 0 and k == 31:
                    g.append(bias)
            res.append(g)
    return res


LN, HH, RHO = T, T + 6, T + 7


def cpow(dst, nreg_or_const, zr, zv, t0, t1):
    it = []
    n = nreg_or_const
    if n == 1:
        it += [f"v_exp_f32 v{t0}, v{zr}", f"v_fract_f32 v{t1}, v{zv}"]
    else:
        src = n if isinstance(n, str) else f32(float(n))
        it += [f"v_mul_f32 v{t0}, {src}, v{zr}", f"v_mul_f32 v{t1}, {src}, v{zv}",
               f"v_exp_f32 v{t0}, v{t0}", f"v_fract_f32 v{t1}, v{t1}"]
    it += [f"v_cos_f32 v{dst}, v{t1}", f"v_sin_f32 v{dst+1}, v{t1}",
           f"v_mul_f32 v{dst}, v{dst}, v{t0}", f"v_mul_f32 v{dst+1}, v{dst+1}, v{t0}"]
    return it


def fill_u0():
    it = []
    A0, A1, A2, A3 = [ACB + 8 + i for i in range(4)]
    EPS = f32(1e-5)
    k0 = -2.0 * math.log2(math.e) * math.sqrt(2.0 / math.pi)
    k1 = k0 * 0.044715
    it += [f"v_mov_b32 v{A0}, v{RSTD}",
           f"v_mul_f32 v{MEAN}, {f32(1/512)}, v{MEAN}",
           f"v_permlane32_swap_b32 v{A0}, v{RSTD}",
           f"v_add_f32 v{RSTD}, v{A0}, v{RSTD}",
           f"v_mul_f32 v{A0}, {f32(1/512)}, v{RSTD}",
           f"v_fma_f32 v{A0}, -v{MEAN}, v{MEAN}, v{A0}",
           f"v_max_f32 v{A0}, 0, v{A0}",
           f"v_add_f32 v{A1}, {EPS}, v{A0}",
           f"v_rsq_f32 v{RSTD}, v{A1}",
           f"v_fmac_f32 v{A0}, {EPS}, v{A1}",
           f"v_rsq_f32 v{A2}, v{A0}",
           f"v_sqrt_f32 v{IR2}, v{A0}",
           f"v_mul_f32 v{K0}, {f32(k0)}, v{A2}",
           f"v_mul_f32 v{A3}, v{A2}, v{A2}",
           f"v_mul_f32 v{A3}, {f32(0.044715)}, v{A3}",
           f"v_mul_f32 v{K1}, v{K0}, v{A3}",
           f"v_cvt_pk_bf16_f32 v{A2}, v{IR2}, v{IR2}",
           f"v_and_b32 v{A3}, 0xffff0000, v{A2}",
           f"v_sub_f32 v{A3}, v{IR2}, v{A3}",
           f"v_cvt_pk_bf16_f32 v{A2}, v{IR2}, v{A3}",
           f"v_mul_lo_u32 v{BIA+8}, v{A2}, v{HH}",
           f"v_sub_u32 v{BIA+4}, v{A2}, v{BIA+8}"]
    return it


def ssm_params():
    it = []
    A0, A1, A2, A3 = [ACB + 8 + i for i in range(4)]
    for k in range(2):
        it.append(f"v_lshl_or_b32 v{BIA+2*k}, v{BIA+2*k}, 16, v{BIA+2*k}")
    LR, LI, ZR, ZV = [ACB + 12 + i for i in range(4)]
    it += [f"v_lshlrev_b32 v{LR}, 16, v{PA}",
           f"v_lshlrev_b32 v{LI}, 16, v{PA+1}",
           f"v_lshlrev_b32 v{A0}, 16, v{PC}",
           f"v_mul_f32 v{A0}, {f32(math.log2(math.e))}, v{A0}",
           f"v_exp_f32 v{A0}, v{A0}",
           f"v_cvt_f32_u32 v{A2}, v{HH}",
           f"v_cvt_pk_bf16_f32 v{A0}, v{A0}, v{A0}",
           f"v_and_b32 v{A0}, 0xffff0000, v{A0}",
           f"v_mul_f32 v{ZR}, v{A0}, v{LR}",
           f"v_mul_f32 v{ZV}, v{A0}, v{LI}",
           f"v_mul_f32 v{ZR}, {f32(math.log2(math.e))}, v{ZR}",
           f"v_mul_f32 v{ZV}, 0.15915494, v{ZV}"]
    it += cpow(PA, 1, ZR, ZV, A0, A1)
    it += cpow(PA16, 16, ZR, ZV, A0, A1)
    it += cpow(PA256, 256, ZR, ZV, A0, A1)
    it += [f"v_mul_f32 v{A3}, {f32(128.0)}, v{A2}"]
    it += cpow(PAH, f"v{A3}", ZR, ZV, A0, A1)
    it += [f"s_lshl_b32 s{sROT}, s{sW}, 1",
           f"v_add_u32 v{A3}, s{sROT}, v{HH}",
           f"v_cvt_f32_u32 v{A3}, v{A3}",
           f"v_mul_f32 v{A3}, {f32(16.0)}, v{A3}"]
    it += cpow(PAS, f"v{A3}", ZR, ZV, A0, A1)
    it += [f"v_mul_f32 v{A0}, v{LR}, v{LR}",
           f"v_fmac_f32 v{A0}, v{LI}, v{LI}",
           f"v_rcp_f32 v{A0}, v{A0}",
           f"v_add_f32 v{A1}, -1.0, v{PA}",
           f"v_mul_f32 v{A2}, v{A1}, v{LR}",
           f"v_fmac_f32 v{A2}, v{PA+1}, v{LI}",
           f"v_mul_f32 v{A3}, v{PA+1}, v{LR}",
           f"v_fma_f32 v{A3}, -v{A1}, v{LI}, v{A3}",
           f"v_add_f32 v{A0}, v{A0}, v{A0}",
           f"v_mul_f32 v{PC}, v{A2}, v{A0}",
           f"v_mul_f32 v{PC+1}, v{A3}, v{A0}"]
    return it


def xready():
    return [lambda a: a.wait_vm("XP"), f"buffer_store_dword v{FONE}, v{FZERO}, {srd(SWS)}, s{sXF} offen sc1"]


ARS, AET, ARW = VQ + 1, VQ + 2, VQ + 3
E0 = T + 4


def unstash(dst, src):
    return f"v_accvgpr_read_b32 v{dst}, a{src}"


def fill_u1():
    it, rest = [], []
    tmp = [T + 10 + i for i in range(4)]
    for qd in range(8):
        l = it if qd < 8 - OPT["g1_pk"] else rest
        l += gelu_plain([ACA + 4 * qd + i for i in range(4)], tmp) if l is it else gelu_packed(ACA + 4 * qd, T + 10)
        if qd & 1:
            l += pack_store(ACA + 8 * (qd >> 1), SWS, sHB, 1024 * (qd >> 1), "HS0")
    return it, rest


def stats_to_lds():
    Z = T + 8
    return [unstash(ARW, aARW), unstash(AET, aAET), unstash(ARS, aARS),
            f"v_mov_b32 v{Z}, 0", f"v_mov_b32 v{Z+1}, 0",
            f"ds_write_b32 v{ARW}, v{RSTD}",
            f"ds_write_b32 v{ARW}, v{MEAN} offset:512",
            f"ds_write_b64 v{AET}, {vr(Z,2)}"]


def fill_u2a():
    RS = RDS
    E1 = PP
    it = []
    for i0 in range(0, 16, 4):
        for i in range(i0, i0 + 4):
            it += [f"v_mul_f32 v{ACB+i}, v{ACB+i}, v{RS+(i&3)}",
                   f"v_mul_f32 v{ACB+16+i}, v{ACB+16+i}, v{RS+(i&3)}"]
        if i0 < 12:
            it.append(f"ds_read_b128 {vr(RS,4)}, v{ARS} offset:{4*i0+16}")
        for i in range(max(i0, 1), i0 + 4):
            cr, ci = (ACB, ACB + 16) if i == 1 else ((E1, E1 + 1) if i & 1 else (E0, E0 + 1))
            nx = E0 if i & 1 else E1
            it += [f"v_fma_f32 v{nx}, v{PA}, v{cr}, v{ACB+i}",
                   f"v_fma_f32 v{nx+1}, v{PA}, v{ci}, v{ACB+16+i}",
                   f"v_fma_f32 v{nx}, -v{PA+1}, v{ci}, v{nx}",
                   f"v_fmac_f32 v{nx+1}, v{PA+1}, v{cr}"]
    it.append((f"ds_write_b64 v{AET}, {vr(E0,2)} offset:2048", "E"))
    return it


def fill_u2b():
    it = []
    slots = [RDS, RDS + 2, VW, VW + 2, T + 8, T + 10, T + 12]
    for m in range(6, -1, -1):
        it.append(f"ds_read_b64 {vr(slots[m],2)}, v{AET} offset:{(7-m)*256}")
    XD, AA, ES = T + 1, X, T + 2
    it += [unstash(XD, aXD), unstash(AA, aAA), unstash(AA + 1, aAA + 1), unstash(ES, aES)]
    it.append(lambda a: a.need([vr(x, 2) for x in slots]))
    cur = slots[6]
    for m in range(5, -1, -1):
        dst = PP if m == 0 else slots[m]
        it += cfma(dst, PA16, cur, slots[m])
        cur = dst
    it += cfma(E0, PA16, PP, E0)

    def estore(a):
        a.I(f"s_cmp_lg_u32 s{sW}, 3")
        a.I("s_cbranch_scc1 L_noe")
        pos = a.pos
        a.I(f"buffer_store_dwordx2 {vr(E0,2)}, v{ES}, {srd(SE)}, 0 offen sc1", track=False)
        a.pos = pos
        a.label("L_noe")
    it.append(estore)
    for tt in range(2):
        it += [f"s_add_u32 m0, s{sAX}, {1024*tt}\ns_add_u32 s{sT0}, s{sXO}, {32768*tt}",
               (f"buffer_load_dwordx4 v{XD}, {srd(SX)}, s{sT0} offen lds", "AUX")]
    it += [f"s_add_u32 m0, s{sAX}, 2048\ns_add_u32 s{sRA}, s{sHB}, {16*KB}", (f"global_load_lds_dwordx4 {vr(AA,2)}, off", "AUX")]
    return it


def gelu_plain(regs, tmp):
    it = []
    n = len(regs)
    for r, t in zip(regs, tmp):
        it.append(f"v_mul_f32 v{t}, v{r}, v{r}")
    for r, t in zip(regs, tmp):
        it.append(f"v_fma_f32 v{t}, v{t}, v{K1}, v{K0}")
    for r, t in zip(regs, tmp):
        it.append(f"v_mul_f32 v{t}, v{t}, v{r}")
    for r, t in zip(regs, tmp):
        it.append(f"v_exp_f32 v{t}, v{t}")
    for r, t in zip(regs, tmp):
        it.append(f"v_fma_f32 v{t}, v{t}, v{IR2}, v{IR2}")
    for r, t in zip(regs, tmp):
        it.append(f"v_rcp_f32 v{t}, v{t}")
    for r, t in zip(regs, tmp):
        it.append(f"v_mul_f32 v{r}, v{r}, v{t}")
    return it


def gelu_packed(base, tmp):
    it = []
    kk = vr(K0, 2)
    ii = vr(RSTD, 2)
    for p in (0, 2):
        it.append(f"v_pk_mul_f32 {vr(tmp+p,2)}, {vr(base+p,2)}, {vr(base+p,2)}")
    for p in (0, 2):
        it.append(f"v_pk_fma_f32 {vr(tmp+p,2)}, {vr(tmp+p,2)}, {kk}, {kk} op_sel:[0,1,0] op_sel_hi:[1,1,0]")
    for p in (0, 2):
        it.append(f"v_pk_mul_f32 {vr(tmp+p,2)}, {vr(tmp+p,2)}, {vr(base+p,2)}")
    for p in range(4):
        it.append(f"v_exp_f32 v{tmp+p}, v{tmp+p}")
    for p in (0, 2):
        it.append(f"v_pk_fma_f32 {vr(tmp+p,2)}, {vr(tmp+p,2)}, {ii}, {ii} op_sel:[0,1,1] op_sel_hi:[1,1,1]")
    for p in range(4):
        it.append(f"v_rcp_f32 v{tmp+p}, v{tmp+p}")
    for p in (0, 2):
        it.append(f"v_pk_mul_f32 {vr(base+p,2)}, {vr(base+p,2)}, {vr(tmp+p,2)}")
    return it


_gp, _gk = gelu_plain, gelu_packed
gelu_plain = lambda regs, tmp: [] if OPT["x_abl"] & 1 else _gp(regs, tmp)
gelu_packed = lambda base, tmp: ["v_nop"] if OPT["x_abl"] & 2 else _gk(base, tmp)


def pack_store(base, s, soff, off, tag):
    it = [f"v_cvt_pk_bf16_f32 v{base+n}, v{base+2*n}, v{base+2*n+1}" for n in range(4)]
    if OPT["x_nostore"] == 1:
        return it
    it.append((f"buffer_store_dwordx4 {vr(base,4)}, v{L16}, {srd(s)}, s{soff} offen offset:{off} {OPT['hsflags']}", tag))
    return it


def cfma(dst, m, x, add):
    return [f"v_fma_f32 v{dst}, v{m}, v{x}, v{add}",
            f"v_fma_f32 v{dst+1}, v{m}, v{x+1}, v{add+1}",
            f"v_fma_f32 v{dst}, -v{m+1}, v{x+1}, v{dst}",
            f"v_fmac_f32 v{dst+1}, v{m+1}, v{x}"]


def poll(a, name, val, addr, s, soff, m="vcc"):
    ld = f"buffer_load_dword v{val}, v{addr}, {srd(s)}, {soff} offen sc1"
    a.need([f"v{val}"])
    a.I(f"v_cmp_eq_u32 {m}, 0, v{val}")
    a.I(f"s_mov_b32 s{sT2}, 0")
    a.I(f"s_cmp_eq_u64 {m}, 0")
    a.I(f"s_cbranch_scc1 {name}_done")
    save, pos = list(a.vmq), a.pos
    a.label(name)
    a.I(ld, track=False)
    a.wait_vm_all()
    a.I(f"v_cmp_eq_u32 {m}, 0, v{val}")
    a.I(f"s_add_u32 s{sT2}, s{sT2}, 1")
    a.I(f"s_cmp_ge_u32 s{sT2}, {SPIN_MAX}")
    a.I(f"s_cbranch_scc1 {name}_done")
    a.I(f"s_cmp_eq_u64 {m}, 0")
    a.I(f"s_cbranch_scc0 {name}")
    a.vmq, a.pos = save, pos
    a.label(name + "_done")
    if DEBUG and not OPT["rt"]:
        CNTS.append(name)
        a.I(f"v_writelane_b32 v{STAMPV}, s{sT2}, {39+len(CNTS)}")


def xlds(c):
    return 32 * KB * (1 + (c >> 1)) + 4 * KB * (c & 1)


def xgroup(c):
    return dma4(VQ, SX, sT0, [f"s_add_u32 m0, s{sWL}, {xlds(c)}", f"s_xor_b32 s{sT0}, s{sXB}, {c<<7}"], f"x{c}")


def wgroup(n, half):
    tag = f"H{n}"
    pre = [f"s_add_u32 m0, s{sWL}, {H[n] + 4*KB*half}"]
    if n in (2, 3):
        pre += [f"s_xor_b32 s{sT0}, s{sCS}, {512*(n&1)}"]
        return dma4(VQ, SBI if half else SBR, sT0, pre, tag)
    off = 32 * 3584 * half + (128 if n >= 4 else 0)
    pre += [f"s_add_u32 s{sT0}, s{sCM1 if n&1 else sCM0}, {off}"]
    return dma4(VW, SW1B if n >= 4 else SW1, sT0, pre, tag)


def cost(it):
    if callable(it):
        return 1
    if isinstance(it, tuple):
        it = it[0]
    c = 0
    for l in it.split("\n"):
        mn = l.split()[0]
        if mn in TRANS or mn.startswith("v_mfma"):
            c += 2
        elif mn == "ds_write_b128":
            c += 6
        elif mn.startswith("ds_write_addtid"):
            c += 2
        elif mn.startswith("ds_write"):
            c += 4
        elif mn == "buffer_store_dwordx4":
            c += 7
        elif mn.startswith("buffer_") or mn.startswith("global_"):
            c += 3
        else:
            c += 1
    return c


def grp(items):
    res, cur = [], []
    for it in items:
        cur.append(it)
        if not (isinstance(it, str) and it.startswith("s_")):
            res.append(cur)
            cur = []
    return res


def spread(main, plans):
    load = [sum(map(cost, g)) for g in main]
    gaps = [[] for _ in main]
    for items, g0, g1, *uni in plans:
        if not items:
            continue
        if uni:
            for j, grp in enumerate(items):
                i = g0 + (j * (g1 - g0)) // len(items)
                gaps[i] += grp
                load[i] += sum(map(cost, grp))
            continue
        tot = sum(load[g0:g1]) + sum(map(cost, items))
        acc, j = 0, 0
        for i in range(g0, g1):
            acc += load[i]
            target = tot * (i - g0 + 1) / (g1 - g0)
            while j < len(items) and (acc + cost(items[j]) / 2 <= target or i == g1 - 1):
                gaps[i].append(items[j])
                acc += cost(items[j])
                load[i] += cost(items[j])
                j += 1
    return [m + g for m, g in zip(main, gaps)]


NEGM, IDM, CD = ACB, ACB + 4, ACB + 16


def unpack(i):
    return [f"v_mfma_f32_4x4x4_16b_bf16 {vr(CD+4*q,4)}, {vr(IDM,2)}, {vr(X+8*i+2*q,2)}, {vr(NEGM,4)}" for q in range(4)]


def repack(i):
    return [f"v_cvt_pk_bf16_f32 v{X+8*i+n}, v{CD+2*n}, v{CD+2*n+1}" for n in range(8)]


def phase1(a, kname):
    I = a.I
    load_kernargs(a)
    TA, TB, TC, TD = T + 1, T + 2, ACB + 31, T + 4
    SG, PI = T + 8, T + 9
    RR = ACA
    I(f"v_lshrrev_b32 v{TA}, 6, v0")
    I(f"v_and_b32 v{LN}, 63, v0")
    I(f"v_readfirstlane_b32 s{sW}, v{TA}")
    I(f"s_getpc_b64 s[{SR}:{SR+1}]")
    a.label("L_pc")
    I(f"s_and_b32 s{sT0}, s2, 0xf8")
    I(f"v_lshrrev_b32 v{TB}, 5, v0")
    I(f"v_add_lshl_u32 v{RR+8}, s{sT0}, v{TB}, 7")
    I(f"v_mov_b32 v{RR+9}, 0")
    I(f"v_min_u32 v{RR+8}, L_end-L_pc, v{RR+8}")
    I(f"v_lshl_add_u64 {vr(RR+8,2)}, {vr(RR+8,2)}, 0, s[{SR}:{SR+1}]")
    I(f"global_load_dword v{RR+10}, {vr(RR+8,2)}, off", track=False)
    I(f"s_bfe_u32 s{sT1}, s2, 0x20003")
    I(f"s_lshr_b32 s{sT0}, s2, 5")
    I(f"s_and_b32 s{sR}, s2, 3")
    I(f"s_lshl2_add_u32 s{sR}, s{sR}, s{sT1}")
    I(f"s_lshl1_add_u32 s{sROT}, s{sT1}, s{sT0}")
    I(f"s_and_b32 s{sROT}, s{sROT}, {OPT['rotmask']}")
    I(f"s_and_b32 s{sJ}, s2, 4")
    I(f"s_lshl1_add_u32 s{sJ}, s{sJ}, s{sT0}")
    I(f"s_lshl2_add_u32 s{sHB}, s{sR}, s{sW}")
    I(f"s_lshl_b32 s{sXB}, s{sHB}, 8")
    I(f"s_or_b32 s{sXB}, s{sXB}, s{sROT}")
    I(f"s_lshl_b32 s{sXB}, s{sXB}, 7")
    I(f"s_lshl_b32 s{sWL}, s{sW}, 13")
    I(f"v_lshrrev_b32 v{TC}, 4, v{LN}")
    I(f"v_xor_b32 v{TC}, v{LN}, v{TC}")
    I(f"v_and_b32 v{TC}, 7, v{TC}")
    I(f"v_lshlrev_b32 v{TC}, 4, v{TC}")
    I(f"v_bfe_u32 v{TD}, v{LN}, 3, 2")
    I(f"v_lshl_or_b32 v{TC}, v{TD}, 10, v{TC}")
    I(f"v_lshrrev_b32 v{HH}, 5, v{LN}")
    I(f"v_lshl_or_b32 v{VQ}, v{HH}, 14, v{TC}")
    I(f"v_xor_b32 v{VQ+1}, 64, v{VQ}")
    I(f"v_add_u32 v{VQ+2}, {2*3072}, v{VQ}")
    I(f"v_add_u32 v{VQ+3}, {3*3072}, v{VQ+1}")
    I(f"v_add_u32 v{VQ+1}, 3072, v{VQ+1}")
    I(f"s_mov_b32 s{SX+2}, {2048*1024}")
    I(f"s_mov_b32 s{SX+3}, 0x20000")
    x0 = xgroup(0)
    a.run(x0[:2])
    I(f"s_lshl2_add_u32 s{sT1}, s2, s{sW}")
    I(f"s_xor_b32 s{sT1}, s{sT1}, 3")
    I(f"s_and_b32 s{sONE}, s{sT1}, 0x1f")
    a.wait_lg_all()
    I(stamp("start"))
    I(f"s_mov_b64 s[{SX}:{SX+1}], {sp(pX)}")
    I(f"s_cmp_eq_u32 s{sONE}, 0")
    I("s_cbranch_scc1 L_init")
    a.label("L_initdone")
    a.vmq = []
    a.run(x0[2:])
    I(stamp("x0 issued"))
    if OPT["x_w0"]:
        a.raw("    s_waitcnt vmcnt(0)")
        I(stamp("x0 alone"))
    for c in range(1, OPT["x_first"]):
        a.run(xgroup(c))
    I(f"v_and_b32 v{RHO}, 31, v{LN}")
    I(f"v_lshlrev_b32 v{L16}, 4, v{LN}")
    I(f"s_lshr_b32 s{sG}, s{sJ}, 2")
    I(f"s_and_b32 s{sJJ}, s{sJ}, 3")
    I(f"s_mul_i32 s{sUB}, s{sG}, 7")
    I(f"s_lshl1_add_u32 s{sUB}, s{sJJ}, s{sUB}")
    I(f"s_lshl_b32 s{sUB}, s{sUB}, 7")
    mk_srd(a, SWS, pWS, WS_END)
    I(f"s_lshl2_add_u32 s{sT0}, s2, s{sW}")
    I(f"s_lshl_b32 s{sT0}, s{sT0}, 11")
    I(f"s_xor_b32 s{sT0}, s{sT0}, {XCH + 4*8192}")
    for k in range(4):
        I(f"v_accvgpr_write_b32 a{188+k}, -1")
    xp = [(f"buffer_store_dwordx4 {ar(188,4)}, v{L16}, {srd(SWS)}, s{sT0 if OPT['xp_at'] < 0 else sXS} offen offset:{1024*k} sc1", "XP") for k in range(2)]
    if OPT["xp_at"] < 0:
        a.run(xp)
    sBK = sRS
    SCH = dict((e.split(":")[0], [int(v) for v in e.split(":")[1:]]) for e in OPT["sch"].split(","))
    early = "R" not in SCH
    RSLOT = H[0] if early else xlds(6)
    I(f"s_lshl1_add_u32 s{sBK}, s2, s{sW}")
    I(f"s_cmp_lt_u32 s{sBK}, 448")
    I(f"s_cselect_b32 s{SR+2}, {1792*1024}, 0")
    I(f"s_cselect_b32 s{sBK}, s{sBK}, 0")
    I(f"s_bitcmp0_b32 s2, 0")
    I(f"s_cselect_b64 s[{SR}:{SR+1}], {sp(pCRE)}, {sp(pCIM)}")
    I(f"s_lshr_b32 s{sT0}, s2, 1")
    I(f"s_cmp_lt_u32 s{sW}, 2")
    I(f"s_cselect_b64 s[{SR}:{SR+1}], {sp(pW2)}, s[{SR}:{SR+1}]")
    I(f"s_cselect_b32 s{SR+2}, s{SR+2}, {512*1024}")
    I(f"s_cselect_b32 s{sBK}, s{sBK}, s{sT0}")
    I(f"s_mov_b32 s{SR+3}, 0x20000")
    I(f"s_lshr_b32 s{sT0}, s{sBK}, 3")
    I(f"s_lshl_b32 s{sT0}, s{sT0}, 8")
    I(f"s_and_b32 s{sT1}, s{sBK}, 7")
    I(f"s_or_b32 s{sT0}, s{sT0}, s{sT1}")
    I(f"s_lshl_b32 s{sINI}, s{sT0}, 7")
    rl = dma4(VQ, SR, sINI, [f"s_add_u32 m0, s{sWL}, {RSLOT}"], "R")
    I(f"s_cmp_eq_u32 s{sW}, 3")
    I("s_cbranch_scc1 L_role3")
    snap = list(a.vmq)
    if early:
        for it in rl:
            I(it, track=False)
    I("s_branch L_rolejoin")
    a.label("L_init")
    mk_srd(a, SWS, pWS, WS_END)
    I(f"v_lshlrev_b32 v{L16}, 4, v{LN}")
    for k in range(4):
        I(f"v_mov_b32 v{RR+k}, -1")
        I(f"v_mov_b32 v{RR+4+k}, 0")
    I(f"s_lshl_b32 s{sT1}, s2, 8")
    I(f"s_add_u32 s{sT1}, s{sT1}, {EOFF}")
    for k in range(2):
        I(f"buffer_store_dwordx4 {vr(RR,4)}, v{L16}, {srd(SWS)}, s{sT1} offen offset:{1024*k} sc1")
    I(f"s_lshl_b32 s{sT1}, s2, 9")
    I(f"s_add_u32 s{sT1}, s{sT1}, {HFLAG}")
    for k in range(4):
        I(f"buffer_store_dwordx4 {vr(RR+4,4)}, v{L16}, {srd(SWS)}, s{sT1} offen offset:{1024*k} sc1")
    I("s_branch L_initdone")
    a.vmq = snap
    a.label("L_role3")
    I(f"s_mov_b32 s{SR+2}, 0")
    I(f"s_lshl4_add_u32 s{sT0}, s{sJ}, s{sR}")
    I(f"s_lshl_b32 s{sT0}, s{sT0}, 11")
    I(f"v_and_b32 v{TA}, 15, v{LN}")
    I(f"v_lshl_add_u32 v{TA}, v{TA}, 7, s{sT0}")
    I(f"global_load_dword v{RR+12}, v{TA}, {sp(pBRE)}", track=False)
    I(f"global_load_dword v{RR+13}, v{TA}, {sp(pBIM)}", track=False)
    I(f"s_bitcmp0_b32 s2, 3")
    I(f"s_cselect_b64 s[{SR}:{SR+1}], {sp(pDSK)}, {sp(pB2)}")
    I(f"v_and_b32 v{TA}, 0x380, v{L16}")
    I(f"global_load_dword v{RR+14}, v{TA}, s[{SR}:{SR+1}]", tag="R" if early else None, track=False)
    a.label("L_rolejoin")
    VT = T + 5
    I(f"s_mul_i32 s{sT0}, s{sHB}, {8*3584}")
    I(f"s_add_u32 s{sT0}, s{sT0}, s{sUB}")
    I(f"s_cmp_lt_u32 s{sJJ}, 3")
    I(f"s_cselect_b32 s{sT1}, 128, 0")
    I(f"v_and_b32 v{TA}, 7, v{LN}")
    I(f"v_mul_u32_u24 v{TA}, 3584, v{TA}")
    I(f"v_mul_u32_u24 v{TB}, s{sT1}, v{HH}")
    I(f"v_add3_u32 v{VT}, v{TA}, v{TB}, s{sT0}")
    if "T1" not in SCH:
        I(f"global_load_dword v{RR+11}, v{VT}, {sp(pW1)}")
    I(f"v_bfe_u32 v{TB}, v{RHO}, 2, 1")
    I(f"v_and_b32 v{TA}, 3, v{RHO}")
    I(f"v_lshrrev_b32 v{TC}, 3, v{RHO}")
    I(f"v_lshl_or_b32 v{TA}, v{TC}, 2, v{TA}")
    I(f"v_lshl_or_b32 v{PI}, v{TB}, 4, v{TA}")
    I(f"s_lshl_b32 s{sT0}, s{sJ}, 6")
    I(f"v_lshl_add_u32 v{TA}, v{PI}, 1, s{sT0}")
    I(f"global_load_ushort v{PA}, v{TA}, {sp(pLRE)}")
    I(f"global_load_ushort v{PA+1}, v{TA}, {sp(pLIM)}")
    I(f"global_load_ushort v{PC}, v{TA}, {sp(pLDT)}")
    I(f"v_and_b32 v{TA}, 19, v{RHO}")
    I(f"v_lshl_or_b32 v{TA}, v{TB}, 3, v{TA}")
    I(f"v_bfe_u32 v{TC}, v{RHO}, 3, 1")
    I(f"v_lshl_or_b32 v{SG}, v{TC}, 2, v{TA}")
    I(f"v_lshl_or_b32 v{TA}, v{HH}, 5, v{SG}")
    I(f"s_add_u32 s{sT1}, s{sUB}, 128")
    I(f"s_min_u32 s{sT1}, s{sT1}, {27*128}")
    I(f"v_lshl_add_u32 v{TB}, v{TA}, 1, s{sUB}")
    I(f"v_lshl_add_u32 v{TA}, v{TA}, 1, s{sT1}")
    I(f"global_load_ushort v{BIA}, v{TB}, {sp(pB1)}")
    I(f"global_load_ushort v{BIA+2}, v{TA}, {sp(pB1)}")
    for c in range(OPT["x_first"], OPT["x_second"]):
        a.run(xgroup(c))
    I(stamp("win1 issued"))
    I(f"s_mul_i32 s{sHB}, s{sHB}, {RT_STRIDE}")
    I(f"s_mul_i32 s{sT0}, s{sG}, 11")
    I(f"s_add_u32 s{sT0}, s{sT0}, s{sJJ}")
    I(f"s_lshl_b32 s{sT0}, s{sT0}, 12")
    I(f"s_add_u32 s{sHB}, s{sHB}, s{sT0}")
    mk_srd(a, SRS, pWS, WS_END)
    I(f"s_cmp_eq_u32 s{SR+2}, 0")
    I(f"s_cselect_b32 s{SRS+2}, 0, s{SRS+2}")
    I(f"s_and_b32 s{sT1}, s{sBK}, 7")
    I(f"s_lshr_b32 s{sT0}, s{sBK}, 3")
    I(f"s_cmp_ge_u32 s{sW}, 2")
    I("s_cbranch_scc1 L_dst2")
    I(f"s_mul_i32 s{sRA}, s{sT1}, {2*176}")
    I(f"s_and_b32 s{sT2}, s{sT0}, 1")
    I(f"s_lshl1_add_u32 s{sRA}, s{sT2}, s{sRA}")
    I(f"s_lshl3_add_u32 s{sFL}, s{sT1}, s{sT2}")
    I(f"s_lshr_b32 s{sT0}, s{sT0}, 1")
    I(f"s_lshl4_add_u32 s{sFL}, s{sFL}, s{sT0}")
    I(f"s_mul_i32 s{sT1}, s{sT0}, 37")
    I(f"s_lshr_b32 s{sT1}, s{sT1}, 8")
    I(f"s_mul_i32 s{sT2}, s{sT1}, {32-7}")
    I(f"s_add_u32 s{sFL}, s{sFL}, s{sT2}")
    I(f"s_mul_i32 s{sT2}, s{sT1}, 44")
    I(f"s_add_u32 s{sRA}, s{sRA}, s{sT2}")
    I(f"s_mul_i32 s{sT1}, s{sT1}, 7")
    I(f"s_sub_u32 s{sT0}, s{sT0}, s{sT1}")
    I(f"s_lshr_b32 s{sT1}, s{sT0}, 1")
    I(f"s_and_b32 s{sT0}, s{sT0}, 1")
    I(f"s_lshl2_add_u32 s{sT0}, s{sT0}, s{sT1}")
    I(f"s_lshl2_add_u32 s{sRA}, s{sT0}, s{sRA}")
    I(f"s_movk_i32 s{sRB}, 176")
    I("s_branch L_dstjoin")
    a.label("L_dst2")
    I(f"s_lshr_b32 s{sFL}, s{sT0}, 1")
    I(f"s_lshr_b32 s{sT2}, s{sT1}, 1")
    I(f"s_lshl2_add_u32 s{sFL}, s{sFL}, s{sT2}")
    I(f"s_and_b32 s{sRA}, s2, 1")
    I(f"s_lshl1_add_u32 s{sFL}, s{sFL}, s{sRA}")
    I(f"s_and_b32 s{sRA}, s{sT0}, 1")
    I(f"s_lshl3_add_u32 s{sFL}, s{sFL}, s{sRA}")
    I(f"s_and_b32 s{sRA}, s{sT1}, 1")
    I(f"s_lshl1_add_u32 s{sFL}, s{sFL}, s{sRA}")
    I(f"s_add_u32 s{sFL}, s{sFL}, 7")
    I(f"s_mul_i32 s{sRA}, s{sT0}, 176")
    I(f"s_mul_i32 s{sT2}, s{sT2}, 44")
    I(f"s_add_u32 s{sRA}, s{sRA}, s{sT2}")
    I(f"s_and_b32 s{sT1}, s{sT1}, 1")
    I(f"s_lshl3_add_u32 s{sRA}, s{sT1}, s{sRA}")
    I(f"s_and_b32 s{sT1}, s2, 1")
    I(f"s_lshl1_add_u32 s{sRA}, s{sT1}, s{sRA}")
    I(f"s_add_u32 s{sRA}, s{sRA}, 28")
    I(f"s_movk_i32 s{sRB}, 4")
    a.label("L_dstjoin")
    I(f"s_add_u32 s{sRA}, s{sRA}, {BW//1024}")
    I(f"s_add_u32 s{sRB}, s{sRB}, s{sRA}")
    I(f"s_lshl_b32 s{sRA}, s{sRA}, 10")
    I(f"s_lshl_b32 s{sRB}, s{sRB}, 10")
    I(f"s_lshl2_add_u32 s{sFL}, s{sFL}, {BFLAG}")
    for n, ptr, size in ((SBR, pBRE, 512 * 1024), (SBI, pBIM, 512 * 1024), (SW1, pW1, 512 * 3584), (SW1B, pW1, 512 * 3584),
                         (SWS2, pWS, WS_END), (SDBG, pDBG, 256), (SOUT, pOUT, 2048 * 2048)):
        mk_srd(a, n, ptr, size)
    I(f"s_cmp_lt_u32 s{sJJ}, 3")
    I(f"s_cselect_b32 s{SW1B+2}, s{SW1B+2}, 0")
    I(f"s_cselect_b32 s{SWS2+2}, s{SWS2+2}, 0")
    I(f"s_lshl_b32 s{sT0}, s{sJ}, 12")
    I(f"s_add_u32 s{sT0}, s{sT0}, {EOFF}")
    I(f"s_add_u32 s{SE}, s{pWS}, s{sT0}")
    I(f"s_addc_u32 s{SE+1}, s{pWS+1}, 0")
    I(f"s_mov_b32 s{SE+2}, 4096")
    I(f"s_mov_b32 s{SE+3}, 0x20000")
    I(f"s_xor_b32 s{sT0}, s{sW}, s{sROT}")
    I(f"s_lshl_b32 s{sCS}, s{sJ}, 8")
    I(f"s_or_b32 s{sCS}, s{sCS}, s{sT0}")
    I(f"s_lshl_b32 s{sCS}, s{sCS}, 7")
    I(f"s_mul_i32 s{sCM0}, s{sT0}, {64*3584}")
    I(f"s_add_u32 s{sCM0}, s{sCM0}, s{sUB}")
    I(f"s_xor_b32 s{sT0}, s{sT0}, 4")
    I(f"s_mul_i32 s{sCM1}, s{sT0}, {64*3584}")
    I(f"s_add_u32 s{sCM1}, s{sCM1}, s{sUB}")
    I(f"s_lshl2_add_u32 s{sHF}, s{sR}, s{sG}")
    I(f"s_lshl4_add_u32 s{sHF}, s{sHF}, s{sW}")
    I(f"s_lshl2_add_u32 s{sHF}, s{sHF}, s{sJJ}")
    I(f"s_lshl2_add_u32 s{sHF}, s{sHF}, {HFLAG}")
    p2_index(a)
    I(f"v_lshrrev_b32 v{TA}, 3, v{LN}")
    I(f"v_and_b32 v{TC}, 0x70, v{L16}")
    I(f"v_bfe_u32 v{TB}, v{LN}, 4, 1")
    I(f"v_lshlrev_b32 v{TD}, 6, v{TB}")
    I(f"v_xor_b32 v{TC}, v{TC}, v{TD}")
    I(f"v_mul_u32_u24 v{TD}, 3584, v{TA}")
    I(f"v_add_u32 v{VW}, v{TD}, v{TC}")
    for q in range(1, 4):
        I(f"v_add_u32 v{VW+q}, {q*(8*3584-1024)}, v{VW}")
    I(f"v_bfe_u32 v{TA}, v{LN}, 2, 2")
    I(f"v_lshl_or_b32 v{TC}, v{HH}, 3, v{TA}")
    I(f"v_lshlrev_b32 v{TC}, 7, v{TC}")
    I(f"v_lshrrev_b32 v{TA}, 1, v{TA}")
    I(f"v_lshl_or_b32 v{TC}, v{TA}, 6, v{TC}")
    I(f"v_lshl_or_b32 v{TC}, v{TB}, 5, v{TC}")
    I(f"v_and_b32 v{TA}, 1, v{LN}")
    I(f"v_lshl_or_b32 v{TC}, v{TA}, 4, v{TC}")
    I(f"v_bfe_u32 v{TA}, v{LN}, 1, 1")
    I(f"v_lshl_or_b32 v{RDT}, v{TA}, 3, v{TC}")
    I(f"v_xor_b32 v{RDT+1}, 64, v{RDT}")
    I(f"v_bfe_u32 v{TA}, v{RHO}, 1, 3")
    I(f"v_xor_b32 v{TA}, v{TA}, v{HH}")
    I(f"v_lshlrev_b32 v{TA}, 4, v{TA}")
    I(f"v_lshl_or_b32 v{TA}, v{RHO}, 7, v{TA}")
    I(f"v_add_u32 v{RDS}, s{sWL}, v{TA}")
    for k in range(1, 4):
        I(f"v_xor_b32 v{RDS+k}, {32*k}, v{RDS}")
    AW = T + 10
    I(f"v_bfe_u32 v{TA}, v{LN}, 2, 2")
    I(f"v_lshl_or_b32 v{TA}, v{HH}, 4, v{TA}")
    I(f"s_add_u32 s{sT0}, s{sWL}, {RSLOT}")
    I(f"v_lshl_add_u32 v{AW}, v{TA}, 7, s{sT0}")
    I(f"v_and_b32 v{TA}, 1, v{LN}")
    I(f"v_lshl_or_b32 v{AW}, v{TA}, 5, v{AW}")
    I(f"v_bfe_u32 v{TA}, v{LN}, 3, 1")
    I(f"v_xor_b32 v{TA}, v{TA}, v{TB}")
    I(f"v_lshl_or_b32 v{AW}, v{TA}, 4, v{AW}")
    I(f"v_bfe_u32 v{TA}, v{LN}, 1, 1")
    I(f"v_lshl_or_b32 v{AW}, v{TA}, 3, v{AW}")
    for k in range(1, 4):
        I(f"v_xor_b32 v{AW+k}, {32*k}, v{AW}")
    I(f"s_cmp_lt_u32 s{sW}, 2")
    I("s_cbranch_scc1 L_awdone")
    for k in range(4):
        I(f"v_add_u32 v{AW+k}, {RSLOT}, v{RDS+k}")
    a.label("L_awdone")
    def stash(dst, src):
        I(f"v_accvgpr_write_b32 a{dst}, v{src}")
    I(f"s_lshl_b32 s{sT0}, s{sW}, 7")
    I(f"s_add_u32 s{sT0}, s{sT0}, {PARK}")
    I(f"v_lshl_add_u32 v{TA}, v{HH}, 6, s{sT0}")
    I(f"v_lshl_add_u32 v{TC}, v{PI}, 2, s{sT0}")
    stash(aARS, TA)
    stash(aARW, TC)
    I(f"s_lshl_b32 s{sT0}, s{sW}, 9")
    I(f"s_add_u32 s{sT0}, s{sT0}, {ETAB}")
    I(f"v_lshl_add_u32 v{TA}, v{LN}, 3, s{sT0}")
    stash(aAET, TA)
    I(f"s_lshl_b32 s{sT0}, s{sR}, 8")
    I(f"v_lshlrev_b32 v{TA}, 3, v{LN}")
    I(f"v_subrev_u32 v{TA}, 256, v{TA}")
    I(f"v_cmp_gt_i32 vcc, 0, v{TA}")
    I(f"v_add_u32 v{TC}, s{sT0}, v{TA}")
    I(f"v_cndmask_b32 v{TA}, v{TC}, v{TA}, vcc")
    stash(aES, TA)
    I(f"v_lshlrev_b32 v{TA}, 3, v{RHO}")
    I(f"v_lshlrev_b32 v{TC}, 8, v{HH}")
    I(f"v_sub_u32 v{TA}, v{TA}, v{TC}")
    I(f"v_add_u32 v{TA}, {EIN + 256}, v{TA}")
    stash(aEA, TA)
    I(f"s_mul_i32 s{sT0}, s{sW}, 5120")
    I(f"s_add_u32 s{sT0}, s{sT0}, {TRB}")
    I(f"v_mul_u32_u24 v{TA}, 80, v{RHO}")
    I(f"v_lshl_add_u32 v{TA}, v{HH}, 5, v{TA}")
    I(f"v_add_u32 v{TA}, s{sT0}, v{TA}")
    stash(aTW, TA)
    I(f"v_bfe_u32 v{TA}, v{LN}, 2, 2")
    I(f"v_lshl_add_u32 v{TA}, v{HH}, 4, v{TA}")
    I(f"v_mul_u32_u24 v{TC}, 80, v{TA}")
    I(f"v_and_b32 v{TA}, 1, v{LN}")
    I(f"v_lshl_add_u32 v{TC}, v{TA}, 5, v{TC}")
    I(f"v_lshl_add_u32 v{TC}, v{TB}, 4, v{TC}")
    I(f"v_bfe_u32 v{TA}, v{LN}, 1, 1")
    I(f"v_lshl_add_u32 v{TC}, v{TA}, 3, v{TC}")
    I(f"v_add_u32 v{TC}, s{sT0}, v{TC}")
    stash(aTR, TC)
    I(f"s_mul_i32 s{sAX}, s{sW}, 3072")
    I(f"s_add_u32 s{sAX}, s{sAX}, {AUX}")
    I(f"s_lshl3_add_u32 s{sXO}, s{sI2}, s{sW}")
    I(f"s_lshl_b32 s{sXO}, s{sXO}, 13")
    I(f"s_lshl_b32 s{sT0}, s{sN}, 7")
    I(f"s_add_u32 s{sXO}, s{sXO}, s{sT0}")
    P0, P2 = ACB, ACB + 2
    I(f"v_mov_b32 v{P0}, s{pB2}")
    I(f"v_mov_b32 v{P0+1}, s{pB2+1}")
    I(f"v_cmp_gt_u32 vcc, 8, v{LN}")
    I(f"v_mov_b32 v{P2}, s{pDSK}")
    I(f"v_mov_b32 v{P2+1}, s{pDSK+1}")
    I(f"v_cndmask_b32 v{P0}, v{P0}, v{P2}, vcc")
    I(f"v_cndmask_b32 v{P0+1}, v{P0+1}, v{P2+1}, vcc")
    I(f"v_and_b32 v{TA}, 0x70, v{L16}")
    I(f"v_add_u32 v{P2}, s{sT0}, v{TA}")
    I(f"v_mov_b32 v{P2+1}, 0")
    I(f"v_lshl_add_u64 {vr(P0,2)}, {vr(P2,2)}, 0, {vr(P0,2)}")
    I(f"v_lshrrev_b32 v{TC}, 3, v{LN}")
    I(f"v_lshl_or_b32 v{TA}, v{TC}, 10, v{TA}")
    stash(aAA, P0)
    stash(aAA + 1, P0 + 1)
    stash(aXD, TA)
    I(f"v_and_b32 v{FREP}, 3, v{LN}")
    I(f"v_lshlrev_b32 v{FREP}, 14, v{FREP}")
    I(f"s_and_b32 s{sT0}, s{sN}, 3")
    I(f"s_lshl4_add_u32 s{sT0}, s{sT0}, s{sR}")
    I(f"s_lshl2_add_u32 s{sT0}, s{sT0}, s{sG2}")
    I(f"s_lshl_b32 s{sT0}, s{sT0}, 8")
    I(f"s_add_u32 s{sT0}, s{sT0}, {HFLAG}")
    I(f"s_add_u32 s{sHP}, s{pWS}, s{sT0}")
    I(f"s_addc_u32 s{sHP+1}, s{pWS+1}, 0")
    I(f"s_lshl2_add_u32 s{sT0}, s2, s{sW}")
    I(f"s_lshl_b32 s{sT0}, s{sT0}, 5")
    I(f"s_add_u32 s{sT0}, s{sT0}, {XFLAG}")
    I(f"s_add_u32 s{sXP}, s{pWS}, s{sT0}")
    I(f"s_addc_u32 s{sXP+1}, s{pWS+1}, 0")
    I(f"s_xor_b32 s{sXF}, s{sT0}, 512")
    I(f"s_and_b32 s{sT0}, s{sR}, 7")
    I(f"s_lshl3_add_u32 s{sT0}, s{sT0}, s{sN}")
    I(f"s_lshl2_add_u32 s{sT0}, s{sT0}, s{sG2}")
    I(f"s_and_b32 s{sT1}, s{sW}, 1")
    I(f"s_lshl1_add_u32 s{sT0}, s{sT0}, s{sT1}")
    I(f"s_lshl_b32 s{sT0}, s{sT0}, 6")
    I(f"s_add_u32 s{sT0}, s{sT0}, {BFLAG}")
    I(f"s_add_u32 s4, s{pWS}, s{sT0}")
    I(f"s_addc_u32 s5, s{pWS+1}, 0")
    GOA, GOV = T + 8, T + 9
    I(f"v_and_b32 v{TA}, 1, v{LN}")
    I(f"v_lshlrev_b32 v{TA}, 4, v{TA}")
    I(f"v_mov_b32 v{TB}, 0x3f80")
    I(f"v_lshlrev_b32 v{TA}, v{TA}, v{TB}")
    I(f"v_bfe_u32 v{TB}, v{LN}, 1, 1")
    I(f"v_mul_lo_u32 v{IDM+1}, v{TA}, v{TB}")
    I(f"v_sub_u32 v{IDM}, v{TA}, v{IDM+1}")
    a.run([f"v_mov_b32 v{BIA+k}, 0" for k in (1, 3, 5, 6, 7, 9, 10, 11)])
    a.run([f"v_mov_b32 v{MEAN}, 0", f"v_mov_b32 v{RSTD}, 0", f"v_lshlrev_b32 v{GOA}, 2, v{RHO}",
           f"v_and_b32 v{KEEP}, 7, v{LN}", f"v_lshlrev_b32 v{KEEP}, 12, v{KEEP}",
           f"v_mov_b32 v{KEEP+2}, 1", f"v_mov_b32 v{KEEP+3}, 0"])
    I(f"s_cmp_lg_u32 s{sONE}, 0")
    I("s_cbranch_scc1 L_nogo")
    a.raw(f"    s_waitcnt vmcnt({len(a.vmq)})")
    I(f"s_lshr_b32 s{sT1}, s2, 1")
    I(f"buffer_store_dword v{KEEP+2}, v{KEEP+3}, {srd(SDBG)}, s{sT1} offen sc1", track=False)
    a.label("L_nogo")
    I(f"s_mov_b32 s{sONE}, 0x3f803f80")
    I(stamp("setup done"))
    for c in range(OPT["x_second"], 4):
        a.run(xgroup(c))

    def rpick(a):
        a.wait_vm("R")
        pos = a.pos
        I(f"s_cmp_ge_u32 s{sW}, 2")
        I("s_cbranch_scc1 L_rp2")
        for dt in range(2):
            for ph in range(2):
                for e in range(2):
                    I(f"ds_read_b64_tr_b16 {ar(8*dt+4*ph+2*e,2)}, v{AW+2*(dt^e)+ph} offset:{e*1024+ph*512}", track=False)
        I("s_branch L_rpjoin")
        a.lgq = [e for e in a.lgq if e.track]
        a.label("L_rp2")
        for k in range(4):
            I(f"ds_read_b128 {ar(4*k,4)}, v{AW+k}", track=False)
        a.pos = pos + 6
        a.label("L_rpjoin")

    rs = [lambda a: a.need([ar(0, 16)])]
    rs += [(f"buffer_store_dwordx4 {ar(4*k,4)}, v{L16}, {srd(SRS)}, s{sRB if k>=2 else sRA} offen offset:{1024*(k&1)} sc1", "RS") for k in range(4)]

    def stats(c):
        it = [lambda a: a.need([vr(X + 16 * c, 16)])]
        it += [f"v_dot2c_f32_bf16 v{MEAN}, s{sONE}, v{X+16*c+k}" for k in range(16)]
        it += [f"v_dot2c_f32_bf16 v{RSTD}, v{X+16*c+k}, v{X+16*c+k}" for k in range(16)]
        return it

    par = ssm_params()
    nw = OPT["w_loop"]
    for c in range(8):
        if c < 4:
            a.run(xgroup(c + 4))
        else:
            if c - 4 < nw:
                a.run(wgroup((c - 4) >> 1, c & 1))
            if c == OPT["go_at"]:
                I(f"buffer_load_dword v{GOV}, v{GOA}, {srd(SDBG)}, 0 offen sc1")
        if c == OPT["xp_at"]:
            a.run(xp)
        if c in (2, 6):
            for k in range(4):
                I(f"v_add_u32 v{RDS+k}, {64*KB}, v{RDS+k}")
        if c == 7:
            a.run(stats(6)[:17])
        a.wait_vm(f"x{c}")
        if c in (0, 1, 4, 7):
            I(stamp(f"x{c} landed"))
        for k in range(4):
            I(f"ds_read_b128 {vr(X+16*c+4*k,4)}, v{RDS+k} offset:{xlds(c) % (64*KB)}")
        if c == 1 and early:
            rpick(a)
        if c:
            a.run(stats(c - 1)[17 if c == 7 else 0:])
        if c == 3 and early:
            a.run(rs[:1])
        if 1 <= c <= OPT["par_n"]:
            a.run(par[(len(par) * (c - 1)) // OPT["par_n"]:(len(par) * c) // OPT["par_n"]])
    s7 = stats(7)
    a.run(s7[:20])
    I(f"v_mov_b32 v{TA}, v{MEAN}")
    a.run(s7[20:22])
    I(f"v_permlane32_swap_b32 v{TA}, v{MEAN}")
    I(f"v_add_f32 v{MEAN}, v{TA}, v{MEAN}")
    for k in range(4):
        I(f"v_mul_f32 v{NEGM+k}, {f32(-1/512)}, v{MEAN}")
    a.run(s7[22:])
    I(f"s_add_u32 s{sUB}, s{sWL}, {128*KB - H[2]}")
    I(stamp("stats done"))

    bflag = [lambda a: a.wait_vm("RS"), f"buffer_store_dword v{KEEP+2}, v{KEEP}, {srd(SRS)}, s{sFL} offen sc1"]
    bl = b_loads()
    bload = f"s_load_dwordx16 s[{sHV}:{sHV+15}], s[4:5], 0 glc"
    bpoll = [bload]
    hg = lambda n: grp(wgroup(n, 0) + wgroup(n, 1))
    events = dict(W=(hg(0) + hg(1))[4 * nw:], H2=hg(2), H3=hg(3), H4=hg(4), H5=hg(5), R=grp(rl), pick=[[rpick]],
                  RS=[rs[:2]] + grp(rs[2:]), bflag=[bflag], bpoll=[bpoll], B=bl[:OPT["b2"]], xr=[xready()],
                  xl=[[XLOAD]], xc=[[spoll("L_xr", XLOAD, 1)]], f0=[hflag(0)], hl0=[[hload(0)]],
                  T1=[[f"buffer_load_dword v{T+4}, v{VT}, {srd(SW1)}, 0 offen"]],
                  go=[[lambda a: poll(a, "L_go", GOV, GOA, SDBG, 0)]], XP=[[x] for x in xp],
                  bchk=[[spoll("L_bf", bload, 11), stamp("B flags")]])
    for name in OPT["x_drop"].split("/"):
        if name:
            events[name] = [[]]
    at = {}
    for name, pos in SCH.items():
        g0, g1 = pos[0], pos[-1] + 1
        for j, e in enumerate(events[name]):
            at.setdefault(g0 + (j * (g1 - g0)) // len(events[name]), []).extend(e)
    order = [x for x in ("R", "pick", "RS", "bflag", "bpoll", "bchk", "B") if x in SCH]
    assert all(SCH[x][-1] <= SCH[y][0] for x, y in zip(order, order[1:]))
    assert SCH["go"][0] < min(60, SCH["bflag"][0], SCH["xr"][0]) and SCH["H5"][0] > 4 * (16 - OPT["la"])
    assert SCH["H5"][-1] < 128 and SCH["H3"][-1] < min(64, SCH["bpoll"][0])
    assert early or (SCH["RS"][0] < SCH["H4"][0] and SCH["pick"][0] < 60)
    assert SCH["bchk"][0] < SCH["hl0"][0] and SCH["f0"][0] >= 128
    assert ("XP" in SCH) == (OPT["xp_at"] > 7) and SCH.get("XP", [-99])[-1] < SCH["xr"][0]
    dm = sorted(SCH[x] for x in ("W", "H2", "H3", "H4", "H5", "R") if x in SCH)
    assert all(x[-1] < y[0] for x, y in zip(dm, dm[1:]))
    P = OPT["pre_pairs"]
    assert min(at) >= -P
    for i in range(P):
        u, r = unpack(i), repack(i)
        a.run(u + at.get(i - P, []))
        if i == P - 1:
            a.run([lambda a: a.wait_vm("H0"), "s_barrier"] + frag_reads(0))
        a.run(r)
    a.run(sum((frag_reads(k) for k in range(1, OPT["la"])), []) + (unpack(P) if P < 16 else []))

    n2 = OPT["b2"]
    flat = lambda ll: [x for l in ll for x in l]
    ge = 4 * OPT["e_win"]
    assert OPT["e_win"] >= 6
    f2b = fill_u2b()
    f0 = [f"v_subrev_u32 v{RDS+k}, s{sUB}, v{RDS+k}" for k in range(4)] + fill_u0() + (par if not OPT["par_n"] else [])
    plan = [[(f0, 2, 50)], [(stats_to_lds(), 26, 56), ([f"ds_read_b128 {vr(RDS,4)}, v{ARS}"], 60, 61), (fill_u1()[0], 1, 64)], [(fill_u2a(), 1, ge), (f2b[:-6], ge, ge + OPT["e_len"]), (f2b[-6:], ge + OPT["e_len"], 64)]]
    for u in range(3):
        a.comment(f"---- GEMM unit {u} ----")
        I(stamp(f"U{u} start"))
        main = []
        LA, WP = OPT["la"], OPT["wp"]
        for d in range(16):
            n = 16 * u + d
            pre = [lambda a: a.need(sum((stage_regs(k) for k in range(WP)), []))] if n == 0 else []
            if OPT["only"] and n % 4 == 0 and d:
                pre.append(stamp(f"w{n}"))
            if n + LA < 48 and (n + LA) % 8 == 0:
                pre += [lambda a, hn=(n + LA) // 8: a.wait_vm(f"H{hn}"), "s_barrier"]
            if n == 32 + OPT["e_win"]:
                pre = [lambda a: a.wait_lg("E")] + pre + ([] if "s_barrier" in pre else ["s_barrier"])
            if n + LA == 32:
                pre += [f"v_add_u32 v{RDT}, {H[4]}, v{RDT}", f"v_add_u32 v{RDT+1}, {H[4]}, v{RDT+1}"]
            if n + LA == 40:
                pre += [f"v_subrev_u32 v{RDT}, {H[4]}, v{RDT}", f"v_subrev_u32 v{RDT+1}, {H[4]}, v{RDT+1}"]
            ms = mfmas(n)
            rd = frag_reads(n + LA) if n + LA < 48 else []
            h = len(rd) // 4
            for i in range(4):
                post = []
                if i == 3 and n < 47 and (n + 1) % WP == 0:
                    post = [lambda a, n=n: a.need(sum((stage_regs(n + 1 + k) for k in range(WP)), []))]
                main.append((pre if i == 0 else []) + ms[i] + post + rd[i * h:(i + 1) * h])
        main = [m + at.get(64 * u + i, []) for i, m in enumerate(main)]
        last = {63: fill_u1()[1]} if u == 1 else {}
        if u == 0:
            for d in range(16 - P):
                r = repack(P + d)
                for i in range(4):
                    main[4 * d + i] = main[4 * d + i] + r[2 * i:2 * i + 2]
                if P + d + 1 < 16:
                    last[4 * d + 3] = unpack(P + d + 1)
        for i, g in enumerate(spread(main, plan[u])):
            a.run(g + last.get(i, []))
    I(stamp("tail start"))
    a.run(tail(flat(bl[n2:])))
    I(stamp("tail issued"))


def merge(fl, mem):
    if not mem:
        return list(fl)
    res = []
    n, m = len(fl), len(mem)
    j = 0
    for i in range(n):
        while j < m and j * n <= i * m:
            res.append(mem[j])
            j += 1
        res.append(fl[i])
    res += mem[j:]
    return res


FREP = KEEP + 1
FONE, FZERO = KEEP + 2, KEEP + 3


sHV = SBR


def hload(stage, retry=False):
    return f"s_load_dwordx16 s[{sHV}:{sHV+15}], s[{sHP}:{sHP+1}], {64*stage}" + (" glc" if retry or OPT["hglc"] else "")


XLOAD = f"s_load_dword s{sHV}, s[{sXP}:{sXP+1}], 0 glc"


def spoll(name, load, n, empty=None):
    def f(a):
        a.I(f"s_mov_b32 s{sT2}, 0")
        a.label(name)
        a.wait_lg_all()
        for k in range(2, n - 1, 2):
            a.I(f"s_and_b64 s[{sHV}:{sHV+1}], s[{sHV}:{sHV+1}], s[{sHV+k}:{sHV+k+1}]")
        if n > 1 and n & 1:
            a.I(f"s_and_b32 s{sHV}, s{sHV}, s{sHV+n-1}")
        if empty is None:
            a.I(f"s_and_b32 s{sHV}, s{sHV}, s{sHV+(1 if n > 1 else 0)}")
        else:
            a.I(f"s_cmp_lg_u32 s{sHV}, {empty}")
        a.I(f"s_cbranch_scc1 {name}_done")
        pos = a.pos
        a.I(f"s_add_u32 s{sT2}, s{sT2}, 1")
        a.I(f"s_cmp_ge_u32 s{sT2}, {SPIN_MAX}")
        a.I(f"s_cbranch_scc1 {name}_done")
        a.I(load)
        a.I(f"s_branch {name}")
        a.lgq, a.pos = [], pos
        a.label(name + "_done")
        if DEBUG and not OPT["rt"]:
            CNTS.append(name)
            a.I(f"v_writelane_b32 v{STAMPV}, s{sT2}, {39+len(CNTS)}")
    return f


CNTS = []


def hpoll(stage):
    return spoll(f"L_hf{stage}", hload(stage, True), 16)


def hflag(stage):
    return [lambda a: a.wait_vm(f"HS{stage}"),
            f"buffer_store_dword v{FONE}, v{FREP}, {srd(SWS)}, s{sHF} offen offset:{64*stage} sc1"]


def cfma_pk(dst, m, x, add):
    return [f"v_pk_fma_f32 {vr(dst,2)}, {vr(x,2)}, {vr(m,2)}, {vr(add,2)} op_sel:[0,0,0] op_sel_hi:[1,0,1]",
            f"v_pk_fma_f32 {vr(dst,2)}, {vr(x,2)}, {vr(m,2)}, {vr(dst,2)} op_sel:[1,1,0] op_sel_hi:[0,1,1] neg_lo:[0,1,0]"]


AUX = 112 * KB
sAX = pOUT
sXO = pOUT + 1


def tail(brest):
    RE, IM, FR = X, X + 8, X + 16
    EL = [X + 32 + 2 * n for n in range(8)]
    EA, EB, TW, TR, ER, EW, EQ = X + 48, X + 49, X + 50, X + 51, X + 52, X + 53, X + 56
    eloads = [f"buffer_load_dwordx4 {vr(EQ,4)}, v{EA}, {srd(SE)}, 0 offen sc1"]
    al = a_loads()
    na, qs, qe = min(2 * OPT["pro"], OPT["pro_q"]), OPT["scan_q"], OPT["eload_q"]
    a0, a1 = [int(v) for v in OPT["a_q"].split("/")]

    def quad(qd):
        mem = []
        if qd == 0:
            mem += brest
        if qd == a0:
            mem += [hpoll(0), stamp("H flags")]
        if a0 <= qd < a1:
            for f in range((na * (qd - a0)) // (a1 - a0), (na * (qd - a0 + 1)) // (a1 - a0)):
                mem += al[f]
        if qd == qe:
            mem += eloads
        r = merge(gelu_packed(ACA + 4 * qd, T + 8), mem)
        if qd & 1:
            r += pack_store(ACA + 8 * (qd >> 1), SWS2, sRA, 1024 * (qd >> 1), "HS2")
        return r + [stamp(f"q{qd}")]

    tl = [f"s_lshl2_add_u32 s{sT0}, s{sW}, s{sR}", f"s_lshl_b32 s{sT0}, s{sT0}, 8", f"s_sub_u32 s{sT0}, s{sT0}, 4096",
          f"v_add_u32 v{EA}, s{sT0}, v{L16}", f"s_lshl_b32 s{sT0}, s{sW}, 10", f"s_add_u32 s{sT0}, s{sT0}, {EIN}",
          f"v_add_u32 v{EW}, s{sT0}, v{L16}", unstash(ER, aEA), unstash(TW, aTW), unstash(TR, aTR)]
    for qd in range(qs):
        tl += quad(qd)

    def epoll(a):
        a.need([vr(EQ, 4)])
        a.I(f"s_mov_b32 s{sT2}, 0")
        a.label("L_epoll")
        a.I(f"v_max3_u32 v{EB}, v{EQ}, v{EQ+1}, v{EQ+2}")
        a.I(f"v_max_u32 v{EB}, v{EB}, v{EQ+3}")
        a.I(f"v_cmp_eq_u32 vcc, -1, v{EB}")
        a.I("s_cmp_eq_u64 vcc, 0")
        a.I("s_cbranch_scc1 L_epoll_done")
        save, pos = list(a.vmq), a.pos
        a.I(f"s_add_u32 s{sT2}, s{sT2}, 1")
        a.I(f"s_cmp_ge_u32 s{sT2}, {SPIN_MAX}")
        a.I("s_cbranch_scc1 L_epoll_done")
        a.I(eloads[0], track=False)
        a.wait_vm_all()
        a.I("s_branch L_epoll")
        a.vmq, a.pos = save, pos
        a.label("L_epoll_done")
        if DEBUG and not OPT["rt"]:
            CNTS.append("epoll")
            a.I(f"v_writelane_b32 v{STAMPV}, s{sT2}, {39+len(CNTS)}")
    tl += [epoll, stamp("E seen"), (f"ds_write_b128 v{EW}, {vr(EQ,4)}", "EW")]
    ureg = lambda i: X + 64 + 2 * i
    for i in range(16):
        h, cc = i & 1, vr(PC, 2)
        if i == 6:
            tl += [lambda a: a.wait_lg("EW"), "s_barrier"]
            tl += [f"ds_read_b64 {vr(EL[n],2)}, v{ER} offset:{(14-2*n)*256}" for n in range(7, -1, -1)]
        tl += [f"v_pk_mul_f32 {vr(ureg(i),2)}, {cc}, {vr(ACB+i-h,2)} op_sel:[0,{h}] op_sel_hi:[1,{h}]",
               f"v_pk_fma_f32 {vr(ureg(i),2)}, {cc}, {vr(ACB+16+i-h,2)}, {vr(ureg(i),2)} op_sel:[1,{h},0] op_sel_hi:[0,{h},1] neg_lo:[1,0,0]"]
    tl.append(lambda a: a.need([vr(r, 2) for r in EL]))
    cur = EL[7]
    for n in range(6, -1, -1):
        tl += cfma_pk(EL[n], PA256, cur, EL[n])
        cur = EL[n]
    S, S0, S1 = EL[0], EL[1], EL[2]
    tl += [f"v_pk_mul_f32 {vr(S0,2)}, {vr(S,2)}, {vr(PAH,2)} op_sel:[0,0] op_sel_hi:[1,0]",
           cfma_pk(S0, PAH, S, S0)[1],
           f"v_mov_b32 v{S1}, v{S0}",
           f"v_mov_b32 v{S1+1}, v{S0+1}",
           f"s_add_u32 s{sRB}, s{sHB}, {28*KB}",
           f"v_permlane32_swap_b32 v{S0}, v{S1}",
           f"v_permlane32_swap_b32 v{S0+1}, v{S1+1}",
           f"v_pk_add_f32 {vr(S0,2)}, {vr(S0,2)}, {vr(S1,2)}"]
    tl += cfma_pk(PP, PAS, S0, PP)
    tl += [f"v_pk_mul_f32 {vr(S1,2)}, {vr(PP,2)}, {vr(PC,2)} op_sel:[0,0] op_sel_hi:[1,0]", cfma_pk(S1, PC, PP, S1)[1]]
    prev = S1
    for i in range(16):
        u = ureg(i)
        nb = 2 * OPT["pro"] - na
        for f in range(na + (nb * i) // 16, na + (nb * (i + 1)) // 16):
            tl += al[f]
        tl += cfma_pk(u, PA, prev, u)
        if i & 1:
            tl += [f"v_cvt_pk_bf16_f32 v{RE+(i>>1)}, v{prev}, v{u}",
                   f"v_cvt_pk_bf16_f32 v{IM+(i>>1)}, -v{prev+1}, -v{u+1}"]
        prev = u
        if i in (7, 15):
            hf = i >> 3
            for p, R in enumerate((RE, IM)):
                tl.append(f"ds_write_b128 v{TW}, {vr(R+4*hf,4)} offset:{p*2560+16*hf}")
    for p in range(2):
        for k in range(2):
            for e in range(2):
                tl.append(f"ds_read_b64_tr_b16 {vr(FR+8*p+4*k+2*e,2)}, v{TR} offset:{p*2560+(8*e+4*k)*80}")
    tl.append(stamp("scan done"))
    if OPT["flag2_at"] < 0:
        assert qs == 8
        tl += hflag(2)
    hs = [lambda a: a.need([vr(FR, 16)])]
    hs += [(f"buffer_store_dwordx4 {vr(FR+4*f,4)}, v{L16}, {srd(SWS)}, s{sRB} offen offset:{1024*f} {OPT['hsflags']}", "HS1") for f in range(4)]
    rest = sum((quad(qd) for qd in range(qs, 8)), [])
    cut = min(12, len(rest))
    tl += rest[:cut] + merge(rest[cut:cut + 24], hs) + rest[cut + 24:]
    return tl


RED, RED_SRC, RED_DT, RED_TT = 40 * KB, 8448, 4224, 4 * 8448


def wreg(s, e, dt):
    return ar(16 * s + 8 * e + 4 * dt, 4)


def hreg(f):
    return ar(176 + 4 * ((f + 4) % 20), 4)


def steps():
    l = [(L, s) for s in range(4) for L in range(4)]
    s1, s2 = [7, 8, 9, 10], [4, 5, 6]
    if OPT["scan_q"] == 8:
        s1, s2 = s2, s1
    if OPT["ord"] == 0:
        l += [(L, s) for L in range(4) for s in s1 + s2]
    else:
        l += [(L, s) for s in s1 for L in range(2)] + [(L, s) for L in range(2) for s in s2]
        l += [(L, s) for L in range(2, 4) for s in s1 + s2]
    return l


def p2_index(a):
    I = a.I
    I(f"s_and_b32 s{sN}, s{sJ}, 7")
    I(f"s_lshr_b32 s{sT1}, s{sJ}, 3")
    I(f"s_lshl1_add_u32 s{sI2}, s{sR}, s{sT1}")
    I(f"s_lshr_b32 s{sT0}, s{sW}, 1")
    I(f"s_lshl1_add_u32 s{sG2}, s{sT1}, s{sT0}")
    I(f"s_mul_i32 s{sT0}, s{sG2}, {G_STRIDE//2048}")
    I(f"s_and_b32 s{sT1}, s{sW}, 1")
    I(f"s_add_u32 s{sT0}, s{sT0}, s{sT1}")
    I(f"s_lshl_b32 s{sT0}, s{sT0}, 11")
    I(f"s_mul_i32 s{sA1}, s{sI2}, {2*RT_STRIDE}")
    I(f"s_add_u32 s{sA1}, s{sA1}, s{sT0}")
    I(f"s_xor_b32 s{sA0}, s{sI2}, 1")
    I(f"s_mul_i32 s{sA0}, s{sA0}, {2*RT_STRIDE}")
    I(f"s_add_u32 s{sA0}, s{sA0}, s{sT0}")
    I(f"s_mul_i32 s{sB0}, s{sN}, {2*RT_STRIDE}")
    I(f"s_add_u32 s{sB0}, s{sB0}, s{sT0}")
    I(f"s_add_u32 s{sB0}, s{sB0}, {BW}")
    I(f"s_lshl2_add_u32 s{sXI}, s2, s{sW}")
    I(f"s_lshl_b32 s{sXI}, s{sXI}, 11")
    I(f"s_or_b32 s{sXI}, s{sXI}, {XCH}")
    I(f"s_xor_b32 s{sXS}, s{sXI}, {4*8192}")


def b_loads():
    l = []
    for s in range(11):
        for e in range(2):
            for t in range(2):
                it = []
                if e == 0:
                    it += [f"s_add_u32 s{sP0+t}, s{sB0}, {s*4096 + t*RT_STRIDE}"]
                it.append(f"buffer_load_dwordx4 {wreg(s,e,t)}, v{L16}, {srd(SWS)}, s{sP0+t} offen offset:{e*1024} sc1")
                l.append(it)
    return l


def a_loads():
    l = []
    for n, (L, s) in enumerate(steps()):
        for e in range(2):
            it = []
            if e == 0:
                it += [f"s_add_u32 s{sP0}, s{sA1 if L >= 2 else sA0}, {s*4096 + (L&1)*RT_STRIDE}"]
            it.append(f"buffer_load_dwordx4 {hreg(2*n+e)}, v{L16}, {srd(SWS)}, s{sP0} offen offset:{e*1024} {OPT['aflags']}")
            l.append(it)
    return l


def phase2(a):
    I = a.I
    al = a_loads()
    st = steps()
    OA, RA, A1, A2, TA = 192, 193, 194, 195, 196
    DK, BB, DF, BF = 198, 200, 208, 212
    XIN, XV, MN, RS, BASE = 128, 144, 152, 156, 160
    prep = [lambda a: a.wait_vm("AUX"),
            f"v_lshl_add_u32 v{A1}, v{LN}, 3, s{sAX}",
            f"v_lshrrev_b32 v{TA}, 4, v{LN}",
            f"s_and_b32 s{sG}, s{sI2}, 1",
            f"s_lshl3_add_u32 s{sG}, s{sG}, s{sW}",
            f"s_lshl_b32 s{sG}, s{sG}, 5",
            f"v_lshl_add_u32 v{A2}, v{TA}, 2, s{sG}"]
    for n in range(4):
        o = PARK + 128 * (n >> 1) + 16 * (n & 1)
        prep += [f"ds_read_b64 {vr(XV+2*n,2)}, v{A1} offset:{512*n}",
                 f"ds_read_b32 v{RS+n}, v{A2} offset:{o}",
                 f"ds_read_b32 v{MN+n}, v{A2} offset:{o+512}"]
    prep += [f"v_and_b32 v{OA}, 15, v{LN}",
             f"v_lshl_add_u32 v{A1}, v{OA}, 3, s{sAX}",
             f"ds_read_b64 {vr(DK,2)}, v{A1} offset:2048",
             f"ds_read_b64 {vr(BB,2)}, v{A1} offset:{2048+128}",
             f"v_and_b32 v{RA}, 3, v{LN}",
             f"v_lshlrev_b32 v{RA}, 5, v{RA}",
             f"v_bfe_u32 v{A2}, v{LN}, 2, 1",
             f"v_lshl_or_b32 v{RA}, v{A2}, 4, v{RA}",
             f"v_lshl_or_b32 v{RA}, v{TA}, 8, v{RA}",
             f"v_bfe_u32 v{A2}, v{LN}, 3, 1",
             f"v_mul_u32_u24 v{A2}, {RED_DT}, v{A2}",
             f"s_and_b32 s{sG}, s{sW}, 1",
             f"s_lshr_b32 s{sJJ}, s{sW}, 1",
             f"s_lshl4_add_u32 s{sG}, s{sG}, s{sJJ}",
             f"s_lshl_b32 s{sG}, s{sG}, 7",
             f"s_add_u32 s{sG}, s{sG}, {RED}",
             f"v_add3_u32 v{RA}, v{RA}, v{A2}, s{sG}",
             f"v_lshlrev_b32 v{OA}, 4, v{OA}",
             f"v_lshl_or_b32 v{OA}, v{TA}, 11, v{OA}",
             f"s_lshl_b32 s{sXO}, s{sXO}, 1",
             f"s_mul_i32 s{sG}, s{sW}, {RED_SRC}"]
    prep2 = [lambda a: a.need([vr(DK, 4), vr(XV, 16)])]
    for h in range(2):
        prep2 += [f"v_lshlrev_b32 v{DF+2*h}, 16, v{DK+h}", f"v_and_b32 v{DF+2*h+1}, 0xffff0000, v{DK+h}",
                  f"v_lshlrev_b32 v{BF+2*h}, 16, v{BB+h}", f"v_and_b32 v{BF+2*h+1}, 0xffff0000, v{BB+h}"]
    for n in range(4):
        for c in range(4):
            b = BASE + 4 * n + c
            src = XV + 2 * n + (c >> 1)
            prep2 += [f"v_lshlrev_b32 v{b}, 16, v{src}" if c % 2 == 0 else f"v_and_b32 v{b}, 0xffff0000, v{src}",
                      f"v_sub_f32 v{TA}, v{b}, v{MN+n}",
                      f"v_mul_f32 v{TA}, v{TA}, v{RS+n}",
                      f"v_add_f32 v{b}, v{b}, v{BF+c}",
                      f"v_fmac_f32 v{b}, v{TA}, v{DF+c}"]

    def add4(x, y, packed):
        if packed:
            return [f"v_pk_add_f32 {vr(x+h,2)}, {vr(x+h,2)}, {vr(y+h,2)}" for h in (0, 2)]
        return [f"v_add_f32 v{x+c}, v{x+c}, v{y+c}" for c in range(4)]

    def reduce(L, packed):
        acc, tt = 32 * L, L & 1
        w = [f"s_add_u32 m0, s{sG}, {RED_TT*tt}"]
        for dt in range(2):
            for i in range(16):
                w.append((f"ds_write_addtid_b32 v{acc+16*dt+i} offset:{RED+dt*RED_DT+i*256}", "RW"))
        r = [lambda a: a.wait_lg("RW"), "s_barrier"]
        for it in range(2):
            for q in range(4):
                r.append(f"ds_read_b128 {vr(acc+16*it+4*q,4)}, v{RA} offset:{RED_TT*tt+q*RED_SRC+it*1024}")
        e = []
        for it in range(2):
            p = acc + 16 * it
            e.append(lambda a, p=p: a.need([vr(p, 16)]))
            if L < 2:
                e += add4(p, p + 4, packed) + add4(p + 8, p + 12, packed) + add4(p, p + 8, packed)
                e += [f"v_cvt_pk_bf16_f32 v{acc+4+2*it+h}, v{p+2*h}, v{p+2*h+1}" for h in range(2)]
                if it and not OPT["x_abl"] & 8:
                    e.append(f"buffer_store_dwordx4 {vr(acc+4,4)}, v{L16}, {srd(SWS)}, s{sXS} offen offset:{1024*tt} sc1")
            else:
                b = BASE + 8 * tt + 4 * it
                e += add4(p, p + 4, packed) + add4(p + 8, p + 12, packed) + add4(b, p, packed) + add4(b, p + 8, packed)
        return w, r, e

    def xin(tt):
        if OPT["x_abl"] & 8:
            return [f"v_mov_b32 v{XIN+4*tt+k}, 0" for k in range(4)]
        return [f"buffer_load_dwordx4 {vr(XIN+4*tt,4)}, v{L16}, {srd(SWS)}, s{sXI} offen offset:{1024*tt} sc1"]

    def xcheck(tt):
        def f(a):
            x, name = XIN + 4 * tt, f"L_xc{tt}"
            a.need([vr(x, 4)])
            a.I(f"s_mov_b32 s{sT2}, 0")
            a.label(name)
            a.I(f"v_max3_u32 v{TA}, v{x}, v{x+1}, v{x+2}")
            a.I(f"v_max_u32 v{TA}, v{TA}, v{x+3}")
            a.I(f"v_cmp_eq_u32 vcc, -1, v{TA}")
            a.I(f"s_cmp_eq_u64 vcc, 0")
            a.I(f"s_cbranch_scc1 {name}_done")
            save, pos = list(a.vmq), a.pos
            a.I(f"s_add_u32 s{sT2}, s{sT2}, 1")
            a.I(f"s_cmp_ge_u32 s{sT2}, {SPIN_MAX}")
            a.I(f"s_cbranch_scc1 {name}_done")
            for l in xin(tt):
                a.I(l, track=False)
            a.wait_vm_all()
            a.I(f"s_branch {name}")
            a.vmq, a.pos = save, pos
            a.label(name + "_done")
            if DEBUG and not OPT["rt"]:
                CNTS.append(name)
                a.I(f"v_writelane_b32 v{STAMPV}, s{sT2}, {39+len(CNTS)}")
        return f

    def final(tt, packed=True):
        e = [xcheck(tt)]
        for it in range(2):
            b = BASE + 8 * tt + 4 * it
            x, u = XIN + 4 * tt + 2 * it, XIN + 8
            for h in range(2):
                e += [f"v_lshlrev_b32 v{u+2*h}, 16, v{x+h}", f"v_and_b32 v{u+2*h+1}, 0xffff0000, v{x+h}"]
            e += [f"s_add_u32 s{sJJ}, s{sXO}, {(32*tt+4*it)*2048}"] + add4(b, u, packed)
            e.append(f"buffer_store_dwordx4 {vr(b,4)}, v{OA}, {srd(SOUT)}, s{sJJ} offen {OPT['outflags']}")
        return e

    first = {1: min(n for n, (L, s) in enumerate(st) if s >= 7), 2: min(n for n, (L, s) in enumerate(st) if 4 <= s < 7)}
    done = [max(n for n, (L, s) in enumerate(st) if L == q) + 1 for q in range(4)]
    gate = {k: v - OPT["look"] for k, v in first.items()}
    issue, t, cnt = {}, 0, 0
    for f in range(2 * OPT["pro"], 88):
        m = f // 2
        lo = max([m - OPT["far"], 0] + [gate[k] for k in first if m >= first[k]])
        if lo > t:
            t, cnt = lo, 0
        if cnt >= OPT["rate"]:
            t, cnt = t + 1, 0
        assert t < m and OPT["far"] <= 9
        issue.setdefault(t, []).append(f)
        cnt += 1
    main = []
    for n, (L, s) in enumerate(st):
        ms = []
        for e in range(2):
            for dt in range(2):
                D = vr(32 * L + 16 * dt, 16)
                ms.append(f"v_mfma_f32_32x32x16_bf16 {D}, {hreg(2*n+e)}, {wreg(s,e,dt)}, {D if s or e else '0'}")
        regs = [hreg(2 * n), hreg(2 * n + 1), ar(16 * s, 16)]
        g0 = [lambda a, regs=regs: a.need(regs)]
        if n == 0 or OPT['only']:
            g0.append(stamp(f"k{n}"))
        g0.append(ms[0])
        g1, g2, g3 = [ms[1]], [ms[2]], [ms[3]]
        for stage in (1, 2):
            if n == gate[stage]:
                g0.append(hpoll(stage))
        for stage in (1, 2):
            lead = OPT["plead"] if gate[stage] == min(gate.values()) else min(OPT["plead"], abs(gate[2] - gate[1]))
            if n + lead == gate[stage]:
                g1.append(hload(stage))
        if n == max(gate.values()):
            g1.append(XLOAD)
        if n == max(gate.values()) + 7:
            g1.append(spoll("L_xr", XLOAD, 1))
        ld = issue.get(n, [])
        for j, f in enumerate(ld):
            (g0, g2, g1, g3)[j if len(ld) <= 2 else (0, 2, 1, 3)[j]].extend(al[f])
        if n == OPT["flag2_at"]:
            g1 += hflag(2)
        if n == OPT["flag1_at"]:
            g1 += hflag(1)
        main += [g0, g1, g2, g3]
    plans = [(prep, 2, 14), (prep2, 16, 4 * done[0])]
    for L in range(3):
        rw, rs1, rr, rs2, re = [int(v) for v in (OPT["red"].split(",") * 3)[L].split("/")]
        w, r, e = reduce(L, False)
        g = 4 * done[L] + 2
        plans += [(w, g, g + rw), (r, g + rw + rs1, g + rw + rs1 + rr)]
        g += rw + rs1 + rr + rs2
        plans.append((e, g, min(g + re, 176)))
    plans.append(([xin(0)], OPT["xin0"], OPT["xin0"] + 1, 1))
    plans.append(([xin(1)], OPT["xin1"], OPT["xin1"] + 1, 1))
    inloop = OPT["fin0"] < 176
    if inloop:
        plans.append((final(0, False), OPT["fin0"], 176))
    if OPT["x_p2"] & 1:
        txt = lambda it: (it[0] if isinstance(it, tuple) else it) if not callable(it) and not isinstance(it, list) else ""
        plans = [([it for it in p[0] if not txt(it).startswith("s_barrier")],) + tuple(p[1:]) for p in plans]
    if OPT["x_p2"] & 2:
        txt = lambda it: (it[0] if isinstance(it, tuple) else it) if not callable(it) and not isinstance(it, list) else ""
        plans = [([it for it in p[0] if not txt(it).startswith("ds_write")],) + tuple(p[1:]) for p in plans]
    for g in spread(main, plans):
        a.run(g)
    I(stamp("mfma done"))
    w, r, e = reduce(3, True)
    a.run(w + ([] if inloop else final(0)) + r)
    I(stamp("fin0"))
    a.run(e + final(1))
    I(stamp("out issued"))
    if DEBUG:
        a.wait_vm_all()
    I(stamp("out done"))


import os
HEADER = open(os.path.dirname(os.path.abspath(__file__)) + "/header.txt").read()


def kd(name):
    return f""".amdhsa_kernel {name}
  .amdhsa_next_free_vgpr 512
  .amdhsa_next_free_sgpr 102
  .amdhsa_accum_offset 256
  .amdhsa_group_segment_fixed_size 0
  .amdhsa_float_denorm_mode_32 3
  .amdhsa_kernarg_size 136
  .amdhsa_user_sgpr_count 2
  .amdhsa_user_sgpr_kernarg_segment_ptr 1
  .amdhsa_system_sgpr_workgroup_id_x 1
.end_amdhsa_kernel
"""


OPT = dict(only='', x_drop='', x_w0=0, xp_at=9, pre_pairs=2, par_n=4, rt=0, x_p2=0, x_nostore=0, spin=0, hsflags='sc1', aflags='sc1', outflags='sc1', hglc=1,
           rotmask=7, x_first=1, x_second=1, w_loop=2, go_at=5,
           sch='W:-2:5,go:6,R:7:12,H2:14:28,pick:34,RS:36:44,H3:30:46,H4:48:62,H5:64:78,XP:80:84,bflag:66,xr:104,bpoll:90,bchk:110,B:111:190,f0:150,hl0:176',
           b2=44, x_abl=0, g1_pk=0, e_win=6, e_len=14, scan_q=8, eload_q=3, a_q='1/8', flag1_at=6, flag2_at=-1,
           la=2, wp=1, pro=9, pro_q=10, far=9, rate=2, look=5, plead=4, ord=1, red='6/2/2/2/5', xin0=146, xin1=164, fin0=169)


def build():
    a = Asm()
    k1 = NAME + "_kernel"
    a.raw(HEADER.rstrip())
    a.raw("; @launch grid=(256,1,1) block=(256,1,1) lds=163840")
    a.raw('.amdgcn_target "amdgcn-amd-amdhsa--gfx950"\n.text')
    a.raw(f".globl {k1}\n.p2align 8\n.type {k1},@function\n{k1}:")
    a.I("s_cmp_ge_u32 s2, 256")
    a.I("s_cbranch_scc1 L_end")
    if DEBUG:
        a.I("s_memrealtime s[86:87]")
    phase1(a, k1)
    phase2(a)
    if OPT["spin"]:
        a.I("s_cmp_lg_u32 s2, 100\ns_cbranch_scc1 L_end")
        a.I(f"s_cmp_lg_u32 s{sW}, 3\ns_cbranch_scc1 L_end")
        a.I("s_mov_b32 s4, 0")
        a.label("L_spin")
        a.I("s_memrealtime s[6:7]")
        a.wait_lg_all()
        a.I("s_sub_u32 s6, s6, s70\ns_add_u32 s4, s4, 1\ns_cmp_ge_u32 s4, 20000\ns_cbranch_scc1 L_end\ns_cmp_lt_u32 s6, 6000\ns_cbranch_scc1 L_spin")
    stamp_flush(a, 0)
    a.label("L_end")
    a.I("s_endpgm")
    a.raw('.section .rodata,"a"\n.p2align 6')
    a.raw(kd(k1))
    print(f"instructions: {a.count}, nops {a.nops}", file=sys.stderr)
    return a.text()


if __name__ == "__main__":
    out = sys.argv[1] if len(sys.argv) > 1 else f"cdna_kernels/{NAME}.s"
    DEBUG = "-d" in sys.argv
    for arg in sys.argv[2:]:
        if "=" in arg:
            k, v = arg.split("=", 1)
            OPT[k] = type(OPT[k])(v)
    txt = build()
    if DEBUG:
        txt += "; STAMPS " + ",".join(STAMPS) + "\n; CNTS " + ",".join(CNTS) + "\n"
    open(out, "w").write(txt)
```

```python
import sys, math, struct
from asmlib import Asm, TRANS

NAME = "parallel_sum__ssm_conv_s5__mixer_channel_mlp__prompt"
KB = 1024
RT_STRIDE = 176 * KB
G_STRIDE = 44 * KB
HID = 0
BW = 64 * RT_STRIDE
EOFF = BW + 16 * RT_STRIDE
HFLAG = EOFF + 64 * KB
XFLAG = HFLAG + 64 * KB
BFLAG = XFLAG + 32 * KB
XCH = 16 * 1024 * KB
WS_END = XCH + 2048 * KB
SPIN_MAX = 4000

H = [0, 32 * KB, 64 * KB, 96 * KB, 128 * KB, 0]
PARK = H[1]
ETAB = H[1] + 1 * KB
EIN = 108 * KB
TRB = H[4]


def f32(x):
    return "0x%08x" % struct.unpack("<I", struct.pack("<f", x))[0]


pX, pLRE, pLIM, pBRE, pBIM, pCRE, pCIM, pLDT = [4 + 2 * i for i in range(8)]
pDSK, pBX, pW1, pB1, pW2, pB2, pOUT, pDBG = [20 + 2 * i for i in range(8)]
pWS = 36
SX, SBR, SBI, SW1, SR, SWS, SWS2, SW1B, SRS, SOUT, SDBG, SE = [40 + 4 * i for i in range(12)]
sW, sR, sJ, sJJ, sG, sROT, sT0, sT1, sT2, sRA, sRB, sHB, sONE, sFL = range(88, 102)
sXB = 38
sUB = 39
sWL = 3
sA1, sXF, sHP, sXP, sXI, sXS = 6, 7, 8, 10, 12, 13
sI2, sN, sB0, sA0, sG2, sP0, sP1 = 15, 16, 17, 18, 19, 24, 25
sCS, sCM0, sCM1 = 26, 27, 28
sHF = 29
sRS = 1
sINI = 0


def srd(n):
    return f"s[{n}:{n+3}]"


def sp(n):
    return f"s[{n}:{n+1}]"


def vr(n, c=1):
    return f"v{n}" if c == 1 else f"v[{n}:{n+c-1}]"


def ar(n, c=1):
    return f"a{n}" if c == 1 else f"a[{n}:{n+c-1}]"


X = 0
ACA, ACB = 128, 160
VQ, VW, RDS, RDT = 192, 196, 200, 204
L16 = 206
MEAN, RSTD, IR2, K0, K1 = 207, 208, 209, 210, 211
PA, PC, PA16, PAS, PAH, PA256, PP = 212, 214, 216, 218, 220, 222, 224
BIA = 226
KEEP = 238
T = 242
STASH = 176
aTW, aTR, aXD, aAA, aES, aEA, aARS, aARW, aAET = 176, 177, 178, 179, 181, 182, 183, 184, 185
STG = 192


DEBUG = False
STAMPV = T + 3
STAMPS = []
DBGOFF = 15 * 1024 * KB


def stamp(name):
    def f(a):
        if not DEBUG:
            return
        if OPT["only"] and name not in ("start", "out done") and name not in OPT["only"].split(","):
            return
        n = len(STAMPS)
        STAMPS.append(name)
        if name.endswith("start") and name[0] in "sk":
            a.I("s_memrealtime s[22:23]")
            a.wait_lg_all()
            a.I(f"v_writelane_b32 v{STAMPV}, s22, 62")
            a.I(f"v_writelane_b32 v{STAMPV}, s86, 61")
        a.I("s_memtime s[22:23]")
        a.wait_lg_all()
        a.I(f"v_writelane_b32 v{STAMPV}, s22, {n}")
        if OPT["rt"]:
            a.I("s_memrealtime s[22:23]")
            a.wait_lg_all()
            a.I(f"v_writelane_b32 v{STAMPV}, s22, {32+n}")
    return f


def stamp_flush(a, which):
    if not DEBUG:
        return
    a.I("s_memrealtime s[22:23]")
    a.wait_lg_all()
    a.I(f"v_writelane_b32 v{STAMPV}, s22, 63")
    a.I(f"s_lshl_b32 s22, s2, 2\ns_add_u32 s22, s22, s{sW}\ns_lshl_b32 s22, s22, 8\ns_add_u32 s22, s22, {DBGOFF + which*256*KB}")
    a.I(f"v_mbcnt_lo_u32_b32 v0, -1, 0\nv_mbcnt_hi_u32_b32 v0, -1, v0\nv_lshlrev_b32 v0, 2, v0")
    a.I(f"buffer_store_dword v{STAMPV}, v0, {srd(SWS)}, s22 offen")


def mk_srd(a, n, ptr, size):
    a.I(f"s_mov_b64 s[{n}:{n+1}], s[{ptr}:{ptr+1}]")
    a.I(f"s_mov_b32 s{n+2}, {size}")
    a.I(f"s_mov_b32 s{n+3}, 0x20000")


def load_kernargs(a):
    a.I("s_load_dwordx16 s[4:19], s[0:1], 0")
    a.I("s_load_dwordx16 s[20:35], s[0:1], 64")
    a.I("s_load_dwordx2 s[36:37], s[0:1], 128")


def dma4(vbase, s, soff, m0expr, tag):
    it = list(m0expr)
    for q in range(4):
        it.append((f"buffer_load_dwordx4 v{vbase+q}, {srd(s)}, s{soff} offen offset:{q*1024} lds", tag))
    return it


def stage_regs(n):
    return [ar(STG + 16 * (n & 3), 16)]


def frag_reads(n):
    u, d = divmod(n, 16)
    it = []
    for s in range(2):
        k = 2 * d + s
        base = STG + 16 * (n & 3) + 8 * s
        if u == 1:
            for part in range(2):
                it.append(f"ds_read_b128 {ar(base+4*part,4)}, v{RDS+(k&3)} offset:{(k>>2)*8192+part*4096}")
        else:
            kk = k if u == 0 else (k & 15)
            for t in range(2):
                for e in range(2):
                    it.append(f"ds_read_b64_tr_b16 {ar(base+4*t+2*e,2)}, v{RDT+t} offset:{kk*2048+e*512}")
    return it


def mfmas(n):
    u, d = divmod(n, 16)
    res = []
    for s in range(2):
        k = 2 * d + s
        base = STG + 16 * (n & 3) + 8 * s
        for t in range(2):
            D = vr((ACA, ACB, ACA)[u] + 16 * t, 16)
            c = D if k else "0"
            bias = f"v_mfma_f32_32x32x16_bf16 {D}, {vr(BIA+u,4)}, {vr(BIA+4+4*t,4)}, {c}"
            g = []
            if u == 1:
                g.append(f"v_mfma_f32_32x32x16_bf16 {D}, {vr(X+4*k,4)}, {ar(base+4*t,4)}, {c}")
            else:
                if u == 2 and k == 0:
                    g.append(bias)
                    c = D
                g.append(f"v_mfma_f32_32x32x16_bf16 {D}, {ar(base+4*t,4)}, {vr(X+4*k,4)}, {c}")
                if u == 0 and k == 31:
                    g.append(bias)
            res.append(g)
    return res


LN, HH, RHO = T, T + 6, T + 7


def cpow(dst, nreg_or_const, zr, zv, t0, t1):
    it = []
    n = nreg_or_const
    if n == 1:
        it += [f"v_exp_f32 v{t0}, v{zr}", f"v_fract_f32 v{t1}, v{zv}"]
    else:
        src = n if isinstance(n, str) else f32(float(n))
        it += [f"v_mul_f32 v{t0}, {src}, v{zr}", f"v_mul_f32 v{t1}, {src}, v{zv}",
               f"v_exp_f32 v{t0}, v{t0}", f"v_fract_f32 v{t1}, v{t1}"]
    it += [f"v_cos_f32 v{dst}, v{t1}", f"v_sin_f32 v{dst+1}, v{t1}",
           f"v_mul_f32 v{dst}, v{dst}, v{t0}", f"v_mul_f32 v{dst+1}, v{dst+1}, v{t0}"]
    return it


def fill_u0():
    it = []
    A0, A1, A2, A3 = [ACB + 8 + i for i in range(4)]
    EPS = f32(1e-5)
    k0 = -2.0 * math.log2(math.e) * math.sqrt(2.0 / math.pi)
    k1 = k0 * 0.044715
    it += [f"v_mov_b32 v{A0}, v{RSTD}",
           f"v_mul_f32 v{MEAN}, {f32(1/512)}, v{MEAN}",
           f"v_permlane32_swap_b32 v{A0}, v{RSTD}",
           f"v_add_f32 v{RSTD}, v{A0}, v{RSTD}",
           f"v_mul_f32 v{A0}, {f32(1/512)}, v{RSTD}",
           f"v_fma_f32 v{A0}, -v{MEAN}, v{MEAN}, v{A0}",
           f"v_max_f32 v{A0}, 0, v{A0}",
           f"v_add_f32 v{A1}, {EPS}, v{A0}",
           f"v_rsq_f32 v{RSTD}, v{A1}",
           f"v_fmac_f32 v{A0}, {EPS}, v{A1}",
           f"v_rsq_f32 v{A2}, v{A0}",
           f"v_sqrt_f32 v{IR2}, v{A0}",
           f"v_mul_f32 v{K0}, {f32(k0)}, v{A2}",
           f"v_mul_f32 v{A3}, v{A2}, v{A2}",
           f"v_mul_f32 v{A3}, {f32(0.044715)}, v{A3}",
           f"v_mul_f32 v{K1}, v{K0}, v{A3}",
           f"v_cvt_pk_bf16_f32 v{A2}, v{IR2}, v{IR2}",
           f"v_and_b32 v{A3}, 0xffff0000, v{A2}",
           f"v_sub_f32 v{A3}, v{IR2}, v{A3}",
           f"v_cvt_pk_bf16_f32 v{A2}, v{IR2}, v{A3}",
           f"v_mul_lo_u32 v{BIA+8}, v{A2}, v{HH}",
           f"v_sub_u32 v{BIA+4}, v{A2}, v{BIA+8}"]
    return it


def ssm_params():
    it = []
    A0, A1, A2, A3 = [ACB + 8 + i for i in range(4)]
    for k in range(2):
        it.append(f"v_lshl_or_b32 v{BIA+2*k}, v{BIA+2*k}, 16, v{BIA+2*k}")
    LR, LI, ZR, ZV = [ACB + 12 + i for i in range(4)]
    it += [f"v_lshlrev_b32 v{LR}, 16, v{PA}",
           f"v_lshlrev_b32 v{LI}, 16, v{PA+1}",
           f"v_lshlrev_b32 v{A0}, 16, v{PC}",
           f"v_mul_f32 v{A0}, {f32(math.log2(math.e))}, v{A0}",
           f"v_exp_f32 v{A0}, v{A0}",
           f"v_cvt_f32_u32 v{A2}, v{HH}",
           f"v_cvt_pk_bf16_f32 v{A0}, v{A0}, v{A0}",
           f"v_and_b32 v{A0}, 0xffff0000, v{A0}",
           f"v_mul_f32 v{ZR}, v{A0}, v{LR}",
           f"v_mul_f32 v{ZV}, v{A0}, v{LI}",
           f"v_mul_f32 v{ZR}, {f32(math.log2(math.e))}, v{ZR}",
           f"v_mul_f32 v{ZV}, 0.15915494, v{ZV}"]
    it += cpow(PA, 1, ZR, ZV, A0, A1)
    it += cpow(PA16, 16, ZR, ZV, A0, A1)
    it += cpow(PA256, 256, ZR, ZV, A0, A1)
    it += [f"v_mul_f32 v{A3}, {f32(128.0)}, v{A2}"]
    it += cpow(PAH, f"v{A3}", ZR, ZV, A0, A1)
    it += [f"s_lshl_b32 s{sROT}, s{sW}, 1",
           f"v_add_u32 v{A3}, s{sROT}, v{HH}",
           f"v_cvt_f32_u32 v{A3}, v{A3}",
           f"v_mul_f32 v{A3}, {f32(16.0)}, v{A3}"]
    it += cpow(PAS, f"v{A3}", ZR, ZV, A0, A1)
    it += [f"v_mul_f32 v{A0}, v{LR}, v{LR}",
           f"v_fmac_f32 v{A0}, v{LI}, v{LI}",
           f"v_rcp_f32 v{A0}, v{A0}",
           f"v_add_f32 v{A1}, -1.0, v{PA}",
           f"v_mul_f32 v{A2}, v{A1}, v{LR}",
           f"v_fmac_f32 v{A2}, v{PA+1}, v{LI}",
           f"v_mul_f32 v{A3}, v{PA+1}, v{LR}",
           f"v_fma_f32 v{A3}, -v{A1}, v{LI}, v{A3}",
           f"v_add_f32 v{A0}, v{A0}, v{A0}",
           f"v_mul_f32 v{PC}, v{A2}, v{A0}",
           f"v_mul_f32 v{PC+1}, v{A3}, v{A0}"]
    return it


def xready():
    return [lambda a: a.wait_vm("XP"), f"buffer_store_dword v{FONE}, v{FZERO}, {srd(SWS)}, s{sXF} offen sc1"]


ARS, AET, ARW = VQ + 1, VQ + 2, VQ + 3
E0 = T + 4


def unstash(dst, src):
    return f"v_accvgpr_read_b32 v{dst}, a{src}"


def fill_u1():
    it, rest = [], []
    tmp = [T + 10 + i for i in range(4)]
    for qd in range(8):
        l = it if qd < 8 - OPT["g1_pk"] else rest
        l += gelu_plain([ACA + 4 * qd + i for i in range(4)], tmp) if l is it else gelu_packed(ACA + 4 * qd, T + 10)
        if qd & 1:
            l += pack_store(ACA + 8 * (qd >> 1), SWS, sHB, 1024 * (qd >> 1), "HS0")
    return it, rest


def stats_to_lds():
    Z = T + 8
    return [unstash(ARW, aARW), unstash(AET, aAET), unstash(ARS, aARS),
            f"v_mov_b32 v{Z}, 0", f"v_mov_b32 v{Z+1}, 0",
            f"ds_write_b32 v{ARW}, v{RSTD}",
            f"ds_write_b32 v{ARW}, v{MEAN} offset:512",
            f"ds_write_b64 v{AET}, {vr(Z,2)}"]


def fill_u2a():
    RS = RDS
    E1 = PP
    it = []
    for i0 in range(0, 16, 4):
        for i in range(i0, i0 + 4):
            it += [f"v_mul_f32 v{ACB+i}, v{ACB+i}, v{RS+(i&3)}",
                   f"v_mul_f32 v{ACB+16+i}, v{ACB+16+i}, v{RS+(i&3)}"]
        if i0 < 12:
            it.append(f"ds_read_b128 {vr(RS,4)}, v{ARS} offset:{4*i0+16}")
        for i in range(max(i0, 1), i0 + 4):
            cr, ci = (ACB, ACB + 16) if i == 1 else ((E1, E1 + 1) if i & 1 else (E0, E0 + 1))
            nx = E0 if i & 1 else E1
            it += [f"v_fma_f32 v{nx}, v{PA}, v{cr}, v{ACB+i}",
                   f"v_fma_f32 v{nx+1}, v{PA}, v{ci}, v{ACB+16+i}",
                   f"v_fma_f32 v{nx}, -v{PA+1}, v{ci}, v{nx}",
                   f"v_fmac_f32 v{nx+1}, v{PA+1}, v{cr}"]
    it.append((f"ds_write_b64 v{AET}, {vr(E0,2)} offset:2048", "E"))
    return it


def fill_u2b():
    it = []
    slots = [RDS, RDS + 2, VW, VW + 2, T + 8, T + 10, T + 12]
    for m in range(6, -1, -1):
        it.append(f"ds_read_b64 {vr(slots[m],2)}, v{AET} offset:{(7-m)*256}")
    XD, AA, ES = T + 1, X, T + 2
    it += [unstash(XD, aXD), unstash(AA, aAA), unstash(AA + 1, aAA + 1), unstash(ES, aES)]
    it.append(lambda a: a.need([vr(x, 2) for x in slots]))
    cur = slots[6]
    for m in range(5, -1, -1):
        dst = PP if m == 0 else slots[m]
        it += cfma(dst, PA16, cur, slots[m])
        cur = dst
    it += cfma(E0, PA16, PP, E0)

    def estore(a):
        a.I(f"s_cmp_lg_u32 s{sW}, 3")
        a.I("s_cbranch_scc1 L_noe")
        pos = a.pos
        a.I(f"buffer_store_dwordx2 {vr(E0,2)}, v{ES}, {srd(SE)}, 0 offen sc1", track=False)
        a.pos = pos
        a.label("L_noe")
    it.append(estore)
    for tt in range(2):
        it += [f"s_add_u32 m0, s{sAX}, {1024*tt}\ns_add_u32 s{sT0}, s{sXO}, {32768*tt}",
               (f"buffer_load_dwordx4 v{XD}, {srd(SX)}, s{sT0} offen lds", "AUX")]
    it += [f"s_add_u32 m0, s{sAX}, 2048\ns_add_u32 s{sRA}, s{sHB}, {16*KB}", (f"global_load_lds_dwordx4 {vr(AA,2)}, off", "AUX")]
    return it


def gelu_plain(regs, tmp):
    it = []
    n = len(regs)
    for r, t in zip(regs, tmp):
        it.append(f"v_mul_f32 v{t}, v{r}, v{r}")
    for r, t in zip(regs, tmp):
        it.append(f"v_fma_f32 v{t}, v{t}, v{K1}, v{K0}")
    for r, t in zip(regs, tmp):
        it.append(f"v_mul_f32 v{t}, v{t}, v{r}")
    for r, t in zip(regs, tmp):
        it.append(f"v_exp_f32 v{t}, v{t}")
    for r, t in zip(regs, tmp):
        it.append(f"v_fma_f32 v{t}, v{t}, v{IR2}, v{IR2}")
    for r, t in zip(regs, tmp):
        it.append(f"v_rcp_f32 v{t}, v{t}")
    for r, t in zip(regs, tmp):
        it.append(f"v_mul_f32 v{r}, v{r}, v{t}")
    return it


def gelu_packed(base, tmp):
    it = []
    kk = vr(K0, 2)
    ii = vr(RSTD, 2)
    for p in (0, 2):
        it.append(f"v_pk_mul_f32 {vr(tmp+p,2)}, {vr(base+p,2)}, {vr(base+p,2)}")
    for p in (0, 2):
        it.append(f"v_pk_fma_f32 {vr(tmp+p,2)}, {vr(tmp+p,2)}, {kk}, {kk} op_sel:[0,1,0] op_sel_hi:[1,1,0]")
    for p in (0, 2):
        it.append(f"v_pk_mul_f32 {vr(tmp+p,2)}, {vr(tmp+p,2)}, {vr(base+p,2)}")
    for p in range(4):
        it.append(f"v_exp_f32 v{tmp+p}, v{tmp+p}")
    for p in (0, 2):
        it.append(f"v_pk_fma_f32 {vr(tmp+p,2)}, {vr(tmp+p,2)}, {ii}, {ii} op_sel:[0,1,1] op_sel_hi:[1,1,1]")
    for p in range(4):
        it.append(f"v_rcp_f32 v{tmp+p}, v{tmp+p}")
    for p in (0, 2):
        it.append(f"v_pk_mul_f32 {vr(base+p,2)}, {vr(base+p,2)}, {vr(tmp+p,2)}")
    return it


_gp, _gk = gelu_plain, gelu_packed
gelu_plain = lambda regs, tmp: [] if OPT["x_abl"] & 1 else _gp(regs, tmp)
gelu_packed = lambda base, tmp: ["v_nop"] if OPT["x_abl"] & 2 else _gk(base, tmp)


def pack_store(base, s, soff, off, tag):
    it = [f"v_cvt_pk_bf16_f32 v{base+n}, v{base+2*n}, v{base+2*n+1}" for n in range(4)]
    if OPT["x_nostore"] == 1:
        return it
    it.append((f"buffer_store_dwordx4 {vr(base,4)}, v{L16}, {srd(s)}, s{soff} offen offset:{off} {OPT['hsflags']}", tag))
    return it


def cfma(dst, m, x, add):
    return [f"v_fma_f32 v{dst}, v{m}, v{x}, v{add}",
            f"v_fma_f32 v{dst+1}, v{m}, v{x+1}, v{add+1}",
            f"v_fma_f32 v{dst}, -v{m+1}, v{x+1}, v{dst}",
            f"v_fmac_f32 v{dst+1}, v{m+1}, v{x}"]


def poll(a, name, val, addr, s, soff, m="vcc"):
    ld = f"buffer_load_dword v{val}, v{addr}, {srd(s)}, {soff} offen sc1"
    a.need([f"v{val}"])
    a.I(f"v_cmp_eq_u32 {m}, 0, v{val}")
    a.I(f"s_mov_b32 s{sT2}, 0")
    a.I(f"s_cmp_eq_u64 {m}, 0")
    a.I(f"s_cbranch_scc1 {name}_done")
    save, pos = list(a.vmq), a.pos
    a.label(name)
    a.I(ld, track=False)
    a.wait_vm_all()
    a.I(f"v_cmp_eq_u32 {m}, 0, v{val}")
    a.I(f"s_add_u32 s{sT2}, s{sT2}, 1")
    a.I(f"s_cmp_ge_u32 s{sT2}, {SPIN_MAX}")
    a.I(f"s_cbranch_scc1 {name}_done")
    a.I(f"s_cmp_eq_u64 {m}, 0")
    a.I(f"s_cbranch_scc0 {name}")
    a.vmq, a.pos = save, pos
    a.label(name + "_done")
    if DEBUG and not OPT["rt"]:
        CNTS.append(name)
        a.I(f"v_writelane_b32 v{STAMPV}, s{sT2}, {39+len(CNTS)}")


def xlds(c):
    return 32 * KB * (1 + (c >> 1)) + 4 * KB * (c & 1)


def xgroup(c):
    return dma4(VQ, SX, sT0, [f"s_add_u32 m0, s{sWL}, {xlds(c)}", f"s_xor_b32 s{sT0}, s{sXB}, {c<<7}"], f"x{c}")


def wgroup(n, half):
    tag = f"H{n}"
    pre = [f"s_add_u32 m0, s{sWL}, {H[n] + 4*KB*half}"]
    if n in (2, 3):
        pre += [f"s_xor_b32 s{sT0}, s{sCS}, {512*(n&1)}"]
        return dma4(VQ, SBI if half else SBR, sT0, pre, tag)
    off = 32 * 3584 * half + (128 if n >= 4 else 0)
    pre += [f"s_add_u32 s{sT0}, s{sCM1 if n&1 else sCM0}, {off}"]
    return dma4(VW, SW1B if n >= 4 else SW1, sT0, pre, tag)


def cost(it):
    if callable(it):
        return 1
    if isinstance(it, tuple):
        it = it[0]
    c = 0
    for l in it.split("\n"):
        mn = l.split()[0]
        if mn in TRANS or mn.startswith("v_mfma"):
            c += 2
        elif mn == "ds_write_b128":
            c += 6
        elif mn.startswith("ds_write_addtid"):
            c += 2
        elif mn.startswith("ds_write"):
            c += 4
        elif mn == "buffer_store_dwordx4":
            c += 7
        elif mn.startswith("buffer_") or mn.startswith("global_"):
            c += 3
        else:
            c += 1
    return c


def grp(items):
    res, cur = [], []
    for it in items:
        cur.append(it)
        if not (isinstance(it, str) and it.startswith("s_")):
            res.append(cur)
            cur = []
    return res


def spread(main, plans):
    load = [sum(map(cost, g)) for g in main]
    gaps = [[] for _ in main]
    for items, g0, g1, *uni in plans:
        if not items:
            continue
        if uni:
            for j, grp in enumerate(items):
                i = g0 + (j * (g1 - g0)) // len(items)
                gaps[i] += grp
                load[i] += sum(map(cost, grp))
            continue
        tot = sum(load[g0:g1]) + sum(map(cost, items))
        acc, j = 0, 0
        for i in range(g0, g1):
            acc += load[i]
            target = tot * (i - g0 + 1) / (g1 - g0)
            while j < len(items) and (acc + cost(items[j]) / 2 <= target or i == g1 - 1):
                gaps[i].append(items[j])
                acc += cost(items[j])
                load[i] += cost(items[j])
                j += 1
    return [m + g for m, g in zip(main, gaps)]


NEGM, IDM, CD = ACB, ACB + 4, ACB + 16


def unpack(i):
    return [f"v_mfma_f32_4x4x4_16b_bf16 {vr(CD+4*q,4)}, {vr(IDM,2)}, {vr(X+8*i+2*q,2)}, {vr(NEGM,4)}" for q in range(4)]


def repack(i):
    return [f"v_cvt_pk_bf16_f32 v{X+8*i+n}, v{CD+2*n}, v{CD+2*n+1}" for n in range(8)]


def phase1(a, kname):
    I = a.I
    load_kernargs(a)
    TA, TB, TC, TD = T + 1, T + 2, ACB + 31, T + 4
    SG, PI = T + 8, T + 9
    RR = ACA
    I(f"v_lshrrev_b32 v{TA}, 6, v0")
    I(f"v_and_b32 v{LN}, 63, v0")
    I(f"v_readfirstlane_b32 s{sW}, v{TA}")
    I(f"s_getpc_b64 s[{SR}:{SR+1}]")
    a.label("L_pc")
    I(f"s_and_b32 s{sT0}, s2, 0xf8")
    I(f"v_lshrrev_b32 v{TB}, 5, v0")
    I(f"v_add_lshl_u32 v{RR+8}, s{sT0}, v{TB}, 7")
    I(f"v_mov_b32 v{RR+9}, 0")
    I(f"v_min_u32 v{RR+8}, L_end-L_pc, v{RR+8}")
    I(f"v_lshl_add_u64 {vr(RR+8,2)}, {vr(RR+8,2)}, 0, s[{SR}:{SR+1}]")
    I(f"global_load_dword v{RR+10}, {vr(RR+8,2)}, off", track=False)
    I(f"s_bfe_u32 s{sT1}, s2, 0x20003")
    I(f"s_lshr_b32 s{sT0}, s2, 5")
    I(f"s_and_b32 s{sR}, s2, 3")
    I(f"s_lshl2_add_u32 s{sR}, s{sR}, s{sT1}")
    I(f"s_lshl1_add_u32 s{sROT}, s{sT1}, s{sT0}")
    I(f"s_and_b32 s{sROT}, s{sROT}, {OPT['rotmask']}")
    I(f"s_and_b32 s{sJ}, s2, 4")
    I(f"s_lshl1_add_u32 s{sJ}, s{sJ}, s{sT0}")
    I(f"s_lshl2_add_u32 s{sHB}, s{sR}, s{sW}")
    I(f"s_lshl_b32 s{sXB}, s{sHB}, 8")
    I(f"s_or_b32 s{sXB}, s{sXB}, s{sROT}")
    I(f"s_lshl_b32 s{sXB}, s{sXB}, 7")
    I(f"s_lshl_b32 s{sWL}, s{sW}, 13")
    I(f"v_lshrrev_b32 v{TC}, 4, v{LN}")
    I(f"v_xor_b32 v{TC}, v{LN}, v{TC}")
    I(f"v_and_b32 v{TC}, 7, v{TC}")
    I(f"v_lshlrev_b32 v{TC}, 4, v{TC}")
    I(f"v_bfe_u32 v{TD}, v{LN}, 3, 2")
    I(f"v_lshl_or_b32 v{TC}, v{TD}, 10, v{TC}")
    I(f"v_lshrrev_b32 v{HH}, 5, v{LN}")
    I(f"v_lshl_or_b32 v{VQ}, v{HH}, 14, v{TC}")
    I(f"v_xor_b32 v{VQ+1}, 64, v{VQ}")
    I(f"v_add_u32 v{VQ+2}, {2*3072}, v{VQ}")
    I(f"v_add_u32 v{VQ+3}, {3*3072}, v{VQ+1}")
    I(f"v_add_u32 v{VQ+1}, 3072, v{VQ+1}")
    I(f"s_mov_b32 s{SX+2}, {2048*1024}")
    I(f"s_mov_b32 s{SX+3}, 0x20000")
    x0 = xgroup(0)
    a.run(x0[:2])
    I(f"s_lshl2_add_u32 s{sT1}, s2, s{sW}")
    I(f"s_xor_b32 s{sT1}, s{sT1}, 3")
    I(f"s_and_b32 s{sONE}, s{sT1}, 0x1f")
    a.wait_lg_all()
    I(stamp("start"))
    I(f"s_mov_b64 s[{SX}:{SX+1}], {sp(pX)}")
    I(f"s_cmp_eq_u32 s{sONE}, 0")
    I("s_cbranch_scc1 L_init")
    a.label("L_initdone")
    a.vmq = []
    a.run(x0[2:])
    I(stamp("x0 issued"))
    if OPT["x_w0"]:
        a.raw("    s_waitcnt vmcnt(0)")
        I(stamp("x0 alone"))
    for c in range(1, OPT["x_first"]):
        a.run(xgroup(c))
    I(f"v_and_b32 v{RHO}, 31, v{LN}")
    I(f"v_lshlrev_b32 v{L16}, 4, v{LN}")
    I(f"s_lshr_b32 s{sG}, s{sJ}, 2")
    I(f"s_and_b32 s{sJJ}, s{sJ}, 3")
    I(f"s_mul_i32 s{sUB}, s{sG}, 7")
    I(f"s_lshl1_add_u32 s{sUB}, s{sJJ}, s{sUB}")
    I(f"s_lshl_b32 s{sUB}, s{sUB}, 7")
    mk_srd(a, SWS, pWS, WS_END)
    I(f"s_lshl2_add_u32 s{sT0}, s2, s{sW}")
    I(f"s_lshl_b32 s{sT0}, s{sT0}, 11")
    I(f"s_xor_b32 s{sT0}, s{sT0}, {XCH + 4*8192}")
    for k in range(4):
        I(f"v_accvgpr_write_b32 a{188+k}, -1")
    xp = [(f"buffer_store_dwordx4 {ar(188,4)}, v{L16}, {srd(SWS)}, s{sT0 if OPT['xp_at'] < 0 else sXS} offen offset:{1024*k} sc1", "XP") for k in range(2)]
    if OPT["xp_at"] < 0:
        a.run(xp)
    sBK = sRS
    SCH = dict((e.split(":")[0], [int(v) for v in e.split(":")[1:]]) for e in OPT["sch"].split(","))
    early = "R" not in SCH
    RSLOT = H[0] if early else xlds(6)
    I(f"s_lshl1_add_u32 s{sBK}, s2, s{sW}")
    I(f"s_cmp_lt_u32 s{sBK}, 448")
    I(f"s_cselect_b32 s{SR+2}, {1792*1024}, 0")
    I(f"s_cselect_b32 s{sBK}, s{sBK}, 0")
    I(f"s_bitcmp0_b32 s2, 0")
    I(f"s_cselect_b64 s[{SR}:{SR+1}], {sp(pCRE)}, {sp(pCIM)}")
    I(f"s_lshr_b32 s{sT0}, s2, 1")
    I(f"s_cmp_lt_u32 s{sW}, 2")
    I(f"s_cselect_b64 s[{SR}:{SR+1}], {sp(pW2)}, s[{SR}:{SR+1}]")
    I(f"s_cselect_b32 s{SR+2}, s{SR+2}, {512*1024}")
    I(f"s_cselect_b32 s{sBK}, s{sBK}, s{sT0}")
    I(f"s_mov_b32 s{SR+3}, 0x20000")
    I(f"s_lshr_b32 s{sT0}, s{sBK}, 3")
    I(f"s_lshl_b32 s{sT0}, s{sT0}, 8")
    I(f"s_and_b32 s{sT1}, s{sBK}, 7")
    I(f"s_or_b32 s{sT0}, s{sT0}, s{sT1}")
    I(f"s_lshl_b32 s{sINI}, s{sT0}, 7")
    rl = dma4(VQ, SR, sINI, [f"s_add_u32 m0, s{sWL}, {RSLOT}"], "R")
    T3 = PP
    I(f"s_lshl4_add_u32 s{sT0}, s{sJ}, s{sR}")
    I(f"s_lshl_b32 s{sT0}, s{sT0}, 11")
    I(f"v_and_b32 v{TA}, 15, v{LN}")
    I(f"v_lshl_add_u32 v{T3}, v{TA}, 7, s{sT0}")
    I(f"v_and_b32 v{T3+1}, 0x380, v{L16}")
    I(f"s_cmp_eq_u32 s{sW}, 3")
    I("s_cbranch_scc1 L_role3")
    snap = list(a.vmq)
    if early:
        for it in rl:
            I(it, track=False)
    I("s_branch L_rolejoin")
    a.label("L_init")
    mk_srd(a, SWS, pWS, WS_END)
    I(f"v_lshlrev_b32 v{L16}, 4, v{LN}")
    for k in range(4):
        I(f"v_mov_b32 v{RR+k}, -1")
        I(f"v_mov_b32 v{RR+4+k}, 0")
    I(f"s_lshl_b32 s{sT1}, s2, 8")
    I(f"s_add_u32 s{sT1}, s{sT1}, {EOFF}")
    for k in range(2):
        I(f"buffer_store_dwordx4 {vr(RR,4)}, v{L16}, {srd(SWS)}, s{sT1} offen offset:{1024*k} sc1")
    I(f"s_lshl_b32 s{sT1}, s2, 9")
    I(f"s_add_u32 s{sT1}, s{sT1}, {HFLAG}")
    for k in range(4):
        I(f"buffer_store_dwordx4 {vr(RR+4,4)}, v{L16}, {srd(SWS)}, s{sT1} offen offset:{1024*k} sc1")
    I("s_branch L_initdone")
    a.vmq = snap
    a.label("L_role3")
    I(f"s_mov_b32 s{SR+2}, 0")
    I(f"s_bitcmp0_b32 s2, 3")
    I(f"s_cselect_b64 s[{SR}:{SR+1}], {sp(pDSK)}, {sp(pB2)}")
    if not OPT["t3_late"]:
        I(f"global_load_dword v{RR+12}, v{T3}, {sp(pBRE)}", track=False)
        I(f"global_load_dword v{RR+13}, v{T3}, {sp(pBIM)}", track=False)
        I(f"global_load_dword v{RR+14}, v{T3+1}, s[{SR}:{SR+1}]", tag="R" if early else None, track=False)
    a.label("L_rolejoin")
    VT = T + 5
    I(f"s_mul_i32 s{sT0}, s{sHB}, {8*3584}")
    I(f"s_add_u32 s{sT0}, s{sT0}, s{sUB}")
    I(f"s_cmp_lt_u32 s{sJJ}, 3")
    I(f"s_cselect_b32 s{sT1}, 128, 0")
    I(f"v_and_b32 v{TA}, 7, v{LN}")
    I(f"v_mul_u32_u24 v{TA}, 3584, v{TA}")
    I(f"v_mul_u32_u24 v{TB}, s{sT1}, v{HH}")
    I(f"v_add3_u32 v{VT}, v{TA}, v{TB}, s{sT0}")
    if "T1" not in SCH and OPT["t1_at"] < 0:
        I(f"global_load_dword v{RR+11}, v{VT}, {sp(pW1)}")
    I(f"v_bfe_u32 v{TB}, v{RHO}, 2, 1")
    I(f"v_and_b32 v{TA}, 3, v{RHO}")
    I(f"v_lshrrev_b32 v{TC}, 3, v{RHO}")
    I(f"v_lshl_or_b32 v{TA}, v{TC}, 2, v{TA}")
    I(f"v_lshl_or_b32 v{PI}, v{TB}, 4, v{TA}")
    I(f"s_lshl_b32 s{sT0}, s{sJ}, 6")
    pl = []

    def pload(dst, off, ptr):
        if OPT["p_at"] < 0:
            I(f"global_load_ushort v{dst}, v{off}, {sp(ptr)}")
        else:
            ad = RR + 18 + 2 * len(pl)
            I(f"v_mov_b32 v{RR+16}, v{off}")
            I(f"v_mov_b32 v{RR+17}, 0")
            I(f"v_lshl_add_u64 {vr(ad,2)}, {vr(RR+16,2)}, 0, {sp(ptr)}")
            pl.append(f"global_load_ushort v{dst}, {vr(ad,2)}, off")
    I(f"v_lshl_add_u32 v{TA}, v{PI}, 1, s{sT0}")
    pload(PA, TA, pLRE)
    pload(PA + 1, TA, pLIM)
    pload(PC, TA, pLDT)
    I(f"v_and_b32 v{TA}, 19, v{RHO}")
    I(f"v_lshl_or_b32 v{TA}, v{TB}, 3, v{TA}")
    I(f"v_bfe_u32 v{TC}, v{RHO}, 3, 1")
    I(f"v_lshl_or_b32 v{SG}, v{TC}, 2, v{TA}")
    I(f"v_lshl_or_b32 v{TA}, v{HH}, 5, v{SG}")
    I(f"s_add_u32 s{sT1}, s{sUB}, 128")
    I(f"s_min_u32 s{sT1}, s{sT1}, {27*128}")
    I(f"v_lshl_add_u32 v{TB}, v{TA}, 1, s{sUB}")
    I(f"v_lshl_add_u32 v{TA}, v{TA}, 1, s{sT1}")
    pload(BIA, TB, pB1)
    pload(BIA + 2, TA, pB1)
    for c in range(OPT["x_first"], OPT["x_second"]):
        a.run(xgroup(c))
    I(stamp("win1 issued"))
    I(f"s_mul_i32 s{sHB}, s{sHB}, {RT_STRIDE}")
    I(f"s_mul_i32 s{sT0}, s{sG}, 11")
    I(f"s_add_u32 s{sT0}, s{sT0}, s{sJJ}")
    I(f"s_lshl_b32 s{sT0}, s{sT0}, 12")
    I(f"s_add_u32 s{sHB}, s{sHB}, s{sT0}")
    mk_srd(a, SRS, pWS, WS_END)
    I(f"s_cmp_eq_u32 s{SR+2}, 0")
    I(f"s_cselect_b32 s{SRS+2}, 0, s{SRS+2}")
    I(f"s_and_b32 s{sT1}, s{sBK}, 7")
    I(f"s_lshr_b32 s{sT0}, s{sBK}, 3")
    I(f"s_cmp_ge_u32 s{sW}, 2")
    I("s_cbranch_scc1 L_dst2")
    I(f"s_mul_i32 s{sRA}, s{sT1}, {2*176}")
    I(f"s_and_b32 s{sT2}, s{sT0}, 1")
    I(f"s_lshl1_add_u32 s{sRA}, s{sT2}, s{sRA}")
    I(f"s_lshl3_add_u32 s{sFL}, s{sT1}, s{sT2}")
    I(f"s_lshr_b32 s{sT0}, s{sT0}, 1")
    I(f"s_lshl4_add_u32 s{sFL}, s{sFL}, s{sT0}")
    I(f"s_mul_i32 s{sT1}, s{sT0}, 37")
    I(f"s_lshr_b32 s{sT1}, s{sT1}, 8")
    I(f"s_mul_i32 s{sT2}, s{sT1}, {32-7}")
    I(f"s_add_u32 s{sFL}, s{sFL}, s{sT2}")
    I(f"s_mul_i32 s{sT2}, s{sT1}, 44")
    I(f"s_add_u32 s{sRA}, s{sRA}, s{sT2}")
    I(f"s_mul_i32 s{sT1}, s{sT1}, 7")
    I(f"s_sub_u32 s{sT0}, s{sT0}, s{sT1}")
    I(f"s_lshr_b32 s{sT1}, s{sT0}, 1")
    I(f"s_and_b32 s{sT0}, s{sT0}, 1")
    I(f"s_lshl2_add_u32 s{sT0}, s{sT0}, s{sT1}")
    I(f"s_lshl2_add_u32 s{sRA}, s{sT0}, s{sRA}")
    I(f"s_movk_i32 s{sRB}, 176")
    I("s_branch L_dstjoin")
    a.label("L_dst2")
    I(f"s_lshr_b32 s{sFL}, s{sT0}, 1")
    I(f"s_lshr_b32 s{sT2}, s{sT1}, 1")
    I(f"s_lshl2_add_u32 s{sFL}, s{sFL}, s{sT2}")
    I(f"s_and_b32 s{sRA}, s2, 1")
    I(f"s_lshl1_add_u32 s{sFL}, s{sFL}, s{sRA}")
    I(f"s_and_b32 s{sRA}, s{sT0}, 1")
    I(f"s_lshl3_add_u32 s{sFL}, s{sFL}, s{sRA}")
    I(f"s_and_b32 s{sRA}, s{sT1}, 1")
    I(f"s_lshl1_add_u32 s{sFL}, s{sFL}, s{sRA}")
    I(f"s_add_u32 s{sFL}, s{sFL}, 7")
    I(f"s_mul_i32 s{sRA}, s{sT0}, 176")
    I(f"s_mul_i32 s{sT2}, s{sT2}, 44")
    I(f"s_add_u32 s{sRA}, s{sRA}, s{sT2}")
    I(f"s_and_b32 s{sT1}, s{sT1}, 1")
    I(f"s_lshl3_add_u32 s{sRA}, s{sT1}, s{sRA}")
    I(f"s_and_b32 s{sT1}, s2, 1")
    I(f"s_lshl1_add_u32 s{sRA}, s{sT1}, s{sRA}")
    I(f"s_add_u32 s{sRA}, s{sRA}, 28")
    I(f"s_movk_i32 s{sRB}, 4")
    a.label("L_dstjoin")
    I(f"s_add_u32 s{sRA}, s{sRA}, {BW//1024}")
    I(f"s_add_u32 s{sRB}, s{sRB}, s{sRA}")
    I(f"s_lshl_b32 s{sRA}, s{sRA}, 10")
    I(f"s_lshl_b32 s{sRB}, s{sRB}, 10")
    I(f"s_lshl2_add_u32 s{sFL}, s{sFL}, {BFLAG}")
    for n, ptr, size in ((SBR, pBRE, 512 * 1024), (SBI, pBIM, 512 * 1024), (SW1, pW1, 512 * 3584), (SW1B, pW1, 512 * 3584),
                         (SWS2, pWS, WS_END), (SDBG, pDBG, 256), (SOUT, pOUT, 2048 * 2048)):
        mk_srd(a, n, ptr, size)
    I(f"s_cmp_lt_u32 s{sJJ}, 3")
    I(f"s_cselect_b32 s{SW1B+2}, s{SW1B+2}, 0")
    I(f"s_cselect_b32 s{SWS2+2}, s{SWS2+2}, 0")
    I(f"s_lshl_b32 s{sT0}, s{sJ}, 12")
    I(f"s_add_u32 s{sT0}, s{sT0}, {EOFF}")
    I(f"s_add_u32 s{SE}, s{pWS}, s{sT0}")
    I(f"s_addc_u32 s{SE+1}, s{pWS+1}, 0")
    I(f"s_mov_b32 s{SE+2}, 4096")
    I(f"s_mov_b32 s{SE+3}, 0x20000")
    I(f"s_xor_b32 s{sT0}, s{sW}, s{sROT}")
    I(f"s_lshl_b32 s{sCS}, s{sJ}, 8")
    I(f"s_or_b32 s{sCS}, s{sCS}, s{sT0}")
    I(f"s_lshl_b32 s{sCS}, s{sCS}, 7")
    I(f"s_mul_i32 s{sCM0}, s{sT0}, {64*3584}")
    I(f"s_add_u32 s{sCM0}, s{sCM0}, s{sUB}")
    I(f"s_xor_b32 s{sT0}, s{sT0}, 4")
    I(f"s_mul_i32 s{sCM1}, s{sT0}, {64*3584}")
    I(f"s_add_u32 s{sCM1}, s{sCM1}, s{sUB}")
    I(f"s_lshl2_add_u32 s{sHF}, s{sR}, s{sG}")
    I(f"s_lshl4_add_u32 s{sHF}, s{sHF}, s{sW}")
    I(f"s_lshl2_add_u32 s{sHF}, s{sHF}, s{sJJ}")
    I(f"s_lshl2_add_u32 s{sHF}, s{sHF}, {HFLAG}")
    p2_index(a)
    I(f"v_lshrrev_b32 v{TA}, 3, v{LN}")
    I(f"v_and_b32 v{TC}, 0x70, v{L16}")
    I(f"v_bfe_u32 v{TB}, v{LN}, 4, 1")
    I(f"v_lshlrev_b32 v{TD}, 6, v{TB}")
    I(f"v_xor_b32 v{TC}, v{TC}, v{TD}")
    I(f"v_mul_u32_u24 v{TD}, 3584, v{TA}")
    I(f"v_add_u32 v{VW}, v{TD}, v{TC}")
    for q in range(1, 4):
        I(f"v_add_u32 v{VW+q}, {q*(8*3584-1024)}, v{VW}")
    I(f"v_bfe_u32 v{TA}, v{LN}, 2, 2")
    I(f"v_lshl_or_b32 v{TC}, v{HH}, 3, v{TA}")
    I(f"v_lshlrev_b32 v{TC}, 7, v{TC}")
    I(f"v_lshrrev_b32 v{TA}, 1, v{TA}")
    I(f"v_lshl_or_b32 v{TC}, v{TA}, 6, v{TC}")
    I(f"v_lshl_or_b32 v{TC}, v{TB}, 5, v{TC}")
    I(f"v_and_b32 v{TA}, 1, v{LN}")
    I(f"v_lshl_or_b32 v{TC}, v{TA}, 4, v{TC}")
    I(f"v_bfe_u32 v{TA}, v{LN}, 1, 1")
    I(f"v_lshl_or_b32 v{RDT}, v{TA}, 3, v{TC}")
    I(f"v_xor_b32 v{RDT+1}, 64, v{RDT}")
    I(f"v_bfe_u32 v{TA}, v{RHO}, 1, 3")
    I(f"v_xor_b32 v{TA}, v{TA}, v{HH}")
    I(f"v_lshlrev_b32 v{TA}, 4, v{TA}")
    I(f"v_lshl_or_b32 v{TA}, v{RHO}, 7, v{TA}")
    I(f"v_add_u32 v{RDS}, s{sWL}, v{TA}")
    for k in range(1, 4):
        I(f"v_xor_b32 v{RDS+k}, {32*k}, v{RDS}")
    AW = T + 10
    I(f"v_bfe_u32 v{TA}, v{LN}, 2, 2")
    I(f"v_lshl_or_b32 v{TA}, v{HH}, 4, v{TA}")
    I(f"s_add_u32 s{sT0}, s{sWL}, {RSLOT}")
    I(f"v_lshl_add_u32 v{AW}, v{TA}, 7, s{sT0}")
    I(f"v_and_b32 v{TA}, 1, v{LN}")
    I(f"v_lshl_or_b32 v{AW}, v{TA}, 5, v{AW}")
    I(f"v_bfe_u32 v{TA}, v{LN}, 3, 1")
    I(f"v_xor_b32 v{TA}, v{TA}, v{TB}")
    I(f"v_lshl_or_b32 v{AW}, v{TA}, 4, v{AW}")
    I(f"v_bfe_u32 v{TA}, v{LN}, 1, 1")
    I(f"v_lshl_or_b32 v{AW}, v{TA}, 3, v{AW}")
    for k in range(1, 4):
        I(f"v_xor_b32 v{AW+k}, {32*k}, v{AW}")
    I(f"s_cmp_lt_u32 s{sW}, 2")
    I("s_cbranch_scc1 L_awdone")
    for k in range(4):
        I(f"v_add_u32 v{AW+k}, {RSLOT}, v{RDS+k}")
    a.label("L_awdone")
    def stash(dst, src):
        I(f"v_accvgpr_write_b32 a{dst}, v{src}")
    I(f"s_lshl_b32 s{sT0}, s{sW}, 7")
    I(f"s_add_u32 s{sT0}, s{sT0}, {PARK}")
    I(f"v_lshl_add_u32 v{TA}, v{HH}, 6, s{sT0}")
    I(f"v_lshl_add_u32 v{TC}, v{PI}, 2, s{sT0}")
    stash(aARS, TA)
    stash(aARW, TC)
    I(f"s_lshl_b32 s{sT0}, s{sW}, 9")
    I(f"s_add_u32 s{sT0}, s{sT0}, {ETAB}")
    I(f"v_lshl_add_u32 v{TA}, v{LN}, 3, s{sT0}")
    stash(aAET, TA)
    I(f"s_lshl_b32 s{sT0}, s{sR}, 8")
    I(f"v_lshlrev_b32 v{TA}, 3, v{LN}")
    I(f"v_subrev_u32 v{TA}, 256, v{TA}")
    I(f"v_cmp_gt_i32 vcc, 0, v{TA}")
    I(f"v_add_u32 v{TC}, s{sT0}, v{TA}")
    I(f"v_cndmask_b32 v{TA}, v{TC}, v{TA}, vcc")
    stash(aES, TA)
    I(f"v_lshlrev_b32 v{TA}, 3, v{RHO}")
    I(f"v_lshlrev_b32 v{TC}, 8, v{HH}")
    I(f"v_sub_u32 v{TA}, v{TA}, v{TC}")
    I(f"v_add_u32 v{TA}, {EIN + 256}, v{TA}")
    stash(aEA, TA)
    I(f"s_mul_i32 s{sT0}, s{sW}, 5120")
    I(f"s_add_u32 s{sT0}, s{sT0}, {TRB}")
    I(f"v_mul_u32_u24 v{TA}, 80, v{RHO}")
    I(f"v_lshl_add_u32 v{TA}, v{HH}, 5, v{TA}")
    I(f"v_add_u32 v{TA}, s{sT0}, v{TA}")
    stash(aTW, TA)
    I(f"v_bfe_u32 v{TA}, v{LN}, 2, 2")
    I(f"v_lshl_add_u32 v{TA}, v{HH}, 4, v{TA}")
    I(f"v_mul_u32_u24 v{TC}, 80, v{TA}")
    I(f"v_and_b32 v{TA}, 1, v{LN}")
    I(f"v_lshl_add_u32 v{TC}, v{TA}, 5, v{TC}")
    I(f"v_lshl_add_u32 v{TC}, v{TB}, 4, v{TC}")
    I(f"v_bfe_u32 v{TA}, v{LN}, 1, 1")
    I(f"v_lshl_add_u32 v{TC}, v{TA}, 3, v{TC}")
    I(f"v_add_u32 v{TC}, s{sT0}, v{TC}")
    stash(aTR, TC)
    I(f"s_mul_i32 s{sAX}, s{sW}, 3072")
    I(f"s_add_u32 s{sAX}, s{sAX}, {AUX}")
    I(f"s_lshl3_add_u32 s{sXO}, s{sI2}, s{sW}")
    I(f"s_lshl_b32 s{sXO}, s{sXO}, 13")
    I(f"s_lshl_b32 s{sT0}, s{sN}, 7")
    I(f"s_add_u32 s{sXO}, s{sXO}, s{sT0}")
    P0, P2 = ACB, ACB + 2
    I(f"v_mov_b32 v{P0}, s{pB2}")
    I(f"v_mov_b32 v{P0+1}, s{pB2+1}")
    I(f"v_cmp_gt_u32 vcc, 8, v{LN}")
    I(f"v_mov_b32 v{P2}, s{pDSK}")
    I(f"v_mov_b32 v{P2+1}, s{pDSK+1}")
    I(f"v_cndmask_b32 v{P0}, v{P0}, v{P2}, vcc")
    I(f"v_cndmask_b32 v{P0+1}, v{P0+1}, v{P2+1}, vcc")
    I(f"v_and_b32 v{TA}, 0x70, v{L16}")
    I(f"v_add_u32 v{P2}, s{sT0}, v{TA}")
    I(f"v_mov_b32 v{P2+1}, 0")
    I(f"v_lshl_add_u64 {vr(P0,2)}, {vr(P2,2)}, 0, {vr(P0,2)}")
    I(f"v_lshrrev_b32 v{TC}, 3, v{LN}")
    I(f"v_lshl_or_b32 v{TA}, v{TC}, 10, v{TA}")
    stash(aAA, P0)
    stash(aAA + 1, P0 + 1)
    stash(aXD, TA)
    I(f"v_and_b32 v{FREP}, 3, v{LN}")
    I(f"v_lshlrev_b32 v{FREP}, 14, v{FREP}")
    I(f"s_and_b32 s{sT0}, s{sN}, 3")
    I(f"s_lshl4_add_u32 s{sT0}, s{sT0}, s{sR}")
    I(f"s_lshl2_add_u32 s{sT0}, s{sT0}, s{sG2}")
    I(f"s_lshl_b32 s{sT0}, s{sT0}, 8")
    I(f"s_add_u32 s{sT0}, s{sT0}, {HFLAG}")
    I(f"s_add_u32 s{sHP}, s{pWS}, s{sT0}")
    I(f"s_addc_u32 s{sHP+1}, s{pWS+1}, 0")
    I(f"s_lshl2_add_u32 s{sT0}, s2, s{sW}")
    I(f"s_lshl_b32 s{sT0}, s{sT0}, 5")
    I(f"s_add_u32 s{sT0}, s{sT0}, {XFLAG}")
    I(f"s_add_u32 s{sXP}, s{pWS}, s{sT0}")
    I(f"s_addc_u32 s{sXP+1}, s{pWS+1}, 0")
    I(f"s_xor_b32 s{sXF}, s{sT0}, 512")
    I(f"s_and_b32 s{sT0}, s{sR}, 7")
    I(f"s_lshl3_add_u32 s{sT0}, s{sT0}, s{sN}")
    I(f"s_lshl2_add_u32 s{sT0}, s{sT0}, s{sG2}")
    I(f"s_and_b32 s{sT1}, s{sW}, 1")
    I(f"s_lshl1_add_u32 s{sT0}, s{sT0}, s{sT1}")
    I(f"s_lshl_b32 s{sT0}, s{sT0}, 6")
    I(f"s_add_u32 s{sT0}, s{sT0}, {BFLAG}")
    I(f"s_add_u32 s4, s{pWS}, s{sT0}")
    I(f"s_addc_u32 s5, s{pWS+1}, 0")
    GOA, GOV = T + 8, T + 9
    I(f"v_and_b32 v{TA}, 1, v{LN}")
    I(f"v_lshlrev_b32 v{TA}, 4, v{TA}")
    I(f"v_mov_b32 v{TB}, 0x3f80")
    I(f"v_lshlrev_b32 v{TA}, v{TA}, v{TB}")
    I(f"v_bfe_u32 v{TB}, v{LN}, 1, 1")
    I(f"v_mul_lo_u32 v{IDM+1}, v{TA}, v{TB}")
    I(f"v_sub_u32 v{IDM}, v{TA}, v{IDM+1}")
    a.run([f"v_mov_b32 v{BIA+k}, 0" for k in (1, 3, 5, 6, 7, 9, 10, 11)])
    a.run([f"v_mov_b32 v{MEAN}, 0", f"v_mov_b32 v{RSTD}, 0", f"v_lshlrev_b32 v{GOA}, 2, v{RHO}",
           f"v_and_b32 v{KEEP}, 7, v{LN}", f"v_lshlrev_b32 v{KEEP}, 12, v{KEEP}",
           f"v_mov_b32 v{KEEP+2}, 1", f"v_mov_b32 v{KEEP+3}, 0"])
    I(f"s_cmp_lg_u32 s{sONE}, 0")
    I("s_cbranch_scc1 L_nogo")
    a.raw(f"    s_waitcnt vmcnt({len(a.vmq)})")
    I(f"s_lshr_b32 s{sT1}, s2, 1")
    I(f"buffer_store_dword v{KEEP+2}, v{KEEP+3}, {srd(SDBG)}, s{sT1} offen sc1", track=False)
    a.label("L_nogo")
    I(f"s_mov_b32 s{sONE}, 0x3f803f80")
    I(stamp("setup done"))
    for c in range(OPT["x_second"], 4):
        a.run(xgroup(c))

    def rpick(a):
        a.wait_vm("R")
        pos = a.pos
        I(f"s_cmp_ge_u32 s{sW}, 2")
        I("s_cbranch_scc1 L_rp2")
        for dt in range(2):
            for ph in range(2):
                for e in range(2):
                    I(f"ds_read_b64_tr_b16 {ar(8*dt+4*ph+2*e,2)}, v{AW+2*(dt^e)+ph} offset:{e*1024+ph*512}", track=False)
        I("s_branch L_rpjoin")
        a.lgq = [e for e in a.lgq if e.track]
        a.label("L_rp2")
        for k in range(4):
            I(f"ds_read_b128 {ar(4*k,4)}, v{AW+k}", track=False)
        a.pos = pos + 6
        a.label("L_rpjoin")

    rs = [lambda a: a.need([ar(0, 16)])]
    rs += [(f"buffer_store_dwordx4 {ar(4*k,4)}, v{L16}, {srd(SRS)}, s{sRB if k>=2 else sRA} offen offset:{1024*(k&1)} sc1", "RS") for k in range(4)]

    def stats(c):
        it = [lambda a: a.need([vr(X + 16 * c, 16)])]
        it += [f"v_dot2c_f32_bf16 v{MEAN}, s{sONE}, v{X+16*c+k}" for k in range(16)]
        it += [f"v_dot2c_f32_bf16 v{RSTD}, v{X+16*c+k}, v{X+16*c+k}" for k in range(16)]
        return it

    par = ssm_params()
    nw = OPT["w_loop"]
    for c in range(8):
        if c < 4:
            a.run(xgroup(c + 4))
        else:
            if c - 4 < nw:
                a.run(wgroup((c - 4) >> 1, c & 1))
            if c == OPT["go_at"]:
                I(f"buffer_load_dword v{GOV}, v{GOA}, {srd(SDBG)}, 0 offen sc1")
        if c == OPT["xp_at"]:
            a.run(xp)
        if c == OPT["t1_at"]:
            I(f"buffer_load_dword v{T+4}, v{VT}, {srd(SW1)}, 0 offen")
        if c == OPT["p_at"]:
            a.run(pl)
        if c in (2, 6):
            for k in range(4):
                I(f"v_add_u32 v{RDS+k}, {64*KB}, v{RDS+k}")
        if c == 7:
            a.run(stats(6)[:17])
        a.wait_vm(f"x{c}")
        if c in (0, 1, 4, 7):
            I(stamp(f"x{c} landed"))
        for k in range(4):
            I(f"ds_read_b128 {vr(X+16*c+4*k,4)}, v{RDS+k} offset:{xlds(c) % (64*KB)}")
        if c == 1 and early:
            rpick(a)
        if c:
            a.run(stats(c - 1)[17 if c == 7 else 0:])
        if c == 3 and early:
            a.run(rs[:1])
        if 1 <= c <= OPT["par_n"]:
            a.run(par[(len(par) * (c - 1)) // OPT["par_n"]:(len(par) * c) // OPT["par_n"]])
    s7 = stats(7)
    a.run(s7[:20])
    I(f"v_mov_b32 v{TA}, v{MEAN}")
    a.run(s7[20:22])
    I(f"v_permlane32_swap_b32 v{TA}, v{MEAN}")
    I(f"v_add_f32 v{MEAN}, v{TA}, v{MEAN}")
    for k in range(4):
        I(f"v_mul_f32 v{NEGM+k}, {f32(-1/512)}, v{MEAN}")
    a.run(s7[22:])
    I(f"s_add_u32 s{sUB}, s{sWL}, {128*KB - H[2]}")
    I(stamp("stats done"))

    bflag = [lambda a: a.wait_vm("RS"), f"buffer_store_dword v{KEEP+2}, v{KEEP}, {srd(SRS)}, s{sFL} offen sc1"]
    bl = b_loads()
    bload = f"s_load_dwordx16 s[{sHV}:{sHV+15}], s[4:5], 0 glc"
    bpoll = [bload]
    hg = lambda n: grp(wgroup(n, 0) + wgroup(n, 1))

    def rjob(a):
        I(f"s_cmp_eq_u32 s{sW}, 3")
        I("s_cbranch_scc1 L_rj3")
        pos, snap = a.pos, list(a.vmq)
        for it in rl:
            I(it, track=False)
        I("s_branch L_rjdone")
        a.vmq = snap
        a.label("L_rj3")
        I(f"buffer_load_dword a0, v{T3}, {srd(SBR)}, 0 offen", tag="R", track=False)
        I(f"buffer_load_dword a1, v{T3}, {srd(SBI)}, 0 offen", tag="R", track=False)
        I(f"global_load_dword a2, v{T3+1}, s[{SR}:{SR+1}]", tag="R", track=False)
        a.pos = pos + 3
        a.label("L_rjdone")
    events = dict(W=(hg(0) + hg(1))[4 * nw:], H2=hg(2), H3=hg(3), H4=hg(4), H5=hg(5), R=[[rjob]] if OPT['t3_late'] else grp(rl), pick=[[rpick]],
                  RS=[rs[:2]] + grp(rs[2:]), bflag=[bflag], bpoll=[bpoll], B=bl[:OPT["b2"]], xr=[xready()],
                  xl=[[XLOAD]], xc=[[spoll("L_xr", XLOAD, 1)]], f0=[hflag(0)], hl0=[[hload(0)]],
                  T1=[[f"buffer_load_dword v{T+4}, v{VT}, {srd(SW1)}, 0 offen"]],
                  go=[[lambda a: poll(a, "L_go", GOV, GOA, SDBG, 0)]], XP=[[x] for x in xp],
                  bchk=[[spoll("L_bf", bload, 11), stamp("B flags")]])
    for name in OPT["x_drop"].split("/"):
        if name:
            events[name] = [[]]
    at = {}
    for name, pos in SCH.items():
        g0, g1 = pos[0], pos[-1] + 1
        for j, e in enumerate(events[name]):
            at.setdefault(g0 + (j * (g1 - g0)) // len(events[name]), []).extend(e)
    order = [x for x in ("R", "pick", "RS", "bflag", "bpoll", "bchk", "B") if x in SCH]
    assert all(SCH[x][-1] <= SCH[y][0] for x, y in zip(order, order[1:]))
    assert SCH["go"][0] < min(60, SCH["bflag"][0], SCH["xr"][0]) and SCH["H5"][0] > 4 * (16 - OPT["la"])
    assert SCH["H5"][-1] < 128 and SCH["H3"][-1] < min(64, SCH["bpoll"][0])
    assert early or (SCH["RS"][0] < SCH["H4"][0] and SCH["pick"][0] < 60)
    assert SCH["bchk"][0] < SCH["hl0"][0] and SCH["f0"][0] >= 128
    assert ("XP" in SCH) == (OPT["xp_at"] > 7) and SCH.get("XP", [-99])[-1] < SCH["xr"][0]
    dm = sorted(SCH[x] for x in ("W", "H2", "H3", "H4", "H5", "R") if x in SCH)
    assert all(x[-1] < y[0] for x, y in zip(dm, dm[1:]))
    P = OPT["pre_pairs"]
    assert min(at) >= -P
    for i in range(P):
        u, r = unpack(i), repack(i)
        a.run(u + at.get(i - P, []))
        if i == P - 1:
            a.run([lambda a: a.wait_vm("H0"), "s_barrier"] + frag_reads(0))
        a.run(r)
    a.run(sum((frag_reads(k) for k in range(1, OPT["la"])), []) + (unpack(P) if P < 16 else []))

    n2 = OPT["b2"]
    flat = lambda ll: [x for l in ll for x in l]
    ge = 4 * OPT["e_win"]
    assert OPT["e_win"] >= 6
    f2b = fill_u2b()
    f0 = [f"v_subrev_u32 v{RDS+k}, s{sUB}, v{RDS+k}" for k in range(4)] + fill_u0() + (par if not OPT["par_n"] else [])
    plan = [[(f0, 2, 50)], [(stats_to_lds(), 26, 56), ([f"ds_read_b128 {vr(RDS,4)}, v{ARS}"], 60, 61), (fill_u1()[0], 1, 64)], [(fill_u2a(), 1, ge), (f2b[:-6], ge, ge + OPT["e_len"]), (f2b[-6:], ge + OPT["e_len"], 64)]]
    for u in range(3):
        a.comment(f"---- GEMM unit {u} ----")
        I(stamp(f"U{u} start"))
        main = []
        LA, WP = OPT["la"], OPT["wp"]
        for d in range(16):
            n = 16 * u + d
            pre = [lambda a: a.need(sum((stage_regs(k) for k in range(WP)), []))] if n == 0 else []
            if OPT["only"] and n % 4 == 0 and d:
                pre.append(stamp(f"w{n}"))
            if n + LA < 48 and (n + LA) % 8 == 0:
                pre += [lambda a, hn=(n + LA) // 8: a.wait_vm(f"H{hn}"), "s_barrier"]
            if n == 32 + OPT["e_win"]:
                pre = [lambda a: a.wait_lg("E")] + pre + ([] if "s_barrier" in pre else ["s_barrier"])
            if n + LA == 32:
                pre += [f"v_add_u32 v{RDT}, {H[4]}, v{RDT}", f"v_add_u32 v{RDT+1}, {H[4]}, v{RDT+1}"]
            if n + LA == 40:
                pre += [f"v_subrev_u32 v{RDT}, {H[4]}, v{RDT}", f"v_subrev_u32 v{RDT+1}, {H[4]}, v{RDT+1}"]
            ms = mfmas(n)
            rd = frag_reads(n + LA) if n + LA < 48 else []
            h = len(rd) // 4
            for i in range(4):
                post = []
                if i == 3 and n < 47 and (n + 1) % WP == 0:
                    post = [lambda a, n=n: a.need(sum((stage_regs(n + 1 + k) for k in range(WP)), []))]
                main.append((pre if i == 0 else []) + ms[i] + post + rd[i * h:(i + 1) * h])
        main = [m + at.get(64 * u + i, []) for i, m in enumerate(main)]
        last = {63: fill_u1()[1]} if u == 1 else {}
        if u == 0:
            for d in range(16 - P):
                r = repack(P + d)
                for i in range(4):
                    main[4 * d + i] = main[4 * d + i] + r[2 * i:2 * i + 2]
                if P + d + 1 < 16:
                    last[4 * d + 3] = unpack(P + d + 1)
        for i, g in enumerate(spread(main, plan[u])):
            a.run(g + last.get(i, []))
    I(stamp("tail start"))
    a.run(tail(flat(bl[n2:])))
    I(stamp("tail issued"))


def merge(fl, mem):
    if not mem:
        return list(fl)
    res = []
    n, m = len(fl), len(mem)
    j = 0
    for i in range(n):
        while j < m and j * n <= i * m:
            res.append(mem[j])
            j += 1
        res.append(fl[i])
    res += mem[j:]
    return res


FREP = KEEP + 1
FONE, FZERO = KEEP + 2, KEEP + 3


sHV = SBR


def hload(stage, retry=False):
    return f"s_load_dwordx16 s[{sHV}:{sHV+15}], s[{sHP}:{sHP+1}], {64*stage}" + (" glc" if retry or OPT["hglc"] else "")


XLOAD = f"s_load_dword s{sHV}, s[{sXP}:{sXP+1}], 0 glc"


def spoll(name, load, n, empty=None):
    def f(a):
        a.I(f"s_mov_b32 s{sT2}, 0")
        a.label(name)
        a.wait_lg_all()
        for k in range(2, n - 1, 2):
            a.I(f"s_and_b64 s[{sHV}:{sHV+1}], s[{sHV}:{sHV+1}], s[{sHV+k}:{sHV+k+1}]")
        if n > 1 and n & 1:
            a.I(f"s_and_b32 s{sHV}, s{sHV}, s{sHV+n-1}")
        if empty is None:
            a.I(f"s_and_b32 s{sHV}, s{sHV}, s{sHV+(1 if n > 1 else 0)}")
        else:
            a.I(f"s_cmp_lg_u32 s{sHV}, {empty}")
        a.I(f"s_cbranch_scc1 {name}_done")
        pos = a.pos
        a.I(f"s_add_u32 s{sT2}, s{sT2}, 1")
        a.I(f"s_cmp_ge_u32 s{sT2}, {SPIN_MAX}")
        a.I(f"s_cbranch_scc1 {name}_done")
        a.I(load)
        a.I(f"s_branch {name}")
        a.lgq, a.pos = [], pos
        a.label(name + "_done")
        if DEBUG and not OPT["rt"]:
            CNTS.append(name)
            a.I(f"v_writelane_b32 v{STAMPV}, s{sT2}, {39+len(CNTS)}")
    return f


CNTS = []


def hpoll(stage):
    return spoll(f"L_hf{stage}", hload(stage, True), 16)


def hflag(stage):
    return [lambda a: a.wait_vm(f"HS{stage}"),
            f"buffer_store_dword v{FONE}, v{FREP}, {srd(SWS)}, s{sHF} offen offset:{64*stage} sc1"]


def cfma_pk(dst, m, x, add):
    return [f"v_pk_fma_f32 {vr(dst,2)}, {vr(x,2)}, {vr(m,2)}, {vr(add,2)} op_sel:[0,0,0] op_sel_hi:[1,0,1]",
            f"v_pk_fma_f32 {vr(dst,2)}, {vr(x,2)}, {vr(m,2)}, {vr(dst,2)} op_sel:[1,1,0] op_sel_hi:[0,1,1] neg_lo:[0,1,0]"]


AUX = 112 * KB
sAX = pOUT
sXO = pOUT + 1


def tail(brest):
    RE, IM, FR = X, X + 8, X + 16
    EL = [X + 32 + 2 * n for n in range(8)]
    EA, EB, TW, TR, ER, EW, EQ = X + 48, X + 49, X + 50, X + 51, X + 52, X + 53, X + 56
    eloads = [f"buffer_load_dwordx4 {vr(EQ,4)}, v{EA}, {srd(SE)}, 0 offen sc1"]
    al = a_loads()
    na, qs, qe = min(2 * OPT["pro"], OPT["pro_q"]), OPT["scan_q"], OPT["eload_q"]
    a0, a1 = [int(v) for v in OPT["a_q"].split("/")]

    def quad(qd):
        mem = []
        if qd == 0:
            mem += brest
        if qd == a0:
            mem += [hpoll(0), stamp("H flags")]
        if a0 <= qd < a1:
            for f in range((na * (qd - a0)) // (a1 - a0), (na * (qd - a0 + 1)) // (a1 - a0)):
                mem += al[f]
        if qd == qe:
            mem += eloads
        r = merge(gelu_packed(ACA + 4 * qd, T + 8), mem)
        if qd & 1:
            r += pack_store(ACA + 8 * (qd >> 1), SWS2, sRA, 1024 * (qd >> 1), "HS2")
        return r + [stamp(f"q{qd}")]

    tl = [f"s_lshl2_add_u32 s{sT0}, s{sW}, s{sR}", f"s_lshl_b32 s{sT0}, s{sT0}, 8", f"s_sub_u32 s{sT0}, s{sT0}, 4096",
          f"v_add_u32 v{EA}, s{sT0}, v{L16}", f"s_lshl_b32 s{sT0}, s{sW}, 10", f"s_add_u32 s{sT0}, s{sT0}, {EIN}",
          f"v_add_u32 v{EW}, s{sT0}, v{L16}", unstash(ER, aEA), unstash(TW, aTW), unstash(TR, aTR)]
    for qd in range(qs):
        tl += quad(qd)

    def epoll(a):
        a.need([vr(EQ, 4)])
        a.I(f"s_mov_b32 s{sT2}, 0")
        a.label("L_epoll")
        a.I(f"v_max3_u32 v{EB}, v{EQ}, v{EQ+1}, v{EQ+2}")
        a.I(f"v_max_u32 v{EB}, v{EB}, v{EQ+3}")
        a.I(f"v_cmp_eq_u32 vcc, -1, v{EB}")
        a.I("s_cmp_eq_u64 vcc, 0")
        a.I("s_cbranch_scc1 L_epoll_done")
        save, pos = list(a.vmq), a.pos
        a.I(f"s_add_u32 s{sT2}, s{sT2}, 1")
        a.I(f"s_cmp_ge_u32 s{sT2}, {SPIN_MAX}")
        a.I("s_cbranch_scc1 L_epoll_done")
        a.I(eloads[0], track=False)
        a.wait_vm_all()
        a.I("s_branch L_epoll")
        a.vmq, a.pos = save, pos
        a.label("L_epoll_done")
        if DEBUG and not OPT["rt"]:
            CNTS.append("epoll")
            a.I(f"v_writelane_b32 v{STAMPV}, s{sT2}, {39+len(CNTS)}")
    tl += [epoll, stamp("E seen"), (f"ds_write_b128 v{EW}, {vr(EQ,4)}", "EW")]
    ureg = lambda i: X + 64 + 2 * i
    for i in range(16):
        h, cc = i & 1, vr(PC, 2)
        if i == 6:
            tl += [lambda a: a.wait_lg("EW"), "s_barrier"]
            tl += [f"ds_read_b64 {vr(EL[n],2)}, v{ER} offset:{(14-2*n)*256}" for n in range(7, -1, -1)]
        tl += [f"v_pk_mul_f32 {vr(ureg(i),2)}, {cc}, {vr(ACB+i-h,2)} op_sel:[0,{h}] op_sel_hi:[1,{h}]",
               f"v_pk_fma_f32 {vr(ureg(i),2)}, {cc}, {vr(ACB+16+i-h,2)}, {vr(ureg(i),2)} op_sel:[1,{h},0] op_sel_hi:[0,{h},1] neg_lo:[1,0,0]"]
    tl.append(lambda a: a.need([vr(r, 2) for r in EL]))
    cur = EL[7]
    for n in range(6, -1, -1):
        tl += cfma_pk(EL[n], PA256, cur, EL[n])
        cur = EL[n]
    S, S0, S1 = EL[0], EL[1], EL[2]
    tl += [f"v_pk_mul_f32 {vr(S0,2)}, {vr(S,2)}, {vr(PAH,2)} op_sel:[0,0] op_sel_hi:[1,0]",
           cfma_pk(S0, PAH, S, S0)[1],
           f"v_mov_b32 v{S1}, v{S0}",
           f"v_mov_b32 v{S1+1}, v{S0+1}",
           f"s_add_u32 s{sRB}, s{sHB}, {28*KB}",
           f"v_permlane32_swap_b32 v{S0}, v{S1}",
           f"v_permlane32_swap_b32 v{S0+1}, v{S1+1}",
           f"v_pk_add_f32 {vr(S0,2)}, {vr(S0,2)}, {vr(S1,2)}"]
    tl += cfma_pk(PP, PAS, S0, PP)
    tl += [f"v_pk_mul_f32 {vr(S1,2)}, {vr(PP,2)}, {vr(PC,2)} op_sel:[0,0] op_sel_hi:[1,0]", cfma_pk(S1, PC, PP, S1)[1]]
    prev = S1
    for i in range(16):
        u = ureg(i)
        nb = 2 * OPT["pro"] - na
        for f in range(na + (nb * i) // 16, na + (nb * (i + 1)) // 16):
            tl += al[f]
        tl += cfma_pk(u, PA, prev, u)
        if i & 1:
            tl += [f"v_cvt_pk_bf16_f32 v{RE+(i>>1)}, v{prev}, v{u}",
                   f"v_cvt_pk_bf16_f32 v{IM+(i>>1)}, -v{prev+1}, -v{u+1}"]
        prev = u
        if i in (7, 15):
            hf = i >> 3
            for p, R in enumerate((RE, IM)):
                tl.append(f"ds_write_b128 v{TW}, {vr(R+4*hf,4)} offset:{p*2560+16*hf}")
    for p in range(2):
        for k in range(2):
            for e in range(2):
                tl.append(f"ds_read_b64_tr_b16 {vr(FR+8*p+4*k+2*e,2)}, v{TR} offset:{p*2560+(8*e+4*k)*80}")
    tl.append(stamp("scan done"))
    if OPT["flag2_at"] < 0:
        assert qs == 8
        tl += hflag(2)
    hs = [lambda a: a.need([vr(FR, 16)])]
    hs += [(f"buffer_store_dwordx4 {vr(FR+4*f,4)}, v{L16}, {srd(SWS)}, s{sRB} offen offset:{1024*f} {OPT['hsflags']}", "HS1") for f in range(4)]
    rest = sum((quad(qd) for qd in range(qs, 8)), [])
    cut = min(12, len(rest))
    tl += rest[:cut] + merge(rest[cut:cut + 24], hs) + rest[cut + 24:]
    return tl


RED, RED_SRC, RED_DT, RED_TT = 40 * KB, 8448, 4224, 4 * 8448


def wreg(s, e, dt):
    return ar(16 * s + 8 * e + 4 * dt, 4)


def hreg(f):
    return ar(176 + 4 * ((f + 4) % 20), 4)


def steps():
    l = [(L, s) for s in range(4) for L in range(4)]
    s1, s2 = [7, 8, 9, 10], [4, 5, 6]
    if OPT["scan_q"] == 8:
        s1, s2 = s2, s1
    if OPT["ord"] == 0:
        l += [(L, s) for L in range(4) for s in s1 + s2]
    else:
        l += [(L, s) for s in s1 for L in range(2)] + [(L, s) for L in range(2) for s in s2]
        l += [(L, s) for L in range(2, 4) for s in s1 + s2]
    return l


def p2_index(a):
    I = a.I
    I(f"s_and_b32 s{sN}, s{sJ}, 7")
    I(f"s_lshr_b32 s{sT1}, s{sJ}, 3")
    I(f"s_lshl1_add_u32 s{sI2}, s{sR}, s{sT1}")
    I(f"s_lshr_b32 s{sT0}, s{sW}, 1")
    I(f"s_lshl1_add_u32 s{sG2}, s{sT1}, s{sT0}")
    I(f"s_mul_i32 s{sT0}, s{sG2}, {G_STRIDE//2048}")
    I(f"s_and_b32 s{sT1}, s{sW}, 1")
    I(f"s_add_u32 s{sT0}, s{sT0}, s{sT1}")
    I(f"s_lshl_b32 s{sT0}, s{sT0}, 11")
    I(f"s_mul_i32 s{sA1}, s{sI2}, {2*RT_STRIDE}")
    I(f"s_add_u32 s{sA1}, s{sA1}, s{sT0}")
    I(f"s_xor_b32 s{sA0}, s{sI2}, 1")
    I(f"s_mul_i32 s{sA0}, s{sA0}, {2*RT_STRIDE}")
    I(f"s_add_u32 s{sA0}, s{sA0}, s{sT0}")
    I(f"s_mul_i32 s{sB0}, s{sN}, {2*RT_STRIDE}")
    I(f"s_add_u32 s{sB0}, s{sB0}, s{sT0}")
    I(f"s_add_u32 s{sB0}, s{sB0}, {BW}")
    I(f"s_lshl2_add_u32 s{sXI}, s2, s{sW}")
    I(f"s_lshl_b32 s{sXI}, s{sXI}, 11")
    I(f"s_or_b32 s{sXI}, s{sXI}, {XCH}")
    I(f"s_xor_b32 s{sXS}, s{sXI}, {4*8192}")


def b_loads():
    l = []
    for s in range(11):
        for e in range(2):
            for t in range(2):
                it = []
                if e == 0:
                    it += [f"s_add_u32 s{sP0+t}, s{sB0}, {s*4096 + t*RT_STRIDE}"]
                it.append(f"buffer_load_dwordx4 {wreg(s,e,t)}, v{L16}, {srd(SWS)}, s{sP0+t} offen offset:{e*1024} sc1")
                l.append(it)
    return l


def a_loads():
    l = []
    for n, (L, s) in enumerate(steps()):
        for e in range(2):
            it = []
            if e == 0:
                it += [f"s_add_u32 s{sP0}, s{sA1 if L >= 2 else sA0}, {s*4096 + (L&1)*RT_STRIDE}"]
            it.append(f"buffer_load_dwordx4 {hreg(2*n+e)}, v{L16}, {srd(SWS)}, s{sP0} offen offset:{e*1024} {OPT['aflags']}")
            l.append(it)
    return l


def phase2(a):
    I = a.I
    al = a_loads()
    st = steps()
    OA, RA, A1, A2, TA = 192, 193, 194, 195, 196
    DK, BB, DF, BF = 198, 200, 208, 212
    XIN, XV, MN, RS, BASE = 128, 144, 152, 156, 160
    prep = [lambda a: a.wait_vm("AUX"),
            f"v_lshl_add_u32 v{A1}, v{LN}, 3, s{sAX}",
            f"v_lshrrev_b32 v{TA}, 4, v{LN}",
            f"s_and_b32 s{sG}, s{sI2}, 1",
            f"s_lshl3_add_u32 s{sG}, s{sG}, s{sW}",
            f"s_lshl_b32 s{sG}, s{sG}, 5",
            f"v_lshl_add_u32 v{A2}, v{TA}, 2, s{sG}"]
    for n in range(4):
        o = PARK + 128 * (n >> 1) + 16 * (n & 1)
        prep += [f"ds_read_b64 {vr(XV+2*n,2)}, v{A1} offset:{512*n}",
                 f"ds_read_b32 v{RS+n}, v{A2} offset:{o}",
                 f"ds_read_b32 v{MN+n}, v{A2} offset:{o+512}"]
    prep += [f"v_and_b32 v{OA}, 15, v{LN}",
             f"v_lshl_add_u32 v{A1}, v{OA}, 3, s{sAX}",
             f"ds_read_b64 {vr(DK,2)}, v{A1} offset:2048",
             f"ds_read_b64 {vr(BB,2)}, v{A1} offset:{2048+128}",
             f"v_and_b32 v{RA}, 3, v{LN}",
             f"v_lshlrev_b32 v{RA}, 5, v{RA}",
             f"v_bfe_u32 v{A2}, v{LN}, 2, 1",
             f"v_lshl_or_b32 v{RA}, v{A2}, 4, v{RA}",
             f"v_lshl_or_b32 v{RA}, v{TA}, 8, v{RA}",
             f"v_bfe_u32 v{A2}, v{LN}, 3, 1",
             f"v_mul_u32_u24 v{A2}, {RED_DT}, v{A2}",
             f"s_and_b32 s{sG}, s{sW}, 1",
             f"s_lshr_b32 s{sJJ}, s{sW}, 1",
             f"s_lshl4_add_u32 s{sG}, s{sG}, s{sJJ}",
             f"s_lshl_b32 s{sG}, s{sG}, 7",
             f"s_add_u32 s{sG}, s{sG}, {RED}",
             f"v_add3_u32 v{RA}, v{RA}, v{A2}, s{sG}",
             f"v_lshlrev_b32 v{OA}, 4, v{OA}",
             f"v_lshl_or_b32 v{OA}, v{TA}, 11, v{OA}",
             f"s_lshl_b32 s{sXO}, s{sXO}, 1",
             f"s_mul_i32 s{sG}, s{sW}, {RED_SRC}"]
    prep2 = [lambda a: a.need([vr(DK, 4), vr(XV, 16)])]
    for h in range(2):
        prep2 += [f"v_lshlrev_b32 v{DF+2*h}, 16, v{DK+h}", f"v_and_b32 v{DF+2*h+1}, 0xffff0000, v{DK+h}",
                  f"v_lshlrev_b32 v{BF+2*h}, 16, v{BB+h}", f"v_and_b32 v{BF+2*h+1}, 0xffff0000, v{BB+h}"]
    for n in range(4):
        for c in range(4):
            b = BASE + 4 * n + c
            src = XV + 2 * n + (c >> 1)
            prep2 += [f"v_lshlrev_b32 v{b}, 16, v{src}" if c % 2 == 0 else f"v_and_b32 v{b}, 0xffff0000, v{src}",
                      f"v_sub_f32 v{TA}, v{b}, v{MN+n}",
                      f"v_mul_f32 v{TA}, v{TA}, v{RS+n}",
                      f"v_add_f32 v{b}, v{b}, v{BF+c}",
                      f"v_fmac_f32 v{b}, v{TA}, v{DF+c}"]

    def add4(x, y, packed):
        if packed:
            return [f"v_pk_add_f32 {vr(x+h,2)}, {vr(x+h,2)}, {vr(y+h,2)}" for h in (0, 2)]
        return [f"v_add_f32 v{x+c}, v{x+c}, v{y+c}" for c in range(4)]

    def reduce(L, packed):
        acc, tt = 32 * L, L & 1
        w = [f"s_add_u32 m0, s{sG}, {RED_TT*tt}"]
        for dt in range(2):
            for i in range(16):
                w.append((f"ds_write_addtid_b32 v{acc+16*dt+i} offset:{RED+dt*RED_DT+i*256}", "RW"))
        r = [lambda a: a.wait_lg("RW"), "s_barrier"]
        for it in range(2):
            for q in range(4):
                r.append(f"ds_read_b128 {vr(acc+16*it+4*q,4)}, v{RA} offset:{RED_TT*tt+q*RED_SRC+it*1024}")
        e = []
        for it in range(2):
            p = acc + 16 * it
            e.append(lambda a, p=p: a.need([vr(p, 16)]))
            if L < 2:
                e += add4(p, p + 4, packed) + add4(p + 8, p + 12, packed) + add4(p, p + 8, packed)
                e += [f"v_cvt_pk_bf16_f32 v{acc+4+2*it+h}, v{p+2*h}, v{p+2*h+1}" for h in range(2)]
                if it and not OPT["x_abl"] & 8:
                    e.append(f"buffer_store_dwordx4 {vr(acc+4,4)}, v{L16}, {srd(SWS)}, s{sXS} offen offset:{1024*tt} sc1")
            else:
                b = BASE + 8 * tt + 4 * it
                e += add4(p, p + 4, packed) + add4(p + 8, p + 12, packed) + add4(b, p, packed) + add4(b, p + 8, packed)
        return w, r, e

    def xin(tt):
        if OPT["x_abl"] & 8:
            return [f"v_mov_b32 v{XIN+4*tt+k}, 0" for k in range(4)]
        return [f"buffer_load_dwordx4 {vr(XIN+4*tt,4)}, v{L16}, {srd(SWS)}, s{sXI} offen offset:{1024*tt} sc1"]

    def xcheck(tt):
        def f(a):
            x, name = XIN + 4 * tt, f"L_xc{tt}"
            a.need([vr(x, 4)])
            a.I(f"s_mov_b32 s{sT2}, 0")
            a.label(name)
            a.I(f"v_max3_u32 v{TA}, v{x}, v{x+1}, v{x+2}")
            a.I(f"v_max_u32 v{TA}, v{TA}, v{x+3}")
            a.I(f"v_cmp_eq_u32 vcc, -1, v{TA}")
            a.I(f"s_cmp_eq_u64 vcc, 0")
            a.I(f"s_cbranch_scc1 {name}_done")
            save, pos = list(a.vmq), a.pos
            a.I(f"s_add_u32 s{sT2}, s{sT2}, 1")
            a.I(f"s_cmp_ge_u32 s{sT2}, {SPIN_MAX}")
            a.I(f"s_cbranch_scc1 {name}_done")
            for l in xin(tt):
                a.I(l, track=False)
            a.wait_vm_all()
            a.I(f"s_branch {name}")
            a.vmq, a.pos = save, pos
            a.label(name + "_done")
            if DEBUG and not OPT["rt"]:
                CNTS.append(name)
                a.I(f"v_writelane_b32 v{STAMPV}, s{sT2}, {39+len(CNTS)}")
        return f

    def final(tt, packed=True):
        e = [xcheck(tt)]
        for it in range(2):
            b = BASE + 8 * tt + 4 * it
            x, u = XIN + 4 * tt + 2 * it, XIN + 8
            for h in range(2):
                e += [f"v_lshlrev_b32 v{u+2*h}, 16, v{x+h}", f"v_and_b32 v{u+2*h+1}, 0xffff0000, v{x+h}"]
            e += [f"s_add_u32 s{sJJ}, s{sXO}, {(32*tt+4*it)*2048}"] + add4(b, u, packed)
            e.append(f"buffer_store_dwordx4 {vr(b,4)}, v{OA}, {srd(SOUT)}, s{sJJ} offen {OPT['outflags']}")
        return e

    first = {1: min(n for n, (L, s) in enumerate(st) if s >= 7), 2: min(n for n, (L, s) in enumerate(st) if 4 <= s < 7)}
    done = [max(n for n, (L, s) in enumerate(st) if L == q) + 1 for q in range(4)]
    gate = {k: v - OPT["look"] for k, v in first.items()}
    issue, t, cnt = {}, 0, 0
    for f in range(2 * OPT["pro"], 88):
        m = f // 2
        lo = max([m - OPT["far"], 0] + [gate[k] for k in first if m >= first[k]])
        if lo > t:
            t, cnt = lo, 0
        if cnt >= OPT["rate"]:
            t, cnt = t + 1, 0
        assert t < m and OPT["far"] <= 9
        issue.setdefault(t, []).append(f)
        cnt += 1
    main = []
    for n, (L, s) in enumerate(st):
        ms = []
        for e in range(2):
            for dt in range(2):
                D = vr(32 * L + 16 * dt, 16)
                ms.append(f"v_mfma_f32_32x32x16_bf16 {D}, {hreg(2*n+e)}, {wreg(s,e,dt)}, {D if s or e else '0'}")
        regs = [hreg(2 * n), hreg(2 * n + 1), ar(16 * s, 16)]
        g0 = [lambda a, regs=regs: a.need(regs)]
        if n == 0 or OPT['only']:
            g0.append(stamp(f"k{n}"))
        g0.append(ms[0])
        g1, g2, g3 = [ms[1]], [ms[2]], [ms[3]]
        for stage in (1, 2):
            if n == gate[stage]:
                g0.append(hpoll(stage))
        for stage in (1, 2):
            lead = OPT["plead"] if gate[stage] == min(gate.values()) else min(OPT["plead"], abs(gate[2] - gate[1]))
            if n + lead == gate[stage]:
                g1.append(hload(stage))
        if n == max(gate.values()):
            g1.append(XLOAD)
        if n == max(gate.values()) + 7:
            g1.append(spoll("L_xr", XLOAD, 1))
        ld = issue.get(n, [])
        for j, f in enumerate(ld):
            (g0, g2, g1, g3)[j if len(ld) <= 2 else (0, 2, 1, 3)[j]].extend(al[f])
        if n == OPT["flag2_at"]:
            g1 += hflag(2)
        if n == OPT["flag1_at"]:
            g1 += hflag(1)
        main += [g0, g1, g2, g3]
    plans = [(prep, 2, 14), (prep2, 16, 4 * done[0])]
    for L in range(3):
        rw, rs1, rr, rs2, re = [int(v) for v in (OPT["red"].split(",") * 3)[L].split("/")]
        w, r, e = reduce(L, False)
        g = 4 * done[L] + 2
        plans += [(w, g, g + rw), (r, g + rw + rs1, g + rw + rs1 + rr)]
        g += rw + rs1 + rr + rs2
        plans.append((e, g, min(g + re, 176)))
    plans.append(([xin(0)], OPT["xin0"], OPT["xin0"] + 1, 1))
    plans.append(([xin(1)], OPT["xin1"], OPT["xin1"] + 1, 1))
    inloop = OPT["fin0"] < 176
    if inloop:
        plans.append((final(0, False), OPT["fin0"], 176))
    if OPT["x_p2"] & 1:
        txt = lambda it: (it[0] if isinstance(it, tuple) else it) if not callable(it) and not isinstance(it, list) else ""
        plans = [([it for it in p[0] if not txt(it).startswith("s_barrier")],) + tuple(p[1:]) for p in plans]
    if OPT["x_p2"] & 2:
        txt = lambda it: (it[0] if isinstance(it, tuple) else it) if not callable(it) and not isinstance(it, list) else ""
        plans = [([it for it in p[0] if not txt(it).startswith("ds_write")],) + tuple(p[1:]) for p in plans]
    for g in spread(main, plans):
        a.run(g)
    I(stamp("mfma done"))
    w, r, e = reduce(3, True)
    a.run(w + ([] if inloop else final(0)) + r)
    I(stamp("fin0"))
    a.run(e + final(1))
    I(stamp("out issued"))
    if DEBUG:
        a.wait_vm_all()
    I(stamp("out done"))


import os
HEADER = open(os.path.dirname(os.path.abspath(__file__)) + "/header.txt").read()


def kd(name):
    return f""".amdhsa_kernel {name}
  .amdhsa_next_free_vgpr 512
  .amdhsa_next_free_sgpr 102
  .amdhsa_accum_offset 256
  .amdhsa_group_segment_fixed_size 0
  .amdhsa_float_denorm_mode_32 3
  .amdhsa_kernarg_size 136
  .amdhsa_user_sgpr_count 2
  .amdhsa_user_sgpr_kernarg_segment_ptr 1
  .amdhsa_system_sgpr_workgroup_id_x 1
.end_amdhsa_kernel
"""


OPT = dict(only='', x_drop='', x_w0=0, xp_at=9, pre_pairs=2, par_n=4, rt=0, x_p2=0, x_nostore=0, spin=0, hsflags='sc1', aflags='sc1', outflags='sc1', hglc=1,
           rotmask=7, x_first=1, x_second=1, w_loop=2, go_at=5,
           sch='W:-2:5,go:6,R:7:12,H2:14:28,pick:34,RS:36:44,H3:30:46,H4:48:62,H5:64:78,XP:80:84,bflag:66,xr:104,bpoll:90,bchk:110,B:111:190,f0:150,hl0:176',
           b2=44, x_abl=0, t3_late=0, t1_at=-1, p_at=-1, g1_pk=0, e_win=6, e_len=14, scan_q=8, eload_q=3, a_q='1/8', flag1_at=6, flag2_at=-1,
           la=2, wp=1, pro=9, pro_q=10, far=9, rate=2, look=5, plead=4, ord=1, red='6/2/2/2/5', xin0=146, xin1=164, fin0=169)


def build():
    a = Asm()
    k1 = NAME + "_kernel"
    a.raw(HEADER.rstrip())
    a.raw("; @launch grid=(256,1,1) block=(256,1,1) lds=163840")
    a.raw('.amdgcn_target "amdgcn-amd-amdhsa--gfx950"\n.text')
    a.raw(f".globl {k1}\n.p2align 8\n.type {k1},@function\n{k1}:")
    a.I("s_cmp_ge_u32 s2, 256")
    a.I("s_cbranch_scc1 L_end")
    if DEBUG:
        a.I("s_memrealtime s[86:87]")
    phase1(a, k1)
    phase2(a)
    if OPT["spin"]:
        a.I("s_cmp_lg_u32 s2, 100\ns_cbranch_scc1 L_end")
        a.I(f"s_cmp_lg_u32 s{sW}, 3\ns_cbranch_scc1 L_end")
        a.I("s_mov_b32 s4, 0")
        a.label("L_spin")
        a.I("s_memrealtime s[6:7]")
        a.wait_lg_all()
        a.I("s_sub_u32 s6, s6, s70\ns_add_u32 s4, s4, 1\ns_cmp_ge_u32 s4, 20000\ns_cbranch_scc1 L_end\ns_cmp_lt_u32 s6, 6000\ns_cbranch_scc1 L_spin")
    stamp_flush(a, 0)
    a.label("L_end")
    a.I("s_endpgm")
    a.raw('.section .rodata,"a"\n.p2align 6')
    a.raw(kd(k1))
    print(f"instructions: {a.count}, nops {a.nops}", file=sys.stderr)
    return a.text()


if __name__ == "__main__":
    out = sys.argv[1] if len(sys.argv) > 1 else f"cdna_kernels/{NAME}.s"
    DEBUG = "-d" in sys.argv
    for arg in sys.argv[2:]:
        if "=" in arg:
            k, v = arg.split("=", 1)
            OPT[k] = type(OPT[k])(v)
    txt = build()
    if DEBUG:
        txt += "; STAMPS " + ",".join(STAMPS) + "\n; CNTS " + ",".join(CNTS) + "\n"
    open(out, "w").write(txt)
```

```python
import sys, math, struct
from asmlib import Asm, TRANS

NAME = "parallel_sum__ssm_conv_s5__mixer_channel_mlp__prompt"
KB = 1024
RT_STRIDE = 176 * KB
G_STRIDE = 44 * KB
HID = 0
BW = 64 * RT_STRIDE
EOFF = BW + 16 * RT_STRIDE
HFLAG = EOFF + 64 * KB
XFLAG = HFLAG + 64 * KB
BFLAG = XFLAG + 32 * KB
XCH = 16 * 1024 * KB
WS_END = XCH + 2048 * KB
SPIN_MAX = 100000

H = [0, 32 * KB, 64 * KB, 96 * KB, 128 * KB, 0]
PARK = H[1]
ETAB = H[1] + 1 * KB
EIN = 108 * KB
TRB = H[4]


def f32(x):
    return "0x%08x" % struct.unpack("<I", struct.pack("<f", x))[0]


pX, pLRE, pLIM, pBRE, pBIM, pCRE, pCIM, pLDT = [4 + 2 * i for i in range(8)]
pDSK, pBX, pW1, pB1, pW2, pB2, pOUT, pDBG = [20 + 2 * i for i in range(8)]
pWS = 36
SX, SBR, SBI, SW1, SR, SWS, SWS2, SW1B, SRS, SOUT, SDBG, SE = [40 + 4 * i for i in range(12)]
sW, sR, sJ, sJJ, sG, sROT, sT0, sT1, sT2, sRA, sRB, sHB, sONE, sFL = range(88, 102)
sXB = 38
sUB = 39
sWL = 3
sA1, sXF, sHP, sXP, sXI, sXS = 6, 7, 8, 10, 12, 13
sI2, sN, sB0, sA0, sG2, sP0, sP1 = 15, 16, 17, 18, 19, 24, 25
sCS, sCM0, sCM1 = 26, 27, 28
sHF = 29
sRS = 1
sINI = 0


def srd(n):
    return f"s[{n}:{n+3}]"


def sp(n):
    return f"s[{n}:{n+1}]"


def vr(n, c=1):
    return f"v{n}" if c == 1 else f"v[{n}:{n+c-1}]"


def ar(n, c=1):
    return f"a{n}" if c == 1 else f"a[{n}:{n+c-1}]"


X = 0
ACA, ACB = 128, 160
VQ, VW, RDS, RDT = 192, 196, 200, 204
L16 = 206
MEAN, RSTD, IR2, K0, K1 = 207, 208, 209, 210, 211
PA, PC, PA16, PAS, PAH, PA256, PP = 212, 214, 216, 218, 220, 222, 224
BIA = 226
KEEP = 238
T = 242
STASH = 176
aTW, aTR, aXD, aAA, aES, aEA, aARS, aARW, aAET = 176, 177, 178, 179, 181, 182, 183, 184, 185
STG = 192


DEBUG = False
STAMPV = T + 3
STAMPS = []
DBGOFF = 15 * 1024 * KB


def stamp(name):
    def f(a):
        if not DEBUG:
            return
        if OPT["only"] and name not in ("start", "out done") and name not in OPT["only"].split(","):
            return
        n = len(STAMPS)
        STAMPS.append(name)
        if name.endswith("start") and name[0] in "sk":
            a.I("s_memrealtime s[22:23]")
            a.wait_lg_all()
            a.I(f"v_writelane_b32 v{STAMPV}, s22, 62")
            a.I(f"v_writelane_b32 v{STAMPV}, s86, 61")
        a.I("s_memtime s[22:23]")
        a.wait_lg_all()
        a.I(f"v_writelane_b32 v{STAMPV}, s22, {n}")
        if OPT["rt"]:
            a.I("s_memrealtime s[22:23]")
            a.wait_lg_all()
            a.I(f"v_writelane_b32 v{STAMPV}, s22, {32+n}")
    return f


def stamp_flush(a, which):
    if not DEBUG:
        return
    a.I("s_memrealtime s[22:23]")
    a.wait_lg_all()
    a.I(f"v_writelane_b32 v{STAMPV}, s22, 63")
    a.I(f"s_lshl_b32 s22, s2, 2\ns_add_u32 s22, s22, s{sW}\ns_lshl_b32 s22, s22, 8\ns_add_u32 s22, s22, {DBGOFF + which*256*KB}")
    a.I(f"v_mbcnt_lo_u32_b32 v0, -1, 0\nv_mbcnt_hi_u32_b32 v0, -1, v0\nv_lshlrev_b32 v0, 2, v0")
    a.I(f"buffer_store_dword v{STAMPV}, v0, {srd(SWS)}, s22 offen")


def mk_srd(a, n, ptr, size):
    a.I(f"s_mov_b64 s[{n}:{n+1}], s[{ptr}:{ptr+1}]")
    a.I(f"s_mov_b32 s{n+2}, {size}")
    a.I(f"s_mov_b32 s{n+3}, 0x20000")


def load_kernargs(a):
    a.I("s_load_dwordx16 s[4:19], s[0:1], 0")
    a.I("s_load_dwordx16 s[20:35], s[0:1], 64")
    a.I("s_load_dwordx2 s[36:37], s[0:1], 128")


def dma4(vbase, s, soff, m0expr, tag):
    it = list(m0expr)
    for q in range(4):
        it.append((f"buffer_load_dwordx4 v{vbase+q}, {srd(s)}, s{soff} offen offset:{q*1024} lds", tag))
    return it


def stage_regs(n):
    return [ar(STG + 16 * (n & 3), 16)]


def frag_reads(n):
    u, d = divmod(n, 16)
    it = []
    for s in range(2):
        k = 2 * d + s
        base = STG + 16 * (n & 3) + 8 * s
        if u == 1:
            for part in range(2):
                it.append(f"ds_read_b128 {ar(base+4*part,4)}, v{RDS+(k&3)} offset:{(k>>2)*8192+part*4096}")
        else:
            kk = k if u == 0 else (k & 15)
            for t in range(2):
                for e in range(2):
                    it.append(f"ds_read_b64_tr_b16 {ar(base+4*t+2*e,2)}, v{RDT+t} offset:{kk*2048+e*512}")
    return it


def mfmas(n):
    u, d = divmod(n, 16)
    res = []
    for s in range(2):
        k = 2 * d + s
        base = STG + 16 * (n & 3) + 8 * s
        for t in range(2):
            D = vr((ACA, ACB, ACA)[u] + 16 * t, 16)
            c = D if k else "0"
            bias = f"v_mfma_f32_32x32x16_bf16 {D}, {vr(BIA+u,4)}, {vr(BIA+4+4*t,4)}, {c}"
            g = []
            if u == 1:
                g.append(f"v_mfma_f32_32x32x16_bf16 {D}, {vr(X+4*k,4)}, {ar(base+4*t,4)}, {c}")
            else:
                if u == 2 and k == 0:
                    g.append(bias)
                    c = D
                g.append(f"v_mfma_f32_32x32x16_bf16 {D}, {ar(base+4*t,4)}, {vr(X+4*k,4)}, {c}")
                if u == 0 and k == 31:
                    g.append(bias)
            res.append(g)
    return res


LN, HH, RHO = T, T + 6, T + 7


def cpow(dst, nreg_or_const, zr, zv, t0, t1):
    it = []
    n = nreg_or_const
    if n == 1:
        it += [f"v_exp_f32 v{t0}, v{zr}", f"v_fract_f32 v{t1}, v{zv}"]
    else:
        src = n if isinstance(n, str) else f32(float(n))
        it += [f"v_mul_f32 v{t0}, {src}, v{zr}", f"v_mul_f32 v{t1}, {src}, v{zv}",
               f"v_exp_f32 v{t0}, v{t0}", f"v_fract_f32 v{t1}, v{t1}"]
    it += [f"v_cos_f32 v{dst}, v{t1}", f"v_sin_f32 v{dst+1}, v{t1}",
           f"v_mul_f32 v{dst}, v{dst}, v{t0}", f"v_mul_f32 v{dst+1}, v{dst+1}, v{t0}"]
    return it


def fill_u0():
    it = []
    A0, A1, A2, A3 = [ACB + 8 + i for i in range(4)]
    EPS = f32(1e-5)
    k0 = -2.0 * math.log2(math.e) * math.sqrt(2.0 / math.pi)
    k1 = k0 * 0.044715
    it += [f"v_mov_b32 v{A0}, v{RSTD}",
           f"v_mul_f32 v{MEAN}, {f32(1/512)}, v{MEAN}",
           f"v_permlane32_swap_b32 v{A0}, v{RSTD}",
           f"v_add_f32 v{RSTD}, v{A0}, v{RSTD}",
           f"v_mul_f32 v{A0}, {f32(1/512)}, v{RSTD}",
           f"v_fma_f32 v{A0}, -v{MEAN}, v{MEAN}, v{A0}",
           f"v_max_f32 v{A0}, 0, v{A0}",
           f"v_add_f32 v{A1}, {EPS}, v{A0}",
           f"v_cvt_pk_bf16_f32 v{A2}, v{A0}, v{A0}",
           f"v_lshlrev_b32 v{A2}, 16, v{A2}",
           f"v_add_f32 v{A2}, {EPS}, v{A2}",
           f"v_cvt_pk_bf16_f32 v{A2}, v{A2}, v{A2}",
           f"v_lshlrev_b32 v{A2}, 16, v{A2}",
           f"v_sqrt_f32 v{A2}, v{A2}",
           f"v_fmac_f32 v{A0}, {EPS}, v{A1}",
           f"v_cvt_pk_bf16_f32 v{A2}, v{A2}, v{A2}",
           f"v_lshlrev_b32 v{A2}, 16, v{A2}",
           f"v_rcp_f32 v{RSTD}, v{A2}",
           f"v_rsq_f32 v{A2}, v{A0}",
           f"v_sqrt_f32 v{IR2}, v{A0}",
           f"v_mul_f32 v{K0}, {f32(k0)}, v{A2}",
           f"v_mul_f32 v{A3}, v{A2}, v{A2}",
           f"v_mul_f32 v{A3}, {f32(0.044715)}, v{A3}",
           f"v_mul_f32 v{K1}, v{K0}, v{A3}",
           f"v_cvt_pk_bf16_f32 v{A2}, v{IR2}, v{IR2}",
           f"v_and_b32 v{A3}, 0xffff0000, v{A2}",
           f"v_sub_f32 v{A3}, v{IR2}, v{A3}",
           f"v_cvt_pk_bf16_f32 v{A2}, v{IR2}, v{A3}",
           f"v_mul_lo_u32 v{BIA+8}, v{A2}, v{HH}",
           f"v_sub_u32 v{BIA+4}, v{A2}, v{BIA+8}"]
    return it


def ssm_params():
    it = []
    A0, A1, A2, A3 = [ACB + 8 + i for i in range(4)]
    for k in range(2):
        it.append(f"v_lshl_or_b32 v{BIA+2*k}, v{BIA+2*k}, 16, v{BIA+2*k}")
    LR, LI, ZR, ZV = [ACB + 12 + i for i in range(4)]
    it += [f"v_lshlrev_b32 v{LR}, 16, v{PA}",
           f"v_lshlrev_b32 v{LI}, 16, v{PA+1}",
           f"v_lshlrev_b32 v{A0}, 16, v{PC}",
           f"v_mul_f32 v{A0}, {f32(math.log2(math.e))}, v{A0}",
           f"v_exp_f32 v{A0}, v{A0}",
           f"v_cvt_f32_u32 v{A2}, v{HH}",
           f"v_cvt_pk_bf16_f32 v{A0}, v{A0}, v{A0}",
           f"v_and_b32 v{A0}, 0xffff0000, v{A0}",
           f"v_mul_f32 v{ZR}, v{A0}, v{LR}",
           f"v_mul_f32 v{ZV}, v{A0}, v{LI}",
           f"v_mul_f32 v{ZR}, {f32(math.log2(math.e))}, v{ZR}",
           f"v_mul_f32 v{ZV}, 0.15915494, v{ZV}"]
    it += cpow(PA, 1, ZR, ZV, A0, A1)
    it += cpow(PA16, 16, ZR, ZV, A0, A1)
    it += cpow(PA256, 256, ZR, ZV, A0, A1)
    it += [f"v_mul_f32 v{A3}, {f32(128.0)}, v{A2}"]
    it += cpow(PAH, f"v{A3}", ZR, ZV, A0, A1)
    it += [f"s_lshl_b32 s{sROT}, s{sW}, 1",
           f"v_add_u32 v{A3}, s{sROT}, v{HH}",
           f"v_cvt_f32_u32 v{A3}, v{A3}",
           f"v_mul_f32 v{A3}, {f32(16.0)}, v{A3}"]
    it += cpow(PAS, f"v{A3}", ZR, ZV, A0, A1)
    it += [f"v_mul_f32 v{A0}, v{LR}, v{LR}",
           f"v_fmac_f32 v{A0}, v{LI}, v{LI}",
           f"v_rcp_f32 v{A0}, v{A0}",
           f"v_add_f32 v{A1}, -1.0, v{PA}",
           f"v_mul_f32 v{A2}, v{A1}, v{LR}",
           f"v_fmac_f32 v{A2}, v{PA+1}, v{LI}",
           f"v_mul_f32 v{A3}, v{PA+1}, v{LR}",
           f"v_fma_f32 v{A3}, -v{A1}, v{LI}, v{A3}",
           f"v_add_f32 v{A0}, v{A0}, v{A0}",
           f"v_mul_f32 v{PC}, v{A2}, v{A0}",
           f"v_mul_f32 v{PC+1}, v{A3}, v{A0}"]
    return it


def xready():
    return [lambda a: a.wait_vm("XP"), f"buffer_store_dword v{FONE}, v{FZERO}, {srd(SWS)}, s{sXF} offen sc1"]


ARS, AET, ARW = VQ + 1, VQ + 2, VQ + 3
E0 = T + 4


def unstash(dst, src):
    return f"v_accvgpr_read_b32 v{dst}, a{src}"


def fill_u1():
    it, rest = [], []
    tmp = [T + 10 + i for i in range(4)]
    for qd in range(8):
        l = it if qd < 8 - OPT["g1_pk"] else rest
        l += gelu_plain([ACA + 4 * qd + i for i in range(4)], tmp) if l is it else gelu_packed(ACA + 4 * qd, T + 10)
        if qd & 1:
            l += pack_store(ACA + 8 * (qd >> 1), SWS, sHB, 1024 * (qd >> 1), "HS0")
    return it, rest


def stats_to_lds():
    Z = T + 8
    return [unstash(ARW, aARW), unstash(AET, aAET), unstash(ARS, aARS),
            f"v_mov_b32 v{Z}, 0", f"v_mov_b32 v{Z+1}, 0",
            f"ds_write_b32 v{ARW}, v{RSTD}",
            f"ds_write_b32 v{ARW}, v{MEAN} offset:512",
            f"ds_write_b64 v{AET}, {vr(Z,2)}"]


def fill_u2a():
    RS = RDS
    E1 = PP
    it = []
    for i0 in range(0, 16, 4):
        for i in range(i0, i0 + 4):
            it += [f"v_mul_f32 v{ACB+i}, v{ACB+i}, v{RS+(i&3)}",
                   f"v_mul_f32 v{ACB+16+i}, v{ACB+16+i}, v{RS+(i&3)}"]
        if i0 < 12:
            it.append(f"ds_read_b128 {vr(RS,4)}, v{ARS} offset:{4*i0+16}")
        for i in range(max(i0, 1), i0 + 4):
            cr, ci = (ACB, ACB + 16) if i == 1 else ((E1, E1 + 1) if i & 1 else (E0, E0 + 1))
            nx = E0 if i & 1 else E1
            it += [f"v_fma_f32 v{nx}, v{PA}, v{cr}, v{ACB+i}",
                   f"v_fma_f32 v{nx+1}, v{PA}, v{ci}, v{ACB+16+i}",
                   f"v_fma_f32 v{nx}, -v{PA+1}, v{ci}, v{nx}",
                   f"v_fmac_f32 v{nx+1}, v{PA+1}, v{cr}"]
    it.append((f"ds_write_b64 v{AET}, {vr(E0,2)} offset:2048", "E"))
    return it


def fill_u2b():
    it = []
    slots = [RDS, RDS + 2, VW, VW + 2, T + 8, T + 10, T + 12]
    for m in range(6, -1, -1):
        it.append(f"ds_read_b64 {vr(slots[m],2)}, v{AET} offset:{(7-m)*256}")
    XD, AA, ES = T + 1, X, T + 2
    it += [unstash(XD, aXD), unstash(AA, aAA), unstash(AA + 1, aAA + 1), unstash(ES, aES)]
    it.append(lambda a: a.need([vr(x, 2) for x in slots]))
    cur = slots[6]
    for m in range(5, -1, -1):
        dst = PP if m == 0 else slots[m]
        it += cfma(dst, PA16, cur, slots[m])
        cur = dst
    it += cfma(E0, PA16, PP, E0)

    def estore(a):
        a.I(f"s_cmp_lg_u32 s{sW}, 3")
        a.I("s_cbranch_scc1 L_noe")
        pos = a.pos
        a.I(f"buffer_store_dwordx2 {vr(E0,2)}, v{ES}, {srd(SE)}, 0 offen sc1", track=False)
        a.pos = pos
        a.label("L_noe")
    it.append(estore)
    for tt in range(2):
        it += [f"s_add_u32 m0, s{sAX}, {1024*tt}\ns_add_u32 s{sT0}, s{sXO}, {32768*tt}",
               (f"buffer_load_dwordx4 v{XD}, {srd(SX)}, s{sT0} offen lds", "AUX")]
    it += [f"s_add_u32 m0, s{sAX}, 2048\ns_add_u32 s{sRA}, s{sHB}, {16*KB}", (f"global_load_lds_dwordx4 {vr(AA,2)}, off", "AUX")]
    return it


def gelu_plain(regs, tmp):
    it = []
    n = len(regs)
    for r, t in zip(regs, tmp):
        it.append(f"v_mul_f32 v{t}, v{r}, v{r}")
    for r, t in zip(regs, tmp):
        it.append(f"v_fma_f32 v{t}, v{t}, v{K1}, v{K0}")
    for r, t in zip(regs, tmp):
        it.append(f"v_mul_f32 v{t}, v{t}, v{r}")
    for r, t in zip(regs, tmp):
        it.append(f"v_exp_f32 v{t}, v{t}")
    for r, t in zip(regs, tmp):
        it.append(f"v_fma_f32 v{t}, v{t}, v{IR2}, v{IR2}")
    for r, t in zip(regs, tmp):
        it.append(f"v_rcp_f32 v{t}, v{t}")
    for r, t in zip(regs, tmp):
        it.append(f"v_mul_f32 v{r}, v{r}, v{t}")
    return it


def gelu_packed(base, tmp):
    it = []
    kk = vr(K0, 2)
    ii = vr(RSTD, 2)
    for p in (0, 2):
        it.append(f"v_pk_mul_f32 {vr(tmp+p,2)}, {vr(base+p,2)}, {vr(base+p,2)}")
    for p in (0, 2):
        it.append(f"v_pk_fma_f32 {vr(tmp+p,2)}, {vr(tmp+p,2)}, {kk}, {kk} op_sel:[0,1,0] op_sel_hi:[1,1,0]")
    for p in (0, 2):
        it.append(f"v_pk_mul_f32 {vr(tmp+p,2)}, {vr(tmp+p,2)}, {vr(base+p,2)}")
    for p in range(4):
        it.append(f"v_exp_f32 v{tmp+p}, v{tmp+p}")
    for p in (0, 2):
        it.append(f"v_pk_fma_f32 {vr(tmp+p,2)}, {vr(tmp+p,2)}, {ii}, {ii} op_sel:[0,1,1] op_sel_hi:[1,1,1]")
    for p in range(4):
        it.append(f"v_rcp_f32 v{tmp+p}, v{tmp+p}")
    for p in (0, 2):
        it.append(f"v_pk_mul_f32 {vr(base+p,2)}, {vr(base+p,2)}, {vr(tmp+p,2)}")
    return it


_gp, _gk = gelu_plain, gelu_packed
gelu_plain = lambda regs, tmp: [] if OPT["x_abl"] & 1 else _gp(regs, tmp)
gelu_packed = lambda base, tmp: ["v_nop"] if OPT["x_abl"] & 2 else _gk(base, tmp)


def pack_store(base, s, soff, off, tag):
    it = [f"v_cvt_pk_bf16_f32 v{base+n}, v{base+2*n}, v{base+2*n+1}" for n in range(4)]
    if OPT["x_nostore"] == 1:
        return it
    it.append((f"buffer_store_dwordx4 {vr(base,4)}, v{L16}, {srd(s)}, s{soff} offen offset:{off} {OPT['hsflags']}", tag))
    return it


def cfma(dst, m, x, add):
    return [f"v_fma_f32 v{dst}, v{m}, v{x}, v{add}",
            f"v_fma_f32 v{dst+1}, v{m}, v{x+1}, v{add+1}",
            f"v_fma_f32 v{dst}, -v{m+1}, v{x+1}, v{dst}",
            f"v_fmac_f32 v{dst+1}, v{m+1}, v{x}"]


def poll(a, name, val, addr, s, soff, m="vcc"):
    ld = f"buffer_load_dword v{val}, v{addr}, {srd(s)}, {soff} offen sc1"
    a.need([f"v{val}"])
    a.I(f"v_cmp_eq_u32 {m}, 0, v{val}")
    a.I(f"s_mov_b32 s{sT2}, 0")
    a.I(f"s_cmp_eq_u64 {m}, 0")
    a.I(f"s_cbranch_scc1 {name}_done")
    save, pos = list(a.vmq), a.pos
    a.label(name)
    a.I(ld, track=False)
    a.wait_vm_all()
    a.I(f"v_cmp_eq_u32 {m}, 0, v{val}")
    a.I(f"s_add_u32 s{sT2}, s{sT2}, 1")
    a.I(f"s_cmp_ge_u32 s{sT2}, {SPIN_MAX}")
    a.I(f"s_cbranch_scc1 {name}_done")
    a.I(f"s_cmp_eq_u64 {m}, 0")
    a.I(f"s_cbranch_scc0 {name}")
    a.vmq, a.pos = save, pos
    a.label(name + "_done")
    if DEBUG and not OPT["rt"]:
        CNTS.append(name)
        a.I(f"v_writelane_b32 v{STAMPV}, s{sT2}, {39+len(CNTS)}")


def xlds(c):
    return 32 * KB * (1 + (c >> 1)) + 4 * KB * (c & 1)


def xgroup(c):
    return dma4(VQ, SX, sT0, [f"s_add_u32 m0, s{sWL}, {xlds(c)}", f"s_xor_b32 s{sT0}, s{sXB}, {c<<7}"], f"x{c}")


def wgroup(n, half):
    tag = f"H{n}"
    pre = [f"s_add_u32 m0, s{sWL}, {H[n] + 4*KB*half}"]
    if n in (2, 3):
        pre += [f"s_xor_b32 s{sT0}, s{sCS}, {512*(n&1)}"]
        return dma4(VQ, SBI if half else SBR, sT0, pre, tag)
    off = 32 * 3584 * half + (128 if n >= 4 else 0)
    pre += [f"s_add_u32 s{sT0}, s{sCM1 if n&1 else sCM0}, {off}"]
    return dma4(VW, SW1B if n >= 4 else SW1, sT0, pre, tag)


def cost(it):
    if callable(it):
        return 1
    if isinstance(it, tuple):
        it = it[0]
    c = 0
    for l in it.split("\n"):
        mn = l.split()[0]
        if mn in TRANS or mn.startswith("v_mfma"):
            c += 2
        elif mn == "ds_write_b128":
            c += 6
        elif mn.startswith("ds_write_addtid"):
            c += 2
        elif mn.startswith("ds_write"):
            c += 4
        elif mn == "buffer_store_dwordx4":
            c += 7
        elif mn.startswith("buffer_") or mn.startswith("global_"):
            c += 3
        else:
            c += 1
    return c


def grp(items):
    res, cur = [], []
    for it in items:
        cur.append(it)
        if not (isinstance(it, str) and it.startswith("s_")):
            res.append(cur)
            cur = []
    return res


def spread(main, plans):
    load = [sum(map(cost, g)) for g in main]
    gaps = [[] for _ in main]
    for items, g0, g1, *uni in plans:
        if not items:
            continue
        if uni:
            for j, grp in enumerate(items):
                i = g0 + (j * (g1 - g0)) // len(items)
                gaps[i] += grp
                load[i] += sum(map(cost, grp))
            continue
        tot = sum(load[g0:g1]) + sum(map(cost, items))
        acc, j = 0, 0
        for i in range(g0, g1):
            acc += load[i]
            target = tot * (i - g0 + 1) / (g1 - g0)
            while j < len(items) and (acc + cost(items[j]) / 2 <= target or i == g1 - 1):
                gaps[i].append(items[j])
                acc += cost(items[j])
                load[i] += cost(items[j])
                j += 1
    return [m + g for m, g in zip(main, gaps)]


NEGM, IDM, CD = ACB, ACB + 4, ACB + 16


def unpack(i):
    return [f"v_mfma_f32_4x4x4_16b_bf16 {vr(CD+4*q,4)}, {vr(IDM,2)}, {vr(X+8*i+2*q,2)}, {vr(NEGM,4)}" for q in range(4)]


def repack(i):
    return [f"v_cvt_pk_bf16_f32 v{X+8*i+n}, v{CD+2*n}, v{CD+2*n+1}" for n in range(8)]


def phase1(a, kname):
    I = a.I
    load_kernargs(a)
    TA, TB, TC, TD = T + 1, T + 2, ACB + 31, T + 4
    SG, PI = T + 8, T + 9
    RR = ACA
    I(f"v_lshrrev_b32 v{TA}, 6, v0")
    I(f"v_and_b32 v{LN}, 63, v0")
    I(f"v_readfirstlane_b32 s{sW}, v{TA}")
    I(f"s_getpc_b64 s[{SR}:{SR+1}]")
    a.label("L_pc")
    I(f"s_and_b32 s{sT0}, s2, 0xf8")
    I(f"v_lshrrev_b32 v{TB}, 5, v0")
    I(f"v_add_lshl_u32 v{RR+8}, s{sT0}, v{TB}, 7")
    I(f"v_mov_b32 v{RR+9}, 0")
    I(f"v_min_u32 v{RR+8}, L_end-L_pc, v{RR+8}")
    I(f"v_lshl_add_u64 {vr(RR+8,2)}, {vr(RR+8,2)}, 0, s[{SR}:{SR+1}]")
    I(f"global_load_dword v{RR+10}, {vr(RR+8,2)}, off", track=False)
    I(f"s_bfe_u32 s{sT1}, s2, 0x20003")
    I(f"s_lshr_b32 s{sT0}, s2, 5")
    I(f"s_and_b32 s{sR}, s2, 3")
    I(f"s_lshl2_add_u32 s{sR}, s{sR}, s{sT1}")
    I(f"s_lshl1_add_u32 s{sROT}, s{sT1}, s{sT0}")
    I(f"s_and_b32 s{sROT}, s{sROT}, {OPT['rotmask']}")
    I(f"s_and_b32 s{sJ}, s2, 4")
    I(f"s_lshl1_add_u32 s{sJ}, s{sJ}, s{sT0}")
    I(f"s_lshl2_add_u32 s{sHB}, s{sR}, s{sW}")
    I(f"s_lshl_b32 s{sXB}, s{sHB}, 8")
    I(f"s_or_b32 s{sXB}, s{sXB}, s{sROT}")
    I(f"s_lshl_b32 s{sXB}, s{sXB}, 7")
    I(f"s_lshl_b32 s{sWL}, s{sW}, 13")
    I(f"v_lshrrev_b32 v{TC}, 4, v{LN}")
    I(f"v_xor_b32 v{TC}, v{LN}, v{TC}")
    I(f"v_and_b32 v{TC}, 7, v{TC}")
    I(f"v_lshlrev_b32 v{TC}, 4, v{TC}")
    I(f"v_bfe_u32 v{TD}, v{LN}, 3, 2")
    I(f"v_lshl_or_b32 v{TC}, v{TD}, 10, v{TC}")
    I(f"v_lshrrev_b32 v{HH}, 5, v{LN}")
    I(f"v_lshl_or_b32 v{VQ}, v{HH}, 14, v{TC}")
    I(f"v_xor_b32 v{VQ+1}, 64, v{VQ}")
    I(f"v_add_u32 v{VQ+2}, {2*3072}, v{VQ}")
    I(f"v_add_u32 v{VQ+3}, {3*3072}, v{VQ+1}")
    I(f"v_add_u32 v{VQ+1}, 3072, v{VQ+1}")
    I(f"s_mov_b32 s{SX+2}, {2048*1024}")
    I(f"s_mov_b32 s{SX+3}, 0x20000")
    x0 = xgroup(0)
    a.run(x0[:2])
    I(f"s_lshl2_add_u32 s{sT1}, s2, s{sW}")
    I(f"s_xor_b32 s{sT1}, s{sT1}, 3")
    I(f"s_and_b32 s{sONE}, s{sT1}, 0x1f")
    a.wait_lg_all()
    I(stamp("start"))
    I(f"s_mov_b64 s[{SX}:{SX+1}], {sp(pX)}")
    I(f"s_cmp_eq_u32 s{sONE}, 0")
    I("s_cbranch_scc1 L_init")
    a.label("L_initdone")
    a.vmq = []
    a.run(x0[2:])
    I(stamp("x0 issued"))
    if OPT["x_w0"]:
        a.raw("    s_waitcnt vmcnt(0)")
        I(stamp("x0 alone"))
    for c in range(1, OPT["x_first"]):
        a.run(xgroup(c))
    I(f"v_and_b32 v{RHO}, 31, v{LN}")
    I(f"v_lshlrev_b32 v{L16}, 4, v{LN}")
    I(f"s_lshr_b32 s{sG}, s{sJ}, 2")
    I(f"s_and_b32 s{sJJ}, s{sJ}, 3")
    I(f"s_mul_i32 s{sUB}, s{sG}, 7")
    I(f"s_lshl1_add_u32 s{sUB}, s{sJJ}, s{sUB}")
    I(f"s_lshl_b32 s{sUB}, s{sUB}, 7")
    mk_srd(a, SWS, pWS, WS_END)
    I(f"s_lshl2_add_u32 s{sT0}, s2, s{sW}")
    I(f"s_lshl_b32 s{sT0}, s{sT0}, 11")
    I(f"s_xor_b32 s{sT0}, s{sT0}, {XCH + 4*8192}")
    for k in range(4):
        I(f"v_accvgpr_write_b32 a{188+k}, -1")
    xp = [(f"buffer_store_dwordx4 {ar(188,4)}, v{L16}, {srd(SWS)}, s{sT0 if OPT['xp_at'] < 0 else sXS} offen offset:{1024*k} sc1", "XP") for k in range(2)]
    if OPT["xp_at"] < 0:
        a.run(xp)
    sBK = sRS
    SCH = dict((e.split(":")[0], [int(v) for v in e.split(":")[1:]]) for e in OPT["sch"].split(","))
    early = "R" not in SCH
    RSLOT = H[0] if early else xlds(6)
    I(f"s_lshl1_add_u32 s{sBK}, s2, s{sW}")
    I(f"s_cmp_lt_u32 s{sBK}, 448")
    I(f"s_cselect_b32 s{SR+2}, {1792*1024}, 0")
    I(f"s_cselect_b32 s{sBK}, s{sBK}, 0")
    I(f"s_bitcmp0_b32 s2, 0")
    I(f"s_cselect_b64 s[{SR}:{SR+1}], {sp(pCRE)}, {sp(pCIM)}")
    I(f"s_lshr_b32 s{sT0}, s2, 1")
    I(f"s_cmp_lt_u32 s{sW}, 2")
    I(f"s_cselect_b64 s[{SR}:{SR+1}], {sp(pW2)}, s[{SR}:{SR+1}]")
    I(f"s_cselect_b32 s{SR+2}, s{SR+2}, {512*1024}")
    I(f"s_cselect_b32 s{sBK}, s{sBK}, s{sT0}")
    I(f"s_mov_b32 s{SR+3}, 0x20000")
    I(f"s_lshr_b32 s{sT0}, s{sBK}, 3")
    I(f"s_lshl_b32 s{sT0}, s{sT0}, 8")
    I(f"s_and_b32 s{sT1}, s{sBK}, 7")
    I(f"s_or_b32 s{sT0}, s{sT0}, s{sT1}")
    I(f"s_lshl_b32 s{sINI}, s{sT0}, 7")
    rl = dma4(VQ, SR, sINI, [f"s_add_u32 m0, s{sWL}, {RSLOT}"], "R")
    T3 = PP
    I(f"s_lshl4_add_u32 s{sT0}, s{sJ}, s{sR}")
    I(f"s_lshl_b32 s{sT0}, s{sT0}, 11")
    I(f"v_and_b32 v{TA}, 15, v{LN}")
    I(f"v_lshl_add_u32 v{T3}, v{TA}, 7, s{sT0}")
    I(f"v_and_b32 v{T3+1}, 0x380, v{L16}")
    I(f"s_cmp_eq_u32 s{sW}, 3")
    I("s_cbranch_scc1 L_role3")
    snap = list(a.vmq)
    if early:
        for it in rl:
            I(it, track=False)
    I("s_branch L_rolejoin")
    a.label("L_init")
    mk_srd(a, SWS, pWS, WS_END)
    I(f"v_lshlrev_b32 v{L16}, 4, v{LN}")
    for k in range(4):
        I(f"v_mov_b32 v{RR+k}, -1")
        I(f"v_mov_b32 v{RR+4+k}, 0")
    I(f"s_lshl_b32 s{sT1}, s2, 8")
    I(f"s_add_u32 s{sT1}, s{sT1}, {EOFF}")
    for k in range(2):
        I(f"buffer_store_dwordx4 {vr(RR,4)}, v{L16}, {srd(SWS)}, s{sT1} offen offset:{1024*k} sc1")
    I(f"s_lshl_b32 s{sT1}, s2, 9")
    I(f"s_add_u32 s{sT1}, s{sT1}, {HFLAG}")
    for k in range(4):
        I(f"buffer_store_dwordx4 {vr(RR+4,4)}, v{L16}, {srd(SWS)}, s{sT1} offen offset:{1024*k} sc1")
    I("s_branch L_initdone")
    a.vmq = snap
    a.label("L_role3")
    I(f"s_mov_b32 s{SR+2}, 0")
    I(f"s_bitcmp0_b32 s2, 3")
    I(f"s_cselect_b64 s[{SR}:{SR+1}], {sp(pDSK)}, {sp(pB2)}")
    if not OPT["t3_late"]:
        I(f"global_load_dword v{RR+12}, v{T3}, {sp(pBRE)}", track=False)
        I(f"global_load_dword v{RR+13}, v{T3}, {sp(pBIM)}", track=False)
        I(f"global_load_dword v{RR+14}, v{T3+1}, s[{SR}:{SR+1}]", tag="R" if early else None, track=False)
    a.label("L_rolejoin")
    VT = T + 5
    I(f"s_mul_i32 s{sT0}, s{sHB}, {8*3584}")
    I(f"s_add_u32 s{sT0}, s{sT0}, s{sUB}")
    I(f"s_cmp_lt_u32 s{sJJ}, 3")
    I(f"s_cselect_b32 s{sT1}, 128, 0")
    I(f"v_and_b32 v{TA}, 7, v{LN}")
    I(f"v_mul_u32_u24 v{TA}, 3584, v{TA}")
    I(f"v_mul_u32_u24 v{TB}, s{sT1}, v{HH}")
    I(f"v_add3_u32 v{VT}, v{TA}, v{TB}, s{sT0}")
    if "T1" not in SCH and OPT["t1_at"] < 0:
        I(f"global_load_dword v{RR+11}, v{VT}, {sp(pW1)}")
    I(f"v_bfe_u32 v{TB}, v{RHO}, 2, 1")
    I(f"v_and_b32 v{TA}, 3, v{RHO}")
    I(f"v_lshrrev_b32 v{TC}, 3, v{RHO}")
    I(f"v_lshl_or_b32 v{TA}, v{TC}, 2, v{TA}")
    I(f"v_lshl_or_b32 v{PI}, v{TB}, 4, v{TA}")
    I(f"s_lshl_b32 s{sT0}, s{sJ}, 6")
    pl = []

    def pload(dst, off, ptr):
        if OPT["p_at"] < 0:
            I(f"global_load_ushort v{dst}, v{off}, {sp(ptr)}")
        else:
            ad = RR + 18 + 2 * len(pl)
            I(f"v_mov_b32 v{RR+16}, v{off}")
            I(f"v_mov_b32 v{RR+17}, 0")
            I(f"v_lshl_add_u64 {vr(ad,2)}, {vr(RR+16,2)}, 0, {sp(ptr)}")
            pl.append(f"global_load_ushort v{dst}, {vr(ad,2)}, off")
    I(f"v_lshl_add_u32 v{TA}, v{PI}, 1, s{sT0}")
    pload(PA, TA, pLRE)
    pload(PA + 1, TA, pLIM)
    pload(PC, TA, pLDT)
    I(f"v_and_b32 v{TA}, 19, v{RHO}")
    I(f"v_lshl_or_b32 v{TA}, v{TB}, 3, v{TA}")
    I(f"v_bfe_u32 v{TC}, v{RHO}, 3, 1")
    I(f"v_lshl_or_b32 v{SG}, v{TC}, 2, v{TA}")
    I(f"v_lshl_or_b32 v{TA}, v{HH}, 5, v{SG}")
    I(f"s_add_u32 s{sT1}, s{sUB}, 128")
    I(f"s_min_u32 s{sT1}, s{sT1}, {27*128}")
    I(f"v_lshl_add_u32 v{TB}, v{TA}, 1, s{sUB}")
    I(f"v_lshl_add_u32 v{TA}, v{TA}, 1, s{sT1}")
    pload(BIA, TB, pB1)
    pload(BIA + 2, TA, pB1)
    for c in range(OPT["x_first"], OPT["x_second"]):
        a.run(xgroup(c))
    I(stamp("win1 issued"))
    I(f"s_mul_i32 s{sHB}, s{sHB}, {RT_STRIDE}")
    I(f"s_mul_i32 s{sT0}, s{sG}, 11")
    I(f"s_add_u32 s{sT0}, s{sT0}, s{sJJ}")
    I(f"s_lshl_b32 s{sT0}, s{sT0}, 12")
    I(f"s_add_u32 s{sHB}, s{sHB}, s{sT0}")
    mk_srd(a, SRS, pWS, WS_END)
    I(f"s_cmp_eq_u32 s{SR+2}, 0")
    I(f"s_cselect_b32 s{SRS+2}, 0, s{SRS+2}")
    I(f"s_and_b32 s{sT1}, s{sBK}, 7")
    I(f"s_lshr_b32 s{sT0}, s{sBK}, 3")
    I(f"s_cmp_ge_u32 s{sW}, 2")
    I("s_cbranch_scc1 L_dst2")
    I(f"s_mul_i32 s{sRA}, s{sT1}, {2*176}")
    I(f"s_and_b32 s{sT2}, s{sT0}, 1")
    I(f"s_lshl1_add_u32 s{sRA}, s{sT2}, s{sRA}")
    I(f"s_lshl3_add_u32 s{sFL}, s{sT1}, s{sT2}")
    I(f"s_lshr_b32 s{sT0}, s{sT0}, 1")
    I(f"s_lshl4_add_u32 s{sFL}, s{sFL}, s{sT0}")
    I(f"s_mul_i32 s{sT1}, s{sT0}, 37")
    I(f"s_lshr_b32 s{sT1}, s{sT1}, 8")
    I(f"s_mul_i32 s{sT2}, s{sT1}, {32-7}")
    I(f"s_add_u32 s{sFL}, s{sFL}, s{sT2}")
    I(f"s_mul_i32 s{sT2}, s{sT1}, 44")
    I(f"s_add_u32 s{sRA}, s{sRA}, s{sT2}")
    I(f"s_mul_i32 s{sT1}, s{sT1}, 7")
    I(f"s_sub_u32 s{sT0}, s{sT0}, s{sT1}")
    I(f"s_lshr_b32 s{sT1}, s{sT0}, 1")
    I(f"s_and_b32 s{sT0}, s{sT0}, 1")
    I(f"s_lshl2_add_u32 s{sT0}, s{sT0}, s{sT1}")
    I(f"s_lshl2_add_u32 s{sRA}, s{sT0}, s{sRA}")
    I(f"s_movk_i32 s{sRB}, 176")
    I("s_branch L_dstjoin")
    a.label("L_dst2")
    I(f"s_lshr_b32 s{sFL}, s{sT0}, 1")
    I(f"s_lshr_b32 s{sT2}, s{sT1}, 1")
    I(f"s_lshl2_add_u32 s{sFL}, s{sFL}, s{sT2}")
    I(f"s_and_b32 s{sRA}, s2, 1")
    I(f"s_lshl1_add_u32 s{sFL}, s{sFL}, s{sRA}")
    I(f"s_and_b32 s{sRA}, s{sT0}, 1")
    I(f"s_lshl3_add_u32 s{sFL}, s{sFL}, s{sRA}")
    I(f"s_and_b32 s{sRA}, s{sT1}, 1")
    I(f"s_lshl1_add_u32 s{sFL}, s{sFL}, s{sRA}")
    I(f"s_add_u32 s{sFL}, s{sFL}, 7")
    I(f"s_mul_i32 s{sRA}, s{sT0}, 176")
    I(f"s_mul_i32 s{sT2}, s{sT2}, 44")
    I(f"s_add_u32 s{sRA}, s{sRA}, s{sT2}")
    I(f"s_and_b32 s{sT1}, s{sT1}, 1")
    I(f"s_lshl3_add_u32 s{sRA}, s{sT1}, s{sRA}")
    I(f"s_and_b32 s{sT1}, s2, 1")
    I(f"s_lshl1_add_u32 s{sRA}, s{sT1}, s{sRA}")
    I(f"s_add_u32 s{sRA}, s{sRA}, 28")
    I(f"s_movk_i32 s{sRB}, 4")
    a.label("L_dstjoin")
    I(f"s_add_u32 s{sRA}, s{sRA}, {BW//1024}")
    I(f"s_add_u32 s{sRB}, s{sRB}, s{sRA}")
    I(f"s_lshl_b32 s{sRA}, s{sRA}, 10")
    I(f"s_lshl_b32 s{sRB}, s{sRB}, 10")
    I(f"s_lshl2_add_u32 s{sFL}, s{sFL}, {BFLAG}")
    for n, ptr, size in ((SBR, pBRE, 512 * 1024), (SBI, pBIM, 512 * 1024), (SW1, pW1, 512 * 3584), (SW1B, pW1, 512 * 3584),
                         (SWS2, pWS, WS_END), (SDBG, pDBG, 256), (SOUT, pOUT, 2048 * 2048)):
        mk_srd(a, n, ptr, size)
    I(f"s_cmp_lt_u32 s{sJJ}, 3")
    I(f"s_cselect_b32 s{SW1B+2}, s{SW1B+2}, 0")
    I(f"s_cselect_b32 s{SWS2+2}, s{SWS2+2}, 0")
    I(f"s_lshl_b32 s{sT0}, s{sJ}, 12")
    I(f"s_add_u32 s{sT0}, s{sT0}, {EOFF}")
    I(f"s_add_u32 s{SE}, s{pWS}, s{sT0}")
    I(f"s_addc_u32 s{SE+1}, s{pWS+1}, 0")
    I(f"s_mov_b32 s{SE+2}, 4096")
    I(f"s_mov_b32 s{SE+3}, 0x20000")
    I(f"s_xor_b32 s{sT0}, s{sW}, s{sROT}")
    I(f"s_lshl_b32 s{sCS}, s{sJ}, 8")
    I(f"s_or_b32 s{sCS}, s{sCS}, s{sT0}")
    I(f"s_lshl_b32 s{sCS}, s{sCS}, 7")
    I(f"s_mul_i32 s{sCM0}, s{sT0}, {64*3584}")
    I(f"s_add_u32 s{sCM0}, s{sCM0}, s{sUB}")
    I(f"s_xor_b32 s{sT0}, s{sT0}, 4")
    I(f"s_mul_i32 s{sCM1}, s{sT0}, {64*3584}")
    I(f"s_add_u32 s{sCM1}, s{sCM1}, s{sUB}")
    I(f"s_lshl2_add_u32 s{sHF}, s{sR}, s{sG}")
    I(f"s_lshl4_add_u32 s{sHF}, s{sHF}, s{sW}")
    I(f"s_lshl2_add_u32 s{sHF}, s{sHF}, s{sJJ}")
    I(f"s_lshl2_add_u32 s{sHF}, s{sHF}, {HFLAG}")
    p2_index(a)
    I(f"v_lshrrev_b32 v{TA}, 3, v{LN}")
    I(f"v_and_b32 v{TC}, 0x70, v{L16}")
    I(f"v_bfe_u32 v{TB}, v{LN}, 4, 1")
    I(f"v_lshlrev_b32 v{TD}, 6, v{TB}")
    I(f"v_xor_b32 v{TC}, v{TC}, v{TD}")
    I(f"v_mul_u32_u24 v{TD}, 3584, v{TA}")
    I(f"v_add_u32 v{VW}, v{TD}, v{TC}")
    for q in range(1, 4):
        I(f"v_add_u32 v{VW+q}, {q*(8*3584-1024)}, v{VW}")
    I(f"v_bfe_u32 v{TA}, v{LN}, 2, 2")
    I(f"v_lshl_or_b32 v{TC}, v{HH}, 3, v{TA}")
    I(f"v_lshlrev_b32 v{TC}, 7, v{TC}")
    I(f"v_lshrrev_b32 v{TA}, 1, v{TA}")
    I(f"v_lshl_or_b32 v{TC}, v{TA}, 6, v{TC}")
    I(f"v_lshl_or_b32 v{TC}, v{TB}, 5, v{TC}")
    I(f"v_and_b32 v{TA}, 1, v{LN}")
    I(f"v_lshl_or_b32 v{TC}, v{TA}, 4, v{TC}")
    I(f"v_bfe_u32 v{TA}, v{LN}, 1, 1")
    I(f"v_lshl_or_b32 v{RDT}, v{TA}, 3, v{TC}")
    I(f"v_xor_b32 v{RDT+1}, 64, v{RDT}")
    I(f"v_bfe_u32 v{TA}, v{RHO}, 1, 3")
    I(f"v_xor_b32 v{TA}, v{TA}, v{HH}")
    I(f"v_lshlrev_b32 v{TA}, 4, v{TA}")
    I(f"v_lshl_or_b32 v{TA}, v{RHO}, 7, v{TA}")
    I(f"v_add_u32 v{RDS}, s{sWL}, v{TA}")
    for k in range(1, 4):
        I(f"v_xor_b32 v{RDS+k}, {32*k}, v{RDS}")
    AW = T + 10
    I(f"v_bfe_u32 v{TA}, v{LN}, 2, 2")
    I(f"v_lshl_or_b32 v{TA}, v{HH}, 4, v{TA}")
    I(f"s_add_u32 s{sT0}, s{sWL}, {RSLOT}")
    I(f"v_lshl_add_u32 v{AW}, v{TA}, 7, s{sT0}")
    I(f"v_and_b32 v{TA}, 1, v{LN}")
    I(f"v_lshl_or_b32 v{AW}, v{TA}, 5, v{AW}")
    I(f"v_bfe_u32 v{TA}, v{LN}, 3, 1")
    I(f"v_xor_b32 v{TA}, v{TA}, v{TB}")
    I(f"v_lshl_or_b32 v{AW}, v{TA}, 4, v{AW}")
    I(f"v_bfe_u32 v{TA}, v{LN}, 1, 1")
    I(f"v_lshl_or_b32 v{AW}, v{TA}, 3, v{AW}")
    for k in range(1, 4):
        I(f"v_xor_b32 v{AW+k}, {32*k}, v{AW}")
    I(f"s_cmp_lt_u32 s{sW}, 2")
    I("s_cbranch_scc1 L_awdone")
    for k in range(4):
        I(f"v_add_u32 v{AW+k}, {RSLOT}, v{RDS+k}")
    a.label("L_awdone")
    def stash(dst, src):
        I(f"v_accvgpr_write_b32 a{dst}, v{src}")
    I(f"s_lshl_b32 s{sT0}, s{sW}, 7")
    I(f"s_add_u32 s{sT0}, s{sT0}, {PARK}")
    I(f"v_lshl_add_u32 v{TA}, v{HH}, 6, s{sT0}")
    I(f"v_lshl_add_u32 v{TC}, v{PI}, 2, s{sT0}")
    stash(aARS, TA)
    stash(aARW, TC)
    I(f"s_lshl_b32 s{sT0}, s{sW}, 9")
    I(f"s_add_u32 s{sT0}, s{sT0}, {ETAB}")
    I(f"v_lshl_add_u32 v{TA}, v{LN}, 3, s{sT0}")
    stash(aAET, TA)
    I(f"s_lshl_b32 s{sT0}, s{sR}, 8")
    I(f"v_lshlrev_b32 v{TA}, 3, v{LN}")
    I(f"v_subrev_u32 v{TA}, 256, v{TA}")
    I(f"v_cmp_gt_i32 vcc, 0, v{TA}")
    I(f"v_add_u32 v{TC}, s{sT0}, v{TA}")
    I(f"v_cndmask_b32 v{TA}, v{TC}, v{TA}, vcc")
    stash(aES, TA)
    I(f"v_lshlrev_b32 v{TA}, 3, v{RHO}")
    I(f"v_lshlrev_b32 v{TC}, 8, v{HH}")
    I(f"v_sub_u32 v{TA}, v{TA}, v{TC}")
    I(f"v_add_u32 v{TA}, {EIN + 256}, v{TA}")
    stash(aEA, TA)
    I(f"s_mul_i32 s{sT0}, s{sW}, 5120")
    I(f"s_add_u32 s{sT0}, s{sT0}, {TRB}")
    I(f"v_mul_u32_u24 v{TA}, 80, v{RHO}")
    I(f"v_lshl_add_u32 v{TA}, v{HH}, 5, v{TA}")
    I(f"v_add_u32 v{TA}, s{sT0}, v{TA}")
    stash(aTW, TA)
    I(f"v_bfe_u32 v{TA}, v{LN}, 2, 2")
    I(f"v_lshl_add_u32 v{TA}, v{HH}, 4, v{TA}")
    I(f"v_mul_u32_u24 v{TC}, 80, v{TA}")
    I(f"v_and_b32 v{TA}, 1, v{LN}")
    I(f"v_lshl_add_u32 v{TC}, v{TA}, 5, v{TC}")
    I(f"v_lshl_add_u32 v{TC}, v{TB}, 4, v{TC}")
    I(f"v_bfe_u32 v{TA}, v{LN}, 1, 1")
    I(f"v_lshl_add_u32 v{TC}, v{TA}, 3, v{TC}")
    I(f"v_add_u32 v{TC}, s{sT0}, v{TC}")
    stash(aTR, TC)
    I(f"s_mul_i32 s{sAX}, s{sW}, 3072")
    I(f"s_add_u32 s{sAX}, s{sAX}, {AUX}")
    I(f"s_lshl3_add_u32 s{sXO}, s{sI2}, s{sW}")
    I(f"s_lshl_b32 s{sXO}, s{sXO}, 13")
    I(f"s_lshl_b32 s{sT0}, s{sN}, 7")
    I(f"s_add_u32 s{sXO}, s{sXO}, s{sT0}")
    P0, P2 = ACB, ACB + 2
    I(f"v_mov_b32 v{P0}, s{pB2}")
    I(f"v_mov_b32 v{P0+1}, s{pB2+1}")
    I(f"v_cmp_gt_u32 vcc, 8, v{LN}")
    I(f"v_mov_b32 v{P2}, s{pDSK}")
    I(f"v_mov_b32 v{P2+1}, s{pDSK+1}")
    I(f"v_cndmask_b32 v{P0}, v{P0}, v{P2}, vcc")
    I(f"v_cndmask_b32 v{P0+1}, v{P0+1}, v{P2+1}, vcc")
    I(f"v_and_b32 v{TA}, 0x70, v{L16}")
    I(f"v_add_u32 v{P2}, s{sT0}, v{TA}")
    I(f"v_mov_b32 v{P2+1}, 0")
    I(f"v_lshl_add_u64 {vr(P0,2)}, {vr(P2,2)}, 0, {vr(P0,2)}")
    I(f"v_lshrrev_b32 v{TC}, 3, v{LN}")
    I(f"v_lshl_or_b32 v{TA}, v{TC}, 10, v{TA}")
    stash(aAA, P0)
    stash(aAA + 1, P0 + 1)
    stash(aXD, TA)
    I(f"v_and_b32 v{FREP}, 3, v{LN}")
    I(f"v_lshlrev_b32 v{FREP}, 14, v{FREP}")
    I(f"s_and_b32 s{sT0}, s{sN}, 3")
    I(f"s_lshl4_add_u32 s{sT0}, s{sT0}, s{sR}")
    I(f"s_lshl2_add_u32 s{sT0}, s{sT0}, s{sG2}")
    I(f"s_lshl_b32 s{sT0}, s{sT0}, 8")
    I(f"s_add_u32 s{sT0}, s{sT0}, {HFLAG}")
    I(f"s_add_u32 s{sHP}, s{pWS}, s{sT0}")
    I(f"s_addc_u32 s{sHP+1}, s{pWS+1}, 0")
    I(f"s_lshl2_add_u32 s{sT0}, s2, s{sW}")
    I(f"s_lshl_b32 s{sT0}, s{sT0}, 5")
    I(f"s_add_u32 s{sT0}, s{sT0}, {XFLAG}")
    I(f"s_add_u32 s{sXP}, s{pWS}, s{sT0}")
    I(f"s_addc_u32 s{sXP+1}, s{pWS+1}, 0")
    I(f"s_xor_b32 s{sXF}, s{sT0}, 512")
    I(f"s_and_b32 s{sT0}, s{sR}, 7")
    I(f"s_lshl3_add_u32 s{sT0}, s{sT0}, s{sN}")
    I(f"s_lshl2_add_u32 s{sT0}, s{sT0}, s{sG2}")
    I(f"s_and_b32 s{sT1}, s{sW}, 1")
    I(f"s_lshl1_add_u32 s{sT0}, s{sT0}, s{sT1}")
    I(f"s_lshl_b32 s{sT0}, s{sT0}, 6")
    I(f"s_add_u32 s{sT0}, s{sT0}, {BFLAG}")
    I(f"s_add_u32 s4, s{pWS}, s{sT0}")
    I(f"s_addc_u32 s5, s{pWS+1}, 0")
    GOA, GOV = T + 8, T + 9
    I(f"v_and_b32 v{TA}, 1, v{LN}")
    I(f"v_lshlrev_b32 v{TA}, 4, v{TA}")
    I(f"v_mov_b32 v{TB}, 0x3f80")
    I(f"v_lshlrev_b32 v{TA}, v{TA}, v{TB}")
    I(f"v_bfe_u32 v{TB}, v{LN}, 1, 1")
    I(f"v_mul_lo_u32 v{IDM+1}, v{TA}, v{TB}")
    I(f"v_sub_u32 v{IDM}, v{TA}, v{IDM+1}")
    a.run([f"v_mov_b32 v{BIA+k}, 0" for k in (1, 3, 5, 6, 7, 9, 10, 11)])
    a.run([f"v_mov_b32 v{MEAN}, 0", f"v_mov_b32 v{RSTD}, 0", f"v_lshlrev_b32 v{GOA}, 2, v{RHO}",
           f"v_and_b32 v{KEEP}, 7, v{LN}", f"v_lshlrev_b32 v{KEEP}, 12, v{KEEP}",
           f"v_mov_b32 v{KEEP+2}, 1", f"v_mov_b32 v{KEEP+3}, 0"])
    I(f"s_cmp_lg_u32 s{sONE}, 0")
    I("s_cbranch_scc1 L_nogo")
    a.raw(f"    s_waitcnt vmcnt({len(a.vmq)})")
    I(f"s_lshr_b32 s{sT1}, s2, 1")
    I(f"buffer_store_dword v{KEEP+2}, v{KEEP+3}, {srd(SDBG)}, s{sT1} offen sc1", track=False)
    a.label("L_nogo")
    I(f"s_mov_b32 s{sONE}, 0x3f803f80")
    I(stamp("setup done"))
    for c in range(OPT["x_second"], 4):
        a.run(xgroup(c))

    def rpick(a):
        a.wait_vm("R")
        pos = a.pos
        I(f"s_cmp_ge_u32 s{sW}, 2")
        I("s_cbranch_scc1 L_rp2")
        for dt in range(2):
            for ph in range(2):
                for e in range(2):
                    I(f"ds_read_b64_tr_b16 {ar(8*dt+4*ph+2*e,2)}, v{AW+2*(dt^e)+ph} offset:{e*1024+ph*512}", track=False)
        I("s_branch L_rpjoin")
        a.lgq = [e for e in a.lgq if e.track]
        a.label("L_rp2")
        for k in range(4):
            I(f"ds_read_b128 {ar(4*k,4)}, v{AW+k}", track=False)
        a.pos = pos + 6
        a.label("L_rpjoin")

    rs = [lambda a: a.need([ar(0, 16)])]
    rs += [(f"buffer_store_dwordx4 {ar(4*k,4)}, v{L16}, {srd(SRS)}, s{sRB if k>=2 else sRA} offen offset:{1024*(k&1)} sc1", "RS") for k in range(4)]

    def stats(c):
        it = [lambda a: a.need([vr(X + 16 * c, 16)])]
        it += [f"v_dot2c_f32_bf16 v{MEAN}, s{sONE}, v{X+16*c+k}" for k in range(16)]
        it += [f"v_dot2c_f32_bf16 v{RSTD}, v{X+16*c+k}, v{X+16*c+k}" for k in range(16)]
        return it

    par = ssm_params()
    nw = OPT["w_loop"]
    for c in range(8):
        if c < 4:
            a.run(xgroup(c + 4))
        else:
            if c - 4 < nw:
                a.run(wgroup((c - 4) >> 1, c & 1))
            if c == OPT["go_at"]:
                I(f"buffer_load_dword v{GOV}, v{GOA}, {srd(SDBG)}, 0 offen sc1")
        if c == OPT["xp_at"]:
            a.run(xp)
        if c == OPT["t1_at"]:
            I(f"buffer_load_dword v{T+4}, v{VT}, {srd(SW1)}, 0 offen")
        if c == OPT["p_at"]:
            a.run(pl)
        if c in (2, 6):
            for k in range(4):
                I(f"v_add_u32 v{RDS+k}, {64*KB}, v{RDS+k}")
        if c == 7:
            a.run(stats(6)[:17])
        a.wait_vm(f"x{c}")
        if c in (0, 1, 4, 7):
            I(stamp(f"x{c} landed"))
        for k in range(4):
            I(f"ds_read_b128 {vr(X+16*c+4*k,4)}, v{RDS+k} offset:{xlds(c) % (64*KB)}")
        if c == 1 and early:
            rpick(a)
        if c:
            a.run(stats(c - 1)[17 if c == 7 else 0:])
        if c == 3 and early:
            a.run(rs[:1])
        if 1 <= c <= OPT["par_n"]:
            a.run(par[(len(par) * (c - 1)) // OPT["par_n"]:(len(par) * c) // OPT["par_n"]])
    s7 = stats(7)
    a.run(s7[:20])
    I(f"v_mov_b32 v{TA}, v{MEAN}")
    a.run(s7[20:22])
    I(f"v_permlane32_swap_b32 v{TA}, v{MEAN}")
    I(f"v_add_f32 v{MEAN}, v{TA}, v{MEAN}")
    for k in range(4):
        I(f"v_mul_f32 v{NEGM+k}, {f32(-1/512)}, v{MEAN}")
    a.run(s7[22:])
    I(f"s_add_u32 s{sUB}, s{sWL}, {128*KB - H[2]}")
    I(stamp("stats done"))

    bflag = [lambda a: a.wait_vm("RS"), f"buffer_store_dword v{KEEP+2}, v{KEEP}, {srd(SRS)}, s{sFL} offen sc1"]
    bl = b_loads()
    bload = f"s_load_dwordx16 s[{sHV}:{sHV+15}], s[4:5], 0 glc"
    bpoll = [bload]
    hg = lambda n: grp(wgroup(n, 0) + wgroup(n, 1))

    def rjob(a):
        I(f"s_cmp_eq_u32 s{sW}, 3")
        I("s_cbranch_scc1 L_rj3")
        pos, snap = a.pos, list(a.vmq)
        a.run(rl)
        I("s_branch L_rjdone")
        a.vmq = snap
        a.label("L_rj3")
        I(f"buffer_load_dword a0, v{T3}, {srd(SBR)}, 0 offen", tag="R")
        I(f"buffer_load_dword a1, v{T3}, {srd(SBI)}, 0 offen", tag="R")
        I(f"global_load_dword a2, v{T3+1}, {sp(pDSK)}", tag="R")
        I(f"global_load_dword a3, v{T3+1}, {sp(pB2)}", tag="R")
        a.pos = pos + 4
        a.label("L_rjdone")
    events = dict(W=(hg(0) + hg(1))[4 * nw:], H2=hg(2), H3=hg(3), H4=hg(4), H5=hg(5), R=[[rjob]] if OPT['t3_late'] else grp(rl), pick=[[rpick]],
                  RS=[rs[:2]] + grp(rs[2:]), bflag=[bflag], bpoll=[bpoll], B=bl[:OPT["b2"]], xr=[xready()],
                  xl=[[XLOAD]], xc=[[spoll("L_xr", XLOAD, 1)]], f0=[hflag(0)], hl0=[[hload(0)]],
                  T1=[[f"buffer_load_dword v{T+4}, v{VT}, {srd(SW1)}, 0 offen"]],
                  go=[[lambda a: poll(a, "L_go", GOV, GOA, SDBG, 0)]], XP=[[x] for x in xp],
                  bchk=[[spoll("L_bf", bload, 11), stamp("B flags")]])
    for name in OPT["x_drop"].split("/"):
        if name:
            events[name] = [[]]
    at = {}
    for name, pos in SCH.items():
        g0, g1 = pos[0], pos[-1] + 1
        for j, e in enumerate(events[name]):
            at.setdefault(g0 + (j * (g1 - g0)) // len(events[name]), []).extend(e)
    order = [x for x in ("R", "pick", "RS", "bflag", "bpoll", "bchk", "B") if x in SCH]
    assert all(SCH[x][-1] <= SCH[y][0] for x, y in zip(order, order[1:]))
    assert SCH["go"][0] < min(60, SCH["bflag"][0], SCH["xr"][0]) and SCH["H5"][0] > 4 * (16 - OPT["la"])
    assert SCH["H5"][-1] < 128 and SCH["H3"][-1] < min(64, SCH["bpoll"][0])
    assert early or (SCH["RS"][0] < SCH["H4"][0] and SCH["pick"][0] < 60)
    assert SCH["bchk"][0] < SCH["hl0"][0] and SCH["f0"][0] >= 128
    assert ("XP" in SCH) == (OPT["xp_at"] > 7) and SCH.get("XP", [-99])[-1] < SCH["xr"][0]
    dm = sorted(SCH[x] for x in ("W", "H2", "H3", "H4", "H5", "R") if x in SCH)
    assert all(x[-1] < y[0] for x, y in zip(dm, dm[1:]))
    P = OPT["pre_pairs"]
    assert min(at) >= -P
    for i in range(P):
        u, r = unpack(i), repack(i)
        a.run(u + at.get(i - P, []))
        if i == P - 1:
            a.run([lambda a: a.wait_vm("H0"), "s_barrier"] + frag_reads(0))
        a.run(r)
    a.run(sum((frag_reads(k) for k in range(1, OPT["la"])), []) + (unpack(P) if P < 16 else []))

    n2 = OPT["b2"]
    flat = lambda ll: [x for l in ll for x in l]
    ge = 4 * OPT["e_win"]
    assert OPT["e_win"] >= 6
    f2b = fill_u2b()
    f0 = [f"v_subrev_u32 v{RDS+k}, s{sUB}, v{RDS+k}" for k in range(4)] + fill_u0() + (par if not OPT["par_n"] else [])
    plan = [[(f0, 2, 50)], [(stats_to_lds(), 26, 56), ([f"ds_read_b128 {vr(RDS,4)}, v{ARS}"], 60, 61), (fill_u1()[0], 1, 64)], [(fill_u2a(), 1, ge), (f2b[:-6], ge, ge + OPT["e_len"]), (f2b[-6:], ge + OPT["e_len"], 64)]]
    for u in range(3):
        a.comment(f"---- GEMM unit {u} ----")
        I(stamp(f"U{u} start"))
        main = []
        LA, WP = OPT["la"], OPT["wp"]
        for d in range(16):
            n = 16 * u + d
            pre = [lambda a: a.need(sum((stage_regs(k) for k in range(WP)), []))] if n == 0 else []
            if OPT["only"] and n % 4 == 0 and d:
                pre.append(stamp(f"w{n}"))
            if n + LA < 48 and (n + LA) % 8 == 0:
                pre += [lambda a, hn=(n + LA) // 8: a.wait_vm(f"H{hn}"), "s_barrier"]
            if n == 32 + OPT["e_win"]:
                pre = [lambda a: a.wait_lg("E")] + pre + ([] if "s_barrier" in pre else ["s_barrier"])
            if n + LA == 32:
                pre += [f"v_add_u32 v{RDT}, {H[4]}, v{RDT}", f"v_add_u32 v{RDT+1}, {H[4]}, v{RDT+1}"]
            if n + LA == 40:
                pre += [f"v_subrev_u32 v{RDT}, {H[4]}, v{RDT}", f"v_subrev_u32 v{RDT+1}, {H[4]}, v{RDT+1}"]
            ms = mfmas(n)
            rd = frag_reads(n + LA) if n + LA < 48 else []
            h = len(rd) // 4
            for i in range(4):
                post = []
                if i == 3 and n < 47 and (n + 1) % WP == 0:
                    post = [lambda a, n=n: a.need(sum((stage_regs(n + 1 + k) for k in range(WP)), []))]
                main.append((pre if i == 0 else []) + ms[i] + post + rd[i * h:(i + 1) * h])
        main = [m + at.get(64 * u + i, []) for i, m in enumerate(main)]
        last = {63: fill_u1()[1]} if u == 1 else {}
        if u == 0:
            for d in range(16 - P):
                r = repack(P + d)
                for i in range(4):
                    main[4 * d + i] = main[4 * d + i] + r[2 * i:2 * i + 2]
                if P + d + 1 < 16:
                    last[4 * d + 3] = unpack(P + d + 1)
        for i, g in enumerate(spread(main, plan[u])):
            a.run(g + last.get(i, []))
    I(stamp("tail start"))
    a.run(tail(flat(bl[n2:])))
    I(stamp("tail issued"))


def merge(fl, mem):
    if not mem:
        return list(fl)
    res = []
    n, m = len(fl), len(mem)
    j = 0
    for i in range(n):
        while j < m and j * n <= i * m:
            res.append(mem[j])
            j += 1
        res.append(fl[i])
    res += mem[j:]
    return res


FREP = KEEP + 1
FONE, FZERO = KEEP + 2, KEEP + 3


sHV = SBR


def hload(stage, retry=False):
    return f"s_load_dwordx16 s[{sHV}:{sHV+15}], s[{sHP}:{sHP+1}], {64*stage}" + (" glc" if retry or OPT["hglc"] else "")


XLOAD = f"s_load_dword s{sHV}, s[{sXP}:{sXP+1}], 0 glc"


def spoll(name, load, n, empty=None):
    def f(a):
        a.I(f"s_mov_b32 s{sT2}, 0")
        a.label(name)
        a.wait_lg_all()
        for k in range(2, n - 1, 2):
            a.I(f"s_and_b64 s[{sHV}:{sHV+1}], s[{sHV}:{sHV+1}], s[{sHV+k}:{sHV+k+1}]")
        if n > 1 and n & 1:
            a.I(f"s_and_b32 s{sHV}, s{sHV}, s{sHV+n-1}")
        if empty is None:
            a.I(f"s_and_b32 s{sHV}, s{sHV}, s{sHV+(1 if n > 1 else 0)}")
        else:
            a.I(f"s_cmp_lg_u32 s{sHV}, {empty}")
        a.I(f"s_cbranch_scc1 {name}_done")
        pos = a.pos
        a.I(f"s_add_u32 s{sT2}, s{sT2}, 1")
        a.I(f"s_cmp_ge_u32 s{sT2}, {SPIN_MAX}")
        a.I(f"s_cbranch_scc1 {name}_done")
        a.I(load)
        a.I(f"s_branch {name}")
        a.lgq, a.pos = [], pos
        a.label(name + "_done")
        if DEBUG and not OPT["rt"]:
            CNTS.append(name)
            a.I(f"v_writelane_b32 v{STAMPV}, s{sT2}, {39+len(CNTS)}")
    return f


CNTS = []


def hpoll(stage):
    return spoll(f"L_hf{stage}", hload(stage, True), 16)


def hflag(stage):
    return [lambda a: a.wait_vm(f"HS{stage}"),
            f"buffer_store_dword v{FONE}, v{FREP}, {srd(SWS)}, s{sHF} offen offset:{64*stage} sc1"]


def cfma_pk(dst, m, x, add):
    return [f"v_pk_fma_f32 {vr(dst,2)}, {vr(x,2)}, {vr(m,2)}, {vr(add,2)} op_sel:[0,0,0] op_sel_hi:[1,0,1]",
            f"v_pk_fma_f32 {vr(dst,2)}, {vr(x,2)}, {vr(m,2)}, {vr(dst,2)} op_sel:[1,1,0] op_sel_hi:[0,1,1] neg_lo:[0,1,0]"]


AUX = 112 * KB
sAX = pOUT
sXO = pOUT + 1


def tail(brest):
    RE, IM, FR = X, X + 8, X + 16
    EL = [X + 32 + 2 * n for n in range(8)]
    EA, EB, TW, TR, ER, EW, EQ = X + 48, X + 49, X + 50, X + 51, X + 52, X + 53, X + 56
    eloads = [f"buffer_load_dwordx4 {vr(EQ,4)}, v{EA}, {srd(SE)}, 0 offen sc1"]
    al = a_loads()
    na, qs, qe = min(2 * OPT["pro"], OPT["pro_q"]), OPT["scan_q"], OPT["eload_q"]
    a0, a1 = [int(v) for v in OPT["a_q"].split("/")]

    def quad(qd):
        mem = []
        if qd == 0:
            mem += brest
        if qd == a0:
            mem += [hpoll(0), stamp("H flags")]
        if a0 <= qd < a1:
            for f in range((na * (qd - a0)) // (a1 - a0), (na * (qd - a0 + 1)) // (a1 - a0)):
                mem += al[f]
        if qd == qe:
            mem += eloads
        r = merge(gelu_packed(ACA + 4 * qd, T + 8), mem)
        if qd & 1:
            r += pack_store(ACA + 8 * (qd >> 1), SWS2, sRA, 1024 * (qd >> 1), "HS2")
        return r + [stamp(f"q{qd}")]

    tl = [f"s_lshl2_add_u32 s{sT0}, s{sW}, s{sR}", f"s_lshl_b32 s{sT0}, s{sT0}, 8", f"s_sub_u32 s{sT0}, s{sT0}, 4096",
          f"v_add_u32 v{EA}, s{sT0}, v{L16}", f"s_lshl_b32 s{sT0}, s{sW}, 10", f"s_add_u32 s{sT0}, s{sT0}, {EIN}",
          f"v_add_u32 v{EW}, s{sT0}, v{L16}", unstash(ER, aEA), unstash(TW, aTW), unstash(TR, aTR)]
    for qd in range(qs):
        tl += quad(qd)

    def epoll(a):
        a.need([vr(EQ, 4)])
        a.I(f"s_mov_b32 s{sT2}, 0")
        a.label("L_epoll")
        a.I(f"v_max3_u32 v{EB}, v{EQ}, v{EQ+1}, v{EQ+2}")
        a.I(f"v_max_u32 v{EB}, v{EB}, v{EQ+3}")
        a.I(f"v_cmp_eq_u32 vcc, -1, v{EB}")
        a.I("s_cmp_eq_u64 vcc, 0")
        a.I("s_cbranch_scc1 L_epoll_done")
        save, pos = list(a.vmq), a.pos
        a.I(f"s_add_u32 s{sT2}, s{sT2}, 1")
        a.I(f"s_cmp_ge_u32 s{sT2}, {SPIN_MAX}")
        a.I("s_cbranch_scc1 L_epoll_done")
        a.I(eloads[0], track=False)
        a.wait_vm_all()
        a.I("s_branch L_epoll")
        a.vmq, a.pos = save, pos
        a.label("L_epoll_done")
        if DEBUG and not OPT["rt"]:
            CNTS.append("epoll")
            a.I(f"v_writelane_b32 v{STAMPV}, s{sT2}, {39+len(CNTS)}")
    tl += [epoll, stamp("E seen"), (f"ds_write_b128 v{EW}, {vr(EQ,4)}", "EW")]
    ureg = lambda i: X + 64 + 2 * i
    for i in range(16):
        h, cc = i & 1, vr(PC, 2)
        if i == 6:
            tl += [lambda a: a.wait_lg("EW"), "s_barrier"]
            tl += [f"ds_read_b64 {vr(EL[n],2)}, v{ER} offset:{(14-2*n)*256}" for n in range(7, -1, -1)]
        tl += [f"v_pk_mul_f32 {vr(ureg(i),2)}, {cc}, {vr(ACB+i-h,2)} op_sel:[0,{h}] op_sel_hi:[1,{h}]",
               f"v_pk_fma_f32 {vr(ureg(i),2)}, {cc}, {vr(ACB+16+i-h,2)}, {vr(ureg(i),2)} op_sel:[1,{h},0] op_sel_hi:[0,{h},1] neg_lo:[1,0,0]"]
    tl.append(lambda a: a.need([vr(r, 2) for r in EL]))
    cur = EL[7]
    for n in range(6, -1, -1):
        tl += cfma_pk(EL[n], PA256, cur, EL[n])
        cur = EL[n]
    S, S0, S1 = EL[0], EL[1], EL[2]
    tl += [f"v_pk_mul_f32 {vr(S0,2)}, {vr(S,2)}, {vr(PAH,2)} op_sel:[0,0] op_sel_hi:[1,0]",
           cfma_pk(S0, PAH, S, S0)[1],
           f"v_mov_b32 v{S1}, v{S0}",
           f"v_mov_b32 v{S1+1}, v{S0+1}",
           f"s_add_u32 s{sRB}, s{sHB}, {28*KB}",
           f"v_permlane32_swap_b32 v{S0}, v{S1}",
           f"v_permlane32_swap_b32 v{S0+1}, v{S1+1}",
           f"v_pk_add_f32 {vr(S0,2)}, {vr(S0,2)}, {vr(S1,2)}"]
    tl += cfma_pk(PP, PAS, S0, PP)
    tl += [f"v_pk_mul_f32 {vr(S1,2)}, {vr(PP,2)}, {vr(PC,2)} op_sel:[0,0] op_sel_hi:[1,0]", cfma_pk(S1, PC, PP, S1)[1]]
    prev = S1
    for i in range(16):
        u = ureg(i)
        nb = 2 * OPT["pro"] - na
        for f in range(na + (nb * i) // 16, na + (nb * (i + 1)) // 16):
            tl += al[f]
        tl += cfma_pk(u, PA, prev, u)
        if i & 1:
            tl += [f"v_cvt_pk_bf16_f32 v{RE+(i>>1)}, v{prev}, v{u}",
                   f"v_cvt_pk_bf16_f32 v{IM+(i>>1)}, -v{prev+1}, -v{u+1}"]
        prev = u
        if i in (7, 15):
            hf = i >> 3
            for p, R in enumerate((RE, IM)):
                tl.append(f"ds_write_b128 v{TW}, {vr(R+4*hf,4)} offset:{p*2560+16*hf}")
    for p in range(2):
        for k in range(2):
            for e in range(2):
                tl.append(f"ds_read_b64_tr_b16 {vr(FR+8*p+4*k+2*e,2)}, v{TR} offset:{p*2560+(8*e+4*k)*80}")
    tl.append(stamp("scan done"))
    if OPT["flag2_at"] < 0:
        assert qs == 8
        tl += hflag(2)
    hs = [lambda a: a.need([vr(FR, 16)])]
    hs += [(f"buffer_store_dwordx4 {vr(FR+4*f,4)}, v{L16}, {srd(SWS)}, s{sRB} offen offset:{1024*f} {OPT['hsflags']}", "HS1") for f in range(4)]
    rest = sum((quad(qd) for qd in range(qs, 8)), [])
    cut = min(12, len(rest))
    tl += rest[:cut] + merge(rest[cut:cut + 24], hs) + rest[cut + 24:]
    return tl


RED, RED_SRC, RED_DT, RED_TT = 40 * KB, 8448, 4224, 4 * 8448


def wreg(s, e, dt):
    return ar(16 * s + 8 * e + 4 * dt, 4)


def hreg(f):
    return ar(176 + 4 * ((f + 4) % 20), 4)


def steps():
    l = [(L, s) for s in range(4) for L in range(4)]
    s1, s2 = [7, 8, 9, 10], [4, 5, 6]
    if OPT["scan_q"] == 8:
        s1, s2 = s2, s1
    if OPT["ord"] == 0:
        l += [(L, s) for L in range(4) for s in s1 + s2]
    else:
        l += [(L, s) for s in s1 for L in range(2)] + [(L, s) for L in range(2) for s in s2]
        l += [(L, s) for L in range(2, 4) for s in s1 + s2]
    return l


def p2_index(a):
    I = a.I
    I(f"s_and_b32 s{sN}, s{sJ}, 7")
    I(f"s_lshr_b32 s{sT1}, s{sJ}, 3")
    I(f"s_lshl1_add_u32 s{sI2}, s{sR}, s{sT1}")
    I(f"s_lshr_b32 s{sT0}, s{sW}, 1")
    I(f"s_lshl1_add_u32 s{sG2}, s{sT1}, s{sT0}")
    I(f"s_mul_i32 s{sT0}, s{sG2}, {G_STRIDE//2048}")
    I(f"s_and_b32 s{sT1}, s{sW}, 1")
    I(f"s_add_u32 s{sT0}, s{sT0}, s{sT1}")
    I(f"s_lshl_b32 s{sT0}, s{sT0}, 11")
    I(f"s_mul_i32 s{sA1}, s{sI2}, {2*RT_STRIDE}")
    I(f"s_add_u32 s{sA1}, s{sA1}, s{sT0}")
    I(f"s_xor_b32 s{sA0}, s{sI2}, 1")
    I(f"s_mul_i32 s{sA0}, s{sA0}, {2*RT_STRIDE}")
    I(f"s_add_u32 s{sA0}, s{sA0}, s{sT0}")
    I(f"s_mul_i32 s{sB0}, s{sN}, {2*RT_STRIDE}")
    I(f"s_add_u32 s{sB0}, s{sB0}, s{sT0}")
    I(f"s_add_u32 s{sB0}, s{sB0}, {BW}")
    I(f"s_lshl2_add_u32 s{sXI}, s2, s{sW}")
    I(f"s_lshl_b32 s{sXI}, s{sXI}, 11")
    I(f"s_or_b32 s{sXI}, s{sXI}, {XCH}")
    I(f"s_xor_b32 s{sXS}, s{sXI}, {4*8192}")


def b_loads():
    l = []
    for s in range(11):
        for e in range(2):
            for t in range(2):
                it = []
                if e == 0:
                    it += [f"s_add_u32 s{sP0+t}, s{sB0}, {s*4096 + t*RT_STRIDE}"]
                it.append(f"buffer_load_dwordx4 {wreg(s,e,t)}, v{L16}, {srd(SWS)}, s{sP0+t} offen offset:{e*1024} sc1")
                l.append(it)
    return l


def a_loads():
    l = []
    for n, (L, s) in enumerate(steps()):
        for e in range(2):
            it = []
            if e == 0:
                it += [f"s_add_u32 s{sP0}, s{sA1 if L >= 2 else sA0}, {s*4096 + (L&1)*RT_STRIDE}"]
            it.append(f"buffer_load_dwordx4 {hreg(2*n+e)}, v{L16}, {srd(SWS)}, s{sP0} offen offset:{e*1024} {OPT['aflags']}")
            l.append(it)
    return l


def phase2(a):
    I = a.I
    al = a_loads()
    st = steps()
    OA, RA, A1, A2, TA = 192, 193, 194, 195, 196
    DK, BB, DF, BF = 198, 200, 208, 212
    XIN, XV, MN, RS, BASE = 128, 144, 152, 156, 160
    prep = [lambda a: a.wait_vm("AUX"),
            f"v_lshl_add_u32 v{A1}, v{LN}, 3, s{sAX}",
            f"v_lshrrev_b32 v{TA}, 4, v{LN}",
            f"s_and_b32 s{sG}, s{sI2}, 1",
            f"s_lshl3_add_u32 s{sG}, s{sG}, s{sW}",
            f"s_lshl_b32 s{sG}, s{sG}, 5",
            f"v_lshl_add_u32 v{A2}, v{TA}, 2, s{sG}"]
    for n in range(4):
        o = PARK + 128 * (n >> 1) + 16 * (n & 1)
        prep += [f"ds_read_b64 {vr(XV+2*n,2)}, v{A1} offset:{512*n}",
                 f"ds_read_b32 v{RS+n}, v{A2} offset:{o}",
                 f"ds_read_b32 v{MN+n}, v{A2} offset:{o+512}"]
    prep += [f"v_and_b32 v{OA}, 15, v{LN}",
             f"v_lshl_add_u32 v{A1}, v{OA}, 3, s{sAX}",
             f"ds_read_b64 {vr(DK,2)}, v{A1} offset:2048",
             f"ds_read_b64 {vr(BB,2)}, v{A1} offset:{2048+128}",
             f"v_and_b32 v{RA}, 3, v{LN}",
             f"v_lshlrev_b32 v{RA}, 5, v{RA}",
             f"v_bfe_u32 v{A2}, v{LN}, 2, 1",
             f"v_lshl_or_b32 v{RA}, v{A2}, 4, v{RA}",
             f"v_lshl_or_b32 v{RA}, v{TA}, 8, v{RA}",
             f"v_bfe_u32 v{A2}, v{LN}, 3, 1",
             f"v_mul_u32_u24 v{A2}, {RED_DT}, v{A2}",
             f"s_and_b32 s{sG}, s{sW}, 1",
             f"s_lshr_b32 s{sJJ}, s{sW}, 1",
             f"s_lshl4_add_u32 s{sG}, s{sG}, s{sJJ}",
             f"s_lshl_b32 s{sG}, s{sG}, 7",
             f"s_add_u32 s{sG}, s{sG}, {RED}",
             f"v_add3_u32 v{RA}, v{RA}, v{A2}, s{sG}",
             f"v_lshlrev_b32 v{OA}, 4, v{OA}",
             f"v_lshl_or_b32 v{OA}, v{TA}, 11, v{OA}",
             f"s_lshl_b32 s{sXO}, s{sXO}, 1",
             f"s_mul_i32 s{sG}, s{sW}, {RED_SRC}"]
    prep2 = [lambda a: a.need([vr(DK, 4), vr(XV, 16)])]
    for h in range(2):
        prep2 += [f"v_lshlrev_b32 v{DF+2*h}, 16, v{DK+h}", f"v_and_b32 v{DF+2*h+1}, 0xffff0000, v{DK+h}",
                  f"v_lshlrev_b32 v{BF+2*h}, 16, v{BB+h}", f"v_and_b32 v{BF+2*h+1}, 0xffff0000, v{BB+h}"]
    for n in range(4):
        for c in range(4):
            b = BASE + 4 * n + c
            src = XV + 2 * n + (c >> 1)
            prep2 += [f"v_lshlrev_b32 v{b}, 16, v{src}" if c % 2 == 0 else f"v_and_b32 v{b}, 0xffff0000, v{src}",
                      f"v_sub_f32 v{TA}, v{b}, v{MN+n}",
                      f"v_mul_f32 v{TA}, v{TA}, v{RS+n}",
                      f"v_add_f32 v{b}, v{b}, v{BF+c}",
                      f"v_fmac_f32 v{b}, v{TA}, v{DF+c}"]

    def add4(x, y, packed):
        if packed:
            return [f"v_pk_add_f32 {vr(x+h,2)}, {vr(x+h,2)}, {vr(y+h,2)}" for h in (0, 2)]
        return [f"v_add_f32 v{x+c}, v{x+c}, v{y+c}" for c in range(4)]

    def reduce(L, packed):
        acc, tt = 32 * L, L & 1
        w = [f"s_add_u32 m0, s{sG}, {RED_TT*tt}"]
        for dt in range(2):
            for i in range(16):
                w.append((f"ds_write_addtid_b32 v{acc+16*dt+i} offset:{RED+dt*RED_DT+i*256}", "RW"))
        r = [lambda a: a.wait_lg("RW"), "s_barrier"]
        for it in range(2):
            for q in range(4):
                r.append(f"ds_read_b128 {vr(acc+16*it+4*q,4)}, v{RA} offset:{RED_TT*tt+q*RED_SRC+it*1024}")
        e = []
        for it in range(2):
            p = acc + 16 * it
            e.append(lambda a, p=p: a.need([vr(p, 16)]))
            if L < 2:
                e += add4(p, p + 4, packed) + add4(p + 8, p + 12, packed) + add4(p, p + 8, packed)
                e += [f"v_cvt_pk_bf16_f32 v{acc+4+2*it+h}, v{p+2*h}, v{p+2*h+1}" for h in range(2)]
                if it and not OPT["x_abl"] & 8:
                    e.append(f"buffer_store_dwordx4 {vr(acc+4,4)}, v{L16}, {srd(SWS)}, s{sXS} offen offset:{1024*tt} sc1")
            else:
                b = BASE + 8 * tt + 4 * it
                e += add4(p, p + 4, packed) + add4(p + 8, p + 12, packed) + add4(b, p, packed) + add4(b, p + 8, packed)
        return w, r, e

    def xin(tt):
        if OPT["x_abl"] & 8:
            return [f"v_mov_b32 v{XIN+4*tt+k}, 0" for k in range(4)]
        return [f"buffer_load_dwordx4 {vr(XIN+4*tt,4)}, v{L16}, {srd(SWS)}, s{sXI} offen offset:{1024*tt} sc1"]

    def xcheck(tt):
        def f(a):
            x, name = XIN + 4 * tt, f"L_xc{tt}"
            a.need([vr(x, 4)])
            a.I(f"s_mov_b32 s{sT2}, 0")
            a.label(name)
            a.I(f"v_max3_u32 v{TA}, v{x}, v{x+1}, v{x+2}")
            a.I(f"v_max_u32 v{TA}, v{TA}, v{x+3}")
            a.I(f"v_cmp_eq_u32 vcc, -1, v{TA}")
            a.I(f"s_cmp_eq_u64 vcc, 0")
            a.I(f"s_cbranch_scc1 {name}_done")
            save, pos = list(a.vmq), a.pos
            a.I(f"s_add_u32 s{sT2}, s{sT2}, 1")
            a.I(f"s_cmp_ge_u32 s{sT2}, {SPIN_MAX}")
            a.I(f"s_cbranch_scc1 {name}_done")
            for l in xin(tt):
                a.I(l, track=False)
            a.wait_vm_all()
            a.I(f"s_branch {name}")
            a.vmq, a.pos = save, pos
            a.label(name + "_done")
            if DEBUG and not OPT["rt"]:
                CNTS.append(name)
                a.I(f"v_writelane_b32 v{STAMPV}, s{sT2}, {39+len(CNTS)}")
        return f

    def final(tt, packed=True):
        e = [xcheck(tt)]
        for it in range(2):
            b = BASE + 8 * tt + 4 * it
            x, u = XIN + 4 * tt + 2 * it, XIN + 8
            for h in range(2):
                e += [f"v_lshlrev_b32 v{u+2*h}, 16, v{x+h}", f"v_and_b32 v{u+2*h+1}, 0xffff0000, v{x+h}"]
            e += [f"s_add_u32 s{sJJ}, s{sXO}, {(32*tt+4*it)*2048}"] + add4(b, u, packed)
            e.append(f"buffer_store_dwordx4 {vr(b,4)}, v{OA}, {srd(SOUT)}, s{sJJ} offen {OPT['outflags']}")
        return e

    first = {1: min(n for n, (L, s) in enumerate(st) if s >= 7), 2: min(n for n, (L, s) in enumerate(st) if 4 <= s < 7)}
    done = [max(n for n, (L, s) in enumerate(st) if L == q) + 1 for q in range(4)]
    gate = {k: v - OPT["look"] for k, v in first.items()}
    issue, t, cnt = {}, 0, 0
    for f in range(2 * OPT["pro"], 88):
        m = f // 2
        lo = max([m - OPT["far"], 0] + [gate[k] for k in first if m >= first[k]])
        if lo > t:
            t, cnt = lo, 0
        if cnt >= OPT["rate"]:
            t, cnt = t + 1, 0
        assert t < m and OPT["far"] <= 9
        issue.setdefault(t, []).append(f)
        cnt += 1
    main = []
    for n, (L, s) in enumerate(st):
        ms = []
        for e in range(2):
            for dt in range(2):
                D = vr(32 * L + 16 * dt, 16)
                ms.append(f"v_mfma_f32_32x32x16_bf16 {D}, {hreg(2*n+e)}, {wreg(s,e,dt)}, {D if s or e else '0'}")
        regs = [hreg(2 * n), hreg(2 * n + 1), ar(16 * s, 16)]
        g0 = [lambda a, regs=regs: a.need(regs)]
        if n == 0 or OPT['only']:
            g0.append(stamp(f"k{n}"))
        g0.append(ms[0])
        g1, g2, g3 = [ms[1]], [ms[2]], [ms[3]]
        for stage in (1, 2):
            if n == gate[stage]:
                g0.append(hpoll(stage))
        for stage in (1, 2):
            lead = OPT["plead"] if gate[stage] == min(gate.values()) else min(OPT["plead"], abs(gate[2] - gate[1]))
            if n + lead == gate[stage]:
                g1.append(hload(stage))
        if n == max(gate.values()):
            g1.append(XLOAD)
        if n == max(gate.values()) + 7:
            g1.append(spoll("L_xr", XLOAD, 1))
        ld = issue.get(n, [])
        for j, f in enumerate(ld):
            (g0, g2, g1, g3)[j if len(ld) <= 2 else (0, 2, 1, 3)[j]].extend(al[f])
        if n == OPT["flag2_at"]:
            g1 += hflag(2)
        if n == OPT["flag1_at"]:
            g1 += hflag(1)
        main += [g0, g1, g2, g3]
    plans = [(prep, 2, 14), (prep2, 16, 4 * done[0])]
    for L in range(3):
        rw, rs1, rr, rs2, re = [int(v) for v in (OPT["red"].split(",") * 3)[L].split("/")]
        w, r, e = reduce(L, False)
        g = 4 * done[L] + 2
        plans += [(w, g, g + rw), (r, g + rw + rs1, g + rw + rs1 + rr)]
        g += rw + rs1 + rr + rs2
        plans.append((e, g, min(g + re, 176)))
    plans.append(([xin(0)], OPT["xin0"], OPT["xin0"] + 1, 1))
    plans.append(([xin(1)], OPT["xin1"], OPT["xin1"] + 1, 1))
    inloop = OPT["fin0"] < 176
    if inloop:
        plans.append((final(0, False), OPT["fin0"], 176))
    if OPT["x_p2"] & 1:
        txt = lambda it: (it[0] if isinstance(it, tuple) else it) if not callable(it) and not isinstance(it, list) else ""
        plans = [([it for it in p[0] if not txt(it).startswith("s_barrier")],) + tuple(p[1:]) for p in plans]
    if OPT["x_p2"] & 2:
        txt = lambda it: (it[0] if isinstance(it, tuple) else it) if not callable(it) and not isinstance(it, list) else ""
        plans = [([it for it in p[0] if not txt(it).startswith("ds_write")],) + tuple(p[1:]) for p in plans]
    for g in spread(main, plans):
        a.run(g)
    I(stamp("mfma done"))
    w, r, e = reduce(3, True)
    a.run(w + ([] if inloop else final(0)) + r)
    I(stamp("fin0"))
    a.run(e + final(1))
    I(stamp("out issued"))
    if DEBUG:
        a.wait_vm_all()
    I(stamp("out done"))


import os
HEADER = open(os.path.dirname(os.path.abspath(__file__)) + "/header.txt").read()


def kd(name):
    return f""".amdhsa_kernel {name}
  .amdhsa_next_free_vgpr 512
  .amdhsa_next_free_sgpr 102
  .amdhsa_accum_offset 256
  .amdhsa_group_segment_fixed_size 0
  .amdhsa_float_denorm_mode_32 3
  .amdhsa_kernarg_size 136
  .amdhsa_user_sgpr_count 2
  .amdhsa_user_sgpr_kernarg_segment_ptr 1
  .amdhsa_system_sgpr_workgroup_id_x 1
.end_amdhsa_kernel
"""


OPT = dict(only='', x_drop='', x_w0=0, xp_at=9, pre_pairs=2, par_n=4, rt=0, x_p2=0, x_nostore=0, spin=0, hsflags='sc1', aflags='sc1', outflags='sc1', hglc=1,
           rotmask=7, x_first=1, x_second=1, w_loop=2, go_at=5,
           sch='W:-2:5,go:6,R:7:12,H2:14:28,pick:34,RS:36:44,H3:30:46,H4:48:62,H5:64:78,XP:80:84,bflag:66,xr:104,bpoll:90,bchk:110,B:111:190,f0:150,hl0:176',
           b2=44, x_abl=0, t3_late=0, t1_at=-1, p_at=-1, g1_pk=0, e_win=6, e_len=14, scan_q=8, eload_q=3, a_q='1/8', flag1_at=6, flag2_at=-1,
           la=2, wp=1, pro=9, pro_q=10, far=9, rate=2, look=5, plead=4, ord=1, red='6/2/2/2/5', xin0=146, xin1=164, fin0=169)


def build():
    a = Asm()
    k1 = NAME + "_kernel"
    a.raw(HEADER.rstrip())
    a.raw("; @launch grid=(256,1,1) block=(256,1,1) lds=163840")
    a.raw('.amdgcn_target "amdgcn-amd-amdhsa--gfx950"\n.text')
    a.raw(f".globl {k1}\n.p2align 8\n.type {k1},@function\n{k1}:")
    a.I("s_cmp_ge_u32 s2, 256")
    a.I("s_cbranch_scc1 L_end")
    if DEBUG:
        a.I("s_memrealtime s[86:87]")
    phase1(a, k1)
    phase2(a)
    if OPT["spin"]:
        a.I("s_cmp_lg_u32 s2, 100\ns_cbranch_scc1 L_end")
        a.I(f"s_cmp_lg_u32 s{sW}, 3\ns_cbranch_scc1 L_end")
        a.I("s_mov_b32 s4, 0")
        a.label("L_spin")
        a.I("s_memrealtime s[6:7]")
        a.wait_lg_all()
        a.I("s_sub_u32 s6, s6, s70\ns_add_u32 s4, s4, 1\ns_cmp_ge_u32 s4, 20000\ns_cbranch_scc1 L_end\ns_cmp_lt_u32 s6, 6000\ns_cbranch_scc1 L_spin")
    stamp_flush(a, 0)
    a.label("L_end")
    a.I("s_endpgm")
    a.raw('.section .rodata,"a"\n.p2align 6')
    a.raw(kd(k1))
    print(f"instructions: {a.count}, nops {a.nops}", file=sys.stderr)
    return a.text()


if __name__ == "__main__":
    out = sys.argv[1] if len(sys.argv) > 1 else f"cdna_kernels/{NAME}.s"
    DEBUG = "-d" in sys.argv
    for arg in sys.argv[2:]:
        if "=" in arg:
            k, v = arg.split("=", 1)
            OPT[k] = type(OPT[k])(v)
    txt = build()
    if DEBUG:
        txt += "; STAMPS " + ",".join(STAMPS) + "\n; CNTS " + ",".join(CNTS) + "\n"
    open(out, "w").write(txt)
```

```python
import sys, math, struct
from asmlib import Asm, TRANS

NAME = "parallel_sum__ssm_conv_s5__mixer_channel_mlp__prompt"
KB = 1024
RT_STRIDE = 176 * KB
G_STRIDE = 44 * KB
HID = 0
BW = 64 * RT_STRIDE
EOFF = BW + 16 * RT_STRIDE
HFLAG = EOFF + 64 * KB
XFLAG = HFLAG + 64 * KB
BFLAG = XFLAG + 32 * KB
XCH = 16 * 1024 * KB
WS_END = XCH + 2048 * KB
SPIN_MAX = 100000

H = [0, 32 * KB, 64 * KB, 96 * KB, 128 * KB, 0]
PARK = H[1]
ETAB = H[1] + 1 * KB
EIN = 108 * KB
TRB = H[4]


def f32(x):
    return "0x%08x" % struct.unpack("<I", struct.pack("<f", x))[0]


pX, pLRE, pLIM, pBRE, pBIM, pCRE, pCIM, pLDT = [4 + 2 * i for i in range(8)]
pDSK, pBX, pW1, pB1, pW2, pB2, pOUT, pDBG = [20 + 2 * i for i in range(8)]
pWS = 36
SX, SBR, SBI, SW1, SR, SWS, SWS2, SW1B, SRS, SOUT, SDBG, SE = [40 + 4 * i for i in range(12)]
sW, sR, sJ, sJJ, sG, sROT, sT0, sT1, sT2, sRA, sRB, sHB, sONE, sFL = range(88, 102)
sXB = 38
sUB = 39
sWL = 3
sA1, sXF, sHP, sXP, sXI, sXS = 6, 7, 8, 10, 12, 13
sI2, sN, sB0, sA0, sG2, sP0, sP1 = 15, 16, 17, 18, 19, 24, 25
sCS, sCM0, sCM1 = 26, 27, 28
sHF = 29
sIW, sIL = 34, 35
sRS = 1
sINI = 0


def srd(n):
    return f"s[{n}:{n+3}]"


def sp(n):
    return f"s[{n}:{n+1}]"


def vr(n, c=1):
    return f"v{n}" if c == 1 else f"v[{n}:{n+c-1}]"


def ar(n, c=1):
    return f"a{n}" if c == 1 else f"a[{n}:{n+c-1}]"


X = 0
ACA, ACB = 128, 160
VQ, VW, RDS, RDT = 192, 196, 200, 204
L16 = 206
MEAN, RSTD, IR2, K0, K1 = 207, 208, 209, 210, 211
PA, PC, PA16, PAS, PAH, PA256, PP = 212, 214, 216, 218, 220, 222, 224
BIA = 226
KEEP = 238
T = 242
STASH = 176
aTW, aTR, aXD, aAA, aES, aEA, aARS, aARW, aAET = 176, 177, 178, 179, 181, 182, 183, 184, 185
STG = 192


DEBUG = False
STAMPV = T + 3
STAMPS = []
DBGOFF = 15 * 1024 * KB


def stamp(name):
    def f(a):
        if not DEBUG:
            return
        if OPT["only"] and name not in ("start", "out done") and name not in OPT["only"].split(","):
            return
        n = len(STAMPS)
        STAMPS.append(name)
        if name.endswith("start") and name[0] in "sk":
            a.I("s_memrealtime s[22:23]")
            a.wait_lg_all()
            a.I(f"v_writelane_b32 v{STAMPV}, s22, 62")
            a.I(f"v_writelane_b32 v{STAMPV}, s86, 61")
        a.I("s_memtime s[22:23]")
        a.wait_lg_all()
        a.I(f"v_writelane_b32 v{STAMPV}, s22, {n}")
        if OPT["rt"]:
            a.I("s_memrealtime s[22:23]")
            a.wait_lg_all()
            a.I(f"v_writelane_b32 v{STAMPV}, s22, {32+n}")
    return f


def stamp_flush(a, which):
    if not DEBUG:
        return
    a.I("s_memrealtime s[22:23]")
    a.wait_lg_all()
    a.I(f"v_writelane_b32 v{STAMPV}, s22, 63")
    a.I(f"s_lshl_b32 s22, s2, 2\ns_add_u32 s22, s22, s{sW}\ns_lshl_b32 s22, s22, 8\ns_add_u32 s22, s22, {DBGOFF + which*256*KB}")
    a.I(f"v_mbcnt_lo_u32_b32 v0, -1, 0\nv_mbcnt_hi_u32_b32 v0, -1, v0\nv_lshlrev_b32 v0, 2, v0")
    a.I(f"buffer_store_dword v{STAMPV}, v0, {srd(SWS)}, s22 offen")


def mk_srd(a, n, ptr, size):
    a.I(f"s_mov_b64 s[{n}:{n+1}], s[{ptr}:{ptr+1}]")
    a.I(f"s_mov_b32 s{n+2}, {size}")
    a.I(f"s_mov_b32 s{n+3}, 0x20000")


def load_kernargs(a):
    a.I("s_load_dwordx16 s[4:19], s[0:1], 0")
    a.I("s_load_dwordx16 s[20:35], s[0:1], 64")
    a.I("s_load_dwordx2 s[36:37], s[0:1], 128")


def dma4(vbase, s, soff, m0expr, tag):
    it = list(m0expr)
    for q in range(4):
        it.append((f"buffer_load_dwordx4 v{vbase+q}, {srd(s)}, s{soff} offen offset:{q*1024} lds", tag))
    return it


def stage_regs(n):
    return [ar(STG + 16 * (n & 3), 16)]


def frag_reads(n):
    u, d = divmod(n, 16)
    it = []
    for s in range(2):
        k = 2 * d + s
        base = STG + 16 * (n & 3) + 8 * s
        if u == 1:
            for part in range(2):
                it.append(f"ds_read_b128 {ar(base+4*part,4)}, v{RDS+(k&3)} offset:{(k>>2)*8192+part*4096}")
        else:
            kk = k if u == 0 else (k & 15)
            for t in range(2):
                for e in range(2):
                    it.append(f"ds_read_b64_tr_b16 {ar(base+4*t+2*e,2)}, v{RDT+t} offset:{kk*2048+e*512}")
    return it


def mfmas(n):
    u, d = divmod(n, 16)
    res = []
    for s in range(2):
        k = 2 * d + s
        base = STG + 16 * (n & 3) + 8 * s
        for t in range(2):
            D = vr((ACA, ACB, ACA)[u] + 16 * t, 16)
            c = D if k else "0"
            bias = f"v_mfma_f32_32x32x16_bf16 {D}, {vr(BIA+u,4)}, {vr(BIA+4+4*t,4)}, {c}"
            g = []
            if u == 1:
                g.append(f"v_mfma_f32_32x32x16_bf16 {D}, {vr(X+4*k,4)}, {ar(base+4*t,4)}, {c}")
            else:
                if u == 2 and k == 0:
                    g.append(bias)
                    c = D
                g.append(f"v_mfma_f32_32x32x16_bf16 {D}, {ar(base+4*t,4)}, {vr(X+4*k,4)}, {c}")
                if u == 0 and k == 31:
                    g.append(bias)
            res.append(g)
    return res


LN, HH, RHO = T, T + 6, T + 7


def cpow(dst, nreg_or_const, zr, zv, t0, t1):
    it = []
    n = nreg_or_const
    if n == 1:
        it += [f"v_exp_f32 v{t0}, v{zr}", f"v_fract_f32 v{t1}, v{zv}"]
    else:
        src = n if isinstance(n, str) else f32(float(n))
        it += [f"v_mul_f32 v{t0}, {src}, v{zr}", f"v_mul_f32 v{t1}, {src}, v{zv}",
               f"v_exp_f32 v{t0}, v{t0}", f"v_fract_f32 v{t1}, v{t1}"]
    it += [f"v_cos_f32 v{dst}, v{t1}", f"v_sin_f32 v{dst+1}, v{t1}",
           f"v_mul_f32 v{dst}, v{dst}, v{t0}", f"v_mul_f32 v{dst+1}, v{dst+1}, v{t0}"]
    return it


def fill_u0():
    it = []
    A0, A1, A2, A3 = [ACB + 8 + i for i in range(4)]
    EPS = f32(1e-5)
    k0 = -2.0 * math.log2(math.e) * math.sqrt(2.0 / math.pi)
    k1 = k0 * 0.044715
    it += [f"v_mov_b32 v{A0}, v{RSTD}",
           f"v_mul_f32 v{MEAN}, {f32(1/512)}, v{MEAN}",
           f"v_permlane32_swap_b32 v{A0}, v{RSTD}",
           f"v_add_f32 v{RSTD}, v{A0}, v{RSTD}",
           f"v_mul_f32 v{A0}, {f32(1/512)}, v{RSTD}",
           f"v_fma_f32 v{A0}, -v{MEAN}, v{MEAN}, v{A0}",
           f"v_max_f32 v{A0}, 0, v{A0}",
           f"v_add_f32 v{A1}, {EPS}, v{A0}",
           f"v_cvt_pk_bf16_f32 v{A2}, v{A0}, v{A0}",
           f"v_lshlrev_b32 v{A2}, 16, v{A2}",
           f"v_add_f32 v{A2}, {EPS}, v{A2}",
           f"v_cvt_pk_bf16_f32 v{A2}, v{A2}, v{A2}",
           f"v_lshlrev_b32 v{A2}, 16, v{A2}",
           f"v_sqrt_f32 v{A2}, v{A2}",
           f"v_fmac_f32 v{A0}, {EPS}, v{A1}",
           f"v_cvt_pk_bf16_f32 v{A2}, v{A2}, v{A2}",
           f"v_lshlrev_b32 v{A2}, 16, v{A2}",
           f"v_rcp_f32 v{RSTD}, v{A2}",
           f"v_rsq_f32 v{A2}, v{A0}",
           f"v_sqrt_f32 v{IR2}, v{A0}",
           f"v_mul_f32 v{K0}, {f32(k0)}, v{A2}",
           f"v_mul_f32 v{A3}, v{A2}, v{A2}",
           f"v_mul_f32 v{A3}, {f32(0.044715)}, v{A3}",
           f"v_mul_f32 v{K1}, v{K0}, v{A3}",
           f"v_cvt_pk_bf16_f32 v{A2}, v{IR2}, v{IR2}",
           f"v_and_b32 v{A3}, 0xffff0000, v{A2}",
           f"v_sub_f32 v{A3}, v{IR2}, v{A3}",
           f"v_cvt_pk_bf16_f32 v{A2}, v{IR2}, v{A3}",
           f"v_mul_lo_u32 v{BIA+8}, v{A2}, v{HH}",
           f"v_sub_u32 v{BIA+4}, v{A2}, v{BIA+8}"]
    return it


def ssm_params():
    it = []
    A0, A1, A2, A3 = [ACB + 8 + i for i in range(4)]
    for k in range(2):
        it.append(f"v_lshl_or_b32 v{BIA+2*k}, v{BIA+2*k}, 16, v{BIA+2*k}")
    LR, LI, ZR, ZV = [ACB + 12 + i for i in range(4)]
    it += [f"v_lshlrev_b32 v{LR}, 16, v{PA}",
           f"v_lshlrev_b32 v{LI}, 16, v{PA+1}",
           f"v_lshlrev_b32 v{A0}, 16, v{PC}",
           f"v_mul_f32 v{A0}, {f32(math.log2(math.e))}, v{A0}",
           f"v_exp_f32 v{A0}, v{A0}",
           f"v_cvt_f32_u32 v{A2}, v{HH}",
           f"v_cvt_pk_bf16_f32 v{A0}, v{A0}, v{A0}",
           f"v_and_b32 v{A0}, 0xffff0000, v{A0}",
           f"v_mul_f32 v{ZR}, v{A0}, v{LR}",
           f"v_mul_f32 v{ZV}, v{A0}, v{LI}",
           f"v_mul_f32 v{ZR}, {f32(math.log2(math.e))}, v{ZR}",
           f"v_mul_f32 v{ZV}, 0.15915494, v{ZV}"]
    it += cpow(PA, 1, ZR, ZV, A0, A1)
    it += cpow(PA16, 16, ZR, ZV, A0, A1)
    it += cpow(PA256, 256, ZR, ZV, A0, A1)
    it += [f"v_mul_f32 v{A3}, {f32(128.0)}, v{A2}"]
    it += cpow(PAH, f"v{A3}", ZR, ZV, A0, A1)
    it += [f"s_lshl_b32 s{sROT}, s{sW}, 1",
           f"v_add_u32 v{A3}, s{sROT}, v{HH}",
           f"v_cvt_f32_u32 v{A3}, v{A3}",
           f"v_mul_f32 v{A3}, {f32(16.0)}, v{A3}"]
    it += cpow(PAS, f"v{A3}", ZR, ZV, A0, A1)
    it += [f"v_mul_f32 v{A0}, v{LR}, v{LR}",
           f"v_fmac_f32 v{A0}, v{LI}, v{LI}",
           f"v_rcp_f32 v{A0}, v{A0}",
           f"v_add_f32 v{A1}, -1.0, v{PA}",
           f"v_mul_f32 v{A2}, v{A1}, v{LR}",
           f"v_fmac_f32 v{A2}, v{PA+1}, v{LI}",
           f"v_mul_f32 v{A3}, v{PA+1}, v{LR}",
           f"v_fma_f32 v{A3}, -v{A1}, v{LI}, v{A3}",
           f"v_add_f32 v{A0}, v{A0}, v{A0}",
           f"v_mul_f32 v{PC}, v{A2}, v{A0}",
           f"v_mul_f32 v{PC+1}, v{A3}, v{A0}"]
    return it


def xready():
    return [lambda a: a.wait_vm("XP"), f"buffer_store_dword v{FONE}, v{FZERO}, {srd(SWS)}, s{sXF} offen sc1"]


ARS, AET, ARW = VQ + 1, VQ + 2, VQ + 3
E0 = T + 4


def unstash(dst, src):
    return f"v_accvgpr_read_b32 v{dst}, a{src}"


def fill_u1():
    it, rest = [], []
    tmp = [T + 10 + i for i in range(4)]
    for qd in range(8):
        l = it if qd < 8 - OPT["g1_pk"] else rest
        l += gelu_plain([ACA + 4 * qd + i for i in range(4)], tmp) if l is it else gelu_packed(ACA + 4 * qd, T + 10)
        if qd & 1:
            l += pack_store(ACA + 8 * (qd >> 1), SWS, sHB, 1024 * (qd >> 1), "HS0")
    return it, rest


def stats_to_lds():
    Z = T + 8
    return [unstash(ARW, aARW), unstash(AET, aAET), unstash(ARS, aARS),
            f"v_mov_b32 v{Z}, 0", f"v_mov_b32 v{Z+1}, 0",
            f"ds_write_b32 v{ARW}, v{RSTD}",
            f"ds_write_b32 v{ARW}, v{MEAN} offset:512",
            f"ds_write_b64 v{AET}, {vr(Z,2)}"]


def fill_u2a():
    RS = RDS
    E1 = PP
    it = []
    for i0 in range(0, 16, 4):
        for i in range(i0, i0 + 4):
            it += [f"v_mul_f32 v{ACB+i}, v{ACB+i}, v{RS+(i&3)}",
                   f"v_mul_f32 v{ACB+16+i}, v{ACB+16+i}, v{RS+(i&3)}"]
        if i0 < 12:
            it.append(f"ds_read_b128 {vr(RS,4)}, v{ARS} offset:{4*i0+16}")
        for i in range(max(i0, 1), i0 + 4):
            cr, ci = (ACB, ACB + 16) if i == 1 else ((E1, E1 + 1) if i & 1 else (E0, E0 + 1))
            nx = E0 if i & 1 else E1
            it += [f"v_fma_f32 v{nx}, v{PA}, v{cr}, v{ACB+i}",
                   f"v_fma_f32 v{nx+1}, v{PA}, v{ci}, v{ACB+16+i}",
                   f"v_fma_f32 v{nx}, -v{PA+1}, v{ci}, v{nx}",
                   f"v_fmac_f32 v{nx+1}, v{PA+1}, v{cr}"]
    it.append((f"ds_write_b64 v{AET}, {vr(E0,2)} offset:2048", "E"))
    return it


def fill_u2b():
    it = []
    slots = [RDS, RDS + 2, VW, VW + 2, T + 8, T + 10, T + 12]
    for m in range(6, -1, -1):
        it.append(f"ds_read_b64 {vr(slots[m],2)}, v{AET} offset:{(7-m)*256}")
    XD, AA, ES = T + 1, X, T + 2
    it += [unstash(XD, aXD), unstash(AA, aAA), unstash(AA + 1, aAA + 1), unstash(ES, aES)]
    it.append(lambda a: a.need([vr(x, 2) for x in slots]))
    cur = slots[6]
    for m in range(5, -1, -1):
        dst = PP if m == 0 else slots[m]
        it += cfma(dst, PA16, cur, slots[m])
        cur = dst
    it += cfma(E0, PA16, PP, E0)

    def estore(a):
        a.I(f"s_cmp_lg_u32 s{sW}, 3")
        a.I("s_cbranch_scc1 L_noe")
        pos = a.pos
        a.I(f"buffer_store_dwordx2 {vr(E0,2)}, v{ES}, {srd(SE)}, 0 offen sc1", track=False)
        a.pos = pos
        a.label("L_noe")
    it.append(estore)
    for tt in range(2):
        it += [f"s_add_u32 m0, s{sAX}, {1024*tt}\ns_add_u32 s{sT0}, s{sXO}, {32768*tt}",
               (f"buffer_load_dwordx4 v{XD}, {srd(SX)}, s{sT0} offen lds", "AUX")]
    it += [f"s_add_u32 m0, s{sAX}, 2048\ns_add_u32 s{sRA}, s{sHB}, {16*KB}", (f"global_load_lds_dwordx4 {vr(AA,2)}, off", "AUX")]
    return it


def gelu_plain(regs, tmp):
    it = []
    n = len(regs)
    for r, t in zip(regs, tmp):
        it.append(f"v_mul_f32 v{t}, v{r}, v{r}")
    for r, t in zip(regs, tmp):
        it.append(f"v_fma_f32 v{t}, v{t}, v{K1}, v{K0}")
    for r, t in zip(regs, tmp):
        it.append(f"v_mul_f32 v{t}, v{t}, v{r}")
    for r, t in zip(regs, tmp):
        it.append(f"v_exp_f32 v{t}, v{t}")
    for r, t in zip(regs, tmp):
        it.append(f"v_fma_f32 v{t}, v{t}, v{IR2}, v{IR2}")
    for r, t in zip(regs, tmp):
        it.append(f"v_rcp_f32 v{t}, v{t}")
    for r, t in zip(regs, tmp):
        it.append(f"v_mul_f32 v{r}, v{r}, v{t}")
    return it


def gelu_packed(base, tmp):
    it = []
    kk = vr(K0, 2)
    ii = vr(RSTD, 2)
    for p in (0, 2):
        it.append(f"v_pk_mul_f32 {vr(tmp+p,2)}, {vr(base+p,2)}, {vr(base+p,2)}")
    for p in (0, 2):
        it.append(f"v_pk_fma_f32 {vr(tmp+p,2)}, {vr(tmp+p,2)}, {kk}, {kk} op_sel:[0,1,0] op_sel_hi:[1,1,0]")
    for p in (0, 2):
        it.append(f"v_pk_mul_f32 {vr(tmp+p,2)}, {vr(tmp+p,2)}, {vr(base+p,2)}")
    for p in range(4):
        it.append(f"v_exp_f32 v{tmp+p}, v{tmp+p}")
    for p in (0, 2):
        it.append(f"v_pk_fma_f32 {vr(tmp+p,2)}, {vr(tmp+p,2)}, {ii}, {ii} op_sel:[0,1,1] op_sel_hi:[1,1,1]")
    for p in range(4):
        it.append(f"v_rcp_f32 v{tmp+p}, v{tmp+p}")
    for p in (0, 2):
        it.append(f"v_pk_mul_f32 {vr(base+p,2)}, {vr(base+p,2)}, {vr(tmp+p,2)}")
    return it


_gp, _gk = gelu_plain, gelu_packed
gelu_plain = lambda regs, tmp: [] if OPT["x_abl"] & 1 else _gp(regs, tmp)
gelu_packed = lambda base, tmp: ["v_nop"] if OPT["x_abl"] & 2 else _gk(base, tmp)


def pack_store(base, s, soff, off, tag):
    it = [f"v_cvt_pk_bf16_f32 v{base+n}, v{base+2*n}, v{base+2*n+1}" for n in range(4)]
    if OPT["x_nostore"] == 1:
        return it
    it.append((f"buffer_store_dwordx4 {vr(base,4)}, v{L16}, {srd(s)}, s{soff} offen offset:{off} {OPT['hsflags']}", tag))
    return it


def cfma(dst, m, x, add):
    return [f"v_fma_f32 v{dst}, v{m}, v{x}, v{add}",
            f"v_fma_f32 v{dst+1}, v{m}, v{x+1}, v{add+1}",
            f"v_fma_f32 v{dst}, -v{m+1}, v{x+1}, v{dst}",
            f"v_fmac_f32 v{dst+1}, v{m+1}, v{x}"]


def poll(a, name, val, addr, s, soff, m="vcc"):
    ld = f"buffer_load_dword v{val}, v{addr}, {srd(s)}, {soff} offen sc1"
    a.need([f"v{val}"])
    a.I(f"v_cmp_eq_u32 {m}, 0, v{val}")
    a.I(f"s_mov_b32 s{sT2}, 0")
    a.I(f"s_cmp_eq_u64 {m}, 0")
    a.I(f"s_cbranch_scc1 {name}_done")
    save, pos = list(a.vmq), a.pos
    a.label(name)
    a.I(ld, track=False)
    a.wait_vm_all()
    a.I(f"v_cmp_eq_u32 {m}, 0, v{val}")
    a.I(f"s_add_u32 s{sT2}, s{sT2}, 1")
    a.I(f"s_cmp_ge_u32 s{sT2}, {SPIN_MAX}")
    a.I(f"s_cbranch_scc1 {name}_done")
    a.I(f"s_cmp_eq_u64 {m}, 0")
    a.I(f"s_cbranch_scc0 {name}")
    a.vmq, a.pos = save, pos
    a.label(name + "_done")
    if DEBUG and not OPT["rt"]:
        CNTS.append(name)
        a.I(f"v_writelane_b32 v{STAMPV}, s{sT2}, {39+len(CNTS)}")


def xlds(c):
    return 32 * KB * (1 + (c >> 1)) + 4 * KB * (c & 1)


def xgroup(c):
    return dma4(VQ, SX, sT0, [f"s_add_u32 m0, s{sWL}, {xlds(c)}", f"s_xor_b32 s{sT0}, s{sXB}, {c<<7}"], f"x{c}")


def wgroup(n, half):
    tag = f"H{n}"
    pre = [f"s_add_u32 m0, s{sWL}, {H[n] + 4*KB*half}"]
    if n in (2, 3):
        pre += [f"s_xor_b32 s{sT0}, s{sCS}, {512*(n&1)}"]
        return dma4(VQ, SBI if half else SBR, sT0, pre, tag)
    off = 32 * 3584 * half + (128 if n >= 4 else 0)
    pre += [f"s_add_u32 s{sT0}, s{sCM1 if n&1 else sCM0}, {off}"]
    return dma4(VW, SW1B if n >= 4 else SW1, sT0, pre, tag)


def cost(it):
    if callable(it):
        return 1
    if isinstance(it, tuple):
        it = it[0]
    c = 0
    for l in it.split("\n"):
        mn = l.split()[0]
        if mn in TRANS or mn.startswith("v_mfma"):
            c += 2
        elif mn == "ds_write_b128":
            c += 6
        elif mn.startswith("ds_write_addtid"):
            c += 2
        elif mn.startswith("ds_write"):
            c += 4
        elif mn == "buffer_store_dwordx4":
            c += 7
        elif mn.startswith("buffer_") or mn.startswith("global_"):
            c += 3
        else:
            c += 1
    return c


def grp(items):
    res, cur = [], []
    for it in items:
        cur.append(it)
        if not (isinstance(it, str) and it.startswith("s_")):
            res.append(cur)
            cur = []
    return res


def spread(main, plans):
    load = [sum(map(cost, g)) for g in main]
    gaps = [[] for _ in main]
    for items, g0, g1, *uni in plans:
        if not items:
            continue
        if uni:
            for j, grp in enumerate(items):
                i = g0 + (j * (g1 - g0)) // len(items)
                gaps[i] += grp
                load[i] += sum(map(cost, grp))
            continue
        tot = sum(load[g0:g1]) + sum(map(cost, items))
        acc, j = 0, 0
        for i in range(g0, g1):
            acc += load[i]
            target = tot * (i - g0 + 1) / (g1 - g0)
            while j < len(items) and (acc + cost(items[j]) / 2 <= target or i == g1 - 1):
                gaps[i].append(items[j])
                acc += cost(items[j])
                load[i] += cost(items[j])
                j += 1
    return [m + g for m, g in zip(main, gaps)]


NEGM, IDM, CD = ACB, ACB + 4, ACB + 16


def unpack(i):
    return [f"v_mfma_f32_4x4x4_16b_bf16 {vr(CD+4*q,4)}, {vr(IDM,2)}, {vr(X+8*i+2*q,2)}, {vr(NEGM,4)}" for q in range(4)]


def repack(i):
    return [f"v_cvt_pk_bf16_f32 v{X+8*i+n}, v{CD+2*n}, v{CD+2*n+1}" for n in range(8)]


def phase1(a, kname):
    I = a.I
    load_kernargs(a)
    TA, TB, TC, TD = T + 1, T + 2, ACB + 31, T + 4
    SG, PI = T + 8, T + 9
    RR = ACA
    I(f"v_lshrrev_b32 v{TA}, 6, v0")
    I(f"v_and_b32 v{LN}, 63, v0")
    I(f"v_readfirstlane_b32 s{sW}, v{TA}")
    I(f"s_getpc_b64 s[{SR}:{SR+1}]")
    a.label("L_pc")
    I(f"s_and_b32 s{sT0}, s2, 0xf8")
    I(f"v_lshrrev_b32 v{TB}, 5, v0")
    I(f"v_add_lshl_u32 v{RR+8}, s{sT0}, v{TB}, 7")
    I(f"v_mov_b32 v{RR+9}, 0")
    I(f"v_min_u32 v{RR+8}, L_end-L_pc, v{RR+8}")
    I(f"v_lshl_add_u64 {vr(RR+8,2)}, {vr(RR+8,2)}, 0, s[{SR}:{SR+1}]")
    I(f"global_load_dword v{RR+10}, {vr(RR+8,2)}, off", track=False)
    I(f"s_bfe_u32 s{sT1}, s2, 0x20003")
    I(f"s_lshr_b32 s{sT0}, s2, 5")
    I(f"s_and_b32 s{sR}, s2, 3")
    I(f"s_lshl2_add_u32 s{sR}, s{sR}, s{sT1}")
    I(f"s_lshl1_add_u32 s{sROT}, s{sT1}, s{sT0}")
    I(f"s_and_b32 s{sROT}, s{sROT}, {OPT['rotmask']}")
    I(f"s_and_b32 s{sJ}, s2, 4")
    I(f"s_lshl1_add_u32 s{sJ}, s{sJ}, s{sT0}")
    I(f"s_lshl2_add_u32 s{sHB}, s{sR}, s{sW}")
    I(f"s_lshl_b32 s{sXB}, s{sHB}, 8")
    I(f"s_or_b32 s{sXB}, s{sXB}, s{sROT}")
    I(f"s_lshl_b32 s{sXB}, s{sXB}, 7")
    I(f"s_lshl_b32 s{sWL}, s{sW}, 13")
    I(f"v_lshrrev_b32 v{TC}, 4, v{LN}")
    I(f"v_xor_b32 v{TC}, v{LN}, v{TC}")
    I(f"v_and_b32 v{TC}, 7, v{TC}")
    I(f"v_lshlrev_b32 v{TC}, 4, v{TC}")
    I(f"v_bfe_u32 v{TD}, v{LN}, 3, 2")
    I(f"v_lshl_or_b32 v{TC}, v{TD}, 10, v{TC}")
    I(f"v_lshrrev_b32 v{HH}, 5, v{LN}")
    I(f"v_lshl_or_b32 v{VQ}, v{HH}, 14, v{TC}")
    I(f"v_xor_b32 v{VQ+1}, 64, v{VQ}")
    I(f"v_add_u32 v{VQ+2}, {2*3072}, v{VQ}")
    I(f"v_add_u32 v{VQ+3}, {3*3072}, v{VQ+1}")
    I(f"v_add_u32 v{VQ+1}, 3072, v{VQ+1}")
    I(f"s_mov_b32 s{SX+2}, {2048*1024}")
    I(f"s_mov_b32 s{SX+3}, 0x20000")
    x0 = xgroup(0)
    a.run(x0[:2])
    a.wait_lg_all()
    I(stamp("start"))
    I(f"s_mov_b64 s[{SX}:{SX+1}], {sp(pX)}")
    a.vmq = []
    a.run(x0[2:])
    I(stamp("x0 issued"))
    if OPT["x_w0"]:
        a.raw("    s_waitcnt vmcnt(0)")
        I(stamp("x0 alone"))
    for c in range(1, OPT["x_first"]):
        a.run(xgroup(c))
    I(f"v_and_b32 v{RHO}, 31, v{LN}")
    I(f"v_lshlrev_b32 v{L16}, 4, v{LN}")
    I(f"s_lshr_b32 s{sG}, s{sJ}, 2")
    I(f"s_and_b32 s{sJJ}, s{sJ}, 3")
    I(f"s_mul_i32 s{sUB}, s{sG}, 7")
    I(f"s_lshl1_add_u32 s{sUB}, s{sJJ}, s{sUB}")
    I(f"s_lshl_b32 s{sUB}, s{sUB}, 7")
    mk_srd(a, SWS, pWS, WS_END)
    I(f"s_lshl2_add_u32 s{sT0}, s2, s{sW}")
    I(f"s_lshl_b32 s{sT0}, s{sT0}, 11")
    I(f"s_xor_b32 s{sT0}, s{sT0}, {XCH + 4*8192}")
    for k in range(4):
        I(f"v_accvgpr_write_b32 a{188+k}, -1")
    xp = [(f"buffer_store_dwordx4 {ar(188,4)}, v{L16}, {srd(SWS)}, s{sT0 if OPT['xp_at'] < 0 else sXS} offen offset:{1024*k} sc1", "XP") for k in range(2)]
    if OPT["xp_at"] < 0:
        a.run(xp)
    sBK = sRS
    SCH = dict((e.split(":")[0], [int(v) for v in e.split(":")[1:]]) for e in OPT["sch"].split(","))
    early = "R" not in SCH
    RSLOT = H[0] if early else xlds(6)
    I(f"s_lshl1_add_u32 s{sBK}, s2, s{sW}")
    I(f"s_cmp_lt_u32 s{sBK}, 448")
    I(f"s_cselect_b32 s{SR+2}, {1792*1024}, 0")
    I(f"s_cselect_b32 s{sBK}, s{sBK}, 0")
    I(f"s_bitcmp0_b32 s2, 0")
    I(f"s_cselect_b64 s[{SR}:{SR+1}], {sp(pCRE)}, {sp(pCIM)}")
    I(f"s_lshr_b32 s{sT0}, s2, 1")
    I(f"s_cmp_lt_u32 s{sW}, 2")
    I(f"s_cselect_b64 s[{SR}:{SR+1}], {sp(pW2)}, s[{SR}:{SR+1}]")
    I(f"s_cselect_b32 s{SR+2}, s{SR+2}, {512*1024}")
    I(f"s_cselect_b32 s{sBK}, s{sBK}, s{sT0}")
    I(f"s_mov_b32 s{SR+3}, 0x20000")
    I(f"s_lshr_b32 s{sT0}, s{sBK}, 3")
    I(f"s_lshl_b32 s{sT0}, s{sT0}, 8")
    I(f"s_and_b32 s{sT1}, s{sBK}, 7")
    I(f"s_or_b32 s{sT0}, s{sT0}, s{sT1}")
    I(f"s_lshl_b32 s{sINI}, s{sT0}, 7")
    rl = dma4(VQ, SR, sINI, [f"s_add_u32 m0, s{sWL}, {RSLOT}"], "R")
    T3 = PP
    I(f"s_lshl4_add_u32 s{sT0}, s{sJ}, s{sR}")
    I(f"s_lshl_b32 s{sT0}, s{sT0}, 11")
    I(f"v_and_b32 v{TA}, 15, v{LN}")
    I(f"v_lshl_add_u32 v{T3}, v{TA}, 7, s{sT0}")
    I(f"v_and_b32 v{T3+1}, 0x380, v{L16}")
    I(f"s_cmp_eq_u32 s{sW}, 3")
    I("s_cbranch_scc1 L_role3")
    snap = list(a.vmq)
    if early:
        for it in rl:
            I(it, track=False)
    I("s_branch L_rolejoin")
    a.vmq = snap
    a.label("L_role3")
    I(f"s_mov_b32 s{SR+2}, 0")
    I(f"s_bitcmp0_b32 s2, 3")
    I(f"s_cselect_b64 s[{SR}:{SR+1}], {sp(pDSK)}, {sp(pB2)}")
    if not OPT["t3_late"]:
        I(f"global_load_dword v{RR+12}, v{T3}, {sp(pBRE)}", track=False)
        I(f"global_load_dword v{RR+13}, v{T3}, {sp(pBIM)}", track=False)
        I(f"global_load_dword v{RR+14}, v{T3+1}, s[{SR}:{SR+1}]", tag="R" if early else None, track=False)
    a.label("L_rolejoin")
    VT = T + 5
    I(f"s_mul_i32 s{sT0}, s{sHB}, {8*3584}")
    I(f"s_add_u32 s{sT0}, s{sT0}, s{sUB}")
    I(f"s_cmp_lt_u32 s{sJJ}, 3")
    I(f"s_cselect_b32 s{sT1}, 128, 0")
    I(f"v_and_b32 v{TA}, 7, v{LN}")
    I(f"v_mul_u32_u24 v{TA}, 3584, v{TA}")
    I(f"v_mul_u32_u24 v{TB}, s{sT1}, v{HH}")
    I(f"v_add3_u32 v{VT}, v{TA}, v{TB}, s{sT0}")
    if "T1" not in SCH and OPT["t1_at"] < 0:
        I(f"global_load_dword v{RR+11}, v{VT}, {sp(pW1)}")
    I(f"v_bfe_u32 v{TB}, v{RHO}, 2, 1")
    I(f"v_and_b32 v{TA}, 3, v{RHO}")
    I(f"v_lshrrev_b32 v{TC}, 3, v{RHO}")
    I(f"v_lshl_or_b32 v{TA}, v{TC}, 2, v{TA}")
    I(f"v_lshl_or_b32 v{PI}, v{TB}, 4, v{TA}")
    I(f"s_lshl_b32 s{sT0}, s{sJ}, 6")
    pl = []

    def pload(dst, off, ptr):
        if OPT["p_at"] < 0:
            I(f"global_load_ushort v{dst}, v{off}, {sp(ptr)}")
        else:
            ad = RR + 18 + 2 * len(pl)
            I(f"v_mov_b32 v{RR+16}, v{off}")
            I(f"v_mov_b32 v{RR+17}, 0")
            I(f"v_lshl_add_u64 {vr(ad,2)}, {vr(RR+16,2)}, 0, {sp(ptr)}")
            pl.append(f"global_load_ushort v{dst}, {vr(ad,2)}, off")
    I(f"v_lshl_add_u32 v{TA}, v{PI}, 1, s{sT0}")
    pload(PA, TA, pLRE)
    pload(PA + 1, TA, pLIM)
    pload(PC, TA, pLDT)
    I(f"v_and_b32 v{TA}, 19, v{RHO}")
    I(f"v_lshl_or_b32 v{TA}, v{TB}, 3, v{TA}")
    I(f"v_bfe_u32 v{TC}, v{RHO}, 3, 1")
    I(f"v_lshl_or_b32 v{SG}, v{TC}, 2, v{TA}")
    I(f"v_lshl_or_b32 v{TA}, v{HH}, 5, v{SG}")
    I(f"s_add_u32 s{sT1}, s{sUB}, 128")
    I(f"s_min_u32 s{sT1}, s{sT1}, {27*128}")
    I(f"v_lshl_add_u32 v{TB}, v{TA}, 1, s{sUB}")
    I(f"v_lshl_add_u32 v{TA}, v{TA}, 1, s{sT1}")
    pload(BIA, TB, pB1)
    pload(BIA + 2, TA, pB1)
    for c in range(OPT["x_first"], OPT["x_second"]):
        a.run(xgroup(c))
    I(stamp("win1 issued"))
    I(f"s_mul_i32 s{sHB}, s{sHB}, {RT_STRIDE}")
    I(f"s_mul_i32 s{sT0}, s{sG}, 11")
    I(f"s_add_u32 s{sT0}, s{sT0}, s{sJJ}")
    I(f"s_lshl_b32 s{sT0}, s{sT0}, 12")
    I(f"s_add_u32 s{sHB}, s{sHB}, s{sT0}")
    mk_srd(a, SRS, pWS, WS_END)
    I(f"s_cmp_eq_u32 s{SR+2}, 0")
    I(f"s_cselect_b32 s{SRS+2}, 0, s{SRS+2}")
    I(f"s_and_b32 s{sT1}, s{sBK}, 7")
    I(f"s_lshr_b32 s{sT0}, s{sBK}, 3")
    I(f"s_cmp_ge_u32 s{sW}, 2")
    I("s_cbranch_scc1 L_dst2")
    I(f"s_mul_i32 s{sRA}, s{sT1}, {2*176}")
    I(f"s_and_b32 s{sT2}, s{sT0}, 1")
    I(f"s_lshl1_add_u32 s{sRA}, s{sT2}, s{sRA}")
    I(f"s_lshl3_add_u32 s{sFL}, s{sT1}, s{sT2}")
    I(f"s_lshr_b32 s{sT0}, s{sT0}, 1")
    I(f"s_lshl4_add_u32 s{sFL}, s{sFL}, s{sT0}")
    I(f"s_mul_i32 s{sT1}, s{sT0}, 37")
    I(f"s_lshr_b32 s{sT1}, s{sT1}, 8")
    I(f"s_mul_i32 s{sT2}, s{sT1}, {32-7}")
    I(f"s_add_u32 s{sFL}, s{sFL}, s{sT2}")
    I(f"s_mul_i32 s{sT2}, s{sT1}, 44")
    I(f"s_add_u32 s{sRA}, s{sRA}, s{sT2}")
    I(f"s_mul_i32 s{sT1}, s{sT1}, 7")
    I(f"s_sub_u32 s{sT0}, s{sT0}, s{sT1}")
    I(f"s_lshr_b32 s{sT1}, s{sT0}, 1")
    I(f"s_and_b32 s{sT0}, s{sT0}, 1")
    I(f"s_lshl2_add_u32 s{sT0}, s{sT0}, s{sT1}")
    I(f"s_lshl2_add_u32 s{sRA}, s{sT0}, s{sRA}")
    I(f"s_movk_i32 s{sRB}, 176")
    I("s_branch L_dstjoin")
    a.label("L_dst2")
    I(f"s_lshr_b32 s{sFL}, s{sT0}, 1")
    I(f"s_lshr_b32 s{sT2}, s{sT1}, 1")
    I(f"s_lshl2_add_u32 s{sFL}, s{sFL}, s{sT2}")
    I(f"s_and_b32 s{sRA}, s2, 1")
    I(f"s_lshl1_add_u32 s{sFL}, s{sFL}, s{sRA}")
    I(f"s_and_b32 s{sRA}, s{sT0}, 1")
    I(f"s_lshl3_add_u32 s{sFL}, s{sFL}, s{sRA}")
    I(f"s_and_b32 s{sRA}, s{sT1}, 1")
    I(f"s_lshl1_add_u32 s{sFL}, s{sFL}, s{sRA}")
    I(f"s_add_u32 s{sFL}, s{sFL}, 7")
    I(f"s_mul_i32 s{sRA}, s{sT0}, 176")
    I(f"s_mul_i32 s{sT2}, s{sT2}, 44")
    I(f"s_add_u32 s{sRA}, s{sRA}, s{sT2}")
    I(f"s_and_b32 s{sT1}, s{sT1}, 1")
    I(f"s_lshl3_add_u32 s{sRA}, s{sT1}, s{sRA}")
    I(f"s_and_b32 s{sT1}, s2, 1")
    I(f"s_lshl1_add_u32 s{sRA}, s{sT1}, s{sRA}")
    I(f"s_add_u32 s{sRA}, s{sRA}, 28")
    I(f"s_movk_i32 s{sRB}, 4")
    a.label("L_dstjoin")
    I(f"s_add_u32 s{sRA}, s{sRA}, {BW//1024}")
    I(f"s_add_u32 s{sRB}, s{sRB}, s{sRA}")
    I(f"s_lshl_b32 s{sRA}, s{sRA}, 10")
    I(f"s_lshl_b32 s{sRB}, s{sRB}, 10")
    I(f"s_lshl2_add_u32 s{sFL}, s{sFL}, {BFLAG}")
    for n, ptr, size in ((SBR, pBRE, 512 * 1024), (SBI, pBIM, 512 * 1024), (SW1, pW1, 512 * 3584), (SW1B, pW1, 512 * 3584),
                         (SWS2, pWS, WS_END), (SDBG, pDBG, 256), (SOUT, pOUT, 2048 * 2048)):
        mk_srd(a, n, ptr, size)
    I(f"s_cmp_lt_u32 s{sJJ}, 3")
    I(f"s_cselect_b32 s{SW1B+2}, s{SW1B+2}, 0")
    I(f"s_cselect_b32 s{SWS2+2}, s{SWS2+2}, 0")
    I(f"s_lshl_b32 s{sT0}, s{sJ}, 12")
    I(f"s_add_u32 s{sT0}, s{sT0}, {EOFF}")
    I(f"s_add_u32 s{SE}, s{pWS}, s{sT0}")
    I(f"s_addc_u32 s{SE+1}, s{pWS+1}, 0")
    I(f"s_mov_b32 s{SE+2}, 4096")
    I(f"s_mov_b32 s{SE+3}, 0x20000")
    I(f"s_xor_b32 s{sT0}, s{sW}, s{sROT}")
    I(f"s_lshl_b32 s{sCS}, s{sJ}, 8")
    I(f"s_or_b32 s{sCS}, s{sCS}, s{sT0}")
    I(f"s_lshl_b32 s{sCS}, s{sCS}, 7")
    I(f"s_mul_i32 s{sCM0}, s{sT0}, {64*3584}")
    I(f"s_add_u32 s{sCM0}, s{sCM0}, s{sUB}")
    I(f"s_xor_b32 s{sT0}, s{sT0}, 4")
    I(f"s_mul_i32 s{sCM1}, s{sT0}, {64*3584}")
    I(f"s_add_u32 s{sCM1}, s{sCM1}, s{sUB}")
    I(f"s_lshl2_add_u32 s{sHF}, s{sR}, s{sG}")
    I(f"s_lshl4_add_u32 s{sHF}, s{sHF}, s{sW}")
    I(f"s_lshl2_add_u32 s{sHF}, s{sHF}, s{sJJ}")
    I(f"s_lshl2_add_u32 s{sHF}, s{sHF}, {HFLAG}")
    p2_index(a)
    I(f"v_lshrrev_b32 v{TA}, 3, v{LN}")
    I(f"v_and_b32 v{TC}, 0x70, v{L16}")
    I(f"v_bfe_u32 v{TB}, v{LN}, 4, 1")
    I(f"v_lshlrev_b32 v{TD}, 6, v{TB}")
    I(f"v_xor_b32 v{TC}, v{TC}, v{TD}")
    I(f"v_mul_u32_u24 v{TD}, 3584, v{TA}")
    I(f"v_add_u32 v{VW}, v{TD}, v{TC}")
    for q in range(1, 4):
        I(f"v_add_u32 v{VW+q}, {q*(8*3584-1024)}, v{VW}")
    I(f"v_bfe_u32 v{TA}, v{LN}, 2, 2")
    I(f"v_lshl_or_b32 v{TC}, v{HH}, 3, v{TA}")
    I(f"v_lshlrev_b32 v{TC}, 7, v{TC}")
    I(f"v_lshrrev_b32 v{TA}, 1, v{TA}")
    I(f"v_lshl_or_b32 v{TC}, v{TA}, 6, v{TC}")
    I(f"v_lshl_or_b32 v{TC}, v{TB}, 5, v{TC}")
    I(f"v_and_b32 v{TA}, 1, v{LN}")
    I(f"v_lshl_or_b32 v{TC}, v{TA}, 4, v{TC}")
    I(f"v_bfe_u32 v{TA}, v{LN}, 1, 1")
    I(f"v_lshl_or_b32 v{RDT}, v{TA}, 3, v{TC}")
    I(f"v_xor_b32 v{RDT+1}, 64, v{RDT}")
    I(f"v_bfe_u32 v{TA}, v{RHO}, 1, 3")
    I(f"v_xor_b32 v{TA}, v{TA}, v{HH}")
    I(f"v_lshlrev_b32 v{TA}, 4, v{TA}")
    I(f"v_lshl_or_b32 v{TA}, v{RHO}, 7, v{TA}")
    I(f"v_add_u32 v{RDS}, s{sWL}, v{TA}")
    for k in range(1, 4):
        I(f"v_xor_b32 v{RDS+k}, {32*k}, v{RDS}")
    AW = T + 10
    I(f"v_bfe_u32 v{TA}, v{LN}, 2, 2")
    I(f"v_lshl_or_b32 v{TA}, v{HH}, 4, v{TA}")
    I(f"s_add_u32 s{sT0}, s{sWL}, {RSLOT}")
    I(f"v_lshl_add_u32 v{AW}, v{TA}, 7, s{sT0}")
    I(f"v_and_b32 v{TA}, 1, v{LN}")
    I(f"v_lshl_or_b32 v{AW}, v{TA}, 5, v{AW}")
    I(f"v_bfe_u32 v{TA}, v{LN}, 3, 1")
    I(f"v_xor_b32 v{TA}, v{TA}, v{TB}")
    I(f"v_lshl_or_b32 v{AW}, v{TA}, 4, v{AW}")
    I(f"v_bfe_u32 v{TA}, v{LN}, 1, 1")
    I(f"v_lshl_or_b32 v{AW}, v{TA}, 3, v{AW}")
    for k in range(1, 4):
        I(f"v_xor_b32 v{AW+k}, {32*k}, v{AW}")
    I(f"s_cmp_lt_u32 s{sW}, 2")
    I("s_cbranch_scc1 L_awdone")
    for k in range(4):
        I(f"v_add_u32 v{AW+k}, {RSLOT}, v{RDS+k}")
    a.label("L_awdone")
    def stash(dst, src):
        I(f"v_accvgpr_write_b32 a{dst}, v{src}")
    I(f"s_lshl_b32 s{sT0}, s{sW}, 7")
    I(f"s_add_u32 s{sT0}, s{sT0}, {PARK}")
    I(f"v_lshl_add_u32 v{TA}, v{HH}, 6, s{sT0}")
    I(f"v_lshl_add_u32 v{TC}, v{PI}, 2, s{sT0}")
    stash(aARS, TA)
    stash(aARW, TC)
    I(f"s_lshl_b32 s{sT0}, s{sW}, 9")
    I(f"s_add_u32 s{sT0}, s{sT0}, {ETAB}")
    I(f"v_lshl_add_u32 v{TA}, v{LN}, 3, s{sT0}")
    stash(aAET, TA)
    I(f"s_lshl_b32 s{sT0}, s{sR}, 8")
    I(f"v_lshlrev_b32 v{TA}, 3, v{LN}")
    I(f"v_subrev_u32 v{TA}, 256, v{TA}")
    I(f"v_cmp_gt_i32 vcc, 0, v{TA}")
    I(f"v_add_u32 v{TC}, s{sT0}, v{TA}")
    I(f"v_cndmask_b32 v{TA}, v{TC}, v{TA}, vcc")
    stash(aES, TA)
    I(f"v_lshlrev_b32 v{TA}, 3, v{RHO}")
    I(f"v_lshlrev_b32 v{TC}, 8, v{HH}")
    I(f"v_sub_u32 v{TA}, v{TA}, v{TC}")
    I(f"v_add_u32 v{TA}, {EIN + 256}, v{TA}")
    stash(aEA, TA)
    I(f"s_mul_i32 s{sT0}, s{sW}, 5120")
    I(f"s_add_u32 s{sT0}, s{sT0}, {TRB}")
    I(f"v_mul_u32_u24 v{TA}, 80, v{RHO}")
    I(f"v_lshl_add_u32 v{TA}, v{HH}, 5, v{TA}")
    I(f"v_add_u32 v{TA}, s{sT0}, v{TA}")
    stash(aTW, TA)
    I(f"v_bfe_u32 v{TA}, v{LN}, 2, 2")
    I(f"v_lshl_add_u32 v{TA}, v{HH}, 4, v{TA}")
    I(f"v_mul_u32_u24 v{TC}, 80, v{TA}")
    I(f"v_and_b32 v{TA}, 1, v{LN}")
    I(f"v_lshl_add_u32 v{TC}, v{TA}, 5, v{TC}")
    I(f"v_lshl_add_u32 v{TC}, v{TB}, 4, v{TC}")
    I(f"v_bfe_u32 v{TA}, v{LN}, 1, 1")
    I(f"v_lshl_add_u32 v{TC}, v{TA}, 3, v{TC}")
    I(f"v_add_u32 v{TC}, s{sT0}, v{TC}")
    stash(aTR, TC)
    I(f"s_mul_i32 s{sAX}, s{sW}, 3072")
    I(f"s_add_u32 s{sAX}, s{sAX}, {AUX}")
    I(f"s_lshl3_add_u32 s{sXO}, s{sI2}, s{sW}")
    I(f"s_lshl_b32 s{sXO}, s{sXO}, 13")
    I(f"s_lshl_b32 s{sT0}, s{sN}, 7")
    I(f"s_add_u32 s{sXO}, s{sXO}, s{sT0}")
    P0, P2 = ACB, ACB + 2
    I(f"v_mov_b32 v{P0}, s{pB2}")
    I(f"v_mov_b32 v{P0+1}, s{pB2+1}")
    I(f"v_cmp_gt_u32 vcc, 8, v{LN}")
    I(f"v_mov_b32 v{P2}, s{pDSK}")
    I(f"v_mov_b32 v{P2+1}, s{pDSK+1}")
    I(f"v_cndmask_b32 v{P0}, v{P0}, v{P2}, vcc")
    I(f"v_cndmask_b32 v{P0+1}, v{P0+1}, v{P2+1}, vcc")
    I(f"v_and_b32 v{TA}, 0x70, v{L16}")
    I(f"v_add_u32 v{P2}, s{sT0}, v{TA}")
    I(f"v_mov_b32 v{P2+1}, 0")
    I(f"v_lshl_add_u64 {vr(P0,2)}, {vr(P2,2)}, 0, {vr(P0,2)}")
    I(f"v_lshrrev_b32 v{TC}, 3, v{LN}")
    I(f"v_lshl_or_b32 v{TA}, v{TC}, 10, v{TA}")
    stash(aAA, P0)
    stash(aAA + 1, P0 + 1)
    stash(aXD, TA)
    I(f"v_and_b32 v{FREP}, 3, v{LN}")
    I(f"v_lshlrev_b32 v{FREP}, 14, v{FREP}")
    I(f"s_and_b32 s{sT0}, s{sN}, 3")
    I(f"s_lshl4_add_u32 s{sT0}, s{sT0}, s{sR}")
    I(f"s_lshl2_add_u32 s{sT0}, s{sT0}, s{sG2}")
    I(f"s_lshl_b32 s{sT0}, s{sT0}, 8")
    I(f"s_add_u32 s{sT0}, s{sT0}, {HFLAG}")
    I(f"s_add_u32 s{sHP}, s{pWS}, s{sT0}")
    I(f"s_addc_u32 s{sHP+1}, s{pWS+1}, 0")
    I(f"s_lshl2_add_u32 s{sT0}, s2, s{sW}")
    I(f"s_lshl_b32 s{sT0}, s{sT0}, 5")
    I(f"s_add_u32 s{sT0}, s{sT0}, {XFLAG}")
    I(f"s_add_u32 s{sXP}, s{pWS}, s{sT0}")
    I(f"s_addc_u32 s{sXP+1}, s{pWS+1}, 0")
    I(f"s_xor_b32 s{sXF}, s{sT0}, 512")
    I(f"s_and_b32 s{sT0}, s{sR}, 7")
    I(f"s_lshl3_add_u32 s{sT0}, s{sT0}, s{sN}")
    I(f"s_lshl2_add_u32 s{sT0}, s{sT0}, s{sG2}")
    I(f"s_and_b32 s{sT1}, s{sW}, 1")
    I(f"s_lshl1_add_u32 s{sT0}, s{sT0}, s{sT1}")
    I(f"s_lshl_b32 s{sT0}, s{sT0}, 6")
    I(f"s_add_u32 s{sT0}, s{sT0}, {BFLAG}")
    I(f"s_add_u32 s4, s{pWS}, s{sT0}")
    I(f"s_addc_u32 s5, s{pWS+1}, 0")
    GOA, GOV = T + 8, T + 9
    I(f"v_and_b32 v{TA}, 1, v{LN}")
    I(f"v_lshlrev_b32 v{TA}, 4, v{TA}")
    I(f"v_mov_b32 v{TB}, 0x3f80")
    I(f"v_lshlrev_b32 v{TA}, v{TA}, v{TB}")
    I(f"v_bfe_u32 v{TB}, v{LN}, 1, 1")
    I(f"v_mul_lo_u32 v{IDM+1}, v{TA}, v{TB}")
    I(f"v_sub_u32 v{IDM}, v{TA}, v{IDM+1}")
    a.run([f"v_mov_b32 v{BIA+k}, 0" for k in (1, 3, 5, 6, 7, 9, 10, 11)])
    a.run([f"v_mov_b32 v{MEAN}, 0", f"v_mov_b32 v{RSTD}, 0", f"v_lshlrev_b32 v{GOA}, 2, v{LN}",
           f"v_and_b32 v{KEEP}, 7, v{LN}", f"v_lshlrev_b32 v{KEEP}, 12, v{KEEP}",
           f"v_mov_b32 v{KEEP+2}, 1", f"v_mov_b32 v{KEEP+3}, 0"])
    I(f"s_lshl2_add_u32 s{sIW}, s{sJJ}, s{sW}")
    I(f"s_lshl2_add_u32 s{sIL}, s{sR}, s{sG}")
    for k in range(4):
        I(f"v_accvgpr_write_b32 a{172+k}, 0")

    def init(a):
        I(f"s_cmp_lg_u32 s{sIW}, 15")
        I("s_cbranch_scc1 L_noinit")
        pos = a.pos
        I(f"s_lshl_b32 s{sT1}, s{sIL}, 10")
        I(f"s_add_u32 s{sT1}, s{sT1}, {EOFF}")
        I(f"buffer_store_dwordx4 {ar(188,4)}, v{L16}, {srd(SWS)}, s{sT1} offen sc1", track=False)
        I(f"s_lshl_b32 s{sT1}, s{sIL}, 11")
        I(f"s_add_u32 s{sT1}, s{sT1}, {HFLAG}")
        for k in range(2):
            I(f"buffer_store_dwordx4 {ar(172,4)}, v{L16}, {srd(SWS)}, s{sT1} offen offset:{1024*k} sc1", tag="INIT", track=False)
        a.pos = pos
        a.label("L_noinit")

    def gostore(a):
        I(f"s_cmp_lg_u32 s{sIW}, 15")
        I("s_cbranch_scc1 L_nogo")
        pos, snap = a.pos, list(a.vmq)
        a.wait_vm("INIT")
        a.vmq = snap
        I(f"s_lshl_b32 s{sT1}, s{sIL}, 2")
        I(f"buffer_store_dword v{KEEP+2}, v{KEEP+3}, {srd(SDBG)}, s{sT1} offen sc1", track=False)
        a.pos = pos
        a.label("L_nogo")
    I(f"s_mov_b32 s{sONE}, 0x3f803f80")
    I(stamp("setup done"))
    if OPT["init_at"] < 0:
        init(a)
    for c in range(OPT["x_second"], 4):
        a.run(xgroup(c))

    def rpick(a):
        a.wait_vm("R")
        pos = a.pos
        I(f"s_cmp_ge_u32 s{sW}, 2")
        I("s_cbranch_scc1 L_rp2")
        for dt in range(2):
            for ph in range(2):
                for e in range(2):
                    I(f"ds_read_b64_tr_b16 {ar(8*dt+4*ph+2*e,2)}, v{AW+2*(dt^e)+ph} offset:{e*1024+ph*512}", track=False)
        I("s_branch L_rpjoin")
        a.lgq = [e for e in a.lgq if e.track]
        a.label("L_rp2")
        for k in range(4):
            I(f"ds_read_b128 {ar(4*k,4)}, v{AW+k}", track=False)
        a.pos = pos + 6
        a.label("L_rpjoin")

    rs = [lambda a: a.need([ar(0, 16)])]
    rs += [(f"buffer_store_dwordx4 {ar(4*k,4)}, v{L16}, {srd(SRS)}, s{sRB if k>=2 else sRA} offen offset:{1024*(k&1)} sc1", "RS") for k in range(4)]

    def stats(c):
        it = [lambda a: a.need([vr(X + 16 * c, 16)])]
        it += [f"v_dot2c_f32_bf16 v{MEAN}, s{sONE}, v{X+16*c+k}" for k in range(16)]
        it += [f"v_dot2c_f32_bf16 v{RSTD}, v{X+16*c+k}, v{X+16*c+k}" for k in range(16)]
        return it

    par = ssm_params()
    nw = OPT["w_loop"]
    for c in range(8):
        if c < 4:
            a.run(xgroup(c + 4))
        else:
            if c - 4 < nw:
                a.run(wgroup((c - 4) >> 1, c & 1))
        if c == OPT["init_at"]:
            init(a)
        if c == OPT["xp_at"]:
            a.run(xp)
        if c == OPT["t1_at"]:
            I(f"buffer_load_dword v{T+4}, v{VT}, {srd(SW1)}, 0 offen")
        if c == OPT["p_at"]:
            a.run(pl)
        if c in (2, 6):
            for k in range(4):
                I(f"v_add_u32 v{RDS+k}, {64*KB}, v{RDS+k}")
        if c == 7:
            a.run(stats(6)[:17])
        a.wait_vm(f"x{c}")
        if c in (0, 1, 4, 7):
            I(stamp(f"x{c} landed"))
        for k in range(4):
            I(f"ds_read_b128 {vr(X+16*c+4*k,4)}, v{RDS+k} offset:{xlds(c) % (64*KB)}")
        if c == OPT["gost_at"]:
            gostore(a)
        if c == 1 and early:
            rpick(a)
        if c:
            a.run(stats(c - 1)[17 if c == 7 else 0:])
        if c == 3 and early:
            a.run(rs[:1])
        if 1 <= c <= OPT["par_n"]:
            a.run(par[(len(par) * (c - 1)) // OPT["par_n"]:(len(par) * c) // OPT["par_n"]])
    s7 = stats(7)
    a.run(s7[:20])
    I(f"v_mov_b32 v{TA}, v{MEAN}")
    a.run(s7[20:22])
    I(f"v_permlane32_swap_b32 v{TA}, v{MEAN}")
    I(f"v_add_f32 v{MEAN}, v{TA}, v{MEAN}")
    for k in range(4):
        I(f"v_mul_f32 v{NEGM+k}, {f32(-1/512)}, v{MEAN}")
    a.run(s7[22:])
    I(f"s_add_u32 s{sUB}, s{sWL}, {128*KB - H[2]}")
    I(stamp("stats done"))

    bflag = [lambda a: a.wait_vm("RS"), f"buffer_store_dword v{KEEP+2}, v{KEEP}, {srd(SRS)}, s{sFL} offen sc1"]
    bl = b_loads()
    bload = f"s_load_dwordx16 s[{sHV}:{sHV+15}], s[4:5], 0 glc"
    bpoll = [bload]
    hg = lambda n: grp(wgroup(n, 0) + wgroup(n, 1))

    def rjob(a):
        I(f"s_cmp_eq_u32 s{sW}, 3")
        I("s_cbranch_scc1 L_rj3")
        pos, snap = a.pos, list(a.vmq)
        a.run(rl)
        I("s_branch L_rjdone")
        a.vmq = snap
        a.label("L_rj3")
        I(f"buffer_load_dword a0, v{T3}, {srd(SBR)}, 0 offen", tag="R")
        I(f"buffer_load_dword a1, v{T3}, {srd(SBI)}, 0 offen", tag="R")
        I(f"global_load_dword a2, v{T3+1}, {sp(pDSK)}", tag="R")
        I(f"global_load_dword a3, v{T3+1}, {sp(pB2)}", tag="R")
        a.pos = pos + 4
        a.label("L_rjdone")
    events = dict(W=(hg(0) + hg(1))[4 * nw:], H2=hg(2), H3=hg(3), H4=hg(4), H5=hg(5), R=[[rjob]] if OPT['t3_late'] else grp(rl), pick=[[rpick]],
                  RS=[rs[:2]] + grp(rs[2:]), bflag=[bflag], bpoll=[bpoll], B=bl[:OPT["b2"]], xr=[xready()],
                  xl=[[XLOAD]], xc=[[spoll("L_xr", XLOAD, 1)]], f0=[hflag(0)], hl0=[[hload(0)]],
                  T1=[[f"buffer_load_dword v{T+4}, v{VT}, {srd(SW1)}, 0 offen"]],
                  go=[[lambda a: poll(a, "L_go", GOV, GOA, SDBG, 0)]], gost=[[gostore]],
                  gold=[[f"buffer_load_dword v{GOV}, v{GOA}, {srd(SDBG)}, 0 offen sc1"]], XP=[[x] for x in xp],
                  bchk=[[spoll("L_bf", bload, 11), stamp("B flags")]])
    for name in OPT["x_drop"].split("/"):
        if name:
            events[name] = [[]]
    at = {}
    for name, pos in SCH.items():
        g0, g1 = pos[0], pos[-1] + 1
        for j, e in enumerate(events[name]):
            at.setdefault(g0 + (j * (g1 - g0)) // len(events[name]), []).extend(e)
    order = [x for x in ("R", "pick", "RS", "bflag", "bpoll", "bchk", "B") if x in SCH]
    assert all(SCH[x][-1] <= SCH[y][0] for x, y in zip(order, order[1:]))
    assert ("gost" in SCH) == (OPT["gost_at"] > 7) and SCH.get("gost", [-99])[0] < SCH["gold"][0] < SCH["go"][0] < min(88, SCH["bflag"][0], SCH["xr"][0]) and SCH["H5"][0] > 4 * (16 - OPT["la"])
    assert SCH["H5"][-1] < 128 and SCH["H3"][-1] < min(64, SCH["bpoll"][0])
    assert early or (SCH["RS"][0] < SCH["H4"][0] and SCH["pick"][0] < 60)
    assert SCH["bchk"][0] < SCH["hl0"][0] and SCH["f0"][0] >= 128
    assert ("XP" in SCH) == (OPT["xp_at"] > 7) and SCH.get("XP", [-99])[-1] < SCH["xr"][0]
    dm = sorted(SCH[x] for x in ("W", "H2", "H3", "H4", "H5", "R") if x in SCH)
    assert all(x[-1] < y[0] for x, y in zip(dm, dm[1:]))
    P = OPT["pre_pairs"]
    assert min(at) >= -P
    for i in range(P):
        u, r = unpack(i), repack(i)
        a.run(u + at.get(i - P, []))
        if i == P - 1:
            a.run([lambda a: a.wait_vm("H0"), "s_barrier"] + frag_reads(0))
        a.run(r)
    a.run(sum((frag_reads(k) for k in range(1, OPT["la"])), []) + (unpack(P) if P < 16 else []))

    n2 = OPT["b2"]
    flat = lambda ll: [x for l in ll for x in l]
    ge = 4 * OPT["e_win"]
    assert OPT["e_win"] >= 6
    f2b = fill_u2b()
    f0 = [f"v_subrev_u32 v{RDS+k}, s{sUB}, v{RDS+k}" for k in range(4)] + fill_u0() + (par if not OPT["par_n"] else [])
    plan = [[(f0, 2, 50)], [(stats_to_lds(), 26, 56), ([f"ds_read_b128 {vr(RDS,4)}, v{ARS}"], 60, 61), (fill_u1()[0], 1, 64)], [(fill_u2a(), 1, ge), (f2b[:-6], ge, ge + OPT["e_len"]), (f2b[-6:], ge + OPT["e_len"], 64)]]
    for u in range(3):
        a.comment(f"---- GEMM unit {u} ----")
        I(stamp(f"U{u} start"))
        main = []
        LA, WP = OPT["la"], OPT["wp"]
        for d in range(16):
            n = 16 * u + d
            pre = [lambda a: a.need(sum((stage_regs(k) for k in range(WP)), []))] if n == 0 else []
            if OPT["only"] and n % 4 == 0 and d:
                pre.append(stamp(f"w{n}"))
            if n + LA < 48 and (n + LA) % 8 == 0:
                pre += [lambda a, hn=(n + LA) // 8: a.wait_vm(f"H{hn}"), "s_barrier"]
            if n == 32 + OPT["e_win"]:
                pre = [lambda a: a.wait_lg("E")] + pre + ([] if "s_barrier" in pre else ["s_barrier"])
            if n + LA == 32:
                pre += [f"v_add_u32 v{RDT}, {H[4]}, v{RDT}", f"v_add_u32 v{RDT+1}, {H[4]}, v{RDT+1}"]
            if n + LA == 40:
                pre += [f"v_subrev_u32 v{RDT}, {H[4]}, v{RDT}", f"v_subrev_u32 v{RDT+1}, {H[4]}, v{RDT+1}"]
            ms = mfmas(n)
            rd = frag_reads(n + LA) if n + LA < 48 else []
            h = len(rd) // 4
            for i in range(4):
                post = []
                if i == 3 and n < 47 and (n + 1) % WP == 0:
                    post = [lambda a, n=n: a.need(sum((stage_regs(n + 1 + k) for k in range(WP)), []))]
                main.append((pre if i == 0 else []) + ms[i] + post + rd[i * h:(i + 1) * h])
        main = [m + at.get(64 * u + i, []) for i, m in enumerate(main)]
        last = {63: fill_u1()[1]} if u == 1 else {}
        if u == 0:
            for d in range(16 - P):
                r = repack(P + d)
                for i in range(4):
                    main[4 * d + i] = main[4 * d + i] + r[2 * i:2 * i + 2]
                if P + d + 1 < 16:
                    last[4 * d + 3] = unpack(P + d + 1)
        for i, g in enumerate(spread(main, plan[u])):
            a.run(g + last.get(i, []))
    I(stamp("tail start"))
    a.run(tail(flat(bl[n2:])))
    I(stamp("tail issued"))


def merge(fl, mem):
    if not mem:
        return list(fl)
    res = []
    n, m = len(fl), len(mem)
    j = 0
    for i in range(n):
        while j < m and j * n <= i * m:
            res.append(mem[j])
            j += 1
        res.append(fl[i])
    res += mem[j:]
    return res


FREP = KEEP + 1
FONE, FZERO = KEEP + 2, KEEP + 3


sHV = SBR


def hload(stage, retry=False):
    return f"s_load_dwordx16 s[{sHV}:{sHV+15}], s[{sHP}:{sHP+1}], {64*stage}" + (" glc" if retry or OPT["hglc"] else "")


XLOAD = f"s_load_dword s{sHV}, s[{sXP}:{sXP+1}], 0 glc"


def spoll(name, load, n, empty=None):
    def f(a):
        a.I(f"s_mov_b32 s{sT2}, 0")
        a.label(name)
        a.wait_lg_all()
        for k in range(2, n - 1, 2):
            a.I(f"s_and_b64 s[{sHV}:{sHV+1}], s[{sHV}:{sHV+1}], s[{sHV+k}:{sHV+k+1}]")
        if n > 1 and n & 1:
            a.I(f"s_and_b32 s{sHV}, s{sHV}, s{sHV+n-1}")
        if empty is None:
            a.I(f"s_and_b32 s{sHV}, s{sHV}, s{sHV+(1 if n > 1 else 0)}")
        else:
            a.I(f"s_cmp_lg_u32 s{sHV}, {empty}")
        a.I(f"s_cbranch_scc1 {name}_done")
        pos = a.pos
        a.I(f"s_add_u32 s{sT2}, s{sT2}, 1")
        a.I(f"s_cmp_ge_u32 s{sT2}, {SPIN_MAX}")
        a.I(f"s_cbranch_scc1 {name}_done")
        a.I(load)
        a.I(f"s_branch {name}")
        a.lgq, a.pos = [], pos
        a.label(name + "_done")
        if DEBUG and not OPT["rt"]:
            CNTS.append(name)
            a.I(f"v_writelane_b32 v{STAMPV}, s{sT2}, {39+len(CNTS)}")
    return f


CNTS = []


def hpoll(stage):
    return spoll(f"L_hf{stage}", hload(stage, True), 16)


def hflag(stage):
    return [lambda a: a.wait_vm(f"HS{stage}"),
            f"buffer_store_dword v{FONE}, v{FREP}, {srd(SWS)}, s{sHF} offen offset:{64*stage} sc1"]


def cfma_pk(dst, m, x, add):
    return [f"v_pk_fma_f32 {vr(dst,2)}, {vr(x,2)}, {vr(m,2)}, {vr(add,2)} op_sel:[0,0,0] op_sel_hi:[1,0,1]",
            f"v_pk_fma_f32 {vr(dst,2)}, {vr(x,2)}, {vr(m,2)}, {vr(dst,2)} op_sel:[1,1,0] op_sel_hi:[0,1,1] neg_lo:[0,1,0]"]


AUX = 112 * KB
sAX = pOUT
sXO = pOUT + 1


def tail(brest):
    RE, IM, FR = X, X + 8, X + 16
    EL = [X + 32 + 2 * n for n in range(8)]
    EA, EB, TW, TR, ER, EW, EQ = X + 48, X + 49, X + 50, X + 51, X + 52, X + 53, X + 56
    eloads = [f"buffer_load_dwordx4 {vr(EQ,4)}, v{EA}, {srd(SE)}, 0 offen sc1"]
    al = a_loads()
    na, qs, qe = min(2 * OPT["pro"], OPT["pro_q"]), OPT["scan_q"], OPT["eload_q"]
    a0, a1 = [int(v) for v in OPT["a_q"].split("/")]

    def quad(qd):
        mem = []
        if qd == 0:
            mem += brest
        if qd == a0:
            mem += [hpoll(0), stamp("H flags")]
        if a0 <= qd < a1:
            for f in range((na * (qd - a0)) // (a1 - a0), (na * (qd - a0 + 1)) // (a1 - a0)):
                mem += al[f]
        if qd == qe:
            mem += eloads
        ps = pack_store(ACA + 8 * (qd >> 1), SWS2, sRA, 1024 * (qd >> 1), "HS2") if qd & 1 else []
        if not OPT["lskip"]:
            r = merge(gelu_packed(ACA + 4 * qd, T + 8), mem) + ps
        else:
            def body(a):
                a.I(f"s_cbranch_vccnz L_q{qd}")
                pos = a.pos
                a.run(gelu_packed(ACA + 4 * qd, T + 8) + ps[:-1])
                a.label(f"L_q{qd}")
            r = mem + [body] + ps[-1:]
        return r + [stamp(f"q{qd}")]

    tl = [f"s_lshl2_add_u32 s{sT0}, s{sW}, s{sR}", f"s_lshl_b32 s{sT0}, s{sT0}, 8", f"s_sub_u32 s{sT0}, s{sT0}, 4096",
          f"v_add_u32 v{EA}, s{sT0}, v{L16}", f"s_lshl_b32 s{sT0}, s{sW}, 10", f"s_add_u32 s{sT0}, s{sT0}, {EIN}",
          f"v_add_u32 v{EW}, s{sT0}, v{L16}", unstash(ER, aEA), unstash(TW, aTW), unstash(TR, aTR)]
    if OPT["lskip"]:
        assert qs == 8
        tl = [f"s_cmp_eq_u32 s{sJJ}, 3\ns_cselect_b64 vcc, -1, 0"] + tl
    for qd in range(qs):
        tl += quad(qd)

    def epoll(a):
        a.need([vr(EQ, 4)])
        a.I(f"s_mov_b32 s{sT2}, 0")
        a.label("L_epoll")
        a.I(f"v_max3_u32 v{EB}, v{EQ}, v{EQ+1}, v{EQ+2}")
        a.I(f"v_max_u32 v{EB}, v{EB}, v{EQ+3}")
        a.I(f"v_cmp_eq_u32 vcc, -1, v{EB}")
        a.I("s_cmp_eq_u64 vcc, 0")
        a.I("s_cbranch_scc1 L_epoll_done")
        save, pos = list(a.vmq), a.pos
        a.I(f"s_add_u32 s{sT2}, s{sT2}, 1")
        a.I(f"s_cmp_ge_u32 s{sT2}, {SPIN_MAX}")
        a.I("s_cbranch_scc1 L_epoll_done")
        a.I(eloads[0], track=False)
        a.wait_vm_all()
        a.I("s_branch L_epoll")
        a.vmq, a.pos = save, pos
        a.label("L_epoll_done")
        if DEBUG and not OPT["rt"]:
            CNTS.append("epoll")
            a.I(f"v_writelane_b32 v{STAMPV}, s{sT2}, {39+len(CNTS)}")
    tl += [epoll, stamp("E seen"), (f"ds_write_b128 v{EW}, {vr(EQ,4)}", "EW")]
    ureg = lambda i: X + 64 + 2 * i
    for i in range(16):
        h, cc = i & 1, vr(PC, 2)
        if i == 6:
            tl += [lambda a: a.wait_lg("EW"), "s_barrier"]
            tl += [f"ds_read_b64 {vr(EL[n],2)}, v{ER} offset:{(14-2*n)*256}" for n in range(7, -1, -1)]
        tl += [f"v_pk_mul_f32 {vr(ureg(i),2)}, {cc}, {vr(ACB+i-h,2)} op_sel:[0,{h}] op_sel_hi:[1,{h}]",
               f"v_pk_fma_f32 {vr(ureg(i),2)}, {cc}, {vr(ACB+16+i-h,2)}, {vr(ureg(i),2)} op_sel:[1,{h},0] op_sel_hi:[0,{h},1] neg_lo:[1,0,0]"]
    tl.append(lambda a: a.need([vr(r, 2) for r in EL]))
    cur = EL[7]
    for n in range(6, -1, -1):
        tl += cfma_pk(EL[n], PA256, cur, EL[n])
        cur = EL[n]
    S, S0, S1 = EL[0], EL[1], EL[2]
    tl += [f"v_pk_mul_f32 {vr(S0,2)}, {vr(S,2)}, {vr(PAH,2)} op_sel:[0,0] op_sel_hi:[1,0]",
           cfma_pk(S0, PAH, S, S0)[1],
           f"v_mov_b32 v{S1}, v{S0}",
           f"v_mov_b32 v{S1+1}, v{S0+1}",
           f"s_add_u32 s{sRB}, s{sHB}, {28*KB}",
           f"v_permlane32_swap_b32 v{S0}, v{S1}",
           f"v_permlane32_swap_b32 v{S0+1}, v{S1+1}",
           f"v_pk_add_f32 {vr(S0,2)}, {vr(S0,2)}, {vr(S1,2)}"]
    tl += cfma_pk(PP, PAS, S0, PP)
    tl += [f"v_pk_mul_f32 {vr(S1,2)}, {vr(PP,2)}, {vr(PC,2)} op_sel:[0,0] op_sel_hi:[1,0]", cfma_pk(S1, PC, PP, S1)[1]]
    prev = S1
    for i in range(16):
        u = ureg(i)
        nb = 2 * OPT["pro"] - na
        for f in range(na + (nb * i) // 16, na + (nb * (i + 1)) // 16):
            tl += al[f]
        tl += cfma_pk(u, PA, prev, u)
        if i & 1:
            tl += [f"v_cvt_pk_bf16_f32 v{RE+(i>>1)}, v{prev}, v{u}",
                   f"v_cvt_pk_bf16_f32 v{IM+(i>>1)}, -v{prev+1}, -v{u+1}"]
        prev = u
        if i in (7, 15):
            hf = i >> 3
            for p, R in enumerate((RE, IM)):
                tl.append(f"ds_write_b128 v{TW}, {vr(R+4*hf,4)} offset:{p*2560+16*hf}")
    for p in range(2):
        for k in range(2):
            for e in range(2):
                tl.append(f"ds_read_b64_tr_b16 {vr(FR+8*p+4*k+2*e,2)}, v{TR} offset:{p*2560+(8*e+4*k)*80}")
    tl.append(stamp("scan done"))
    if OPT["flag2_at"] < 0:
        assert qs == 8
        tl += hflag(2)
    hs = [lambda a: a.need([vr(FR, 16)])]
    hs += [(f"buffer_store_dwordx4 {vr(FR+4*f,4)}, v{L16}, {srd(SWS)}, s{sRB} offen offset:{1024*f} {OPT['hsflags']}", "HS1") for f in range(4)]
    rest = sum((quad(qd) for qd in range(qs, 8)), [])
    cut = min(12, len(rest))
    tl += rest[:cut] + merge(rest[cut:cut + 24], hs) + rest[cut + 24:]
    return tl


RED, RED_SRC, RED_DT, RED_TT = 40 * KB, 8448, 4224, 4 * 8448


def wreg(s, e, dt):
    return ar(16 * s + 8 * e + 4 * dt, 4)


def hreg(f):
    return ar(176 + 4 * ((f + 4) % 20), 4)


def steps():
    l = [(L, s) for s in range(4) for L in range(4)]
    s1, s2 = [7, 8, 9, 10], [4, 5, 6]
    if OPT["scan_q"] == 8:
        s1, s2 = s2, s1
    if OPT["ord"] == 0:
        l += [(L, s) for L in range(4) for s in s1 + s2]
    else:
        l += [(L, s) for s in s1 for L in range(2)] + [(L, s) for L in range(2) for s in s2]
        l += [(L, s) for L in range(2, 4) for s in s1 + s2]
    return l


def p2_index(a):
    I = a.I
    I(f"s_and_b32 s{sN}, s{sJ}, 7")
    I(f"s_lshr_b32 s{sT1}, s{sJ}, 3")
    I(f"s_lshl1_add_u32 s{sI2}, s{sR}, s{sT1}")
    I(f"s_lshr_b32 s{sT0}, s{sW}, 1")
    I(f"s_lshl1_add_u32 s{sG2}, s{sT1}, s{sT0}")
    I(f"s_mul_i32 s{sT0}, s{sG2}, {G_STRIDE//2048}")
    I(f"s_and_b32 s{sT1}, s{sW}, 1")
    I(f"s_add_u32 s{sT0}, s{sT0}, s{sT1}")
    I(f"s_lshl_b32 s{sT0}, s{sT0}, 11")
    I(f"s_mul_i32 s{sA1}, s{sI2}, {2*RT_STRIDE}")
    I(f"s_add_u32 s{sA1}, s{sA1}, s{sT0}")
    I(f"s_xor_b32 s{sA0}, s{sI2}, 1")
    I(f"s_mul_i32 s{sA0}, s{sA0}, {2*RT_STRIDE}")
    I(f"s_add_u32 s{sA0}, s{sA0}, s{sT0}")
    I(f"s_mul_i32 s{sB0}, s{sN}, {2*RT_STRIDE}")
    I(f"s_add_u32 s{sB0}, s{sB0}, s{sT0}")
    I(f"s_add_u32 s{sB0}, s{sB0}, {BW}")
    I(f"s_lshl2_add_u32 s{sXI}, s2, s{sW}")
    I(f"s_lshl_b32 s{sXI}, s{sXI}, 11")
    I(f"s_or_b32 s{sXI}, s{sXI}, {XCH}")
    I(f"s_xor_b32 s{sXS}, s{sXI}, {4*8192}")


def b_loads():
    l = []
    for s in range(11):
        for e in range(2):
            for t in range(2):
                it = []
                if e == 0:
                    it += [f"s_add_u32 s{sP0+t}, s{sB0}, {s*4096 + t*RT_STRIDE}"]
                it.append(f"buffer_load_dwordx4 {wreg(s,e,t)}, v{L16}, {srd(SWS)}, s{sP0+t} offen offset:{e*1024} sc1")
                l.append(it)
    return l


def a_loads():
    l = []
    for n, (L, s) in enumerate(steps()):
        for e in range(2):
            it = []
            if e == 0:
                it += [f"s_add_u32 s{sP0}, s{sA1 if L >= 2 else sA0}, {s*4096 + (L&1)*RT_STRIDE}"]
            it.append(f"buffer_load_dwordx4 {hreg(2*n+e)}, v{L16}, {srd(SWS)}, s{sP0} offen offset:{e*1024} {OPT['aflags']}")
            if OPT["x_abl"] & 16 and L in (0, 2) and s in (0, 7) or OPT["x_abl"] & 32 and L in (0, 2) and s == 4:
                it = ["v_nop"]
            l.append(it)
    return l


def phase2(a):
    I = a.I
    al = a_loads()
    st = steps()
    OA, RA, A1, A2, TA = 192, 193, 194, 195, 196
    DK, BB, DF, BF = 198, 200, 208, 212
    XIN, XV, MN, RS, BASE = 128, 144, 152, 156, 160
    prep = [lambda a: a.wait_vm("AUX"),
            f"v_lshl_add_u32 v{A1}, v{LN}, 3, s{sAX}",
            f"v_lshrrev_b32 v{TA}, 4, v{LN}",
            f"s_and_b32 s{sG}, s{sI2}, 1",
            f"s_lshl3_add_u32 s{sG}, s{sG}, s{sW}",
            f"s_lshl_b32 s{sG}, s{sG}, 5",
            f"v_lshl_add_u32 v{A2}, v{TA}, 2, s{sG}"]
    for n in range(4):
        o = PARK + 128 * (n >> 1) + 16 * (n & 1)
        prep += [f"ds_read_b64 {vr(XV+2*n,2)}, v{A1} offset:{512*n}",
                 f"ds_read_b32 v{RS+n}, v{A2} offset:{o}",
                 f"ds_read_b32 v{MN+n}, v{A2} offset:{o+512}"]
    prep += [f"v_and_b32 v{OA}, 15, v{LN}",
             f"v_lshl_add_u32 v{A1}, v{OA}, 3, s{sAX}",
             f"ds_read_b64 {vr(DK,2)}, v{A1} offset:2048",
             f"ds_read_b64 {vr(BB,2)}, v{A1} offset:{2048+128}",
             f"v_and_b32 v{RA}, 3, v{LN}",
             f"v_lshlrev_b32 v{RA}, 5, v{RA}",
             f"v_bfe_u32 v{A2}, v{LN}, 2, 1",
             f"v_lshl_or_b32 v{RA}, v{A2}, 4, v{RA}",
             f"v_lshl_or_b32 v{RA}, v{TA}, 8, v{RA}",
             f"v_bfe_u32 v{A2}, v{LN}, 3, 1",
             f"v_mul_u32_u24 v{A2}, {RED_DT}, v{A2}",
             f"s_and_b32 s{sG}, s{sW}, 1",
             f"s_lshr_b32 s{sJJ}, s{sW}, 1",
             f"s_lshl4_add_u32 s{sG}, s{sG}, s{sJJ}",
             f"s_lshl_b32 s{sG}, s{sG}, 7",
             f"s_add_u32 s{sG}, s{sG}, {RED}",
             f"v_add3_u32 v{RA}, v{RA}, v{A2}, s{sG}",
             f"v_lshlrev_b32 v{OA}, 4, v{OA}",
             f"v_lshl_or_b32 v{OA}, v{TA}, 11, v{OA}",
             f"s_lshl_b32 s{sXO}, s{sXO}, 1",
             f"s_mul_i32 s{sG}, s{sW}, {RED_SRC}"]
    prep2 = [lambda a: a.need([vr(DK, 4), vr(XV, 16)])]
    for h in range(2):
        prep2 += [f"v_lshlrev_b32 v{DF+2*h}, 16, v{DK+h}", f"v_and_b32 v{DF+2*h+1}, 0xffff0000, v{DK+h}",
                  f"v_lshlrev_b32 v{BF+2*h}, 16, v{BB+h}", f"v_and_b32 v{BF+2*h+1}, 0xffff0000, v{BB+h}"]
    for n in range(4):
        for c in range(4):
            b = BASE + 4 * n + c
            src = XV + 2 * n + (c >> 1)
            prep2 += [f"v_lshlrev_b32 v{b}, 16, v{src}" if c % 2 == 0 else f"v_and_b32 v{b}, 0xffff0000, v{src}",
                      f"v_sub_f32 v{TA}, v{b}, v{MN+n}",
                      f"v_mul_f32 v{TA}, v{TA}, v{RS+n}",
                      f"v_add_f32 v{b}, v{b}, v{BF+c}",
                      f"v_fmac_f32 v{b}, v{TA}, v{DF+c}"]

    def add4(x, y, packed):
        if packed:
            return [f"v_pk_add_f32 {vr(x+h,2)}, {vr(x+h,2)}, {vr(y+h,2)}" for h in (0, 2)]
        return [f"v_add_f32 v{x+c}, v{x+c}, v{y+c}" for c in range(4)]

    def reduce(L, packed):
        acc, tt = 32 * L, L & 1
        w = [f"s_add_u32 m0, s{sG}, {RED_TT*tt}"]
        for dt in range(2):
            for i in range(16):
                w.append((f"ds_write_addtid_b32 v{acc+16*dt+i} offset:{RED+dt*RED_DT+i*256}", "RW"))
        r = [lambda a: a.wait_lg("RW"), "s_barrier"]
        for it in range(2):
            for q in range(4):
                r.append(f"ds_read_b128 {vr(acc+16*it+4*q,4)}, v{RA} offset:{RED_TT*tt+q*RED_SRC+it*1024}")
        e = []
        for it in range(2):
            p = acc + 16 * it
            e.append(lambda a, p=p: a.need([vr(p, 16)]))
            if L < 2:
                e += add4(p, p + 4, packed) + add4(p + 8, p + 12, packed) + add4(p, p + 8, packed)
                e += [f"v_cvt_pk_bf16_f32 v{acc+4+2*it+h}, v{p+2*h}, v{p+2*h+1}" for h in range(2)]
                if it and not OPT["x_abl"] & 8:
                    e.append(f"buffer_store_dwordx4 {vr(acc+4,4)}, v{L16}, {srd(SWS)}, s{sXS} offen offset:{1024*tt} sc1")
            else:
                b = BASE + 8 * tt + 4 * it
                e += add4(p, p + 4, packed) + add4(p + 8, p + 12, packed) + add4(b, p, packed) + add4(b, p + 8, packed)
        return w, r, e

    def xin(tt):
        if OPT["x_abl"] & 8:
            return [f"v_mov_b32 v{XIN+4*tt+k}, 0" for k in range(4)]
        return [f"buffer_load_dwordx4 {vr(XIN+4*tt,4)}, v{L16}, {srd(SWS)}, s{sXI} offen offset:{1024*tt} sc1"]

    def xcheck(tt):
        def f(a):
            x, name = XIN + 4 * tt, f"L_xc{tt}"
            a.need([vr(x, 4)])
            a.I(f"s_mov_b32 s{sT2}, 0")
            a.label(name)
            a.I(f"v_max3_u32 v{TA}, v{x}, v{x+1}, v{x+2}")
            a.I(f"v_max_u32 v{TA}, v{TA}, v{x+3}")
            a.I(f"v_cmp_eq_u32 vcc, -1, v{TA}")
            a.I(f"s_cmp_eq_u64 vcc, 0")
            a.I(f"s_cbranch_scc1 {name}_done")
            save, pos = list(a.vmq), a.pos
            a.I(f"s_add_u32 s{sT2}, s{sT2}, 1")
            a.I(f"s_cmp_ge_u32 s{sT2}, {SPIN_MAX}")
            a.I(f"s_cbranch_scc1 {name}_done")
            for l in xin(tt):
                a.I(l, track=False)
            a.wait_vm_all()
            a.I(f"s_branch {name}")
            a.vmq, a.pos = save, pos
            a.label(name + "_done")
            if DEBUG and not OPT["rt"]:
                CNTS.append(name)
                a.I(f"v_writelane_b32 v{STAMPV}, s{sT2}, {39+len(CNTS)}")
        return f

    def final(tt, packed=True):
        e = [xcheck(tt)]
        for it in range(2):
            b = BASE + 8 * tt + 4 * it
            x, u = XIN + 4 * tt + 2 * it, XIN + 8
            for h in range(2):
                e += [f"v_lshlrev_b32 v{u+2*h}, 16, v{x+h}", f"v_and_b32 v{u+2*h+1}, 0xffff0000, v{x+h}"]
            e += [f"s_add_u32 s{sJJ}, s{sXO}, {(32*tt+4*it)*2048}"] + add4(b, u, packed)
            e.append(f"buffer_store_dwordx4 {vr(b,4)}, v{OA}, {srd(SOUT)}, s{sJJ} offen {OPT['outflags']}")
        return e

    first = {1: min(n for n, (L, s) in enumerate(st) if s >= 7), 2: min(n for n, (L, s) in enumerate(st) if 4 <= s < 7)}
    done = [max(n for n, (L, s) in enumerate(st) if L == q) + 1 for q in range(4)]
    gate = {k: v - OPT["look"] for k, v in first.items()}
    issue, t, cnt = {}, 0, 0
    for f in range(2 * OPT["pro"], 88):
        m = f // 2
        lo = max([m - OPT["far"], 0] + [gate[k] for k in first if m >= first[k]])
        if lo > t:
            t, cnt = lo, 0
        if cnt >= OPT["rate"]:
            t, cnt = t + 1, 0
        assert t < m and OPT["far"] <= 9
        issue.setdefault(t, []).append(f)
        cnt += 1
    main = []
    for n, (L, s) in enumerate(st):
        ms = []
        for e in range(2):
            for dt in range(2):
                D = vr(32 * L + 16 * dt, 16)
                ms.append(f"v_mfma_f32_32x32x16_bf16 {D}, {hreg(2*n+e)}, {wreg(s,e,dt)}, {D if s or e else '0'}")
        regs = [hreg(2 * n), hreg(2 * n + 1), ar(16 * s, 16)]
        g0 = [lambda a, regs=regs: a.need(regs)]
        if n == 0 or OPT['only']:
            g0.append(stamp(f"k{n}"))
        g0.append(ms[0])
        g1, g2, g3 = [ms[1]], [ms[2]], [ms[3]]
        for stage in (1, 2):
            if n == gate[stage]:
                g0.append(hpoll(stage))
        for stage in (1, 2):
            lead = OPT["plead"] if gate[stage] == min(gate.values()) else min(OPT["plead"], abs(gate[2] - gate[1]))
            if n + lead == gate[stage]:
                g1.append(hload(stage))
        if n == max(gate.values()):
            g1.append(XLOAD)
        if n == max(gate.values()) + 7:
            g1.append(spoll("L_xr", XLOAD, 1))
        ld = issue.get(n, [])
        for j, f in enumerate(ld):
            (g0, g2, g1, g3)[j if len(ld) <= 2 else (0, 2, 1, 3)[j]].extend(al[f])
        if n == OPT["flag2_at"]:
            g1 += hflag(2)
        if n == OPT["flag1_at"]:
            g1 += hflag(1)
        main += [g0, g1, g2, g3]
    plans = [(prep, 2, 14), (prep2, 16, 4 * done[0])]
    for L in range(3):
        rw, rs1, rr, rs2, re = [int(v) for v in (OPT["red"].split(",") * 3)[L].split("/")]
        w, r, e = reduce(L, False)
        g = 4 * done[L] + 2
        plans += [(w, g, g + rw), (r, g + rw + rs1, g + rw + rs1 + rr)]
        g += rw + rs1 + rr + rs2
        plans.append((e, g, min(g + re, 176)))
    plans.append(([xin(0)], OPT["xin0"], OPT["xin0"] + 1, 1))
    plans.append(([xin(1)], OPT["xin1"], OPT["xin1"] + 1, 1))
    inloop = OPT["fin0"] < 176
    if inloop:
        plans.append((final(0, False), OPT["fin0"], 176))
    if OPT["x_p2"] & 1:
        txt = lambda it: (it[0] if isinstance(it, tuple) else it) if not callable(it) and not isinstance(it, list) else ""
        plans = [([it for it in p[0] if not txt(it).startswith("s_barrier")],) + tuple(p[1:]) for p in plans]
    if OPT["x_p2"] & 2:
        txt = lambda it: (it[0] if isinstance(it, tuple) else it) if not callable(it) and not isinstance(it, list) else ""
        plans = [([it for it in p[0] if not txt(it).startswith("ds_write")],) + tuple(p[1:]) for p in plans]
    for g in spread(main, plans):
        a.run(g)
    I(stamp("mfma done"))
    w, r, e = reduce(3, True)
    a.run(w + ([] if inloop else final(0)) + r)
    I(stamp("fin0"))
    a.run(e + final(1))
    I(stamp("out issued"))
    if DEBUG:
        a.wait_vm_all()
    I(stamp("out done"))


import os
HEADER = open(os.path.dirname(os.path.abspath(__file__)) + "/header.txt").read()


DOC = '''; out = x + S5(LN x) + MLP(LN LN x), one persistent launch, 256 workgroups (one per CU) of 4 waves.
; Generated by my own script (gen/gen.py): straight-line code, waits and wait states inserted per register.
;
;   x goes LDS-DMA -> MFMA fragments in registers; row sum / sum of squares with v_dot2; x - mean is formed in
;   fp32 (4x4 identity MFMA) and rounded to bf16; 1/std is applied after the GEMMs.  The second layer norm of
;   The S5 recurrence is an exact chunked scan: 16-step segments per lane, 8 segments per workgroup through LDS,
;   re-laid into fragment order once (spread over all workgroups) and sit in registers.  Waves are summed through
; Hand-offs: write-through (sc1) stores, drained, then a flag word; or words that are marked empty first.  Flag
;   words are reset at the start of the launch, which d_debug announces.  Every spin is bounded.  Nothing depends
'''


def kd(name):
    return f""".amdhsa_kernel {name}
  .amdhsa_next_free_vgpr 512
  .amdhsa_next_free_sgpr 102
  .amdhsa_accum_offset 256
  .amdhsa_group_segment_fixed_size 0
  .amdhsa_float_denorm_mode_32 3
  .amdhsa_kernarg_size 136
  .amdhsa_user_sgpr_count 2
  .amdhsa_user_sgpr_kernarg_segment_ptr 1
  .amdhsa_system_sgpr_workgroup_id_x 1
.end_amdhsa_kernel
"""


OPT = dict(only='', x_drop='', x_w0=0, xp_at=9, pre_pairs=2, par_n=4, rt=0, x_p2=0, x_nostore=0, spin=0, hsflags='sc1', aflags='sc1', outflags='sc1', hglc=1,
           rotmask=7, x_first=2, x_second=2, w_loop=2, init_at=-1, gost_at=3,
           sch='gold:4,W:-2:5,go:25,R:7:12,H2:14:28,pick:34,RS:36:47,H3:30:44,H4:48:62,H5:76:90,XP:72:75,bflag:66,xr:96,bpoll:90,bchk:107,B:108:190,f0:150,hl0:176',
           b2=44, x_abl=0, lskip=1, t3_late=0, t1_at=-1, p_at=-1, g1_pk=0, e_win=6, e_len=10, scan_q=8, eload_q=2, a_q='1/8', flag1_at=7, flag2_at=-1,
           la=2, wp=1, pro=8, pro_q=12, far=9, rate=2, look=5, plead=3, ord=1, red='8/2/2/2/3,6/2/2/2/5,5/2/2/2/5', xin0=146, xin1=160, fin0=167)


def build():
    a = Asm()
    k1 = NAME + "_kernel"
    a.raw(HEADER.rstrip())
    a.raw("; @launch grid=(256,1,1) block=(256,1,1) lds=163840")
    a.raw(DOC.rstrip())
    a.raw('.amdgcn_target "amdgcn-amd-amdhsa--gfx950"\n.text')
    a.raw(f".globl {k1}\n.p2align 8\n.type {k1},@function\n{k1}:")
    a.I("s_cmp_ge_u32 s2, 256")
    a.I("s_cbranch_scc1 L_end")
    if DEBUG:
        a.I("s_memrealtime s[86:87]")
    phase1(a, k1)
    phase2(a)
    if OPT["spin"]:
        a.I("s_cmp_lg_u32 s2, 100\ns_cbranch_scc1 L_end")
        a.I(f"s_cmp_lg_u32 s{sW}, 3\ns_cbranch_scc1 L_end")
        a.I("s_mov_b32 s4, 0")
        a.label("L_spin")
        a.I("s_memrealtime s[6:7]")
        a.wait_lg_all()
        a.I("s_sub_u32 s6, s6, s70\ns_add_u32 s4, s4, 1\ns_cmp_ge_u32 s4, 20000\ns_cbranch_scc1 L_end\ns_cmp_lt_u32 s6, 6000\ns_cbranch_scc1 L_spin")
    stamp_flush(a, 0)
    a.label("L_end")
    a.I("s_endpgm")
    a.raw('.section .rodata,"a"\n.p2align 6')
    a.raw(kd(k1))
    print(f"instructions: {a.count}, nops {a.nops}", file=sys.stderr)
    return a.text()


if __name__ == "__main__":
    out = sys.argv[1] if len(sys.argv) > 1 else f"cdna_kernels/{NAME}.s"
    DEBUG = "-d" in sys.argv
    for arg in sys.argv[2:]:
        if "=" in arg:
            k, v = arg.split("=", 1)
            OPT[k] = type(OPT[k])(v)
    txt = build()
    if DEBUG:
        txt += "; STAMPS " + ",".join(STAMPS) + "\n; CNTS " + ",".join(CNTS) + "\n"
    open(out, "w").write(txt)
```

```python
import sys, math, struct
from asmlib import Asm, TRANS

NAME = "parallel_sum__ssm_conv_s5__mixer_channel_mlp__prompt"
KB = 1024
RT_STRIDE = 176 * KB
G_STRIDE = 44 * KB
HID = 0
BW = 64 * RT_STRIDE
EOFF = BW + 16 * RT_STRIDE
HFLAG = EOFF + 64 * KB
XFLAG = HFLAG + 64 * KB
BFLAG = XFLAG + 32 * KB
XCH = 16 * 1024 * KB
WS_END = XCH + 2048 * KB
SPIN_MAX = 100000

H = [0, 32 * KB, 64 * KB, 96 * KB, 128 * KB, 0]
PARK = H[1]
ETAB = H[1] + 1 * KB
EIN = 108 * KB
TRB = H[4]


def f32(x):
    return "0x%08x" % struct.unpack("<I", struct.pack("<f", x))[0]


pX, pLRE, pLIM, pBRE, pBIM, pCRE, pCIM, pLDT = [4 + 2 * i for i in range(8)]
pDSK, pBX, pW1, pB1, pW2, pB2, pOUT, pDBG = [20 + 2 * i for i in range(8)]
pWS = 36
SX, SBR, SBI, SW1, SR, SWS, SWS2, SW1B, SRS, SOUT, SDBG, SE = [40 + 4 * i for i in range(12)]
sW, sR, sJ, sJJ, sG, sROT, sT0, sT1, sT2, sRA, sRB, sHB, sONE, sFL = range(88, 102)
sXB = 38
sUB = 39
sWL = 3
sA1, sXF, sHP, sXP, sXI, sXS = 6, 7, 8, 10, 12, 13
sI2, sN, sB0, sA0, sG2, sP0, sP1 = 15, 16, 17, 18, 19, 24, 25
sCS, sCM0, sCM1 = 26, 27, 28
sHF = 29
sIW, sIL = 34, 35
sRS = 1
sINI = 0


def srd(n):
    return f"s[{n}:{n+3}]"


def sp(n):
    return f"s[{n}:{n+1}]"


def vr(n, c=1):
    return f"v{n}" if c == 1 else f"v[{n}:{n+c-1}]"


def ar(n, c=1):
    return f"a{n}" if c == 1 else f"a[{n}:{n+c-1}]"


X = 0
ACA, ACB = 128, 160
VQ, VW, RDS, RDT = 192, 196, 200, 204
L16 = 206
MEAN, RSTD, IR2, K0, K1 = 207, 208, 209, 210, 211
PA, PC, PA16, PAS, PAH, PA256, PP = 212, 214, 216, 218, 220, 222, 224
BIA = 226
KEEP = 238
T = 242
STASH = 176
aTW, aTR, aXD, aAA, aES, aEA, aARS, aARW, aAET = 176, 177, 178, 179, 181, 182, 183, 184, 185
STG = 192


DEBUG = False
STAMPV = T + 3
STAMPS = []
DBGOFF = 15 * 1024 * KB


def stamp(name):
    def f(a):
        if not DEBUG:
            return
        if OPT["only"] and name not in ("start", "out done") and name not in OPT["only"].split(","):
            return
        n = len(STAMPS)
        STAMPS.append(name)
        if name.endswith("start") and name[0] in "sk":
            a.I("s_memrealtime s[22:23]")
            a.wait_lg_all()
            a.I(f"v_writelane_b32 v{STAMPV}, s22, 62")
            a.I(f"v_writelane_b32 v{STAMPV}, s86, 61")
        a.I("s_memtime s[22:23]")
        a.wait_lg_all()
        a.I(f"v_writelane_b32 v{STAMPV}, s22, {n}")
        if OPT["rt"]:
            a.I("s_memrealtime s[22:23]")
            a.wait_lg_all()
            a.I(f"v_writelane_b32 v{STAMPV}, s22, {32+n}")
    return f


def stamp_flush(a, which):
    if not DEBUG:
        return
    a.I("s_memrealtime s[22:23]")
    a.wait_lg_all()
    a.I(f"v_writelane_b32 v{STAMPV}, s22, 63")
    a.I(f"s_lshl_b32 s22, s2, 2\ns_add_u32 s22, s22, s{sW}\ns_lshl_b32 s22, s22, 8\ns_add_u32 s22, s22, {DBGOFF + which*256*KB}")
    a.I(f"v_mbcnt_lo_u32_b32 v0, -1, 0\nv_mbcnt_hi_u32_b32 v0, -1, v0\nv_lshlrev_b32 v0, 2, v0")
    a.I(f"buffer_store_dword v{STAMPV}, v0, {srd(SWS)}, s22 offen")


def mk_srd(a, n, ptr, size):
    a.I(f"s_mov_b64 s[{n}:{n+1}], s[{ptr}:{ptr+1}]")
    a.I(f"s_mov_b32 s{n+2}, {size}")
    a.I(f"s_mov_b32 s{n+3}, 0x20000")


def load_kernargs(a):
    a.I("s_load_dwordx16 s[4:19], s[0:1], 0")
    a.I("s_load_dwordx16 s[20:35], s[0:1], 64")
    a.I("s_load_dwordx2 s[36:37], s[0:1], 128")


def dma4(vbase, s, soff, m0expr, tag):
    it = list(m0expr)
    for q in range(4):
        it.append((f"buffer_load_dwordx4 v{vbase+q}, {srd(s)}, s{soff} offen offset:{q*1024} lds", tag))
    return it


def stage_regs(n):
    return [ar(STG + 16 * (n & 3), 16)]


def frag_reads(n):
    u, d = divmod(n, 16)
    it = []
    for s in range(2):
        k = 2 * d + s
        base = STG + 16 * (n & 3) + 8 * s
        if u == 1:
            for part in range(2):
                it.append(f"ds_read_b128 {ar(base+4*part,4)}, v{RDS+(k&3)} offset:{(k>>2)*8192+part*4096}")
        else:
            kk = k if u == 0 else (k & 15)
            for t in range(2):
                for e in range(2):
                    it.append(f"ds_read_b64_tr_b16 {ar(base+4*t+2*e,2)}, v{RDT+t} offset:{kk*2048+e*512}")
    return it


def mfmas(n):
    u, d = divmod(n, 16)
    res = []
    for s in range(2):
        k = 2 * d + s
        base = STG + 16 * (n & 3) + 8 * s
        for t in range(2):
            D = vr((ACA, ACB, ACA)[u] + 16 * t, 16)
            c = D if k else "0"
            bias = f"v_mfma_f32_32x32x16_bf16 {D}, {vr(BIA+u,4)}, {vr(BIA+4+4*t,4)}, {c}"
            g = []
            if u == 1:
                g.append(f"v_mfma_f32_32x32x16_bf16 {D}, {vr(X+4*k,4)}, {ar(base+4*t,4)}, {c}")
            else:
                if u == 2 and k == 0:
                    g.append(bias)
                    c = D
                g.append(f"v_mfma_f32_32x32x16_bf16 {D}, {ar(base+4*t,4)}, {vr(X+4*k,4)}, {c}")
                if u == 0 and k == 31:
                    g.append(bias)
            res.append(g)
    return res


LN, HH, RHO = T, T + 6, T + 7


def cpow(dst, nreg_or_const, zr, zv, t0, t1):
    it = []
    n = nreg_or_const
    if n == 1:
        it += [f"v_exp_f32 v{t0}, v{zr}", f"v_fract_f32 v{t1}, v{zv}"]
    else:
        src = n if isinstance(n, str) else f32(float(n))
        it += [f"v_mul_f32 v{t0}, {src}, v{zr}", f"v_mul_f32 v{t1}, {src}, v{zv}",
               f"v_exp_f32 v{t0}, v{t0}", f"v_fract_f32 v{t1}, v{t1}"]
    it += [f"v_cos_f32 v{dst}, v{t1}", f"v_sin_f32 v{dst+1}, v{t1}",
           f"v_mul_f32 v{dst}, v{dst}, v{t0}", f"v_mul_f32 v{dst+1}, v{dst+1}, v{t0}"]
    return it


def fill_u0():
    it = []
    A0, A1, A2, A3 = [ACB + 8 + i for i in range(4)]
    EPS = f32(1e-5)
    k0 = -2.0 * math.log2(math.e) * math.sqrt(2.0 / math.pi)
    k1 = k0 * 0.044715
    it += [f"v_mov_b32 v{A0}, v{RSTD}",
           f"v_mul_f32 v{MEAN}, {f32(1/512)}, v{MEAN}",
           f"v_permlane32_swap_b32 v{A0}, v{RSTD}",
           f"v_add_f32 v{RSTD}, v{A0}, v{RSTD}",
           f"v_mul_f32 v{A0}, {f32(1/512)}, v{RSTD}",
           f"v_fma_f32 v{A0}, -v{MEAN}, v{MEAN}, v{A0}",
           f"v_max_f32 v{A0}, 0, v{A0}",
           f"v_add_f32 v{A1}, {EPS}, v{A0}",
           f"v_cvt_pk_bf16_f32 v{A2}, v{A0}, v{A0}",
           f"v_lshlrev_b32 v{A2}, 16, v{A2}",
           f"v_add_f32 v{A2}, {EPS}, v{A2}",
           f"v_cvt_pk_bf16_f32 v{A2}, v{A2}, v{A2}",
           f"v_lshlrev_b32 v{A2}, 16, v{A2}",
           f"v_sqrt_f32 v{A2}, v{A2}",
           f"v_fmac_f32 v{A0}, {EPS}, v{A1}",
           f"v_cvt_pk_bf16_f32 v{A2}, v{A2}, v{A2}",
           f"v_lshlrev_b32 v{A2}, 16, v{A2}",
           f"v_rcp_f32 v{RSTD}, v{A2}",
           f"v_rsq_f32 v{A2}, v{A0}",
           f"v_sqrt_f32 v{IR2}, v{A0}",
           f"v_mul_f32 v{K0}, {f32(k0)}, v{A2}",
           f"v_mul_f32 v{A3}, v{A2}, v{A2}",
           f"v_mul_f32 v{A3}, {f32(0.044715)}, v{A3}",
           f"v_mul_f32 v{K1}, v{K0}, v{A3}",
           f"v_cvt_pk_bf16_f32 v{A2}, v{IR2}, v{IR2}",
           f"v_and_b32 v{A3}, 0xffff0000, v{A2}",
           f"v_sub_f32 v{A3}, v{IR2}, v{A3}",
           f"v_cvt_pk_bf16_f32 v{A2}, v{IR2}, v{A3}",
           f"v_mul_lo_u32 v{BIA+8}, v{A2}, v{HH}",
           f"v_sub_u32 v{BIA+4}, v{A2}, v{BIA+8}"]
    return it


def ssm_params():
    it = []
    A0, A1, A2, A3 = [ACB + 8 + i for i in range(4)]
    for k in range(2):
        it.append(f"v_lshl_or_b32 v{BIA+2*k}, v{BIA+2*k}, 16, v{BIA+2*k}")
    LR, LI, ZR, ZV = [ACB + 12 + i for i in range(4)]
    it += [f"v_lshlrev_b32 v{LR}, 16, v{PA}",
           f"v_lshlrev_b32 v{LI}, 16, v{PA+1}",
           f"v_lshlrev_b32 v{A0}, 16, v{PC}",
           f"v_mul_f32 v{A0}, {f32(math.log2(math.e))}, v{A0}",
           f"v_exp_f32 v{A0}, v{A0}",
           f"v_cvt_f32_u32 v{A2}, v{HH}",
           f"v_cvt_pk_bf16_f32 v{A0}, v{A0}, v{A0}",
           f"v_and_b32 v{A0}, 0xffff0000, v{A0}",
           f"v_mul_f32 v{ZR}, v{A0}, v{LR}",
           f"v_mul_f32 v{ZV}, v{A0}, v{LI}",
           f"v_mul_f32 v{ZR}, {f32(math.log2(math.e))}, v{ZR}",
           f"v_mul_f32 v{ZV}, 0.15915494, v{ZV}"]
    it += cpow(PA, 1, ZR, ZV, A0, A1)
    it += cpow(PA16, 16, ZR, ZV, A0, A1)
    it += cpow(PA256, 256, ZR, ZV, A0, A1)
    it += [f"v_mul_f32 v{A3}, {f32(128.0)}, v{A2}"]
    it += cpow(PAH, f"v{A3}", ZR, ZV, A0, A1)
    it += [f"s_lshl_b32 s{sROT}, s{sW}, 1",
           f"v_add_u32 v{A3}, s{sROT}, v{HH}",
           f"v_cvt_f32_u32 v{A3}, v{A3}",
           f"v_mul_f32 v{A3}, {f32(16.0)}, v{A3}"]
    it += cpow(PAS, f"v{A3}", ZR, ZV, A0, A1)
    it += [f"v_mul_f32 v{A0}, v{LR}, v{LR}",
           f"v_fmac_f32 v{A0}, v{LI}, v{LI}",
           f"v_rcp_f32 v{A0}, v{A0}",
           f"v_add_f32 v{A1}, -1.0, v{PA}",
           f"v_mul_f32 v{A2}, v{A1}, v{LR}",
           f"v_fmac_f32 v{A2}, v{PA+1}, v{LI}",
           f"v_mul_f32 v{A3}, v{PA+1}, v{LR}",
           f"v_fma_f32 v{A3}, -v{A1}, v{LI}, v{A3}",
           f"v_add_f32 v{A0}, v{A0}, v{A0}",
           f"v_mul_f32 v{PC}, v{A2}, v{A0}",
           f"v_mul_f32 v{PC+1}, v{A3}, v{A0}"]
    return it


def xready():
    return [lambda a: a.wait_vm("XP"), f"buffer_store_dword v{FONE}, v{FZERO}, {srd(SWS)}, s{sXF} offen sc1"]


ARS, AET, ARW = VQ + 1, VQ + 2, VQ + 3
E0 = T + 4


def unstash(dst, src):
    return f"v_accvgpr_read_b32 v{dst}, a{src}"


def fill_u1():
    it, rest = [], []
    tmp = [T + 10 + i for i in range(4)]
    for qd in range(8):
        l = it if qd < 8 - OPT["g1_pk"] else rest
        l += gelu_plain([ACA + 4 * qd + i for i in range(4)], tmp) if l is it else gelu_packed(ACA + 4 * qd, T + 10)
        if qd & 1:
            l += pack_store(ACA + 8 * (qd >> 1), SWS, sHB, 1024 * (qd >> 1), "HS0")
    return it, rest


def stats_to_lds():
    Z = T + 8
    return [unstash(ARW, aARW), unstash(AET, aAET), unstash(ARS, aARS),
            f"v_mov_b32 v{Z}, 0", f"v_mov_b32 v{Z+1}, 0",
            f"ds_write_b32 v{ARW}, v{RSTD}",
            f"ds_write_b32 v{ARW}, v{MEAN} offset:512",
            f"ds_write_b64 v{AET}, {vr(Z,2)}"]


def fill_u2a():
    RS = RDS
    E1 = PP
    it = []
    for i0 in range(0, 16, 4):
        for i in range(i0, i0 + 4):
            it += [f"v_mul_f32 v{ACB+i}, v{ACB+i}, v{RS+(i&3)}",
                   f"v_mul_f32 v{ACB+16+i}, v{ACB+16+i}, v{RS+(i&3)}"]
        if i0 < 12:
            it.append(f"ds_read_b128 {vr(RS,4)}, v{ARS} offset:{4*i0+16}")
        for i in range(max(i0, 1), i0 + 4):
            cr, ci = (ACB, ACB + 16) if i == 1 else ((E1, E1 + 1) if i & 1 else (E0, E0 + 1))
            nx = E0 if i & 1 else E1
            it += [f"v_fma_f32 v{nx}, v{PA}, v{cr}, v{ACB+i}",
                   f"v_fma_f32 v{nx+1}, v{PA}, v{ci}, v{ACB+16+i}",
                   f"v_fma_f32 v{nx}, -v{PA+1}, v{ci}, v{nx}",
                   f"v_fmac_f32 v{nx+1}, v{PA+1}, v{cr}"]
    it.append((f"ds_write_b64 v{AET}, {vr(E0,2)} offset:2048", "E"))
    return it


def fill_u2b():
    it = []
    slots = [RDS, RDS + 2, VW, VW + 2, T + 8, T + 10, T + 12]
    for m in range(6, -1, -1):
        it.append(f"ds_read_b64 {vr(slots[m],2)}, v{AET} offset:{(7-m)*256}")
    XD, AA, ES = T + 1, X, T + 2
    it += [unstash(XD, aXD), unstash(AA, aAA), unstash(AA + 1, aAA + 1), unstash(ES, aES)]
    it.append(lambda a: a.need([vr(x, 2) for x in slots]))
    cur = slots[6]
    for m in range(5, -1, -1):
        dst = PP if m == 0 else slots[m]
        it += cfma(dst, PA16, cur, slots[m])
        cur = dst
    it += cfma(E0, PA16, PP, E0)

    def estore(a):
        a.I(f"s_cmp_lg_u32 s{sW}, 3")
        a.I("s_cbranch_scc1 L_noe")
        pos = a.pos
        a.I(f"buffer_store_dwordx2 {vr(E0,2)}, v{ES}, {srd(SE)}, 0 offen sc1", track=False)
        a.pos = pos
        a.label("L_noe")
    it.append(estore)
    for tt in range(2):
        it += [f"s_add_u32 m0, s{sAX}, {1024*tt}\ns_add_u32 s{sT0}, s{sXO}, {32768*tt}",
               (f"buffer_load_dwordx4 v{XD}, {srd(SX)}, s{sT0} offen lds", "AUX")]
    it += [f"s_add_u32 m0, s{sAX}, 2048\ns_add_u32 s{sRA}, s{sHB}, {16*KB}", (f"global_load_lds_dwordx4 {vr(AA,2)}, off", "AUX")]
    return it


def gelu_plain(regs, tmp):
    it = []
    n = len(regs)
    for r, t in zip(regs, tmp):
        it.append(f"v_mul_f32 v{t}, v{r}, v{r}")
    for r, t in zip(regs, tmp):
        it.append(f"v_fma_f32 v{t}, v{t}, v{K1}, v{K0}")
    for r, t in zip(regs, tmp):
        it.append(f"v_mul_f32 v{t}, v{t}, v{r}")
    for r, t in zip(regs, tmp):
        it.append(f"v_exp_f32 v{t}, v{t}")
    for r, t in zip(regs, tmp):
        it.append(f"v_fma_f32 v{t}, v{t}, v{IR2}, v{IR2}")
    for r, t in zip(regs, tmp):
        it.append(f"v_rcp_f32 v{t}, v{t}")
    for r, t in zip(regs, tmp):
        it.append(f"v_mul_f32 v{r}, v{r}, v{t}")
    return it


def gelu_packed(base, tmp):
    it = []
    kk = vr(K0, 2)
    ii = vr(RSTD, 2)
    for p in (0, 2):
        it.append(f"v_pk_mul_f32 {vr(tmp+p,2)}, {vr(base+p,2)}, {vr(base+p,2)}")
    for p in (0, 2):
        it.append(f"v_pk_fma_f32 {vr(tmp+p,2)}, {vr(tmp+p,2)}, {kk}, {kk} op_sel:[0,1,0] op_sel_hi:[1,1,0]")
    for p in (0, 2):
        it.append(f"v_pk_mul_f32 {vr(tmp+p,2)}, {vr(tmp+p,2)}, {vr(base+p,2)}")
    for p in range(4):
        it.append(f"v_exp_f32 v{tmp+p}, v{tmp+p}")
    for p in (0, 2):
        it.append(f"v_pk_fma_f32 {vr(tmp+p,2)}, {vr(tmp+p,2)}, {ii}, {ii} op_sel:[0,1,1] op_sel_hi:[1,1,1]")
    for p in range(4):
        it.append(f"v_rcp_f32 v{tmp+p}, v{tmp+p}")
    for p in (0, 2):
        it.append(f"v_pk_mul_f32 {vr(base+p,2)}, {vr(base+p,2)}, {vr(tmp+p,2)}")
    return it


_gp, _gk = gelu_plain, gelu_packed
gelu_plain = lambda regs, tmp: [] if OPT["x_abl"] & 1 else _gp(regs, tmp)
gelu_packed = lambda base, tmp: ["v_nop"] if OPT["x_abl"] & 2 else _gk(base, tmp)


def pack_store(base, s, soff, off, tag):
    it = [f"v_cvt_pk_bf16_f32 v{base+n}, v{base+2*n}, v{base+2*n+1}" for n in range(4)]
    if OPT["x_nostore"] == 1:
        return it
    it.append((f"buffer_store_dwordx4 {vr(base,4)}, v{L16}, {srd(s)}, s{soff} offen offset:{off} {OPT['hsflags']}", tag))
    return it


def cfma(dst, m, x, add):
    return [f"v_fma_f32 v{dst}, v{m}, v{x}, v{add}",
            f"v_fma_f32 v{dst+1}, v{m}, v{x+1}, v{add+1}",
            f"v_fma_f32 v{dst}, -v{m+1}, v{x+1}, v{dst}",
            f"v_fmac_f32 v{dst+1}, v{m+1}, v{x}"]


def poll(a, name, val, addr, s, soff, m="vcc"):
    ld = f"buffer_load_dword v{val}, v{addr}, {srd(s)}, {soff} offen sc1"
    a.need([f"v{val}"])
    a.I(f"v_cmp_eq_u32 {m}, 0, v{val}")
    a.I(f"s_mov_b32 s{sT2}, 0")
    a.I(f"s_cmp_eq_u64 {m}, 0")
    a.I(f"s_cbranch_scc1 {name}_done")
    save, pos = list(a.vmq), a.pos
    a.label(name)
    a.I(ld, track=False)
    a.wait_vm_all()
    a.I(f"v_cmp_eq_u32 {m}, 0, v{val}")
    a.I(f"s_add_u32 s{sT2}, s{sT2}, 1")
    a.I(f"s_cmp_ge_u32 s{sT2}, {SPIN_MAX}")
    a.I(f"s_cbranch_scc1 {name}_done")
    a.I(f"s_cmp_eq_u64 {m}, 0")
    a.I(f"s_cbranch_scc0 {name}")
    a.vmq, a.pos = save, pos
    a.label(name + "_done")
    if DEBUG and not OPT["rt"]:
        CNTS.append(name)
        a.I(f"v_writelane_b32 v{STAMPV}, s{sT2}, {39+len(CNTS)}")


def xlds(c):
    return 32 * KB * (1 + (c >> 1)) + 4 * KB * (c & 1)


def xgroup(c):
    return dma4(VQ, SX, sT0, [f"s_add_u32 m0, s{sWL}, {xlds(c)}", f"s_xor_b32 s{sT0}, s{sXB}, {c<<7}"], f"x{c}")


def wgroup(n, half):
    tag = f"H{n}"
    pre = [f"s_add_u32 m0, s{sWL}, {H[n] + 4*KB*half}"]
    if n in (2, 3):
        pre += [f"s_xor_b32 s{sT0}, s{sCS}, {512*(n&1)}"]
        return dma4(VQ, SBI if half else SBR, sT0, pre, tag)
    off = 32 * 3584 * half + (128 if n >= 4 else 0)
    pre += [f"s_add_u32 s{sT0}, s{sCM1 if n&1 else sCM0}, {off}"]
    return dma4(VW, SW1B if n >= 4 else SW1, sT0, pre, tag)


def cost(it):
    if callable(it):
        return 1
    if isinstance(it, tuple):
        it = it[0]
    c = 0
    for l in it.split("\n"):
        mn = l.split()[0]
        if mn in TRANS or mn.startswith("v_mfma"):
            c += 2
        elif mn == "ds_write_b128":
            c += 6
        elif mn.startswith("ds_write_addtid"):
            c += 2
        elif mn.startswith("ds_write"):
            c += 4
        elif mn == "buffer_store_dwordx4":
            c += 7
        elif mn.startswith("buffer_") or mn.startswith("global_"):
            c += 3
        else:
            c += 1
    return c


def grp(items):
    res, cur = [], []
    for it in items:
        cur.append(it)
        if not (isinstance(it, str) and it.startswith("s_")):
            res.append(cur)
            cur = []
    return res


def spread(main, plans):
    load = [sum(map(cost, g)) for g in main]
    gaps = [[] for _ in main]
    for items, g0, g1, *uni in plans:
        if not items:
            continue
        if uni:
            for j, grp in enumerate(items):
                i = g0 + (j * (g1 - g0)) // len(items)
                gaps[i] += grp
                load[i] += sum(map(cost, grp))
            continue
        tot = sum(load[g0:g1]) + sum(map(cost, items))
        acc, j = 0, 0
        for i in range(g0, g1):
            acc += load[i]
            target = tot * (i - g0 + 1) / (g1 - g0)
            while j < len(items) and (acc + cost(items[j]) / 2 <= target or i == g1 - 1):
                gaps[i].append(items[j])
                acc += cost(items[j])
                load[i] += cost(items[j])
                j += 1
    return [m + g for m, g in zip(main, gaps)]


NEGM, IDM, CD = ACB, ACB + 4, ACB + 16


def unpack(i):
    return [f"v_mfma_f32_4x4x4_16b_bf16 {vr(CD+4*q,4)}, {vr(IDM,2)}, {vr(X+8*i+2*q,2)}, {vr(NEGM,4)}" for q in range(4)]


def repack(i):
    return [f"v_cvt_pk_bf16_f32 v{X+8*i+n}, v{CD+2*n}, v{CD+2*n+1}" for n in range(8)]


def phase1(a, kname):
    I = a.I
    load_kernargs(a)
    TA, TB, TC, TD = T + 1, T + 2, ACB + 31, T + 4
    PI = T + 9
    RR = ACA
    I(f"v_lshrrev_b32 v{TA}, 6, v0")
    I(f"v_and_b32 v{LN}, 63, v0")
    I(f"v_readfirstlane_b32 s{sW}, v{TA}")
    def code_touch():
        I(f"s_getpc_b64 s[{SR}:{SR+1}]")
        a.label("L_pc")
        I(f"s_and_b32 s{sT2}, s2, 0xf8")
        I(f"v_lshrrev_b32 v{TB}, 5, v0")
        I(f"v_add_lshl_u32 v{RR+8}, s{sT2}, v{TB}, 7")
        I(f"v_mov_b32 v{RR+9}, 0")
        I(f"v_min_u32 v{RR+8}, L_end-L_pc, v{RR+8}")
        I(f"v_lshl_add_u64 {vr(RR+8,2)}, {vr(RR+8,2)}, 0, s[{SR}:{SR+1}]")
        I(f"global_load_dword v{RR+10}, {vr(RR+8,2)}, off", track=False)
    code_touch()
    I(f"s_bfe_u32 s{sT1}, s2, 0x20003")
    I(f"s_lshr_b32 s{sT0}, s2, 5")
    I(f"s_and_b32 s{sR}, s2, 3")
    I(f"s_lshl2_add_u32 s{sR}, s{sR}, s{sT1}")
    I(f"s_lshl1_add_u32 s{sROT}, s{sT1}, s{sT0}")
    I(f"s_and_b32 s{sROT}, s{sROT}, {OPT['rotmask']}")
    I(f"s_and_b32 s{sJ}, s2, 4")
    I(f"s_lshl1_add_u32 s{sJ}, s{sJ}, s{sT0}")
    I(f"s_lshl2_add_u32 s{sHB}, s{sR}, s{sW}")
    I(f"s_lshl_b32 s{sXB}, s{sHB}, 8")
    I(f"s_or_b32 s{sXB}, s{sXB}, s{sROT}")
    I(f"s_lshl_b32 s{sXB}, s{sXB}, 7")
    I(f"s_lshl_b32 s{sWL}, s{sW}, 13")
    I(f"v_lshrrev_b32 v{TC}, 4, v{LN}")
    I(f"v_xor_b32 v{TC}, v{LN}, v{TC}")
    I(f"v_and_b32 v{TC}, 7, v{TC}")
    I(f"v_lshlrev_b32 v{TC}, 4, v{TC}")
    I(f"v_bfe_u32 v{TD}, v{LN}, 3, 2")
    I(f"v_lshl_or_b32 v{TC}, v{TD}, 10, v{TC}")
    I(f"v_lshrrev_b32 v{HH}, 5, v{LN}")
    I(f"v_lshl_or_b32 v{VQ}, v{HH}, 14, v{TC}")
    I(f"v_xor_b32 v{VQ+1}, 64, v{VQ}")
    I(f"v_add_u32 v{VQ+2}, {2*3072}, v{VQ}")
    I(f"v_add_u32 v{VQ+3}, {3*3072}, v{VQ+1}")
    I(f"v_add_u32 v{VQ+1}, 3072, v{VQ+1}")
    I(f"s_mov_b32 s{SX+2}, {2048*1024}")
    I(f"s_mov_b32 s{SX+3}, 0x20000")
    SCH = dict((e.split(":")[0], [int(v) for v in e.split(":")[1:]]) for e in OPT["sch"].split(","))
    V1, V2, V3, V4, V5 = RR + 11, RR + 12, RR + 13, RR + 14, RR + 15

    def touch_addr():
        I(f"s_lshr_b32 s{sG}, s{sJ}, 2")
        I(f"s_and_b32 s{sJJ}, s{sJ}, 3")
        I(f"s_mul_i32 s{sUB}, s{sG}, 7")
        I(f"s_lshl1_add_u32 s{sUB}, s{sJJ}, s{sUB}")
        I(f"s_lshl_b32 s{sUB}, s{sUB}, 7")
        I(f"s_mul_i32 s{sT2}, s{sHB}, {8*3584}")
        I(f"s_add_u32 s{sT2}, s{sT2}, s{sUB}")
        I(f"s_cmp_lt_u32 s{sJJ}, 3")
        I(f"s_cselect_b32 s{sT1}, 128, 0")
        I(f"v_and_b32 v{TA}, 7, v{LN}")
        I(f"v_mul_u32_u24 v{V1}, 3584, v{TA}")
        I(f"v_mad_u32_u24 v{V1}, v{HH}, s{sT1}, v{V1}")
        I(f"v_add_u32 v{V1}, s{sT2}, v{V1}")
        I(f"s_lshr_b32 s{sT2}, s{sHB}, 1")
        I(f"s_lshl_b32 s{sRA}, s{sJ}, 5")
        I(f"s_add_u32 s{sT2}, s{sT2}, s{sRA}")
        I(f"s_lshl_b32 s{sT2}, s{sT2}, 10")
        I(f"v_lshl_add_u32 v{V2}, v{TA}, 7, s{sT2}")

    def param_addr():
        I(f"v_and_b32 v{RHO}, 31, v{LN}")
        I(f"v_bfe_u32 v{TB}, v{LN}, 2, 1")
        I(f"v_and_b32 v{TA}, 3, v{LN}")
        I(f"v_lshl_or_b32 v{TA}, v{TD}, 2, v{TA}")
        I(f"v_lshl_or_b32 v{PI}, v{TB}, 4, v{TA}")
        I(f"v_add_lshl_u32 v{V3}, v{PI}, s{sRA}, 1")
        I(f"v_and_b32 v{TA}, 0x33, v{LN}")
        I(f"v_lshl_or_b32 v{TA}, v{TB}, 3, v{TA}")
        I(f"v_and_b32 v{TC}, 1, v{TD}")
        I(f"v_lshl_or_b32 v{TA}, v{TC}, 2, v{TA}")
        I(f"v_lshl_add_u32 v{V4}, v{TA}, 1, s{sUB}")
        I(f"v_add_u32 v{V5}, s{sT1}, v{V4}")

    x0 = xgroup(0)
    a.run(x0[:2])
    if OPT["pre"] >= 1:
        touch_addr()
    if OPT["pre"] >= 2:
        param_addr()
    a.wait_lg_all()
    I(stamp("start"))
    I(f"s_mov_b64 s[{SX}:{SX+1}], {sp(pX)}")
    a.vmq = []
    a.run(x0[2:])
    I(stamp("x0 issued"))
    for c in range(1, OPT["x_first"]):
        a.run(xgroup(c))
    if OPT["pre"] < 1:
        touch_addr()
    I(f"global_load_dword v{V1}, v{V1}, {sp(pW1)}")
    I(f"s_bitcmp0_b32 s{sW}, 0")
    I(f"s_cselect_b64 s[{SR}:{SR+1}], {sp(pBRE)}, {sp(pBIM)}")
    I(f"global_load_dword v{V2}, v{V2}, s[{SR}:{SR+1}]")
    if OPT["pre"] < 2:
        param_addr()
    I(f"global_load_ushort v{PA}, v{V3}, {sp(pLRE)}")
    I(f"global_load_ushort v{PA+1}, v{V3}, {sp(pLIM)}")
    I(f"global_load_ushort v{PC}, v{V3}, {sp(pLDT)}")
    I(f"global_load_ushort v{BIA}, v{V4}, {sp(pB1)}")
    I(f"global_load_ushort v{BIA+2}, v{V5}, {sp(pB1)}")
    for c in range(OPT["x_first"], OPT["x_second"]):
        a.run(xgroup(c))
    I(stamp("win1 issued"))
    I(f"v_lshlrev_b32 v{L16}, 4, v{LN}")
    mk_srd(a, SWS, pWS, WS_END)
    for k in range(4):
        I(f"v_accvgpr_write_b32 a{188+k}, -1")
    xp = [(f"buffer_store_dwordx4 {ar(188,4)}, v{L16}, {srd(SWS)}, s{sXS} offen offset:{1024*k} sc1", "XP") for k in range(2)]
    sBK = sRS
    RSLOT = xlds(6)
    mk_srd(a, SRS, pWS, WS_END)
    I(f"s_lshl1_add_u32 s{sBK}, s2, s{sW}")
    I(f"s_cmp_lt_u32 s{sBK}, 448")
    I(f"s_cselect_b32 s{SR+2}, {1792*1024}, 0")
    I(f"s_cselect_b32 s{sBK}, s{sBK}, 0")
    I(f"s_bitcmp0_b32 s2, 0")
    I(f"s_cselect_b64 s[{SR}:{SR+1}], {sp(pCRE)}, {sp(pCIM)}")
    I(f"s_cselect_b64 s[{SE}:{SE+1}], {sp(pDSK)}, {sp(pB2)}")
    I(f"s_lshr_b32 s{sT0}, s2, 1")
    I(f"s_cmp_lt_u32 s{sW}, 2")
    I(f"s_cselect_b64 s[{SR}:{SR+1}], {sp(pW2)}, s[{SR}:{SR+1}]")
    I(f"s_cselect_b32 s{SR+2}, s{SR+2}, {512*1024}")
    I(f"s_cselect_b32 s{sBK}, s{sBK}, s{sT0}")
    I(f"s_mov_b32 s{SR+3}, 0x20000")
    I(f"s_cmp_eq_u32 s{SR+2}, 0")
    I(f"s_cselect_b32 s{SRS+2}, 0, s{SRS+2}")
    I(f"s_lshr_b32 s{sT0}, s{sBK}, 3")
    I(f"s_lshl_b32 s{sT0}, s{sT0}, 8")
    I(f"s_cmp_eq_u32 s{sW}, 3")
    I(f"s_cselect_b64 s[{SR}:{SR+1}], s[{SE}:{SE+1}], s[{SR}:{SR+1}]")
    I(f"s_cselect_b32 s{SR+2}, 1024, s{SR+2}")
    I(f"s_cselect_b32 s{SRS+2}, 0, s{SRS+2}")
    I(f"s_cselect_b32 s{sT0}, 0, s{sT0}")
    I(f"s_and_b32 s{sT1}, s{sBK}, 7")
    I(f"s_or_b32 s{sT0}, s{sT0}, s{sT1}")
    I(f"s_lshl_b32 s{sINI}, s{sT0}, 7")
    rl = dma4(VQ, SR, sINI, [f"s_add_u32 m0, s{sWL}, {RSLOT}"], "R")
    I(f"s_mul_i32 s{sHB}, s{sHB}, {RT_STRIDE}")
    I(f"s_mul_i32 s{sT0}, s{sG}, 11")
    I(f"s_add_u32 s{sT0}, s{sT0}, s{sJJ}")
    I(f"s_lshl_b32 s{sT0}, s{sT0}, 12")
    I(f"s_add_u32 s{sHB}, s{sHB}, s{sT0}")
    I(f"s_and_b32 s{sT1}, s{sBK}, 7")
    I(f"s_lshr_b32 s{sT0}, s{sBK}, 3")
    I(f"s_cmp_ge_u32 s{sW}, 2")
    I("s_cbranch_scc1 L_dst2")
    I(f"s_mul_i32 s{sRA}, s{sT1}, {2*176}")
    I(f"s_and_b32 s{sT2}, s{sT0}, 1")
    I(f"s_lshl1_add_u32 s{sRA}, s{sT2}, s{sRA}")
    I(f"s_lshl3_add_u32 s{sFL}, s{sT1}, s{sT2}")
    I(f"s_lshr_b32 s{sT0}, s{sT0}, 1")
    I(f"s_lshl4_add_u32 s{sFL}, s{sFL}, s{sT0}")
    I(f"s_mul_i32 s{sT1}, s{sT0}, 37")
    I(f"s_lshr_b32 s{sT1}, s{sT1}, 8")
    I(f"s_mul_i32 s{sT2}, s{sT1}, {32-7}")
    I(f"s_add_u32 s{sFL}, s{sFL}, s{sT2}")
    I(f"s_mul_i32 s{sT2}, s{sT1}, 44")
    I(f"s_add_u32 s{sRA}, s{sRA}, s{sT2}")
    I(f"s_mul_i32 s{sT1}, s{sT1}, 7")
    I(f"s_sub_u32 s{sT0}, s{sT0}, s{sT1}")
    I(f"s_lshr_b32 s{sT1}, s{sT0}, 1")
    I(f"s_and_b32 s{sT0}, s{sT0}, 1")
    I(f"s_lshl2_add_u32 s{sT0}, s{sT0}, s{sT1}")
    I(f"s_lshl2_add_u32 s{sRA}, s{sT0}, s{sRA}")
    I(f"s_movk_i32 s{sRB}, 176")
    I("s_branch L_dstjoin")
    a.label("L_dst2")
    I(f"s_lshr_b32 s{sFL}, s{sT0}, 1")
    I(f"s_lshr_b32 s{sT2}, s{sT1}, 1")
    I(f"s_lshl2_add_u32 s{sFL}, s{sFL}, s{sT2}")
    I(f"s_and_b32 s{sRA}, s2, 1")
    I(f"s_lshl1_add_u32 s{sFL}, s{sFL}, s{sRA}")
    I(f"s_and_b32 s{sRA}, s{sT0}, 1")
    I(f"s_lshl3_add_u32 s{sFL}, s{sFL}, s{sRA}")
    I(f"s_and_b32 s{sRA}, s{sT1}, 1")
    I(f"s_lshl1_add_u32 s{sFL}, s{sFL}, s{sRA}")
    I(f"s_add_u32 s{sFL}, s{sFL}, 7")
    I(f"s_mul_i32 s{sRA}, s{sT0}, 176")
    I(f"s_mul_i32 s{sT2}, s{sT2}, 44")
    I(f"s_add_u32 s{sRA}, s{sRA}, s{sT2}")
    I(f"s_and_b32 s{sT1}, s{sT1}, 1")
    I(f"s_lshl3_add_u32 s{sRA}, s{sT1}, s{sRA}")
    I(f"s_and_b32 s{sT1}, s2, 1")
    I(f"s_lshl1_add_u32 s{sRA}, s{sT1}, s{sRA}")
    I(f"s_add_u32 s{sRA}, s{sRA}, 28")
    I(f"s_movk_i32 s{sRB}, 4")
    a.label("L_dstjoin")
    I(f"s_add_u32 s{sRA}, s{sRA}, {BW//1024}")
    I(f"s_add_u32 s{sRB}, s{sRB}, s{sRA}")
    I(f"s_lshl_b32 s{sRA}, s{sRA}, 10")
    I(f"s_lshl_b32 s{sRB}, s{sRB}, 10")
    I(f"s_lshl2_add_u32 s{sFL}, s{sFL}, {BFLAG}")
    for n, ptr, size in ((SBR, pBRE, 512 * 1024), (SBI, pBIM, 512 * 1024), (SW1, pW1, 512 * 3584), (SW1B, pW1, 512 * 3584),
                         (SWS2, pWS, WS_END), (SDBG, pDBG, 256), (SOUT, pOUT, 2048 * 2048)):
        mk_srd(a, n, ptr, size)
    I(f"s_cmp_lt_u32 s{sJJ}, 3")
    I(f"s_cselect_b32 s{SW1B+2}, s{SW1B+2}, 0")
    I(f"s_cselect_b32 s{SWS2+2}, s{SWS2+2}, 0")
    I(f"s_lshl_b32 s{sT0}, s{sJ}, 12")
    I(f"s_add_u32 s{sT0}, s{sT0}, {EOFF}")
    I(f"s_add_u32 s{SE}, s{pWS}, s{sT0}")
    I(f"s_addc_u32 s{SE+1}, s{pWS+1}, 0")
    I(f"s_mov_b32 s{SE+2}, 4096")
    I(f"s_mov_b32 s{SE+3}, 0x20000")
    I(f"s_xor_b32 s{sT0}, s{sW}, s{sROT}")
    I(f"s_lshl_b32 s{sCS}, s{sJ}, 8")
    I(f"s_or_b32 s{sCS}, s{sCS}, s{sT0}")
    I(f"s_lshl_b32 s{sCS}, s{sCS}, 7")
    I(f"s_mul_i32 s{sCM0}, s{sT0}, {64*3584}")
    I(f"s_add_u32 s{sCM0}, s{sCM0}, s{sUB}")
    I(f"s_xor_b32 s{sT0}, s{sT0}, 4")
    I(f"s_mul_i32 s{sCM1}, s{sT0}, {64*3584}")
    I(f"s_add_u32 s{sCM1}, s{sCM1}, s{sUB}")
    I(f"s_lshl2_add_u32 s{sHF}, s{sR}, s{sG}")
    I(f"s_lshl4_add_u32 s{sHF}, s{sHF}, s{sW}")
    I(f"s_lshl2_add_u32 s{sHF}, s{sHF}, s{sJJ}")
    I(f"s_lshl2_add_u32 s{sHF}, s{sHF}, {HFLAG}")
    p2_index(a)
    for c in range(OPT["x_second"], OPT["x_third"]):
        a.run(xgroup(c))
    I(f"v_lshrrev_b32 v{TA}, 3, v{LN}")
    I(f"v_and_b32 v{TC}, 0x70, v{L16}")
    I(f"v_bfe_u32 v{TB}, v{LN}, 4, 1")
    I(f"v_lshlrev_b32 v{TD}, 6, v{TB}")
    I(f"v_xor_b32 v{TC}, v{TC}, v{TD}")
    I(f"v_mul_u32_u24 v{TD}, 3584, v{TA}")
    I(f"v_add_u32 v{VW}, v{TD}, v{TC}")
    for q in range(1, 4):
        I(f"v_add_u32 v{VW+q}, {q*(8*3584-1024)}, v{VW}")
    I(f"v_bfe_u32 v{TA}, v{LN}, 2, 2")
    I(f"v_lshl_or_b32 v{TC}, v{HH}, 3, v{TA}")
    I(f"v_lshlrev_b32 v{TC}, 7, v{TC}")
    I(f"v_lshrrev_b32 v{TA}, 1, v{TA}")
    I(f"v_lshl_or_b32 v{TC}, v{TA}, 6, v{TC}")
    I(f"v_lshl_or_b32 v{TC}, v{TB}, 5, v{TC}")
    I(f"v_and_b32 v{TA}, 1, v{LN}")
    I(f"v_lshl_or_b32 v{TC}, v{TA}, 4, v{TC}")
    I(f"v_bfe_u32 v{TA}, v{LN}, 1, 1")
    I(f"v_lshl_or_b32 v{RDT}, v{TA}, 3, v{TC}")
    I(f"v_xor_b32 v{RDT+1}, 64, v{RDT}")
    I(f"v_bfe_u32 v{TA}, v{RHO}, 1, 3")
    I(f"v_xor_b32 v{TA}, v{TA}, v{HH}")
    I(f"v_lshlrev_b32 v{TA}, 4, v{TA}")
    I(f"v_lshl_or_b32 v{TA}, v{RHO}, 7, v{TA}")
    I(f"v_add_u32 v{RDS}, s{sWL}, v{TA}")
    for k in range(1, 4):
        I(f"v_xor_b32 v{RDS+k}, {32*k}, v{RDS}")
    AW = T + 10
    I(f"v_bfe_u32 v{TA}, v{LN}, 2, 2")
    I(f"v_lshl_or_b32 v{TA}, v{HH}, 4, v{TA}")
    I(f"s_add_u32 s{sT0}, s{sWL}, {RSLOT}")
    I(f"v_lshl_add_u32 v{AW}, v{TA}, 7, s{sT0}")
    I(f"v_and_b32 v{TA}, 1, v{LN}")
    I(f"v_lshl_or_b32 v{AW}, v{TA}, 5, v{AW}")
    I(f"v_bfe_u32 v{TA}, v{LN}, 3, 1")
    I(f"v_xor_b32 v{TA}, v{TA}, v{TB}")
    I(f"v_lshl_or_b32 v{AW}, v{TA}, 4, v{AW}")
    I(f"v_bfe_u32 v{TA}, v{LN}, 1, 1")
    I(f"v_lshl_or_b32 v{AW}, v{TA}, 3, v{AW}")
    for k in range(1, 4):
        I(f"v_xor_b32 v{AW+k}, {32*k}, v{AW}")
    I(f"s_cmp_lt_u32 s{sW}, 2")
    I("s_cbranch_scc1 L_awdone")
    for k in range(4):
        I(f"v_add_u32 v{AW+k}, {RSLOT}, v{RDS+k}")
    a.label("L_awdone")
    def stash(dst, src):
        I(f"v_accvgpr_write_b32 a{dst}, v{src}")
    I(f"s_lshl_b32 s{sT0}, s{sW}, 7")
    I(f"s_add_u32 s{sT0}, s{sT0}, {PARK}")
    I(f"v_lshl_add_u32 v{TA}, v{HH}, 6, s{sT0}")
    I(f"v_lshl_add_u32 v{TC}, v{PI}, 2, s{sT0}")
    stash(aARS, TA)
    stash(aARW, TC)
    I(f"s_lshl_b32 s{sT0}, s{sW}, 9")
    I(f"s_add_u32 s{sT0}, s{sT0}, {ETAB}")
    I(f"v_lshl_add_u32 v{TA}, v{LN}, 3, s{sT0}")
    stash(aAET, TA)
    I(f"s_lshl_b32 s{sT0}, s{sR}, 8")
    I(f"v_lshlrev_b32 v{TA}, 3, v{LN}")
    I(f"v_subrev_u32 v{TA}, 256, v{TA}")
    I(f"v_cmp_gt_i32 vcc, 0, v{TA}")
    I(f"v_add_u32 v{TC}, s{sT0}, v{TA}")
    I(f"v_cndmask_b32 v{TA}, v{TC}, v{TA}, vcc")
    stash(aES, TA)
    I(f"v_lshlrev_b32 v{TA}, 3, v{RHO}")
    I(f"v_lshlrev_b32 v{TC}, 8, v{HH}")
    I(f"v_sub_u32 v{TA}, v{TA}, v{TC}")
    I(f"v_add_u32 v{TA}, {EIN + 256}, v{TA}")
    stash(aEA, TA)
    I(f"s_mul_i32 s{sT0}, s{sW}, 5120")
    I(f"s_add_u32 s{sT0}, s{sT0}, {TRB}")
    I(f"v_mul_u32_u24 v{TA}, 80, v{RHO}")
    I(f"v_lshl_add_u32 v{TA}, v{HH}, 5, v{TA}")
    I(f"v_add_u32 v{TA}, s{sT0}, v{TA}")
    stash(aTW, TA)
    I(f"v_bfe_u32 v{TA}, v{LN}, 2, 2")
    I(f"v_lshl_add_u32 v{TA}, v{HH}, 4, v{TA}")
    I(f"v_mul_u32_u24 v{TC}, 80, v{TA}")
    I(f"v_and_b32 v{TA}, 1, v{LN}")
    I(f"v_lshl_add_u32 v{TC}, v{TA}, 5, v{TC}")
    I(f"v_lshl_add_u32 v{TC}, v{TB}, 4, v{TC}")
    I(f"v_bfe_u32 v{TA}, v{LN}, 1, 1")
    I(f"v_lshl_add_u32 v{TC}, v{TA}, 3, v{TC}")
    I(f"v_add_u32 v{TC}, s{sT0}, v{TC}")
    stash(aTR, TC)
    for c in range(OPT["x_third"], OPT["x_fourth"]):
        a.run(xgroup(c))
    I(f"s_mul_i32 s{sAX}, s{sW}, 3072")
    I(f"s_add_u32 s{sAX}, s{sAX}, {AUX}")
    I(f"s_lshl3_add_u32 s{sXO}, s{sI2}, s{sW}")
    I(f"s_lshl_b32 s{sXO}, s{sXO}, 13")
    I(f"s_lshl_b32 s{sT0}, s{sN}, 7")
    I(f"s_add_u32 s{sXO}, s{sXO}, s{sT0}")
    P0, P2 = ACB, ACB + 2
    I(f"v_mov_b32 v{P0}, s{pB2}")
    I(f"v_mov_b32 v{P0+1}, s{pB2+1}")
    I(f"v_cmp_gt_u32 vcc, 8, v{LN}")
    I(f"v_mov_b32 v{P2}, s{pDSK}")
    I(f"v_mov_b32 v{P2+1}, s{pDSK+1}")
    I(f"v_cndmask_b32 v{P0}, v{P0}, v{P2}, vcc")
    I(f"v_cndmask_b32 v{P0+1}, v{P0+1}, v{P2+1}, vcc")
    I(f"v_and_b32 v{TA}, 0x70, v{L16}")
    I(f"v_add_u32 v{P2}, s{sT0}, v{TA}")
    I(f"v_mov_b32 v{P2+1}, 0")
    I(f"v_lshl_add_u64 {vr(P0,2)}, {vr(P2,2)}, 0, {vr(P0,2)}")
    I(f"v_lshrrev_b32 v{TC}, 3, v{LN}")
    I(f"v_lshl_or_b32 v{TA}, v{TC}, 10, v{TA}")
    stash(aAA, P0)
    stash(aAA + 1, P0 + 1)
    stash(aXD, TA)
    I(f"v_and_b32 v{FREP}, 3, v{LN}")
    I(f"v_lshlrev_b32 v{FREP}, 14, v{FREP}")
    I(f"s_and_b32 s{sT0}, s{sN}, 3")
    I(f"s_lshl4_add_u32 s{sT0}, s{sT0}, s{sR}")
    I(f"s_lshl2_add_u32 s{sT0}, s{sT0}, s{sG2}")
    I(f"s_lshl_b32 s{sT0}, s{sT0}, 8")
    I(f"s_add_u32 s{sT0}, s{sT0}, {HFLAG}")
    I(f"s_add_u32 s{sHP}, s{pWS}, s{sT0}")
    I(f"s_addc_u32 s{sHP+1}, s{pWS+1}, 0")
    I(f"s_lshl2_add_u32 s{sT0}, s2, s{sW}")
    I(f"s_lshl_b32 s{sT0}, s{sT0}, 5")
    I(f"s_add_u32 s{sT0}, s{sT0}, {XFLAG}")
    I(f"s_add_u32 s{sXP}, s{pWS}, s{sT0}")
    I(f"s_addc_u32 s{sXP+1}, s{pWS+1}, 0")
    I(f"s_xor_b32 s{sXF}, s{sT0}, 512")
    I(f"s_and_b32 s{sT0}, s{sR}, 7")
    I(f"s_lshl3_add_u32 s{sT0}, s{sT0}, s{sN}")
    I(f"s_lshl2_add_u32 s{sT0}, s{sT0}, s{sG2}")
    I(f"s_and_b32 s{sT1}, s{sW}, 1")
    I(f"s_lshl1_add_u32 s{sT0}, s{sT0}, s{sT1}")
    I(f"s_lshl_b32 s{sT0}, s{sT0}, 6")
    I(f"s_add_u32 s{sT0}, s{sT0}, {BFLAG}")
    I(f"s_add_u32 s4, s{pWS}, s{sT0}")
    I(f"s_addc_u32 s5, s{pWS+1}, 0")
    GOA, GOV = T + 8, T + 9
    I(f"v_and_b32 v{TA}, 1, v{LN}")
    I(f"v_lshlrev_b32 v{TA}, 4, v{TA}")
    I(f"v_mov_b32 v{TB}, 0x3f80")
    I(f"v_lshlrev_b32 v{TA}, v{TA}, v{TB}")
    I(f"v_bfe_u32 v{TB}, v{LN}, 1, 1")
    I(f"v_mul_lo_u32 v{IDM+1}, v{TA}, v{TB}")
    I(f"v_sub_u32 v{IDM}, v{TA}, v{IDM+1}")
    a.run([f"v_mov_b32 v{BIA+k}, 0" for k in (1, 3, 5, 6, 7, 9, 10, 11)])
    a.run([f"v_mov_b32 v{MEAN}, 0", f"v_mov_b32 v{RSTD}, 0", f"v_lshlrev_b32 v{GOA}, 2, v{LN}",
           f"v_and_b32 v{KEEP}, 7, v{LN}", f"v_lshlrev_b32 v{KEEP}, 12, v{KEEP}",
           f"v_mov_b32 v{KEEP+2}, 1", f"v_mov_b32 v{KEEP+3}, 0"])
    I(f"s_lshl2_add_u32 s{sIW}, s{sJJ}, s{sW}")
    I(f"s_lshl2_add_u32 s{sIL}, s{sR}, s{sG}")
    for k in range(4):
        I(f"v_accvgpr_write_b32 a{172+k}, 0")

    def init(a):
        I(f"s_cmp_lg_u32 s{sIW}, 15")
        I("s_cbranch_scc1 L_noinit")
        pos = a.pos
        I(f"s_lshl_b32 s{sT1}, s{sIL}, 10")
        I(f"s_add_u32 s{sT1}, s{sT1}, {EOFF}")
        I(f"buffer_store_dwordx4 {ar(188,4)}, v{L16}, {srd(SWS)}, s{sT1} offen sc1", track=False)
        I(f"s_lshl_b32 s{sT1}, s{sIL}, 11")
        I(f"s_add_u32 s{sT1}, s{sT1}, {HFLAG}")
        for k in range(2):
            I(f"buffer_store_dwordx4 {ar(172,4)}, v{L16}, {srd(SWS)}, s{sT1} offen offset:{1024*k} sc1", tag="INIT", track=False)
        a.pos = pos
        a.label("L_noinit")

    def gostore(a):
        I(f"s_cmp_lg_u32 s{sIW}, 15")
        I("s_cbranch_scc1 L_nogo")
        pos, snap = a.pos, list(a.vmq)
        a.wait_vm("INIT")
        a.vmq = snap
        I(f"s_lshl_b32 s{sT1}, s{sIL}, 2")
        I(f"buffer_store_dword v{KEEP+2}, v{KEEP+3}, {srd(SDBG)}, s{sT1} offen sc1", track=False)
        a.pos = pos
        a.label("L_nogo")
    I(f"s_mov_b32 s{sONE}, 0x3f803f80")
    I(stamp("setup done"))
    if OPT["init_at"] < 0:
        init(a)
    for c in range(OPT["x_fourth"], 4):
        a.run(xgroup(c))

    def rpick(a):
        a.wait_vm("R")
        pos = a.pos
        I(f"s_cmp_ge_u32 s{sW}, 2")
        I("s_cbranch_scc1 L_rp2")
        for dt in range(2):
            for ph in range(2):
                for e in range(2):
                    I(f"ds_read_b64_tr_b16 {ar(8*dt+4*ph+2*e,2)}, v{AW+2*(dt^e)+ph} offset:{e*1024+ph*512}", track=False)
        I("s_branch L_rpjoin")
        a.lgq = [e for e in a.lgq if e.track]
        a.label("L_rp2")
        for k in range(4):
            I(f"ds_read_b128 {ar(4*k,4)}, v{AW+k}", track=False)
        a.pos = pos + 6
        a.label("L_rpjoin")

    rs = [lambda a: a.need([ar(0, 16)])]
    rs += [(f"buffer_store_dwordx4 {ar(4*k,4)}, v{L16}, {srd(SRS)}, s{sRB if k>=2 else sRA} offen offset:{1024*(k&1)} sc1", "RS") for k in range(4)]

    def stats(c):
        it = [lambda a: a.need([vr(X + 16 * c, 16)])]
        it += [f"v_dot2c_f32_bf16 v{MEAN}, s{sONE}, v{X+16*c+k}" for k in range(16)]
        it += [f"v_dot2c_f32_bf16 v{RSTD}, v{X+16*c+k}, v{X+16*c+k}" for k in range(16)]
        return it

    par = ssm_params()
    nw = OPT["w_loop"]
    for c in range(8):
        if c < 4:
            a.run(xgroup(c + 4))
        else:
            if c - 4 < nw:
                a.run(wgroup((c - 4) >> 1, c & 1))
        if c == OPT["init_at"]:
            init(a)
        if c in (2, 6):
            for k in range(4):
                I(f"v_add_u32 v{RDS+k}, {64*KB}, v{RDS+k}")
        if c == 7:
            a.run(stats(6)[:17])
        a.wait_vm(f"x{c}")
        if c in (0, 1, 4, 7):
            I(stamp(f"x{c} landed"))
        for k in range(4):
            I(f"ds_read_b128 {vr(X+16*c+4*k,4)}, v{RDS+k} offset:{xlds(c) % (64*KB)}")
        if c == OPT["gost_at"]:
            gostore(a)
        if c:
            a.run(stats(c - 1)[17 if c == 7 else 0:])
        if 1 <= c <= OPT["par_n"]:
            a.run(par[(len(par) * (c - 1)) // OPT["par_n"]:(len(par) * c) // OPT["par_n"]])
    s7 = stats(7)
    a.run(s7[:20])
    I(f"v_mov_b32 v{TA}, v{MEAN}")
    a.run(s7[20:22])
    I(f"v_permlane32_swap_b32 v{TA}, v{MEAN}")
    I(f"v_add_f32 v{MEAN}, v{TA}, v{MEAN}")
    for k in range(4):
        I(f"v_mul_f32 v{NEGM+k}, {f32(-1/512)}, v{MEAN}")
    a.run(s7[22:])
    I(f"s_add_u32 s{sUB}, s{sWL}, {128*KB - H[2]}")
    I(stamp("stats done"))

    bflag = [lambda a: a.wait_vm("RS"), f"buffer_store_dword v{KEEP+2}, v{KEEP}, {srd(SRS)}, s{sFL} offen sc1"]
    bl = b_loads()
    bload = f"s_load_dwordx16 s[{sHV}:{sHV+15}], s[4:5], 0 glc"
    bpoll = [bload]
    hg = lambda n: grp(wgroup(n, 0) + wgroup(n, 1))
    events = dict(W=(hg(0) + hg(1))[4 * nw:], H2=hg(2), H3=hg(3), H4=hg(4), H5=hg(5), R=grp(rl), pick=[[rpick]],
                  RS=[rs[:2]] + grp(rs[2:]), bflag=[bflag], bpoll=[bpoll], B=bl[:OPT["b2"]], xr=[xready()],
                  xl=[[XLOAD]], xc=[[spoll("L_xr", XLOAD, 1)]], f0=[hflag(0)], hl0=[[hload(0)]],
                  go=[[lambda a: poll(a, "L_go", GOV, GOA, SDBG, 0)]], gost=[[gostore]],
                  gold=[[f"buffer_load_dword v{GOV}, v{GOA}, {srd(SDBG)}, 0 offen sc1"]], XP=[[x] for x in xp],
                  bchk=[[spoll("L_bf", bload, 11), stamp("B flags")]])
    for name in OPT["x_drop"].split("/"):
        if name:
            events[name] = [[]]
    at = {}
    for name, pos in SCH.items():
        g0, g1 = pos[0], pos[-1] + 1
        for j, e in enumerate(events[name]):
            at.setdefault(g0 + (j * (g1 - g0)) // len(events[name]), []).extend(e)
    order = [x for x in ("R", "pick", "RS", "bflag", "bpoll", "bchk", "B") if x in SCH]
    assert all(SCH[x][-1] <= SCH[y][0] for x, y in zip(order, order[1:]))
    assert ("gost" in SCH) == (OPT["gost_at"] > 7) and SCH.get("gost", [-99])[0] < SCH["gold"][0] < SCH["go"][0] < min(88, SCH["bflag"][0], SCH["xr"][0]) and SCH["H5"][0] > 4 * (16 - OPT["la"])
    assert SCH["H5"][-1] < 128 and SCH["H3"][-1] < min(64, SCH["bpoll"][0])
    assert SCH["RS"][0] < SCH["H4"][0] and SCH["pick"][0] < 60
    assert SCH["bchk"][0] < SCH["hl0"][0] and SCH["f0"][0] >= 128
    assert SCH["XP"][-1] < SCH["xr"][0]
    for n, name in ((1, "W"), (2, "H2"), (3, "H3"), (4, "H4"), (5, "H5")):
        assert SCH.get(name, [-9])[-1] < 4 * (8 * n - OPT["la"])
    assert nw >= 2 and max(SCH.get("R", [0])[-1], SCH.get("W", [0])[-1], SCH.get("T1", [0])[-1]) < SCH["bpoll"][0]
    dm = sorted(SCH[x] for x in ("W", "H2", "H3", "H4", "H5", "R") if x in SCH)
    assert all(x[-1] < y[0] for x, y in zip(dm, dm[1:]))
    P = OPT["pre_pairs"]
    assert min(at) >= -P
    for i in range(P):
        u, r = unpack(i), repack(i)
        a.run(u + at.get(i - P, []))
        if i == P - 1:
            a.run([lambda a: a.wait_vm("H0"), "s_barrier"] + frag_reads(0))
        a.run(r)
    a.run(sum((frag_reads(k) for k in range(1, OPT["la"])), []) + (unpack(P) if P < 16 else []))

    n2 = OPT["b2"]
    flat = lambda ll: [x for l in ll for x in l]
    ge = 4 * OPT["e_win"]
    assert OPT["e_win"] >= 6
    f2b = fill_u2b()
    f0 = [f"v_subrev_u32 v{RDS+k}, s{sUB}, v{RDS+k}" for k in range(4)] + fill_u0() + (par if not OPT["par_n"] else [])
    plan = [[(f0, 2, 50)], [(stats_to_lds(), 26, 56), ([f"ds_read_b128 {vr(RDS,4)}, v{ARS}"], 60, 61), (fill_u1()[0], 1, 64)], [(fill_u2a(), 1, ge), (f2b[:-6], ge, ge + OPT["e_len"]), (f2b[-6:], ge + OPT["e_len"], 64)]]
    for u in range(3):
        a.comment(f"---- GEMM unit {u} ----")
        I(stamp(f"U{u} start"))
        main = []
        LA, WP = OPT["la"], OPT["wp"]
        for d in range(16):
            n = 16 * u + d
            pre = [lambda a: a.need(sum((stage_regs(k) for k in range(WP)), []))] if n == 0 else []
            if OPT["only"] and n % 4 == 0 and d:
                pre.append(stamp(f"w{n}"))
            if n + LA < 48 and (n + LA) % 8 == 0:
                pre += [lambda a, hn=(n + LA) // 8: a.wait_vm(f"H{hn}"), "s_barrier"]
            if n == 32 + OPT["e_win"]:
                pre = [lambda a: a.wait_lg("E")] + pre + ([] if "s_barrier" in pre else ["s_barrier"])
            if n + LA == 32:
                pre += [f"v_add_u32 v{RDT}, {H[4]}, v{RDT}", f"v_add_u32 v{RDT+1}, {H[4]}, v{RDT+1}"]
            if n + LA == 40:
                pre += [f"v_subrev_u32 v{RDT}, {H[4]}, v{RDT}", f"v_subrev_u32 v{RDT+1}, {H[4]}, v{RDT+1}"]
            ms = mfmas(n)
            rd = frag_reads(n + LA) if n + LA < 48 else []
            h = len(rd) // 4
            for i in range(4):
                post = []
                if i == 3 and n < 47 and (n + 1) % WP == 0:
                    post = [lambda a, n=n: a.need(sum((stage_regs(n + 1 + k) for k in range(WP)), []))]
                main.append((pre if i == 0 else []) + ms[i] + post + rd[i * h:(i + 1) * h])
        main = [m + at.get(64 * u + i, []) for i, m in enumerate(main)]
        last = {63: fill_u1()[1]} if u == 1 else {}
        if u == 0:
            cg = 4 // OPT["c_rate"]
            for d in range(16 - P):
                r = repack(P + d)
                for i in range(cg):
                    main[cg * d + i] = main[cg * d + i] + r[(8 // cg) * i:(8 // cg) * (i + 1)]
                if P + d + 1 < 16:
                    last[cg * d + cg - 1] = unpack(P + d + 1)
        for i, g in enumerate(spread(main, plan[u])):
            a.run(g + last.get(i, []))
    I(stamp("tail start"))
    a.run(tail(flat(bl[n2:])))
    I(stamp("tail issued"))


def merge(fl, mem):
    if not mem:
        return list(fl)
    res = []
    n, m = len(fl), len(mem)
    j = 0
    for i in range(n):
        while j < m and j * n <= i * m:
            res.append(mem[j])
            j += 1
        res.append(fl[i])
    res += mem[j:]
    return res


FREP = KEEP + 1
FONE, FZERO = KEEP + 2, KEEP + 3


sHV = SBR


def hload(stage, retry=False):
    return f"s_load_dwordx16 s[{sHV}:{sHV+15}], s[{sHP}:{sHP+1}], {64*stage}" + (" glc" if retry or OPT["hglc"] else "")


XLOAD = f"s_load_dword s{sHV}, s[{sXP}:{sXP+1}], 0 glc"


def spoll(name, load, n, empty=None):
    def f(a):
        a.I(f"s_mov_b32 s{sT2}, 0")
        a.label(name)
        a.wait_lg_all()
        for k in range(2, n - 1, 2):
            a.I(f"s_and_b64 s[{sHV}:{sHV+1}], s[{sHV}:{sHV+1}], s[{sHV+k}:{sHV+k+1}]")
        if n > 1 and n & 1:
            a.I(f"s_and_b32 s{sHV}, s{sHV}, s{sHV+n-1}")
        if empty is None:
            a.I(f"s_and_b32 s{sHV}, s{sHV}, s{sHV+(1 if n > 1 else 0)}")
        else:
            a.I(f"s_cmp_lg_u32 s{sHV}, {empty}")
        a.I(f"s_cbranch_scc1 {name}_done")
        pos = a.pos
        a.I(f"s_add_u32 s{sT2}, s{sT2}, 1")
        a.I(f"s_cmp_ge_u32 s{sT2}, {SPIN_MAX}")
        a.I(f"s_cbranch_scc1 {name}_done")
        a.I(load)
        a.I(f"s_branch {name}")
        a.lgq, a.pos = [], pos
        a.label(name + "_done")
        if DEBUG and not OPT["rt"]:
            CNTS.append(name)
            a.I(f"v_writelane_b32 v{STAMPV}, s{sT2}, {39+len(CNTS)}")
    return f


CNTS = []


def hpoll(stage):
    return spoll(f"L_hf{stage}", hload(stage, True), 16)


def hflag(stage):
    return [lambda a: a.wait_vm(f"HS{stage}"),
            f"buffer_store_dword v{FONE}, v{FREP}, {srd(SWS)}, s{sHF} offen offset:{64*stage} sc1"]


def cfma_pk(dst, m, x, add):
    return [f"v_pk_fma_f32 {vr(dst,2)}, {vr(x,2)}, {vr(m,2)}, {vr(add,2)} op_sel:[0,0,0] op_sel_hi:[1,0,1]",
            f"v_pk_fma_f32 {vr(dst,2)}, {vr(x,2)}, {vr(m,2)}, {vr(dst,2)} op_sel:[1,1,0] op_sel_hi:[0,1,1] neg_lo:[0,1,0]"]


AUX = 112 * KB
sAX = pOUT
sXO = pOUT + 1


def tail(brest):
    RE, IM, FR = X, X + 8, X + 16
    EL = [X + 32 + 2 * n for n in range(8)]
    EA, EB, TW, TR, ER, EW, EQ = X + 48, X + 49, X + 50, X + 51, X + 52, X + 53, X + 56
    eloads = [f"buffer_load_dwordx4 {vr(EQ,4)}, v{EA}, {srd(SE)}, 0 offen sc1"]
    al = a_loads()
    na, qs, qe = min(2 * OPT["pro"], OPT["pro_q"]), OPT["scan_q"], OPT["eload_q"]
    a0, a1 = [int(v) for v in OPT["a_q"].split("/")]

    def quad(qd):
        mem = []
        if qd == 0:
            mem += brest
        if qd == a0:
            mem += [hpoll(0), stamp("H flags")]
        if a0 <= qd < a1:
            for f in range((na * (qd - a0)) // (a1 - a0), (na * (qd - a0 + 1)) // (a1 - a0)):
                mem += al[f]
        if qd == qe:
            mem += eloads
        ps = pack_store(ACA + 8 * (qd >> 1), SWS2, sRA, 1024 * (qd >> 1), "HS2") if qd & 1 else []
        if not OPT["lskip"]:
            r = merge(gelu_packed(ACA + 4 * qd, T + 8), mem) + ps
        else:
            def body(a):
                a.I(f"s_cbranch_vccnz L_q{qd}")
                pos = a.pos
                a.run(gelu_packed(ACA + 4 * qd, T + 8) + ps[:-1])
                a.label(f"L_q{qd}")
            r = mem + [body] + ps[-1:]
        return r + [stamp(f"q{qd}")]

    tl = [f"s_lshl2_add_u32 s{sT0}, s{sW}, s{sR}", f"s_lshl_b32 s{sT0}, s{sT0}, 8", f"s_sub_u32 s{sT0}, s{sT0}, 4096",
          f"v_add_u32 v{EA}, s{sT0}, v{L16}", f"s_lshl_b32 s{sT0}, s{sW}, 10", f"s_add_u32 s{sT0}, s{sT0}, {EIN}",
          f"v_add_u32 v{EW}, s{sT0}, v{L16}", unstash(ER, aEA), unstash(TW, aTW), unstash(TR, aTR)]
    if OPT["lskip"]:
        assert qs == 8
        tl = [f"s_cmp_eq_u32 s{sJJ}, 3\ns_cselect_b64 vcc, -1, 0"] + tl
    for qd in range(qs):
        tl += quad(qd)

    def epoll(a):
        a.need([vr(EQ, 4)])
        a.I(f"s_mov_b32 s{sT2}, 0")
        a.label("L_epoll")
        a.I(f"v_max3_u32 v{EB}, v{EQ}, v{EQ+1}, v{EQ+2}")
        a.I(f"v_max_u32 v{EB}, v{EB}, v{EQ+3}")
        a.I(f"v_cmp_eq_u32 vcc, -1, v{EB}")
        a.I("s_cmp_eq_u64 vcc, 0")
        a.I("s_cbranch_scc1 L_epoll_done")
        save, pos = list(a.vmq), a.pos
        a.I(f"s_add_u32 s{sT2}, s{sT2}, 1")
        a.I(f"s_cmp_ge_u32 s{sT2}, {SPIN_MAX}")
        a.I("s_cbranch_scc1 L_epoll_done")
        a.I(eloads[0], track=False)
        a.wait_vm_all()
        a.I("s_branch L_epoll")
        a.vmq, a.pos = save, pos
        a.label("L_epoll_done")
        if DEBUG and not OPT["rt"]:
            CNTS.append("epoll")
            a.I(f"v_writelane_b32 v{STAMPV}, s{sT2}, {39+len(CNTS)}")
    tl += [epoll, stamp("E seen"), (f"ds_write_b128 v{EW}, {vr(EQ,4)}", "EW")]
    ureg = lambda i: X + 64 + 2 * i
    for i in range(16):
        h, cc = i & 1, vr(PC, 2)
        if i == 6:
            tl += [lambda a: a.wait_lg("EW"), "s_barrier"]
            tl += [f"ds_read_b64 {vr(EL[n],2)}, v{ER} offset:{(14-2*n)*256}" for n in range(7, -1, -1)]
        tl += [f"v_pk_mul_f32 {vr(ureg(i),2)}, {cc}, {vr(ACB+i-h,2)} op_sel:[0,{h}] op_sel_hi:[1,{h}]",
               f"v_pk_fma_f32 {vr(ureg(i),2)}, {cc}, {vr(ACB+16+i-h,2)}, {vr(ureg(i),2)} op_sel:[1,{h},0] op_sel_hi:[0,{h},1] neg_lo:[1,0,0]"]
    tl.append(lambda a: a.need([vr(r, 2) for r in EL]))
    cur = EL[7]
    for n in range(6, -1, -1):
        tl += cfma_pk(EL[n], PA256, cur, EL[n])
        cur = EL[n]
    S, S0, S1 = EL[0], EL[1], EL[2]
    tl += [f"v_pk_mul_f32 {vr(S0,2)}, {vr(S,2)}, {vr(PAH,2)} op_sel:[0,0] op_sel_hi:[1,0]",
           cfma_pk(S0, PAH, S, S0)[1],
           f"v_mov_b32 v{S1}, v{S0}",
           f"v_mov_b32 v{S1+1}, v{S0+1}",
           f"s_add_u32 s{sRB}, s{sHB}, {28*KB}",
           f"v_permlane32_swap_b32 v{S0}, v{S1}",
           f"v_permlane32_swap_b32 v{S0+1}, v{S1+1}",
           f"v_pk_add_f32 {vr(S0,2)}, {vr(S0,2)}, {vr(S1,2)}"]
    tl += cfma_pk(PP, PAS, S0, PP)
    tl += [f"v_pk_mul_f32 {vr(S1,2)}, {vr(PP,2)}, {vr(PC,2)} op_sel:[0,0] op_sel_hi:[1,0]", cfma_pk(S1, PC, PP, S1)[1]]
    prev = S1
    for i in range(16):
        u = ureg(i)
        nb = 2 * OPT["pro"] - na
        for f in range(na + (nb * i) // 16, na + (nb * (i + 1)) // 16):
            tl += al[f]
        tl += cfma_pk(u, PA, prev, u)
        if i & 1:
            tl += [f"v_cvt_pk_bf16_f32 v{RE+(i>>1)}, v{prev}, v{u}",
                   f"v_cvt_pk_bf16_f32 v{IM+(i>>1)}, -v{prev+1}, -v{u+1}"]
        prev = u
        if i in (7, 15):
            hf = i >> 3
            for p, R in enumerate((RE, IM)):
                tl.append(f"ds_write_b128 v{TW}, {vr(R+4*hf,4)} offset:{p*2560+16*hf}")
    for p in range(2):
        for k in range(2):
            for e in range(2):
                tl.append(f"ds_read_b64_tr_b16 {vr(FR+8*p+4*k+2*e,2)}, v{TR} offset:{p*2560+(8*e+4*k)*80}")
    tl.append(stamp("scan done"))
    if OPT["flag2_at"] < 0:
        assert qs == 8
        tl += hflag(2)
    hs = [lambda a: a.need([vr(FR, 16)])]
    hs += [(f"buffer_store_dwordx4 {vr(FR+4*f,4)}, v{L16}, {srd(SWS)}, s{sRB} offen offset:{1024*f} {OPT['hsflags']}", "HS1") for f in range(4)]
    rest = sum((quad(qd) for qd in range(qs, 8)), [])
    cut = min(12, len(rest))
    tl += rest[:cut] + merge(rest[cut:cut + 24], hs) + rest[cut + 24:]
    return tl


RED, RED_SRC, RED_DT, RED_TT = 40 * KB, 8448, 4224, 4 * 8448


def wreg(s, e, dt):
    return ar(16 * s + 8 * e + 4 * dt, 4)


def hreg(f):
    return ar(176 + 4 * ((f + 4) % 20), 4)


def steps():
    l = [(L, s) for s in range(4) for L in range(4)]
    s1, s2 = [7, 8, 9, 10], [4, 5, 6]
    if OPT["scan_q"] == 8:
        s1, s2 = s2, s1
    if OPT["ord"] == 0:
        l += [(L, s) for L in range(4) for s in s1 + s2]
    else:
        l += [(L, s) for s in s1 for L in range(2)] + [(L, s) for L in range(2) for s in s2]
        l += [(L, s) for L in range(2, 4) for s in s1 + s2]
    return l


def p2_index(a):
    I = a.I
    I(f"s_and_b32 s{sN}, s{sJ}, 7")
    I(f"s_lshr_b32 s{sT1}, s{sJ}, 3")
    I(f"s_lshl1_add_u32 s{sI2}, s{sR}, s{sT1}")
    I(f"s_lshr_b32 s{sT0}, s{sW}, 1")
    I(f"s_lshl1_add_u32 s{sG2}, s{sT1}, s{sT0}")
    I(f"s_mul_i32 s{sT0}, s{sG2}, {G_STRIDE//2048}")
    I(f"s_and_b32 s{sT1}, s{sW}, 1")
    I(f"s_add_u32 s{sT0}, s{sT0}, s{sT1}")
    I(f"s_lshl_b32 s{sT0}, s{sT0}, 11")
    I(f"s_mul_i32 s{sA1}, s{sI2}, {2*RT_STRIDE}")
    I(f"s_add_u32 s{sA1}, s{sA1}, s{sT0}")
    I(f"s_xor_b32 s{sA0}, s{sI2}, 1")
    I(f"s_mul_i32 s{sA0}, s{sA0}, {2*RT_STRIDE}")
    I(f"s_add_u32 s{sA0}, s{sA0}, s{sT0}")
    I(f"s_mul_i32 s{sB0}, s{sN}, {2*RT_STRIDE}")
    I(f"s_add_u32 s{sB0}, s{sB0}, s{sT0}")
    I(f"s_add_u32 s{sB0}, s{sB0}, {BW}")
    I(f"s_lshl2_add_u32 s{sXI}, s2, s{sW}")
    I(f"s_lshl_b32 s{sXI}, s{sXI}, 11")
    I(f"s_or_b32 s{sXI}, s{sXI}, {XCH}")
    I(f"s_xor_b32 s{sXS}, s{sXI}, {4*8192}")


def b_loads():
    l = []
    for s in range(11):
        for e in range(2):
            for t in range(2):
                it = []
                if e == 0:
                    it += [f"s_add_u32 s{sP0+t}, s{sB0}, {s*4096 + t*RT_STRIDE}"]
                it.append(f"buffer_load_dwordx4 {wreg(s,e,t)}, v{L16}, {srd(SWS)}, s{sP0+t} offen offset:{e*1024} sc1")
                l.append(it)
    return l


def a_loads():
    l = []
    for n, (L, s) in enumerate(steps()):
        for e in range(2):
            it = []
            if e == 0:
                it += [f"s_add_u32 s{sP0}, s{sA1 if L >= 2 else sA0}, {s*4096 + (L&1)*RT_STRIDE}"]
            it.append(f"buffer_load_dwordx4 {hreg(2*n+e)}, v{L16}, {srd(SWS)}, s{sP0} offen offset:{e*1024} {OPT['aflags']}")
            if OPT["x_abl"] & 16 and L in (0, 2) and s in (0, 7) or OPT["x_abl"] & 32 and L in (0, 2) and s == 4:
                it = ["v_nop"]
            l.append(it)
    return l


def phase2(a):
    I = a.I
    al = a_loads()
    st = steps()
    OA, RA, A1, A2, TA = 192, 193, 194, 195, 196
    DK, BB, DF, BF = 198, 200, 208, 212
    XIN, XV, MN, RS, BASE = 128, 144, 152, 156, 160
    prep = [lambda a: a.wait_vm("AUX"),
            f"v_lshl_add_u32 v{A1}, v{LN}, 3, s{sAX}",
            f"v_lshrrev_b32 v{TA}, 4, v{LN}",
            f"s_and_b32 s{sG}, s{sI2}, 1",
            f"s_lshl3_add_u32 s{sG}, s{sG}, s{sW}",
            f"s_lshl_b32 s{sG}, s{sG}, 5",
            f"v_lshl_add_u32 v{A2}, v{TA}, 2, s{sG}"]
    for n in range(4):
        o = PARK + 128 * (n >> 1) + 16 * (n & 1)
        prep += [f"ds_read_b64 {vr(XV+2*n,2)}, v{A1} offset:{512*n}",
                 f"ds_read_b32 v{RS+n}, v{A2} offset:{o}",
                 f"ds_read_b32 v{MN+n}, v{A2} offset:{o+512}"]
    prep += [f"v_and_b32 v{OA}, 15, v{LN}",
             f"v_lshl_add_u32 v{A1}, v{OA}, 3, s{sAX}",
             f"ds_read_b64 {vr(DK,2)}, v{A1} offset:2048",
             f"ds_read_b64 {vr(BB,2)}, v{A1} offset:{2048+128}",
             f"v_and_b32 v{RA}, 3, v{LN}",
             f"v_lshlrev_b32 v{RA}, 5, v{RA}",
             f"v_bfe_u32 v{A2}, v{LN}, 2, 1",
             f"v_lshl_or_b32 v{RA}, v{A2}, 4, v{RA}",
             f"v_lshl_or_b32 v{RA}, v{TA}, 8, v{RA}",
             f"v_bfe_u32 v{A2}, v{LN}, 3, 1",
             f"v_mul_u32_u24 v{A2}, {RED_DT}, v{A2}",
             f"s_and_b32 s{sG}, s{sW}, 1",
             f"s_lshr_b32 s{sJJ}, s{sW}, 1",
             f"s_lshl4_add_u32 s{sG}, s{sG}, s{sJJ}",
             f"s_lshl_b32 s{sG}, s{sG}, 7",
             f"s_add_u32 s{sG}, s{sG}, {RED}",
             f"v_add3_u32 v{RA}, v{RA}, v{A2}, s{sG}",
             f"v_lshlrev_b32 v{OA}, 4, v{OA}",
             f"v_lshl_or_b32 v{OA}, v{TA}, 11, v{OA}",
             f"s_lshl_b32 s{sXO}, s{sXO}, 1",
             f"s_mul_i32 s{sG}, s{sW}, {RED_SRC}"]
    prep2 = [lambda a: a.need([vr(DK, 4), vr(XV, 16)])]
    for h in range(2):
        prep2 += [f"v_lshlrev_b32 v{DF+2*h}, 16, v{DK+h}", f"v_and_b32 v{DF+2*h+1}, 0xffff0000, v{DK+h}",
                  f"v_lshlrev_b32 v{BF+2*h}, 16, v{BB+h}", f"v_and_b32 v{BF+2*h+1}, 0xffff0000, v{BB+h}"]
    for n in range(4):
        for c in range(4):
            b = BASE + 4 * n + c
            src = XV + 2 * n + (c >> 1)
            prep2 += [f"v_lshlrev_b32 v{b}, 16, v{src}" if c % 2 == 0 else f"v_and_b32 v{b}, 0xffff0000, v{src}",
                      f"v_sub_f32 v{TA}, v{b}, v{MN+n}",
                      f"v_mul_f32 v{TA}, v{TA}, v{RS+n}",
                      f"v_add_f32 v{b}, v{b}, v{BF+c}",
                      f"v_fmac_f32 v{b}, v{TA}, v{DF+c}"]

    def add4(x, y, packed):
        if packed:
            return [f"v_pk_add_f32 {vr(x+h,2)}, {vr(x+h,2)}, {vr(y+h,2)}" for h in (0, 2)]
        return [f"v_add_f32 v{x+c}, v{x+c}, v{y+c}" for c in range(4)]

    def reduce(L, packed):
        acc, tt = 32 * L, L & 1
        w = [f"s_add_u32 m0, s{sG}, {RED_TT*tt}"]
        for dt in range(2):
            for i in range(16):
                w.append((f"ds_write_addtid_b32 v{acc+16*dt+i} offset:{RED+dt*RED_DT+i*256}", "RW"))
        r = [lambda a: a.wait_lg("RW"), "s_barrier"]
        for it in range(2):
            for q in range(4):
                r.append(f"ds_read_b128 {vr(acc+16*it+4*q,4)}, v{RA} offset:{RED_TT*tt+q*RED_SRC+it*1024}")
        e = []
        for it in range(2):
            p = acc + 16 * it
            e.append(lambda a, p=p: a.need([vr(p, 16)]))
            if L < 2:
                e += add4(p, p + 4, packed) + add4(p + 8, p + 12, packed) + add4(p, p + 8, packed)
                e += [f"v_cvt_pk_bf16_f32 v{acc+4+2*it+h}, v{p+2*h}, v{p+2*h+1}" for h in range(2)]
                if it and not OPT["x_abl"] & 8:
                    e.append(f"buffer_store_dwordx4 {vr(acc+4,4)}, v{L16}, {srd(SWS)}, s{sXS} offen offset:{1024*tt} sc1")
            else:
                b = BASE + 8 * tt + 4 * it
                e += add4(p, p + 4, packed) + add4(p + 8, p + 12, packed) + add4(b, p, packed) + add4(b, p + 8, packed)
        return w, r, e

    def xin(tt):
        if OPT["x_abl"] & 8:
            return [f"v_mov_b32 v{XIN+4*tt+k}, 0" for k in range(4)]
        return [f"buffer_load_dwordx4 {vr(XIN+4*tt,4)}, v{L16}, {srd(SWS)}, s{sXI} offen offset:{1024*tt} sc1"]

    def xcheck(tt):
        def f(a):
            x, name = XIN + 4 * tt, f"L_xc{tt}"
            a.need([vr(x, 4)])
            a.I(f"s_mov_b32 s{sT2}, 0")
            a.label(name)
            a.I(f"v_max3_u32 v{TA}, v{x}, v{x+1}, v{x+2}")
            a.I(f"v_max_u32 v{TA}, v{TA}, v{x+3}")
            a.I(f"v_cmp_eq_u32 vcc, -1, v{TA}")
            a.I(f"s_cmp_eq_u64 vcc, 0")
            a.I(f"s_cbranch_scc1 {name}_done")
            save, pos = list(a.vmq), a.pos
            a.I(f"s_add_u32 s{sT2}, s{sT2}, 1")
            a.I(f"s_cmp_ge_u32 s{sT2}, {SPIN_MAX}")
            a.I(f"s_cbranch_scc1 {name}_done")
            for l in xin(tt):
                a.I(l, track=False)
            a.wait_vm_all()
            a.I(f"s_branch {name}")
            a.vmq, a.pos = save, pos
            a.label(name + "_done")
            if DEBUG and not OPT["rt"]:
                CNTS.append(name)
                a.I(f"v_writelane_b32 v{STAMPV}, s{sT2}, {39+len(CNTS)}")
        return f

    def final(tt, packed=True):
        e = [xcheck(tt)]
        for it in range(2):
            b = BASE + 8 * tt + 4 * it
            x, u = XIN + 4 * tt + 2 * it, XIN + 8
            for h in range(2):
                e += [f"v_lshlrev_b32 v{u+2*h}, 16, v{x+h}", f"v_and_b32 v{u+2*h+1}, 0xffff0000, v{x+h}"]
            e += [f"s_add_u32 s{sJJ}, s{sXO}, {(32*tt+4*it)*2048}"] + add4(b, u, packed)
            e.append(f"buffer_store_dwordx4 {vr(b,4)}, v{OA}, {srd(SOUT)}, s{sJJ} offen {OPT['outflags']}")
        return e

    first = {1: min(n for n, (L, s) in enumerate(st) if s >= 7), 2: min(n for n, (L, s) in enumerate(st) if 4 <= s < 7)}
    done = [max(n for n, (L, s) in enumerate(st) if L == q) + 1 for q in range(4)]
    gate = {k: v - OPT["look"] for k, v in first.items()}
    issue, t, cnt = {}, 0, 0
    for f in range(2 * OPT["pro"], 88):
        m = f // 2
        lo = max([m - OPT["far"], 0] + [gate[k] for k in first if m >= first[k]])
        if lo > t:
            t, cnt = lo, 0
        if cnt >= OPT["rate"]:
            t, cnt = t + 1, 0
        assert t < m and OPT["far"] <= 9
        issue.setdefault(t, []).append(f)
        cnt += 1
    main = []
    for n, (L, s) in enumerate(st):
        ms = []
        for e in range(2):
            for dt in range(2):
                D = vr(32 * L + 16 * dt, 16)
                ms.append(f"v_mfma_f32_32x32x16_bf16 {D}, {hreg(2*n+e)}, {wreg(s,e,dt)}, {D if s or e else '0'}")
        regs = [hreg(2 * n), hreg(2 * n + 1), ar(16 * s, 16)]
        g0 = [lambda a, regs=regs: a.need(regs)]
        if n == 0 or OPT['only']:
            g0.append(stamp(f"k{n}"))
        g0.append(ms[0])
        g1, g2, g3 = [ms[1]], [ms[2]], [ms[3]]
        for stage in (1, 2):
            if n == gate[stage]:
                g0.append(hpoll(stage))
        for stage in (1, 2):
            lead = OPT["plead"] if gate[stage] == min(gate.values()) else min(OPT["plead"], abs(gate[2] - gate[1]))
            if n + lead == gate[stage]:
                g1.append(hload(stage))
        if n == max(gate.values()):
            g1.append(XLOAD)
        if n == max(gate.values()) + 7:
            g1.append(spoll("L_xr", XLOAD, 1))
        ld = issue.get(n, [])
        for j, f in enumerate(ld):
            (g0, g2, g1, g3)[j if len(ld) <= 2 else (0, 2, 1, 3)[j]].extend(al[f])
        if n == OPT["flag2_at"]:
            g1 += hflag(2)
        if n == OPT["flag1_at"]:
            g1 += hflag(1)
        main += [g0, g1, g2, g3]
    plans = [(prep, 2, 14), (prep2, 16, 4 * done[0])]
    for L in range(3):
        rw, rs1, rr, rs2, re = [int(v) for v in (OPT["red"].split(",") * 3)[L].split("/")]
        w, r, e = reduce(L, False)
        g = 4 * done[L] + 2
        plans += [(w, g, g + rw), (r, g + rw + rs1, g + rw + rs1 + rr)]
        g += rw + rs1 + rr + rs2
        plans.append((e, g, min(g + re, 176)))
    assert 4 * (max(gate.values()) + 8) <= min(OPT["xin0"], OPT["xin1"]) and OPT["xin0"] < OPT["fin0"] and g + re <= OPT["fin0"]
    plans.append(([xin(0)], OPT["xin0"], OPT["xin0"] + 1, 1))
    plans.append(([xin(1)], OPT["xin1"], OPT["xin1"] + 1, 1))
    inloop = OPT["fin0"] < 176
    if inloop:
        plans.append((final(0, False), OPT["fin0"], 176))
    if OPT["x_p2"] & 1:
        txt = lambda it: (it[0] if isinstance(it, tuple) else it) if not callable(it) and not isinstance(it, list) else ""
        plans = [([it for it in p[0] if not txt(it).startswith("s_barrier")],) + tuple(p[1:]) for p in plans]
    if OPT["x_p2"] & 2:
        txt = lambda it: (it[0] if isinstance(it, tuple) else it) if not callable(it) and not isinstance(it, list) else ""
        plans = [([it for it in p[0] if not txt(it).startswith("ds_write")],) + tuple(p[1:]) for p in plans]
    for g in spread(main, plans):
        a.run(g)
    I(stamp("mfma done"))
    w, r, e = reduce(3, True)
    a.run(w + ([] if inloop else final(0)) + r)
    I(stamp("fin0"))
    a.run(e + final(1))
    I(stamp("out issued"))
    if DEBUG:
        a.wait_vm_all()
    I(stamp("out done"))


import os
HEADER = open(os.path.dirname(os.path.abspath(__file__)) + "/header.txt").read()


DOC = '''; out = x + S5(LN x) + MLP(LN LN x), one persistent launch, 256 workgroups (one per CU) of 4 waves.
; Generated by my own script (gen/gen.py): straight-line code, waits and wait states inserted per register.
;
;   x goes LDS-DMA -> MFMA fragments in registers; row sum / sum of squares with v_dot2; x - mean is formed in
;   fp32 (4x4 identity MFMA) and rounded to bf16; 1/std is applied after the GEMMs.  The second layer norm of
;   The S5 recurrence is an exact chunked scan: 16-step segments per lane, 8 segments per workgroup through LDS,
;   re-laid into fragment order once (spread over all workgroups) and sit in registers.  Waves are summed through
; Hand-offs: write-through (sc1) stores, drained, then a flag word; or words that are marked empty first.  Flag
;   words are reset at the start of the launch, which d_debug announces.  Every spin is bounded.  Nothing depends
'''


def kd(name):
    return f""".amdhsa_kernel {name}
  .amdhsa_next_free_vgpr 512
  .amdhsa_next_free_sgpr 102
  .amdhsa_accum_offset 256
  .amdhsa_group_segment_fixed_size 0
  .amdhsa_float_denorm_mode_32 3
  .amdhsa_kernarg_size 136
  .amdhsa_user_sgpr_count 2
  .amdhsa_user_sgpr_kernarg_segment_ptr 1
  .amdhsa_system_sgpr_workgroup_id_x 1
.end_amdhsa_kernel
"""


OPT = dict(only='', x_drop='', pre=0, pre_pairs=2, par_n=4, rt=0, x_p2=0, x_nostore=0, spin=0, hsflags='sc1', aflags='sc1', outflags='sc1', hglc=1,
           rotmask=7, x_first=2, x_second=2, x_third=2, x_fourth=2, w_loop=2, init_at=-1, gost_at=3,
           sch='gold:4,W:-2:5,go:25,R:7:12,H2:14:28,pick:34,RS:36:47,H3:30:44,H4:48:62,H5:76:90,XP:72:75,bflag:66,xr:96,bpoll:90,bchk:107,B:108:190,f0:150,hl0:176',
           b2=44, x_abl=0, c_rate=1, lskip=1, g1_pk=0, e_win=6, e_len=10, scan_q=8, eload_q=2, a_q='1/8', flag1_at=7, flag2_at=-1,
           la=2, wp=1, pro=8, pro_q=12, far=9, rate=2, look=5, plead=3, ord=1, red='8/2/2/2/3,6/2/2/2/5,5/2/2/2/5', xin0=146, xin1=160, fin0=167)


def build():
    a = Asm()
    k1 = NAME + "_kernel"
    a.raw(HEADER.rstrip())
    a.raw("; @launch grid=(256,1,1) block=(256,1,1) lds=163840")
    a.raw(DOC.rstrip())
    a.raw('.amdgcn_target "amdgcn-amd-amdhsa--gfx950"\n.text')
    a.raw(f".globl {k1}\n.p2align 8\n.type {k1},@function\n{k1}:")
    a.I("s_cmp_ge_u32 s2, 256")
    a.I("s_cbranch_scc1 L_end")
    if DEBUG:
        a.I("s_memrealtime s[86:87]")
    phase1(a, k1)
    phase2(a)
    if OPT["spin"]:
        a.I("s_cmp_lg_u32 s2, 100\ns_cbranch_scc1 L_end")
        a.I(f"s_cmp_lg_u32 s{sW}, 3\ns_cbranch_scc1 L_end")
        a.I("s_mov_b32 s4, 0")
        a.label("L_spin")
        a.I("s_memrealtime s[6:7]")
        a.wait_lg_all()
        a.I("s_sub_u32 s6, s6, s70\ns_add_u32 s4, s4, 1\ns_cmp_ge_u32 s4, 20000\ns_cbranch_scc1 L_end\ns_cmp_lt_u32 s6, 6000\ns_cbranch_scc1 L_spin")
    stamp_flush(a, 0)
    a.label("L_end")
    a.I("s_endpgm")
    a.raw('.section .rodata,"a"\n.p2align 6')
    a.raw(kd(k1))
    print(f"instructions: {a.count}, nops {a.nops}", file=sys.stderr)
    return a.text()


if __name__ == "__main__":
    out = sys.argv[1] if len(sys.argv) > 1 else f"cdna_kernels/{NAME}.s"
    DEBUG = "-d" in sys.argv
    for arg in sys.argv[2:]:
        if "=" in arg:
            k, v = arg.split("=", 1)
            OPT[k] = type(OPT[k])(v)
    txt = build()
    if DEBUG:
        txt += "; STAMPS " + ",".join(STAMPS) + "\n; CNTS " + ",".join(CNTS) + "\n"
    open(out, "w").write(txt)
```

```python
import sys
def add_probe(src, a_off, b_off, mul_num, shift):
    DBG=15<<20
    z=DBG+62*4
    body=f""".globl probe_kernel
.p2align 8
.type probe_kernel,@function
probe_kernel:
    s_cmp_ge_u32 s2, 1
    s_cbranch_scc1 L_pend
    s_load_dwordx2 s[4:5], s[0:1], 128
    s_waitcnt lgkmcnt(0)
    s_add_u32 s6, s4, {z}
    s_addc_u32 s7, s5, 0
    s_load_dword s12, s[6:7], 0
    s_add_u32 s8, s4, {DBG+a_off}
    s_addc_u32 s9, s5, 0
    s_load_dword s13, s[8:9], 0
    s_add_u32 s10, s4, {DBG+b_off}
    s_addc_u32 s11, s5, 0
    s_load_dword s14, s[10:11], 0
    s_waitcnt lgkmcnt(0)
    s_sub_u32 s13, s13, s14
    s_mul_i32 s13, s13, {mul_num}
    s_lshr_b32 s13, s13, {shift}
    s_min_u32 s13, s13, 20000
    s_add_u32 s13, s13, 6000
    s_mov_b32 s15, 0
L_pspin:
    s_memrealtime s[16:17]
    s_waitcnt lgkmcnt(0)
    s_sub_u32 s16, s16, s12
    s_add_u32 s15, s15, 1
    s_cmp_ge_u32 s15, 20000
    s_cbranch_scc1 L_pend
    s_cmp_lt_u32 s16, s13
    s_cbranch_scc1 L_pspin
L_pend:
    s_endpgm
"""
    kd=""".p2align 6
.amdhsa_kernel probe_kernel
  .amdhsa_next_free_vgpr 8
  .amdhsa_next_free_sgpr 24
  .amdhsa_accum_offset 8
  .amdhsa_group_segment_fixed_size 0
  .amdhsa_kernarg_size 136
  .amdhsa_user_sgpr_count 2
  .amdhsa_user_sgpr_kernarg_segment_ptr 1
  .amdhsa_system_sgpr_workgroup_id_x 1
.end_amdhsa_kernel
"""
    lines=src.split("\n")
    last=max(i for i,l in enumerate(lines) if l.startswith("; @launch"))
    if "kernel=" not in lines[last]:
        lines[last]=lines[last].replace("@launch ","@launch kernel=parallel_sum__ssm_conv_s5__mixer_channel_mlp__prompt_kernel ")
    lines.insert(last+1,"; @launch kernel=probe_kernel grid=(1,1,1) block=(64,1,1) lds=0")
    t="\n".join(lines)
    return t.replace('.section .rodata,"a"', body+'.section .rodata,"a"')+kd
if __name__=="__main__":
    src=open(sys.argv[1]).read()
    names=[l for l in src.split("\n") if l.startswith("; STAMPS")][0][9:].split(",")
    wg=int(sys.argv[2])
    def loc(n):
        if n[0]=="@":
            k,l=n[1:].split(":"); return int(k)*256*1024+wg*1024+int(l)*4
        if n[0]=="#":
            nm,_,w=n[1:].partition("/"); return (int(w) if w else wg)*1024+(32+names.index(nm))*4
        i=names.index(n); k=names[:i].count("|"); return k*256*1024+wg*1024+i*4
    for i,spec in enumerate(sys.argv[3:]):
        a,b=spec.split("-")
        if a[0] in "@#": t=add_probe(src,loc(a),loc(b),1,0)
        else: t=add_probe(src,loc(a),loc(b),6554*int(__import__('os').environ.get('MUL','1')),16)
        open(f"p{i}.s","w").write(t)
```

```python
import sys
from probe import add_probe
def body(mode, mul, off=0):
    DBG=(15+off)<<20
    l=[".globl probe_kernel",".p2align 8",".type probe_kernel,@function","probe_kernel:",
       "s_cmp_ge_u32 s2, 1","s_cbranch_scc1 L_pend","s_load_dwordx2 s[4:5], s[0:1], 128","s_waitcnt lgkmcnt(0)",
       f"s_add_u32 s6, s4, {DBG}","s_addc_u32 s7, s5, 0","s_load_dword s12, s[6:7], 244","v_lshlrev_b32 v1, 12, v0"]
    for i in range(16):
        l+=[f"global_load_dword v{8+i}, v1, s[6:7] offset:{i*256+244}", f"global_load_dword v{24+i}, v1, s[6:7] offset:{i*256+252}"]
    l+=["s_waitcnt vmcnt(0) lgkmcnt(0)"]
    for i in range(32): l.append(f"v_subrev_u32 v{8+i}, s12, v{8+i}")
    l+=["v_mov_b32 v2, v8","v_mov_b32 v3, v8","v_mov_b32 v4, v24"]
    for i in range(1,16): l+=[f"v_max_i32 v2, v2, v{8+i}",f"v_min_i32 v3, v3, v{8+i}",f"v_max_i32 v4, v4, v{24+i}"]
    l+=["s_nop 1","v_readlane_b32 s16, v2, 0","v_readlane_b32 s17, v3, 0","v_readlane_b32 s18, v4, 0"]
    for i in range(1,64):
        l+=[f"v_readlane_b32 s19, v2, {i}",f"v_readlane_b32 s20, v3, {i}",f"v_readlane_b32 s21, v4, {i}","s_nop 1","s_max_i32 s16, s16, s19","s_min_i32 s17, s17, s20","s_max_i32 s18, s18, s21"]
    l+=[["s_sub_u32 s13, s18, s16","s_sub_u32 s13, s16, s17","s_sub_u32 s13, s18, s17"][mode],
        f"s_mul_i32 s13, s13, {mul}","s_min_u32 s13, s13, 30000","s_add_u32 s13, s13, 4000","s_add_u32 s12, s12, s17","s_mov_b32 s15, 0",
        "L_pspin:","s_memrealtime s[16:17]","s_waitcnt lgkmcnt(0)","s_sub_u32 s16, s16, s12","s_add_u32 s15, s15, 1","s_cmp_ge_u32 s15, 40000",
        "s_cbranch_scc1 L_pend","s_cmp_lt_u32 s16, s13","s_cbranch_scc1 L_pspin","L_pend:","s_endpgm",""]
    return "\n".join(l)
def make(src,mode,mul,off=0):
    t=add_probe(src,0,0,1,0)
    i0=t.index(".globl probe_kernel"); i1=t.index('.section .rodata,"a"')
    t=t[:i0]+body(mode,mul,off)+t[i1:]
    return t.replace(".amdhsa_next_free_vgpr 8\n",".amdhsa_next_free_vgpr 48\n").replace(".amdhsa_accum_offset 8\n",".amdhsa_accum_offset 48\n")
if __name__=="__main__":
    for i,spec in enumerate(sys.argv[1:]):
        f,m,off=(spec.split(":")+["0","0"])[:3]
        open(f"p{i}.s","w").write(make(open(f).read(),int(m),10,int(off)))
```

```python
import sys, math, struct
from asmlib import Asm, TRANS

NAME = "parallel_sum__ssm_conv_s5__mixer_channel_mlp__prompt"
KB = 1024
RT_STRIDE = 176 * KB
G_STRIDE = 44 * KB
HID = 0
BW = 64 * RT_STRIDE
EOFF = BW + 16 * RT_STRIDE
HFLAG = EOFF + 64 * KB
XFLAG = HFLAG + 64 * KB
BFLAG = XFLAG + 32 * KB
XCH = 16 * 1024 * KB
WS_END = XCH + 2048 * KB
SPIN_MAX = 100000

H = [0, 32 * KB, 64 * KB, 96 * KB, 128 * KB, 0]
PARK = H[1]
ETAB = H[1] + 1 * KB
EIN = 108 * KB
TRB = H[4]


def f32(x):
    return "0x%08x" % struct.unpack("<I", struct.pack("<f", x))[0]


pX, pLRE, pLIM, pBRE, pBIM, pCRE, pCIM, pLDT = [4 + 2 * i for i in range(8)]
pDSK, pBX, pW1, pB1, pW2, pB2, pOUT, pDBG = [20 + 2 * i for i in range(8)]
pWS = 36
SX, SBR, SBI, SW1, SR, SWS, SWS2, SW1B, SRS, SOUT, SDBG, SE = [40 + 4 * i for i in range(12)]
sW, sR, sJ, sJJ, sG, sROT, sT0, sT1, sT2, sRA, sRB, sHB, sONE, sFL = range(88, 102)
sXB = 38
sUB = 39
sWL = 3
sA1, sXF, sHP, sXP, sXI, sXS = 6, 7, 8, 10, 12, 13
sI2, sN, sB0, sA0, sG2, sP0, sP1 = 15, 16, 17, 18, 19, 24, 25
sCS, sCM0, sCM1 = 26, 27, 28
sHF = 29
sIW, sIL = 34, 35
sRS = 1
sINI = 0


def srd(n):
    return f"s[{n}:{n+3}]"


def sp(n):
    return f"s[{n}:{n+1}]"


def vr(n, c=1):
    return f"v{n}" if c == 1 else f"v[{n}:{n+c-1}]"


def ar(n, c=1):
    return f"a{n}" if c == 1 else f"a[{n}:{n+c-1}]"


X = 0
ACA, ACB = 128, 160
VQ, VW, RDS, RDT = 192, 196, 200, 204
L16 = 206
MEAN, RSTD, IR2, K0, K1 = 207, 208, 209, 210, 211
PA, PC, PA16, PAS, PAH, PA256, PP = 212, 214, 216, 218, 220, 222, 224
BIA = 226
KEEP = 238
T = 242
STASH = 176
aTW, aTR, aXD, aAA, aES, aEA, aARS, aARW, aAET = 176, 177, 178, 179, 181, 182, 183, 184, 185
STG = 192


DEBUG = False
STAMPV = T + 3
STAMPS = []
DBGOFF = 15 * 1024 * KB


def stamp(name):
    def f(a):
        if not DEBUG:
            return
        if OPT["only"] and name not in ("start", "out done") and name not in OPT["only"].split(","):
            return
        n = len(STAMPS)
        STAMPS.append(name)
        if name.endswith("start") and name[0] in "sk":
            a.I("s_memrealtime s[22:23]")
            a.wait_lg_all()
            a.I(f"v_writelane_b32 v{STAMPV}, s22, 62")
            a.I(f"v_writelane_b32 v{STAMPV}, s86, 61")
        a.I("s_memtime s[22:23]")
        a.wait_lg_all()
        a.I(f"v_writelane_b32 v{STAMPV}, s22, {n}")
        if OPT["rt"]:
            a.I("s_memrealtime s[22:23]")
            a.wait_lg_all()
            a.I(f"v_writelane_b32 v{STAMPV}, s22, {32+n}")
    return f


def stamp_flush(a, which):
    if not DEBUG:
        return
    a.I("s_memrealtime s[22:23]")
    a.wait_lg_all()
    a.I(f"v_writelane_b32 v{STAMPV}, s22, 63")
    a.I(f"s_lshl_b32 s22, s2, 2\ns_add_u32 s22, s22, s{sW}\ns_lshl_b32 s22, s22, 8\ns_add_u32 s22, s22, {DBGOFF + which*256*KB}")
    a.I(f"v_mbcnt_lo_u32_b32 v0, -1, 0\nv_mbcnt_hi_u32_b32 v0, -1, v0\nv_lshlrev_b32 v0, 2, v0")
    a.I(f"buffer_store_dword v{STAMPV}, v0, {srd(SWS)}, s22 offen")


def mk_srd(a, n, ptr, size):
    a.I(f"s_mov_b64 s[{n}:{n+1}], s[{ptr}:{ptr+1}]")
    a.I(f"s_mov_b32 s{n+2}, {size}")
    a.I(f"s_mov_b32 s{n+3}, 0x20000")


def load_kernargs(a):
    a.I("s_load_dwordx16 s[4:19], s[0:1], 0")
    a.I("s_load_dwordx16 s[20:35], s[0:1], 64")
    a.I("s_load_dwordx2 s[36:37], s[0:1], 128")


def dma4(vbase, s, soff, m0expr, tag):
    it = list(m0expr)
    for q in range(4):
        it.append((f"buffer_load_dwordx4 v{vbase+q}, {srd(s)}, s{soff} offen offset:{q*1024} lds", tag))
    return it


def stage_regs(n):
    return [ar(STG + 16 * (n & 3), 16)]


def frag_reads(n):
    u, d = divmod(n, 16)
    it = []
    for s in range(2):
        k = 2 * d + s
        base = STG + 16 * (n & 3) + 8 * s
        if u == 1:
            for part in range(2):
                it.append(f"ds_read_b128 {ar(base+4*part,4)}, v{RDS+(k&3)} offset:{(k>>2)*8192+part*4096}")
        else:
            kk = k if u == 0 else (k & 15)
            for t in range(2):
                for e in range(2):
                    it.append(f"ds_read_b64_tr_b16 {ar(base+4*t+2*e,2)}, v{RDT+t} offset:{kk*2048+e*512}")
    return it


def mfmas(n):
    u, d = divmod(n, 16)
    res = []
    for s in range(2):
        k = 2 * d + s
        base = STG + 16 * (n & 3) + 8 * s
        for t in range(2):
            D = vr((ACA, ACB, ACA)[u] + 16 * t, 16)
            c = D if k else "0"
            bias = f"v_mfma_f32_32x32x16_bf16 {D}, {vr(BIA+u,4)}, {vr(BIA+4+4*t,4)}, {c}"
            g = []
            if u == 1:
                g.append(f"v_mfma_f32_32x32x16_bf16 {D}, {vr(X+4*k,4)}, {ar(base+4*t,4)}, {c}")
            else:
                if u == 2 and k == 0:
                    g.append(bias)
                    c = D
                g.append(f"v_mfma_f32_32x32x16_bf16 {D}, {ar(base+4*t,4)}, {vr(X+4*k,4)}, {c}")
                if u == 0 and k == 31:
                    g.append(bias)
            res.append(g)
    return res


LN, HH, RHO = T, T + 6, T + 7


def cpow(dst, nreg_or_const, zr, zv, t0, t1):
    it = []
    n = nreg_or_const
    if n == 1:
        it += [f"v_exp_f32 v{t0}, v{zr}", f"v_fract_f32 v{t1}, v{zv}"]
    else:
        src = n if isinstance(n, str) else f32(float(n))
        it += [f"v_mul_f32 v{t0}, {src}, v{zr}", f"v_mul_f32 v{t1}, {src}, v{zv}",
               f"v_exp_f32 v{t0}, v{t0}", f"v_fract_f32 v{t1}, v{t1}"]
    it += [f"v_cos_f32 v{dst}, v{t1}", f"v_sin_f32 v{dst+1}, v{t1}",
           f"v_mul_f32 v{dst}, v{dst}, v{t0}", f"v_mul_f32 v{dst+1}, v{dst+1}, v{t0}"]
    return it


def fill_u0():
    it = []
    A0, A1, A2, A3 = [ACB + 8 + i for i in range(4)]
    EPS = f32(1e-5)
    k0 = -2.0 * math.log2(math.e) * math.sqrt(2.0 / math.pi)
    k1 = k0 * 0.044715
    it += [f"v_mov_b32 v{A0}, v{RSTD}",
           f"v_mul_f32 v{MEAN}, {f32(1/512)}, v{MEAN}",
           f"v_permlane32_swap_b32 v{A0}, v{RSTD}",
           f"v_add_f32 v{RSTD}, v{A0}, v{RSTD}",
           f"v_mul_f32 v{A0}, {f32(1/512)}, v{RSTD}",
           f"v_fma_f32 v{A0}, -v{MEAN}, v{MEAN}, v{A0}",
           f"v_max_f32 v{A0}, 0, v{A0}",
           f"v_add_f32 v{A1}, {EPS}, v{A0}",
           f"v_cvt_pk_bf16_f32 v{A2}, v{A0}, v{A0}",
           f"v_lshlrev_b32 v{A2}, 16, v{A2}",
           f"v_add_f32 v{A2}, {EPS}, v{A2}",
           f"v_cvt_pk_bf16_f32 v{A2}, v{A2}, v{A2}",
           f"v_lshlrev_b32 v{A2}, 16, v{A2}",
           f"v_sqrt_f32 v{A2}, v{A2}",
           f"v_fmac_f32 v{A0}, {EPS}, v{A1}",
           f"v_cvt_pk_bf16_f32 v{A2}, v{A2}, v{A2}",
           f"v_lshlrev_b32 v{A2}, 16, v{A2}",
           f"v_rcp_f32 v{RSTD}, v{A2}",
           f"v_rsq_f32 v{A2}, v{A0}",
           f"v_sqrt_f32 v{IR2}, v{A0}",
           f"v_mul_f32 v{K0}, {f32(k0)}, v{A2}",
           f"v_mul_f32 v{A3}, v{A2}, v{A2}",
           f"v_mul_f32 v{A3}, {f32(0.044715)}, v{A3}",
           f"v_mul_f32 v{K1}, v{K0}, v{A3}",
           f"v_cvt_pk_bf16_f32 v{A2}, v{IR2}, v{IR2}",
           f"v_and_b32 v{A3}, 0xffff0000, v{A2}",
           f"v_sub_f32 v{A3}, v{IR2}, v{A3}",
           f"v_cvt_pk_bf16_f32 v{A2}, v{IR2}, v{A3}",
           f"v_mul_lo_u32 v{BIA+8}, v{A2}, v{HH}",
           f"v_sub_u32 v{BIA+4}, v{A2}, v{BIA+8}"]
    return it


def ssm_params():
    it = []
    A0, A1, A2, A3 = [ACB + 8 + i for i in range(4)]
    for k in range(2):
        it.append(f"v_lshl_or_b32 v{BIA+2*k}, v{BIA+2*k}, 16, v{BIA+2*k}")
    LR, LI, ZR, ZV = [ACB + 12 + i for i in range(4)]
    it += [f"v_lshlrev_b32 v{LR}, 16, v{PA}",
           f"v_lshlrev_b32 v{LI}, 16, v{PA+1}",
           f"v_lshlrev_b32 v{A0}, 16, v{PC}",
           f"v_mul_f32 v{A0}, {f32(math.log2(math.e))}, v{A0}",
           f"v_exp_f32 v{A0}, v{A0}",
           f"v_cvt_f32_u32 v{A2}, v{HH}",
           f"v_cvt_pk_bf16_f32 v{A0}, v{A0}, v{A0}",
           f"v_and_b32 v{A0}, 0xffff0000, v{A0}",
           f"v_mul_f32 v{ZR}, v{A0}, v{LR}",
           f"v_mul_f32 v{ZV}, v{A0}, v{LI}",
           f"v_mul_f32 v{ZR}, {f32(math.log2(math.e))}, v{ZR}",
           f"v_mul_f32 v{ZV}, 0.15915494, v{ZV}"]
    it += cpow(PA, 1, ZR, ZV, A0, A1)
    it += cpow(PA16, 16, ZR, ZV, A0, A1)
    it += cpow(PA256, 256, ZR, ZV, A0, A1)
    it += [f"v_mul_f32 v{A3}, {f32(128.0)}, v{A2}"]
    it += cpow(PAH, f"v{A3}", ZR, ZV, A0, A1)
    it += [f"s_lshl_b32 s{sROT}, s{sW}, 1",
           f"v_add_u32 v{A3}, s{sROT}, v{HH}",
           f"v_cvt_f32_u32 v{A3}, v{A3}",
           f"v_mul_f32 v{A3}, {f32(16.0)}, v{A3}"]
    it += cpow(PAS, f"v{A3}", ZR, ZV, A0, A1)
    it += [f"v_mul_f32 v{A0}, v{LR}, v{LR}",
           f"v_fmac_f32 v{A0}, v{LI}, v{LI}",
           f"v_rcp_f32 v{A0}, v{A0}",
           f"v_add_f32 v{A1}, -1.0, v{PA}",
           f"v_mul_f32 v{A2}, v{A1}, v{LR}",
           f"v_fmac_f32 v{A2}, v{PA+1}, v{LI}",
           f"v_mul_f32 v{A3}, v{PA+1}, v{LR}",
           f"v_fma_f32 v{A3}, -v{A1}, v{LI}, v{A3}",
           f"v_add_f32 v{A0}, v{A0}, v{A0}",
           f"v_mul_f32 v{PC}, v{A2}, v{A0}",
           f"v_mul_f32 v{PC+1}, v{A3}, v{A0}"]
    return it


def xready():
    return [lambda a: a.wait_vm("XP"), f"buffer_store_dword v{FONE}, v{FZERO}, {srd(SWS)}, s{sXF} offen sc1"]


ARS, AET, ARW = VQ + 1, VQ + 2, VQ + 3
E0 = T + 4


def unstash(dst, src):
    return f"v_accvgpr_read_b32 v{dst}, a{src}"


def fill_u1():
    it, rest = [], []
    tmp = [T + 10 + i for i in range(4)]
    for qd in range(8):
        l = it if qd < 8 - OPT["g1_pk"] else rest
        l += gelu_plain([ACA + 4 * qd + i for i in range(4)], tmp) if l is it else gelu_packed(ACA + 4 * qd, T + 10)
        if qd & 1:
            l += pack_store(ACA + 8 * (qd >> 1), SWS, sHB, 1024 * (qd >> 1), "HS0")
    return it, rest


def stats_to_lds():
    Z = T + 8
    return [unstash(ARW, aARW), unstash(AET, aAET), unstash(ARS, aARS),
            f"v_mov_b32 v{Z}, 0", f"v_mov_b32 v{Z+1}, 0",
            f"ds_write_b32 v{ARW}, v{RSTD}",
            f"ds_write_b32 v{ARW}, v{MEAN} offset:512",
            f"ds_write_b64 v{AET}, {vr(Z,2)}"]


def fill_u2a():
    RS = RDS
    E1 = PP
    it = []
    for i0 in range(0, 16, 4):
        for i in range(i0, i0 + 4):
            it += [f"v_mul_f32 v{ACB+i}, v{ACB+i}, v{RS+(i&3)}",
                   f"v_mul_f32 v{ACB+16+i}, v{ACB+16+i}, v{RS+(i&3)}"]
        if i0 < 12:
            it.append(f"ds_read_b128 {vr(RS,4)}, v{ARS} offset:{4*i0+16}")
        for i in range(max(i0, 1), i0 + 4):
            cr, ci = (ACB, ACB + 16) if i == 1 else ((E1, E1 + 1) if i & 1 else (E0, E0 + 1))
            nx = E0 if i & 1 else E1
            it += [f"v_fma_f32 v{nx}, v{PA}, v{cr}, v{ACB+i}",
                   f"v_fma_f32 v{nx+1}, v{PA}, v{ci}, v{ACB+16+i}",
                   f"v_fma_f32 v{nx}, -v{PA+1}, v{ci}, v{nx}",
                   f"v_fmac_f32 v{nx+1}, v{PA+1}, v{cr}"]
    it.append((f"ds_write_b64 v{AET}, {vr(E0,2)} offset:2048", "E"))
    return it


def fill_u2b():
    it = []
    slots = [RDS, RDS + 2, VW, VW + 2, T + 8, T + 10, T + 12]
    for m in range(6, -1, -1):
        it.append(f"ds_read_b64 {vr(slots[m],2)}, v{AET} offset:{(7-m)*256}")
    XD, AA, ES = T + 1, X, T + 2
    it += [unstash(XD, aXD), unstash(AA, aAA), unstash(AA + 1, aAA + 1), unstash(ES, aES)]
    it.append(lambda a: a.need([vr(x, 2) for x in slots]))
    cur = slots[6]
    for m in range(5, -1, -1):
        dst = PP if m == 0 else slots[m]
        it += cfma(dst, PA16, cur, slots[m])
        cur = dst
    it += cfma(E0, PA16, PP, E0)

    def estore(a):
        a.I(f"s_cmp_lg_u32 s{sW}, 3")
        a.I("s_cbranch_scc1 L_noe")
        pos = a.pos
        a.I(f"buffer_store_dwordx2 {vr(E0,2)}, v{ES}, {srd(SE)}, 0 offen sc1", track=False)
        a.pos = pos
        a.label("L_noe")
    it.append(estore)
    for tt in range(2):
        it += [f"s_add_u32 m0, s{sAX}, {1024*tt}\ns_add_u32 s{sT0}, s{sXO}, {32768*tt}",
               (f"buffer_load_dwordx4 v{XD}, {srd(SX)}, s{sT0} offen lds", "AUX")]
    it += [f"s_add_u32 m0, s{sAX}, 2048\ns_add_u32 s{sRA}, s{sHB}, {16*KB}", (f"global_load_lds_dwordx4 {vr(AA,2)}, off", "AUX")]
    return it


def gelu_plain(regs, tmp):
    it = []
    n = len(regs)
    for r, t in zip(regs, tmp):
        it.append(f"v_mul_f32 v{t}, v{r}, v{r}")
    for r, t in zip(regs, tmp):
        it.append(f"v_fma_f32 v{t}, v{t}, v{K1}, v{K0}")
    for r, t in zip(regs, tmp):
        it.append(f"v_mul_f32 v{t}, v{t}, v{r}")
    for r, t in zip(regs, tmp):
        it.append(f"v_exp_f32 v{t}, v{t}")
    for r, t in zip(regs, tmp):
        it.append(f"v_fma_f32 v{t}, v{t}, v{IR2}, v{IR2}")
    for r, t in zip(regs, tmp):
        it.append(f"v_rcp_f32 v{t}, v{t}")
    for r, t in zip(regs, tmp):
        it.append(f"v_mul_f32 v{r}, v{r}, v{t}")
    return it


def gelu_packed(base, tmp):
    it = []
    kk = vr(K0, 2)
    ii = vr(RSTD, 2)
    for p in (0, 2):
        it.append(f"v_pk_mul_f32 {vr(tmp+p,2)}, {vr(base+p,2)}, {vr(base+p,2)}")
    for p in (0, 2):
        it.append(f"v_pk_fma_f32 {vr(tmp+p,2)}, {vr(tmp+p,2)}, {kk}, {kk} op_sel:[0,1,0] op_sel_hi:[1,1,0]")
    for p in (0, 2):
        it.append(f"v_pk_mul_f32 {vr(tmp+p,2)}, {vr(tmp+p,2)}, {vr(base+p,2)}")
    for p in range(4):
        it.append(f"v_exp_f32 v{tmp+p}, v{tmp+p}")
    for p in (0, 2):
        it.append(f"v_pk_fma_f32 {vr(tmp+p,2)}, {vr(tmp+p,2)}, {ii}, {ii} op_sel:[0,1,1] op_sel_hi:[1,1,1]")
    for p in range(4):
        it.append(f"v_rcp_f32 v{tmp+p}, v{tmp+p}")
    for p in (0, 2):
        it.append(f"v_pk_mul_f32 {vr(base+p,2)}, {vr(base+p,2)}, {vr(tmp+p,2)}")
    return it


_gp, _gk = gelu_plain, gelu_packed
gelu_plain = lambda regs, tmp: [] if OPT["x_abl"] & 1 else _gp(regs, tmp)
gelu_packed = lambda base, tmp: ["v_nop"] if OPT["x_abl"] & 2 else _gk(base, tmp)


def pack_store(base, s, soff, off, tag):
    it = [f"v_cvt_pk_bf16_f32 v{base+n}, v{base+2*n}, v{base+2*n+1}" for n in range(4)]
    if OPT["x_nostore"] == 1:
        return it
    it.append((f"buffer_store_dwordx4 {vr(base,4)}, v{L16}, {srd(s)}, s{soff} offen offset:{off} {OPT['hsflags']}", tag))
    return it


def cfma(dst, m, x, add):
    return [f"v_fma_f32 v{dst}, v{m}, v{x}, v{add}",
            f"v_fma_f32 v{dst+1}, v{m}, v{x+1}, v{add+1}",
            f"v_fma_f32 v{dst}, -v{m+1}, v{x+1}, v{dst}",
            f"v_fmac_f32 v{dst+1}, v{m+1}, v{x}"]


def poll(a, name, val, addr, s, soff, m="vcc"):
    ld = f"buffer_load_dword v{val}, v{addr}, {srd(s)}, {soff} offen sc1"
    a.need([f"v{val}"])
    a.I(f"v_cmp_eq_u32 {m}, 0, v{val}")
    a.I(f"s_mov_b32 s{sT2}, 0")
    a.I(f"s_cmp_eq_u64 {m}, 0")
    a.I(f"s_cbranch_scc1 {name}_done")
    save, pos = list(a.vmq), a.pos
    a.label(name)
    a.I(ld, track=False)
    a.wait_vm_all()
    a.I(f"v_cmp_eq_u32 {m}, 0, v{val}")
    a.I(f"s_add_u32 s{sT2}, s{sT2}, 1")
    a.I(f"s_cmp_ge_u32 s{sT2}, {SPIN_MAX}")
    a.I(f"s_cbranch_scc1 {name}_done")
    a.I(f"s_cmp_eq_u64 {m}, 0")
    a.I(f"s_cbranch_scc0 {name}")
    a.vmq, a.pos = save, pos
    a.label(name + "_done")
    if DEBUG and not OPT["rt"]:
        CNTS.append(name)
        a.I(f"v_writelane_b32 v{STAMPV}, s{sT2}, {39+len(CNTS)}")


def xlds(c):
    return 32 * KB * (1 + (c >> 1)) + 4 * KB * (c & 1)


def xgroup(c):
    return dma4(VQ, SX, sT0, [f"s_add_u32 m0, s{sWL}, {xlds(c)}", f"s_xor_b32 s{sT0}, s{sXB}, {c<<7}"], f"x{c}")


def wgroup(n, half):
    tag = f"H{n}"
    pre = [f"s_add_u32 m0, s{sWL}, {H[n] + 4*KB*half}"]
    if n in (2, 3):
        pre += [f"s_xor_b32 s{sT0}, s{sCS}, {512*(n&1)}"]
        return dma4(VQ, SBI if half else SBR, sT0, pre, tag)
    off = 32 * 3584 * half + (128 if n >= 4 else 0)
    pre += [f"s_add_u32 s{sT0}, s{sCM1 if n&1 else sCM0}, {off}"]
    return dma4(VW, SW1B if n >= 4 else SW1, sT0, pre, tag)


def cost(it):
    if callable(it):
        return 1
    if isinstance(it, tuple):
        it = it[0]
    c = 0
    for l in it.split("\n"):
        mn = l.split()[0]
        if mn in TRANS or mn.startswith("v_mfma"):
            c += 2
        elif mn == "ds_write_b128":
            c += 6
        elif mn.startswith("ds_write_addtid"):
            c += 2
        elif mn.startswith("ds_write"):
            c += 4
        elif mn == "buffer_store_dwordx4":
            c += 7
        elif mn.startswith("buffer_") or mn.startswith("global_"):
            c += 3
        else:
            c += 1
    return c


def grp(items):
    res, cur = [], []
    for it in items:
        cur.append(it)
        if not (isinstance(it, str) and it.startswith("s_")):
            res.append(cur)
            cur = []
    return res


def spread(main, plans):
    load = [sum(map(cost, g)) for g in main]
    gaps = [[] for _ in main]
    for items, g0, g1, *uni in plans:
        if not items:
            continue
        if uni:
            for j, grp in enumerate(items):
                i = g0 + (j * (g1 - g0)) // len(items)
                gaps[i] += grp
                load[i] += sum(map(cost, grp))
            continue
        tot = sum(load[g0:g1]) + sum(map(cost, items))
        acc, j = 0, 0
        for i in range(g0, g1):
            acc += load[i]
            target = tot * (i - g0 + 1) / (g1 - g0)
            while j < len(items) and (acc + cost(items[j]) / 2 <= target or i == g1 - 1):
                gaps[i].append(items[j])
                acc += cost(items[j])
                load[i] += cost(items[j])
                j += 1
    return [m + g for m, g in zip(main, gaps)]


NEGM, IDM, CD = ACB, ACB + 4, ACB + 16


def unpack(i):
    return [f"v_mfma_f32_4x4x4_16b_bf16 {vr(CD+4*q,4)}, {vr(IDM,2)}, {vr(X+8*i+2*q,2)}, {vr(NEGM,4)}" for q in range(4)]


def repack(i):
    return [f"v_cvt_pk_bf16_f32 v{X+8*i+n}, v{CD+2*n}, v{CD+2*n+1}" for n in range(8)]


def phase1(a, kname):
    I = a.I
    load_kernargs(a)
    TA, TB, TC, TD = T + 1, T + 2, ACB + 31, T + 4
    PI = T + 9
    RR = ACA
    I(f"v_lshrrev_b32 v{TA}, 6, v0")
    I(f"v_and_b32 v{LN}, 63, v0")
    I(f"v_readfirstlane_b32 s{sW}, v{TA}")
    def code_touch():
        I(f"s_getpc_b64 s[{SR}:{SR+1}]")
        a.label("L_pc")
        I(f"s_and_b32 s{sT2}, s2, 0xf8")
        I(f"v_lshrrev_b32 v{TB}, 5, v0")
        I(f"v_add_lshl_u32 v{RR+8}, s{sT2}, v{TB}, 7")
        I(f"v_mov_b32 v{RR+9}, 0")
        I(f"v_min_u32 v{RR+8}, L_end-L_pc, v{RR+8}")
        I(f"v_lshl_add_u64 {vr(RR+8,2)}, {vr(RR+8,2)}, 0, s[{SR}:{SR+1}]")
        I(f"global_load_dword v{RR+10}, {vr(RR+8,2)}, off", track=False)
    code_touch()
    I(f"s_bfe_u32 s{sT1}, s2, 0x20003")
    I(f"s_lshr_b32 s{sT0}, s2, 5")
    I(f"s_and_b32 s{sR}, s2, 3")
    I(f"s_lshl2_add_u32 s{sR}, s{sR}, s{sT1}")
    if OPT["rotw"] == 0:
        I(f"s_mov_b32 s{sROT}, s{sT0}")
    elif OPT["rotw"] == 1:
        I(f"s_xor_b32 s{sROT}, s{sT1}, s{sT0}")
    else:
        I(f"s_lshl1_add_u32 s{sROT}, s{sT1}, s{sT0}")
        I(f"s_and_b32 s{sROT}, s{sROT}, {OPT['rotmask']}")
    I(f"s_and_b32 s{sJ}, s2, 4")
    I(f"s_lshl1_add_u32 s{sJ}, s{sJ}, s{sT0}")
    I(f"s_lshl2_add_u32 s{sHB}, s{sR}, s{sW}")
    I(f"s_lshl_b32 s{sXB}, s{sHB}, 8")
    I(f"s_or_b32 s{sXB}, s{sXB}, s{sROT}")
    I(f"s_lshl_b32 s{sXB}, s{sXB}, 7")
    I(f"s_lshl_b32 s{sWL}, s{sW}, 13")
    I(f"v_lshrrev_b32 v{TC}, 4, v{LN}")
    I(f"v_xor_b32 v{TC}, v{LN}, v{TC}")
    I(f"v_and_b32 v{TC}, 7, v{TC}")
    I(f"v_lshlrev_b32 v{TC}, 4, v{TC}")
    I(f"v_bfe_u32 v{TD}, v{LN}, 3, 2")
    I(f"v_lshl_or_b32 v{TC}, v{TD}, 10, v{TC}")
    I(f"v_lshrrev_b32 v{HH}, 5, v{LN}")
    I(f"v_lshl_or_b32 v{VQ}, v{HH}, 14, v{TC}")
    I(f"v_xor_b32 v{VQ+1}, 64, v{VQ}")
    I(f"v_add_u32 v{VQ+2}, {2*3072}, v{VQ}")
    I(f"v_add_u32 v{VQ+3}, {3*3072}, v{VQ+1}")
    I(f"v_add_u32 v{VQ+1}, 3072, v{VQ+1}")
    I(f"s_mov_b32 s{SX+2}, {2048*1024}")
    I(f"s_mov_b32 s{SX+3}, 0x20000")
    SCH = dict((e.split(":")[0], [int(v) for v in e.split(":")[1:]]) for e in OPT["sch"].split(","))
    V1, V2, V3, V4, V5 = RR + 11, RR + 12, RR + 13, RR + 14, RR + 15

    def touch_addr():
        I(f"s_lshr_b32 s{sG}, s{sJ}, 2")
        I(f"s_and_b32 s{sJJ}, s{sJ}, 3")
        I(f"s_mul_i32 s{sUB}, s{sG}, 7")
        I(f"s_lshl1_add_u32 s{sUB}, s{sJJ}, s{sUB}")
        I(f"s_lshl_b32 s{sUB}, s{sUB}, 7")
        I(f"s_mul_i32 s{sT2}, s{sHB}, {8*3584}")
        I(f"s_add_u32 s{sT2}, s{sT2}, s{sUB}")
        I(f"s_cmp_lt_u32 s{sJJ}, 3")
        I(f"s_cselect_b32 s{sT1}, 128, 0")
        I(f"v_and_b32 v{TA}, 7, v{LN}")
        I(f"v_mul_u32_u24 v{V1}, 3584, v{TA}")
        I(f"v_mad_u32_u24 v{V1}, v{HH}, s{sT1}, v{V1}")
        I(f"v_add_u32 v{V1}, s{sT2}, v{V1}")
        I(f"s_lshr_b32 s{sT2}, s{sHB}, 1")
        I(f"s_lshl_b32 s{sRA}, s{sJ}, 5")
        I(f"s_add_u32 s{sT2}, s{sT2}, s{sRA}")
        I(f"s_lshl_b32 s{sT2}, s{sT2}, 10")
        I(f"v_lshl_add_u32 v{V2}, v{TA}, 7, s{sT2}")

    def param_addr():
        I(f"v_and_b32 v{RHO}, 31, v{LN}")
        I(f"v_bfe_u32 v{TB}, v{LN}, 2, 1")
        I(f"v_and_b32 v{TA}, 3, v{LN}")
        I(f"v_lshl_or_b32 v{TA}, v{TD}, 2, v{TA}")
        I(f"v_lshl_or_b32 v{PI}, v{TB}, 4, v{TA}")
        I(f"v_add_lshl_u32 v{V3}, v{PI}, s{sRA}, 1")
        I(f"v_and_b32 v{TA}, 0x33, v{LN}")
        I(f"v_lshl_or_b32 v{TA}, v{TB}, 3, v{TA}")
        I(f"v_and_b32 v{TC}, 1, v{TD}")
        I(f"v_lshl_or_b32 v{TA}, v{TC}, 2, v{TA}")
        I(f"v_lshl_add_u32 v{V4}, v{TA}, 1, s{sUB}")
        I(f"v_add_u32 v{V5}, s{sT1}, v{V4}")

    x0 = xgroup(0)
    a.run(x0[:2])
    if OPT["pre"] >= 1:
        touch_addr()
    if OPT["pre"] >= 2:
        param_addr()
    a.wait_lg_all()
    I(stamp("start"))
    I(f"s_mov_b64 s[{SX}:{SX+1}], {sp(pX)}")
    a.vmq = []
    a.run(x0[2:])
    I(stamp("x0 issued"))
    for c in range(1, OPT["x_first"]):
        a.run(xgroup(c))
    if OPT["pre"] < 1:
        touch_addr()
    I(f"global_load_dword v{V1}, v{V1}, {sp(pW1)}")
    I(f"s_bitcmp0_b32 s{sW}, 0")
    I(f"s_cselect_b64 s[{SR}:{SR+1}], {sp(pBRE)}, {sp(pBIM)}")
    I(f"global_load_dword v{V2}, v{V2}, s[{SR}:{SR+1}]")
    if OPT["pre"] < 2:
        param_addr()
    I(f"global_load_ushort v{PA}, v{V3}, {sp(pLRE)}")
    I(f"global_load_ushort v{PA+1}, v{V3}, {sp(pLIM)}")
    I(f"global_load_ushort v{PC}, v{V3}, {sp(pLDT)}")
    I(f"global_load_ushort v{BIA}, v{V4}, {sp(pB1)}")
    I(f"global_load_ushort v{BIA+2}, v{V5}, {sp(pB1)}")
    for c in range(OPT["x_first"], OPT["x_second"]):
        a.run(xgroup(c))
    I(stamp("win1 issued"))
    I(f"v_lshlrev_b32 v{L16}, 4, v{LN}")
    if OPT["ws_mb"]:
        I(f"s_add_u32 s{pWS}, s{pWS}, {OPT['ws_mb'] << 20}")
        I(f"s_addc_u32 s{pWS+1}, s{pWS+1}, 0")
    mk_srd(a, SWS, pWS, WS_END)
    for k in range(4):
        I(f"v_accvgpr_write_b32 a{188+k}, -1")
    mk_srd(a, SDBG, pDBG, 256)
    I(f"s_lshl2_add_u32 s{sIW}, s{sJJ}, s{sW}")
    I(f"s_lshl2_add_u32 s{sIL}, s{sR}, s{sG}")
    for k in range(4):
        I(f"v_accvgpr_write_b32 a{172+k}, 0")

    def init(a):
        I(f"s_cmp_lg_u32 s{sIW}, 15")
        I("s_cbranch_scc1 L_noinit")
        pos = a.pos
        I(f"s_lshl_b32 s{sT1}, s{sIL}, 10")
        I(f"s_add_u32 s{sT1}, s{sT1}, {EOFF}")
        I(f"buffer_store_dwordx4 {ar(188,4)}, v{L16}, {srd(SWS)}, s{sT1} offen sc1", track=False)
        I(f"s_lshl_b32 s{sT1}, s{sIL}, 11")
        I(f"s_add_u32 s{sT1}, s{sT1}, {HFLAG}")
        for k in range(2):
            I(f"buffer_store_dwordx4 {ar(172,4)}, v{L16}, {srd(SWS)}, s{sT1} offen offset:{1024*k} sc1", tag="INIT", track=False)
        a.pos = pos
        a.label("L_noinit")

    if OPT["init_at"] == -2:
        init(a)
    xp = [(f"buffer_store_dwordx4 {ar(188,4)}, v{L16}, {srd(SWS)}, s{sXS} offen offset:{1024*k} sc1", "XP") for k in range(2)]
    sBK = sRS
    RSLOT = xlds(6)
    mk_srd(a, SRS, pWS, WS_END)
    I(f"s_lshr_b32 s{sT1}, s{sJ}, 3")
    I(f"s_and_b32 s{sT2}, s{sJ}, 7")
    I(f"s_mul_i32 s{sBK}, s{sT1}, 14")
    I(f"s_add_u32 s{sBK}, s{sBK}, s{sR}")
    I(f"s_lshl1_add_u32 s{sBK}, s{sBK}, s{sW}")
    I(f"s_lshl3_add_u32 s{sBK}, s{sBK}, s{sT2}")
    I(f"s_cmp_lt_u32 s{sR}, 14")
    I(f"s_cselect_b32 s{SR+2}, {1792*1024}, 0")
    I(f"s_cselect_b32 s{sBK}, s{sBK}, 0")
    I(f"s_and_b32 s{sT0}, s{sR}, 1")
    I(f"s_lshl1_add_u32 s{sT0}, s{sT2}, s{sT0}")
    I(f"s_lshl1_add_u32 s{sT0}, s{sT0}, s{sT1}")
    I(f"s_bfe_u32 s{sT1}, s{sR}, 0x20001")
    I(f"s_lshl2_add_u32 s{sT0}, s{sT0}, s{sT1}")
    I(f"s_bitcmp0_b32 s{sR}, 3")
    I(f"s_cselect_b64 s[{SR}:{SR+1}], {sp(pCRE)}, {sp(pCIM)}")
    I(f"s_cselect_b64 s[{SE}:{SE+1}], {sp(pDSK)}, {sp(pB2)}")
    I(f"s_cmp_lt_u32 s{sW}, 2")
    I(f"s_cselect_b64 s[{SR}:{SR+1}], {sp(pW2)}, s[{SR}:{SR+1}]")
    I(f"s_cselect_b32 s{SR+2}, s{SR+2}, {512*1024}")
    I(f"s_cselect_b32 s{sBK}, s{sBK}, s{sT0}")
    I(f"s_mov_b32 s{SR+3}, 0x20000")
    I(f"s_cmp_eq_u32 s{SR+2}, 0")
    I(f"s_cselect_b32 s{SRS+2}, 0, s{SRS+2}")
    I(f"s_lshr_b32 s{sT0}, s{sBK}, 3")
    I(f"s_lshl_b32 s{sT0}, s{sT0}, 8")
    I(f"s_cmp_eq_u32 s{sW}, 3")
    I(f"s_cselect_b64 s[{SR}:{SR+1}], s[{SE}:{SE+1}], s[{SR}:{SR+1}]")
    I(f"s_cselect_b32 s{SR+2}, 1024, s{SR+2}")
    I(f"s_cselect_b32 s{SRS+2}, 0, s{SRS+2}")
    I(f"s_cselect_b32 s{sT0}, 0, s{sT0}")
    I(f"s_and_b32 s{sT1}, s{sBK}, 7")
    I(f"s_or_b32 s{sT0}, s{sT0}, s{sT1}")
    I(f"s_lshl_b32 s{sINI}, s{sT0}, 7")
    rl = dma4(VQ, SR, sINI, [f"s_add_u32 m0, s{sWL}, {RSLOT}"], "R")
    I(f"s_mul_i32 s{sHB}, s{sHB}, {RT_STRIDE}")
    I(f"s_mul_i32 s{sT0}, s{sG}, 11")
    I(f"s_add_u32 s{sT0}, s{sT0}, s{sJJ}")
    I(f"s_lshl_b32 s{sT0}, s{sT0}, 12")
    I(f"s_add_u32 s{sHB}, s{sHB}, s{sT0}")
    I(f"s_and_b32 s{sT1}, s{sBK}, 7")
    I(f"s_lshr_b32 s{sT0}, s{sBK}, 3")
    I(f"s_cmp_ge_u32 s{sW}, 2")
    I("s_cbranch_scc1 L_dst2")
    I(f"s_mul_i32 s{sRA}, s{sT1}, {2*176}")
    I(f"s_and_b32 s{sT2}, s{sT0}, 1")
    I(f"s_lshl1_add_u32 s{sRA}, s{sT2}, s{sRA}")
    I(f"s_lshl3_add_u32 s{sFL}, s{sT1}, s{sT2}")
    I(f"s_lshr_b32 s{sT0}, s{sT0}, 1")
    I(f"s_lshl4_add_u32 s{sFL}, s{sFL}, s{sT0}")
    I(f"s_mul_i32 s{sT1}, s{sT0}, 37")
    I(f"s_lshr_b32 s{sT1}, s{sT1}, 8")
    I(f"s_mul_i32 s{sT2}, s{sT1}, {32-7}")
    I(f"s_add_u32 s{sFL}, s{sFL}, s{sT2}")
    I(f"s_mul_i32 s{sT2}, s{sT1}, 44")
    I(f"s_add_u32 s{sRA}, s{sRA}, s{sT2}")
    I(f"s_mul_i32 s{sT1}, s{sT1}, 7")
    I(f"s_sub_u32 s{sT0}, s{sT0}, s{sT1}")
    I(f"s_lshr_b32 s{sT1}, s{sT0}, 1")
    I(f"s_and_b32 s{sT0}, s{sT0}, 1")
    I(f"s_lshl2_add_u32 s{sT0}, s{sT0}, s{sT1}")
    I(f"s_lshl2_add_u32 s{sRA}, s{sT0}, s{sRA}")
    I(f"s_movk_i32 s{sRB}, 176")
    I("s_branch L_dstjoin")
    a.label("L_dst2")
    I(f"s_lshr_b32 s{sFL}, s{sT0}, 1")
    I(f"s_lshr_b32 s{sT2}, s{sT1}, 1")
    I(f"s_lshl2_add_u32 s{sFL}, s{sFL}, s{sT2}")
    I(f"s_lshr_b32 s{sRA}, s{sR}, 3")
    I(f"s_lshl1_add_u32 s{sFL}, s{sFL}, s{sRA}")
    I(f"s_and_b32 s{sRA}, s{sT0}, 1")
    I(f"s_lshl3_add_u32 s{sFL}, s{sFL}, s{sRA}")
    I(f"s_and_b32 s{sRA}, s{sT1}, 1")
    I(f"s_lshl1_add_u32 s{sFL}, s{sFL}, s{sRA}")
    I(f"s_add_u32 s{sFL}, s{sFL}, 7")
    I(f"s_mul_i32 s{sRA}, s{sT0}, 176")
    I(f"s_mul_i32 s{sT2}, s{sT2}, 44")
    I(f"s_add_u32 s{sRA}, s{sRA}, s{sT2}")
    I(f"s_and_b32 s{sT1}, s{sT1}, 1")
    I(f"s_lshl3_add_u32 s{sRA}, s{sT1}, s{sRA}")
    I(f"s_lshr_b32 s{sT1}, s{sR}, 3")
    I(f"s_lshl1_add_u32 s{sRA}, s{sT1}, s{sRA}")
    I(f"s_add_u32 s{sRA}, s{sRA}, 28")
    I(f"s_movk_i32 s{sRB}, 4")
    a.label("L_dstjoin")
    I(f"s_add_u32 s{sRA}, s{sRA}, {BW//1024}")
    I(f"s_add_u32 s{sRB}, s{sRB}, s{sRA}")
    I(f"s_lshl_b32 s{sRA}, s{sRA}, 10")
    I(f"s_lshl_b32 s{sRB}, s{sRB}, 10")
    I(f"s_lshl2_add_u32 s{sFL}, s{sFL}, {BFLAG}")
    for n, ptr, size in ((SBR, pBRE, 512 * 1024), (SBI, pBIM, 512 * 1024), (SW1, pW1, 512 * 3584), (SW1B, pW1, 512 * 3584),
                         (SWS2, pWS, WS_END), (SOUT, pOUT, 2048 * 2048)):
        mk_srd(a, n, ptr, size)
    I(f"s_cmp_lt_u32 s{sJJ}, 3")
    I(f"s_cselect_b32 s{SW1B+2}, s{SW1B+2}, 0")
    I(f"s_cselect_b32 s{SWS2+2}, s{SWS2+2}, 0")
    I(f"s_lshl_b32 s{sT0}, s{sJ}, 12")
    I(f"s_add_u32 s{sT0}, s{sT0}, {EOFF}")
    I(f"s_add_u32 s{SE}, s{pWS}, s{sT0}")
    I(f"s_addc_u32 s{SE+1}, s{pWS+1}, 0")
    I(f"s_mov_b32 s{SE+2}, 4096")
    I(f"s_mov_b32 s{SE+3}, 0x20000")
    I(f"s_xor_b32 s{sT0}, s{sW}, s{sROT}")
    I(f"s_lshl_b32 s{sCS}, s{sJ}, 8")
    I(f"s_or_b32 s{sCS}, s{sCS}, s{sT0}")
    I(f"s_lshl_b32 s{sCS}, s{sCS}, 7")
    I(f"s_mul_i32 s{sCM0}, s{sT0}, {64*3584}")
    I(f"s_add_u32 s{sCM0}, s{sCM0}, s{sUB}")
    I(f"s_xor_b32 s{sT0}, s{sT0}, 4")
    I(f"s_mul_i32 s{sCM1}, s{sT0}, {64*3584}")
    I(f"s_add_u32 s{sCM1}, s{sCM1}, s{sUB}")
    I(f"s_lshl2_add_u32 s{sHF}, s{sR}, s{sG}")
    I(f"s_lshl4_add_u32 s{sHF}, s{sHF}, s{sW}")
    I(f"s_lshl2_add_u32 s{sHF}, s{sHF}, s{sJJ}")
    I(f"s_lshl2_add_u32 s{sHF}, s{sHF}, {HFLAG}")
    p2_index(a)
    for c in range(OPT["x_second"], OPT["x_third"]):
        a.run(xgroup(c))
    I(f"v_lshrrev_b32 v{TA}, 3, v{LN}")
    I(f"v_and_b32 v{TC}, 0x70, v{L16}")
    I(f"v_bfe_u32 v{TB}, v{LN}, 4, 1")
    I(f"v_lshlrev_b32 v{TD}, 6, v{TB}")
    I(f"v_xor_b32 v{TC}, v{TC}, v{TD}")
    I(f"v_mul_u32_u24 v{TD}, 3584, v{TA}")
    I(f"v_add_u32 v{VW}, v{TD}, v{TC}")
    for q in range(1, 4):
        I(f"v_add_u32 v{VW+q}, {q*(8*3584-1024)}, v{VW}")
    I(f"v_bfe_u32 v{TA}, v{LN}, 2, 2")
    I(f"v_lshl_or_b32 v{TC}, v{HH}, 3, v{TA}")
    I(f"v_lshlrev_b32 v{TC}, 7, v{TC}")
    I(f"v_lshrrev_b32 v{TA}, 1, v{TA}")
    I(f"v_lshl_or_b32 v{TC}, v{TA}, 6, v{TC}")
    I(f"v_lshl_or_b32 v{TC}, v{TB}, 5, v{TC}")
    I(f"v_and_b32 v{TA}, 1, v{LN}")
    I(f"v_lshl_or_b32 v{TC}, v{TA}, 4, v{TC}")
    I(f"v_bfe_u32 v{TA}, v{LN}, 1, 1")
    I(f"v_lshl_or_b32 v{RDT}, v{TA}, 3, v{TC}")
    I(f"v_xor_b32 v{RDT+1}, 64, v{RDT}")
    I(f"v_bfe_u32 v{TA}, v{RHO}, 1, 3")
    I(f"v_xor_b32 v{TA}, v{TA}, v{HH}")
    I(f"v_lshlrev_b32 v{TA}, 4, v{TA}")
    I(f"v_lshl_or_b32 v{TA}, v{RHO}, 7, v{TA}")
    I(f"v_add_u32 v{RDS}, s{sWL}, v{TA}")
    for k in range(1, 4):
        I(f"v_xor_b32 v{RDS+k}, {32*k}, v{RDS}")
    AW = T + 10
    I(f"v_bfe_u32 v{TA}, v{LN}, 2, 2")
    I(f"v_lshl_or_b32 v{TA}, v{HH}, 4, v{TA}")
    I(f"s_add_u32 s{sT0}, s{sWL}, {RSLOT}")
    I(f"v_lshl_add_u32 v{AW}, v{TA}, 7, s{sT0}")
    I(f"v_and_b32 v{TA}, 1, v{LN}")
    I(f"v_lshl_or_b32 v{AW}, v{TA}, 5, v{AW}")
    I(f"v_bfe_u32 v{TA}, v{LN}, 3, 1")
    I(f"v_xor_b32 v{TA}, v{TA}, v{TB}")
    I(f"v_lshl_or_b32 v{AW}, v{TA}, 4, v{AW}")
    I(f"v_bfe_u32 v{TA}, v{LN}, 1, 1")
    I(f"v_lshl_or_b32 v{AW}, v{TA}, 3, v{AW}")
    for k in range(1, 4):
        I(f"v_xor_b32 v{AW+k}, {32*k}, v{AW}")
    I(f"s_cmp_lt_u32 s{sW}, 2")
    I("s_cbranch_scc1 L_awdone")
    for k in range(4):
        I(f"v_add_u32 v{AW+k}, {RSLOT}, v{RDS+k}")
    a.label("L_awdone")
    def stash(dst, src):
        I(f"v_accvgpr_write_b32 a{dst}, v{src}")
    I(f"s_lshl_b32 s{sT0}, s{sW}, 7")
    I(f"s_add_u32 s{sT0}, s{sT0}, {PARK}")
    I(f"v_lshl_add_u32 v{TA}, v{HH}, 6, s{sT0}")
    I(f"v_lshl_add_u32 v{TC}, v{PI}, 2, s{sT0}")
    stash(aARS, TA)
    stash(aARW, TC)
    I(f"s_lshl_b32 s{sT0}, s{sW}, 9")
    I(f"s_add_u32 s{sT0}, s{sT0}, {ETAB}")
    I(f"v_lshl_add_u32 v{TA}, v{LN}, 3, s{sT0}")
    stash(aAET, TA)
    I(f"s_lshl_b32 s{sT0}, s{sR}, 8")
    I(f"v_lshlrev_b32 v{TA}, 3, v{LN}")
    I(f"v_subrev_u32 v{TA}, 256, v{TA}")
    I(f"v_cmp_gt_i32 vcc, 0, v{TA}")
    I(f"v_add_u32 v{TC}, s{sT0}, v{TA}")
    I(f"v_cndmask_b32 v{TA}, v{TC}, v{TA}, vcc")
    stash(aES, TA)
    I(f"v_lshlrev_b32 v{TA}, 3, v{RHO}")
    I(f"v_lshlrev_b32 v{TC}, 8, v{HH}")
    I(f"v_sub_u32 v{TA}, v{TA}, v{TC}")
    I(f"v_add_u32 v{TA}, {EIN + 256}, v{TA}")
    stash(aEA, TA)
    I(f"s_mul_i32 s{sT0}, s{sW}, 5120")
    I(f"s_add_u32 s{sT0}, s{sT0}, {TRB}")
    I(f"v_mul_u32_u24 v{TA}, 80, v{RHO}")
    I(f"v_lshl_add_u32 v{TA}, v{HH}, 5, v{TA}")
    I(f"v_add_u32 v{TA}, s{sT0}, v{TA}")
    stash(aTW, TA)
    I(f"v_bfe_u32 v{TA}, v{LN}, 2, 2")
    I(f"v_lshl_add_u32 v{TA}, v{HH}, 4, v{TA}")
    I(f"v_mul_u32_u24 v{TC}, 80, v{TA}")
    I(f"v_and_b32 v{TA}, 1, v{LN}")
    I(f"v_lshl_add_u32 v{TC}, v{TA}, 5, v{TC}")
    I(f"v_lshl_add_u32 v{TC}, v{TB}, 4, v{TC}")
    I(f"v_bfe_u32 v{TA}, v{LN}, 1, 1")
    I(f"v_lshl_add_u32 v{TC}, v{TA}, 3, v{TC}")
    I(f"v_add_u32 v{TC}, s{sT0}, v{TC}")
    stash(aTR, TC)
    for c in range(OPT["x_third"], OPT["x_fourth"]):
        a.run(xgroup(c))
    I(f"s_mul_i32 s{sAX}, s{sW}, 3072")
    I(f"s_add_u32 s{sAX}, s{sAX}, {AUX}")
    I(f"s_lshl3_add_u32 s{sXO}, s{sI2}, s{sW}")
    I(f"s_lshl_b32 s{sXO}, s{sXO}, 13")
    I(f"s_lshl_b32 s{sT0}, s{sN}, 7")
    I(f"s_add_u32 s{sXO}, s{sXO}, s{sT0}")
    P0, P2 = ACB, ACB + 2
    I(f"v_mov_b32 v{P0}, s{pB2}")
    I(f"v_mov_b32 v{P0+1}, s{pB2+1}")
    I(f"v_cmp_gt_u32 vcc, 8, v{LN}")
    I(f"v_mov_b32 v{P2}, s{pDSK}")
    I(f"v_mov_b32 v{P2+1}, s{pDSK+1}")
    I(f"v_cndmask_b32 v{P0}, v{P0}, v{P2}, vcc")
    I(f"v_cndmask_b32 v{P0+1}, v{P0+1}, v{P2+1}, vcc")
    I(f"v_and_b32 v{TA}, 0x70, v{L16}")
    I(f"v_add_u32 v{P2}, s{sT0}, v{TA}")
    I(f"v_mov_b32 v{P2+1}, 0")
    I(f"v_lshl_add_u64 {vr(P0,2)}, {vr(P2,2)}, 0, {vr(P0,2)}")
    I(f"v_lshrrev_b32 v{TC}, 3, v{LN}")
    I(f"v_lshl_or_b32 v{TA}, v{TC}, 10, v{TA}")
    stash(aAA, P0)
    stash(aAA + 1, P0 + 1)
    stash(aXD, TA)
    I(f"v_and_b32 v{FREP}, 3, v{LN}")
    I(f"v_lshlrev_b32 v{FREP}, 14, v{FREP}")
    I(f"s_and_b32 s{sT0}, s{sN}, 3")
    I(f"s_lshl4_add_u32 s{sT0}, s{sT0}, s{sR}")
    I(f"s_lshl2_add_u32 s{sT0}, s{sT0}, s{sG2}")
    I(f"s_lshl_b32 s{sT0}, s{sT0}, 8")
    I(f"s_add_u32 s{sT0}, s{sT0}, {HFLAG}")
    I(f"s_add_u32 s{sHP}, s{pWS}, s{sT0}")
    I(f"s_addc_u32 s{sHP+1}, s{pWS+1}, 0")
    I(f"s_lshl2_add_u32 s{sT0}, s2, s{sW}")
    I(f"s_lshl_b32 s{sT0}, s{sT0}, 5")
    I(f"s_add_u32 s{sT0}, s{sT0}, {XFLAG}")
    I(f"s_add_u32 s{sXP}, s{pWS}, s{sT0}")
    I(f"s_addc_u32 s{sXP+1}, s{pWS+1}, 0")
    I(f"s_xor_b32 s{sXF}, s{sT0}, 512")
    I(f"s_and_b32 s{sT0}, s{sR}, 7")
    I(f"s_lshl3_add_u32 s{sT0}, s{sT0}, s{sN}")
    I(f"s_lshl2_add_u32 s{sT0}, s{sT0}, s{sG2}")
    I(f"s_and_b32 s{sT1}, s{sW}, 1")
    I(f"s_lshl1_add_u32 s{sT0}, s{sT0}, s{sT1}")
    I(f"s_lshl_b32 s{sT0}, s{sT0}, 6")
    I(f"s_add_u32 s{sT0}, s{sT0}, {BFLAG}")
    I(f"s_add_u32 s4, s{pWS}, s{sT0}")
    I(f"s_addc_u32 s5, s{pWS+1}, 0")
    GOA, GOV = T + 8, T + 9
    I(f"v_and_b32 v{TA}, 1, v{LN}")
    I(f"v_lshlrev_b32 v{TA}, 4, v{TA}")
    I(f"v_mov_b32 v{TB}, 0x3f80")
    I(f"v_lshlrev_b32 v{TA}, v{TA}, v{TB}")
    I(f"v_bfe_u32 v{TB}, v{LN}, 1, 1")
    I(f"v_mul_lo_u32 v{IDM+1}, v{TA}, v{TB}")
    I(f"v_sub_u32 v{IDM}, v{TA}, v{IDM+1}")
    a.run([f"v_mov_b32 v{BIA+k}, 0" for k in (1, 3, 5, 6, 7, 9, 10, 11)])
    a.run([f"v_mov_b32 v{MEAN}, 0", f"v_mov_b32 v{RSTD}, 0", f"v_lshlrev_b32 v{GOA}, 2, v{LN}",
           f"v_and_b32 v{KEEP}, 7, v{LN}", f"v_lshlrev_b32 v{KEEP}, 12, v{KEEP}",
           f"v_mov_b32 v{KEEP+2}, 1", f"v_mov_b32 v{KEEP+3}, 0"])
    def gostore(a):
        I(f"s_cmp_lg_u32 s{sIW}, 15")
        I("s_cbranch_scc1 L_nogo")
        pos, snap = a.pos, list(a.vmq)
        a.wait_vm("INIT")
        a.vmq = snap
        I(f"s_lshl_b32 s{sT1}, s{sIL}, 2")
        I(f"buffer_store_dword v{KEEP+2}, v{KEEP+3}, {srd(SDBG)}, s{sT1} offen sc1", track=False)
        a.pos = pos
        a.label("L_nogo")
    I(f"s_mov_b32 s{sONE}, 0x3f803f80")
    I(stamp("setup done"))
    if OPT["init_at"] == -1:
        init(a)
    for c in range(OPT["x_fourth"], 4):
        a.run(xgroup(c))

    def rpick(a):
        a.wait_vm("R")
        pos = a.pos
        I(f"s_cmp_ge_u32 s{sW}, 2")
        I("s_cbranch_scc1 L_rp2")
        for dt in range(2):
            for ph in range(2):
                for e in range(2):
                    I(f"ds_read_b64_tr_b16 {ar(8*dt+4*ph+2*e,2)}, v{AW+2*(dt^e)+ph} offset:{e*1024+ph*512}", track=False)
        I("s_branch L_rpjoin")
        a.lgq = [e for e in a.lgq if e.track]
        a.label("L_rp2")
        for k in range(4):
            I(f"ds_read_b128 {ar(4*k,4)}, v{AW+k}", track=False)
        a.pos = pos + 6
        a.label("L_rpjoin")

    rs = [lambda a: a.need([ar(0, 16)])]
    rs += [(f"buffer_store_dwordx4 {ar(4*k,4)}, v{L16}, {srd(SRS)}, s{sRB if k>=2 else sRA} offen offset:{1024*(k&1)} sc1", "RS") for k in range(4)]

    def stats(c):
        it = [lambda a: a.need([vr(X + 16 * c, 16)])]
        it += [f"v_dot2c_f32_bf16 v{MEAN}, s{sONE}, v{X+16*c+k}" for k in range(16)]
        it += [f"v_dot2c_f32_bf16 v{RSTD}, v{X+16*c+k}, v{X+16*c+k}" for k in range(16)]
        return it

    par = ssm_params()
    nw = OPT["w_loop"]
    for c in range(8):
        if c < 4:
            a.run(xgroup(c + 4))
        else:
            if c - 4 < nw:
                a.run(wgroup((c - 4) >> 1, c & 1))
        if c == OPT["init_at"]:
            init(a)
        if c in (2, 6):
            for k in range(4):
                I(f"v_add_u32 v{RDS+k}, {64*KB}, v{RDS+k}")
        if c == 7:
            a.run(stats(6)[:17])
        a.wait_vm(f"x{c}")
        if c in (0, 1, 4, 7):
            I(stamp(f"x{c} landed"))
        for k in range(4):
            I(f"ds_read_b128 {vr(X+16*c+4*k,4)}, v{RDS+k} offset:{xlds(c) % (64*KB)}")
        if c == OPT["gost_at"]:
            gostore(a)
        if c:
            a.run(stats(c - 1)[17 if c == 7 else 0:])
        if 1 <= c <= OPT["par_n"]:
            a.run(par[(len(par) * (c - 1)) // OPT["par_n"]:(len(par) * c) // OPT["par_n"]])
    s7 = stats(7)
    a.run(s7[:20])
    I(f"v_mov_b32 v{TA}, v{MEAN}")
    a.run(s7[20:22])
    I(f"v_permlane32_swap_b32 v{TA}, v{MEAN}")
    I(f"v_add_f32 v{MEAN}, v{TA}, v{MEAN}")
    for k in range(4):
        I(f"v_mul_f32 v{NEGM+k}, {f32(-1/512)}, v{MEAN}")
    a.run(s7[22:])
    I(f"s_add_u32 s{sUB}, s{sWL}, {128*KB - H[2]}")
    I(stamp("stats done"))

    bflag = [lambda a: a.wait_vm("RS"), f"buffer_store_dword v{KEEP+2}, v{KEEP}, {srd(SRS)}, s{sFL} offen sc1"]
    bl = b_loads()
    bload = f"s_load_dwordx16 s[{sHV}:{sHV+15}], s[4:5], 0 glc"
    bpoll = [bload]
    hg = lambda n: grp(wgroup(n, 0) + wgroup(n, 1))
    events = dict(W=(hg(0) + hg(1))[4 * nw:], H2=hg(2), H3=hg(3), H4=hg(4), H5=hg(5), R=grp(rl), pick=[[rpick]],
                  RS=[rs[:2]] + grp(rs[2:]), bflag=[bflag], bpoll=[bpoll], B=bl[:OPT["b2"]], xr=[xready()],
                  xl=[[XLOAD]], xc=[[spoll("L_xr", XLOAD, 1)]], f0=[hflag(0)], hl0=[[hload(0)]],
                  go=[[lambda a: poll(a, "L_go", GOV, GOA, SDBG, 0)]], gost=[[gostore]],
                  gold=[[f"buffer_load_dword v{GOV}, v{GOA}, {srd(SDBG)}, 0 offen sc1"]], XP=[[x] for x in xp],
                  bchk=[[spoll("L_bf", bload, 11), stamp("B flags")]])
    for name in OPT["x_drop"].split("/"):
        if name:
            events[name] = [[]]
    at = {}
    for name, pos in SCH.items():
        g0, g1 = pos[0], pos[-1] + 1
        for j, e in enumerate(events[name]):
            at.setdefault(g0 + (j * (g1 - g0)) // len(events[name]), []).extend(e)
    order = [x for x in ("R", "pick", "RS", "bflag", "bpoll", "bchk", "B") if x in SCH]
    assert all(SCH[x][-1] <= SCH[y][0] for x, y in zip(order, order[1:]))
    assert ("gost" in SCH) == (OPT["gost_at"] > 7) and SCH.get("gost", [-99])[0] < SCH["gold"][0] < SCH["go"][0] < min(88, SCH["bflag"][0], SCH["xr"][0]) and SCH["H5"][0] > 4 * (16 - OPT["la"])
    assert SCH["H5"][-1] < 128 and SCH["H3"][-1] < min(64, SCH["bpoll"][0])
    assert SCH["RS"][0] < SCH["H4"][0] and SCH["pick"][0] < 60
    assert SCH["bchk"][0] < SCH["hl0"][0] and SCH["f0"][0] >= 128
    assert SCH["XP"][-1] < SCH["xr"][0]
    for n, name in ((1, "W"), (2, "H2"), (3, "H3"), (4, "H4"), (5, "H5")):
        assert SCH.get(name, [-9])[-1] < 4 * (8 * n - OPT["la"])
    assert nw >= 2 and max(SCH.get("R", [0])[-1], SCH.get("W", [0])[-1], SCH.get("T1", [0])[-1]) < SCH["bpoll"][0]
    dm = sorted(SCH[x] for x in ("W", "H2", "H3", "H4", "H5", "R") if x in SCH)
    assert all(x[-1] < y[0] for x, y in zip(dm, dm[1:]))
    P = OPT["pre_pairs"]
    assert min(at) >= -P
    for i in range(P):
        u, r = unpack(i), repack(i)
        a.run(u + at.get(i - P, []))
        if i == P - 1:
            a.run([lambda a: a.wait_vm("H0"), "s_barrier"] + frag_reads(0))
        a.run(r)
    a.run(sum((frag_reads(k) for k in range(1, OPT["la"])), []) + (unpack(P) if P < 16 else []))

    n2 = OPT["b2"]
    flat = lambda ll: [x for l in ll for x in l]
    ge = 4 * OPT["e_win"]
    assert OPT["e_win"] >= 6
    f2b = fill_u2b()
    f0 = [f"v_subrev_u32 v{RDS+k}, s{sUB}, v{RDS+k}" for k in range(4)] + fill_u0() + (par if not OPT["par_n"] else [])
    plan = [[(f0, 2, 50)], [(stats_to_lds(), 26, 56), ([f"ds_read_b128 {vr(RDS,4)}, v{ARS}"], 60, 61), (fill_u1()[0], 1, 64)], [(fill_u2a(), 1, ge), (f2b[:-6], ge, ge + OPT["e_len"]), (f2b[-6:], ge + OPT["e_len"], 64)]]
    for u in range(3):
        a.comment(f"---- GEMM unit {u} ----")
        I(stamp(f"U{u} start"))
        main = []
        LA, WP = OPT["la"], OPT["wp"]
        for d in range(16):
            n = 16 * u + d
            pre = [lambda a: a.need(sum((stage_regs(k) for k in range(WP)), []))] if n == 0 else []
            if OPT["only"] and n % 4 == 0 and d:
                pre.append(stamp(f"w{n}"))
            if n + LA < 48 and (n + LA) % 8 == 0:
                pre += [lambda a, hn=(n + LA) // 8: a.wait_vm(f"H{hn}"), "s_barrier"]
            if n == 32 + OPT["e_win"]:
                pre = [lambda a: a.wait_lg("E")] + pre + ([] if "s_barrier" in pre else ["s_barrier"])
            if n + LA == 32:
                pre += [f"v_add_u32 v{RDT}, {H[4]}, v{RDT}", f"v_add_u32 v{RDT+1}, {H[4]}, v{RDT+1}"]
            if n + LA == 40:
                pre += [f"v_subrev_u32 v{RDT}, {H[4]}, v{RDT}", f"v_subrev_u32 v{RDT+1}, {H[4]}, v{RDT+1}"]
            ms = mfmas(n)
            rd = frag_reads(n + LA) if n + LA < 48 else []
            h = len(rd) // 4
            for i in range(4):
                post = []
                if i == 3 and n < 47 and (n + 1) % WP == 0:
                    post = [lambda a, n=n: a.need(sum((stage_regs(n + 1 + k) for k in range(WP)), []))]
                main.append((pre if i == 0 else []) + ms[i] + post + rd[i * h:(i + 1) * h])
        main = [m + at.get(64 * u + i, []) for i, m in enumerate(main)]
        last = {63: fill_u1()[1]} if u == 1 else {}
        if u == 0:
            cg = 4 // OPT["c_rate"]
            for d in range(16 - P):
                r = repack(P + d)
                for i in range(cg):
                    main[cg * d + i] = main[cg * d + i] + r[(8 // cg) * i:(8 // cg) * (i + 1)]
                if P + d + 1 < 16:
                    last[cg * d + cg - 1] = unpack(P + d + 1)
        for i, g in enumerate(spread(main, plan[u])):
            a.run(g + last.get(i, []))
    I(stamp("tail start"))
    a.run(tail(flat(bl[n2:])))
    I(stamp("tail issued"))


def merge(fl, mem):
    if not mem:
        return list(fl)
    res = []
    n, m = len(fl), len(mem)
    j = 0
    for i in range(n):
        while j < m and j * n <= i * m:
            res.append(mem[j])
            j += 1
        res.append(fl[i])
    res += mem[j:]
    return res


FREP = KEEP + 1
FONE, FZERO = KEEP + 2, KEEP + 3


sHV = SBR


def hload(stage, retry=False):
    return f"s_load_dwordx16 s[{sHV}:{sHV+15}], s[{sHP}:{sHP+1}], {64*stage}" + (" glc" if retry or OPT["hglc"] else "")


XLOAD = f"s_load_dword s{sHV}, s[{sXP}:{sXP+1}], 0 glc"


def spoll(name, load, n, empty=None):
    def f(a):
        a.I(f"s_mov_b32 s{sT2}, 0")
        a.label(name)
        a.wait_lg_all()
        for k in range(2, n - 1, 2):
            a.I(f"s_and_b64 s[{sHV}:{sHV+1}], s[{sHV}:{sHV+1}], s[{sHV+k}:{sHV+k+1}]")
        if n > 1 and n & 1:
            a.I(f"s_and_b32 s{sHV}, s{sHV}, s{sHV+n-1}")
        if empty is None:
            a.I(f"s_and_b32 s{sHV}, s{sHV}, s{sHV+(1 if n > 1 else 0)}")
        else:
            a.I(f"s_cmp_lg_u32 s{sHV}, {empty}")
        a.I(f"s_cbranch_scc1 {name}_done")
        pos = a.pos
        a.I(f"s_add_u32 s{sT2}, s{sT2}, 1")
        a.I(f"s_cmp_ge_u32 s{sT2}, {SPIN_MAX}")
        a.I(f"s_cbranch_scc1 {name}_done")
        a.I(load)
        a.I(f"s_branch {name}")
        a.lgq, a.pos = [], pos
        a.label(name + "_done")
        if DEBUG and not OPT["rt"]:
            CNTS.append(name)
            a.I(f"v_writelane_b32 v{STAMPV}, s{sT2}, {39+len(CNTS)}")
    return f


CNTS = []


def hpoll(stage):
    return spoll(f"L_hf{stage}", hload(stage, True), 16)


def hflag(stage):
    return [lambda a: a.wait_vm(f"HS{stage}"),
            f"buffer_store_dword v{FONE}, v{FREP}, {srd(SWS)}, s{sHF} offen offset:{64*stage} sc1"]


def cfma_pk(dst, m, x, add):
    return [f"v_pk_fma_f32 {vr(dst,2)}, {vr(x,2)}, {vr(m,2)}, {vr(add,2)} op_sel:[0,0,0] op_sel_hi:[1,0,1]",
            f"v_pk_fma_f32 {vr(dst,2)}, {vr(x,2)}, {vr(m,2)}, {vr(dst,2)} op_sel:[1,1,0] op_sel_hi:[0,1,1] neg_lo:[0,1,0]"]


AUX = 112 * KB
sAX = pOUT
sXO = pOUT + 1


def tail(brest):
    RE, IM, FR = X, X + 8, X + 16
    EL = [X + 32 + 2 * n for n in range(8)]
    EA, EB, TW, TR, ER, EW, EQ = X + 48, X + 49, X + 50, X + 51, X + 52, X + 53, X + 56
    eloads = [f"buffer_load_dwordx4 {vr(EQ,4)}, v{EA}, {srd(SE)}, 0 offen sc1"]
    al = a_loads()
    na, qs, qe = min(2 * OPT["pro"], OPT["pro_q"]), OPT["scan_q"], OPT["eload_q"]
    a0, a1 = [int(v) for v in OPT["a_q"].split("/")]

    def quad(qd):
        mem = []
        if qd == 0:
            mem += brest
        if qd == a0:
            mem += [hpoll(0), stamp("H flags")]
        if a0 <= qd < a1:
            for f in range((na * (qd - a0)) // (a1 - a0), (na * (qd - a0 + 1)) // (a1 - a0)):
                mem += al[f]
        if qd == qe:
            mem += eloads
        ps = pack_store(ACA + 8 * (qd >> 1), SWS2, sRA, 1024 * (qd >> 1), "HS2") if qd & 1 else []
        if not OPT["lskip"]:
            r = merge(gelu_packed(ACA + 4 * qd, T + 8), mem) + ps
        else:
            def body(a):
                a.I(f"s_cbranch_vccnz L_q{qd}")
                pos = a.pos
                a.run(gelu_packed(ACA + 4 * qd, T + 8) + ps[:-1])
                a.label(f"L_q{qd}")
            r = mem + [body] + ps[-1:]
        return r + [stamp(f"q{qd}")]

    tl = [f"s_lshl2_add_u32 s{sT0}, s{sW}, s{sR}", f"s_lshl_b32 s{sT0}, s{sT0}, 8", f"s_sub_u32 s{sT0}, s{sT0}, 4096",
          f"v_add_u32 v{EA}, s{sT0}, v{L16}", f"s_lshl_b32 s{sT0}, s{sW}, 10", f"s_add_u32 s{sT0}, s{sT0}, {EIN}",
          f"v_add_u32 v{EW}, s{sT0}, v{L16}", unstash(ER, aEA), unstash(TW, aTW), unstash(TR, aTR)]
    if OPT["lskip"]:
        assert qs == 8
        tl = [f"s_cmp_eq_u32 s{sJJ}, 3\ns_cselect_b64 vcc, -1, 0"] + tl
    for qd in range(qs):
        tl += quad(qd)

    def epoll(a):
        a.need([vr(EQ, 4)])
        a.I(f"s_mov_b32 s{sT2}, 0")
        a.label("L_epoll")
        a.I(f"v_max3_u32 v{EB}, v{EQ}, v{EQ+1}, v{EQ+2}")
        a.I(f"v_max_u32 v{EB}, v{EB}, v{EQ+3}")
        a.I(f"v_cmp_eq_u32 vcc, -1, v{EB}")
        a.I("s_cmp_eq_u64 vcc, 0")
        a.I("s_cbranch_scc1 L_epoll_done")
        save, pos = list(a.vmq), a.pos
        a.I(f"s_add_u32 s{sT2}, s{sT2}, 1")
        a.I(f"s_cmp_ge_u32 s{sT2}, {SPIN_MAX}")
        a.I("s_cbranch_scc1 L_epoll_done")
        a.I(eloads[0], track=False)
        a.wait_vm_all()
        a.I("s_branch L_epoll")
        a.vmq, a.pos = save, pos
        a.label("L_epoll_done")
        if DEBUG and not OPT["rt"]:
            CNTS.append("epoll")
            a.I(f"v_writelane_b32 v{STAMPV}, s{sT2}, {39+len(CNTS)}")
    tl += [epoll, stamp("E seen"), (f"ds_write_b128 v{EW}, {vr(EQ,4)}", "EW")]
    ureg = lambda i: X + 64 + 2 * i
    for i in range(16):
        h, cc = i & 1, vr(PC, 2)
        if i == 6:
            tl += [lambda a: a.wait_lg("EW"), "s_barrier"]
            tl += [f"ds_read_b64 {vr(EL[n],2)}, v{ER} offset:{(14-2*n)*256}" for n in range(7, -1, -1)]
        tl += [f"v_pk_mul_f32 {vr(ureg(i),2)}, {cc}, {vr(ACB+i-h,2)} op_sel:[0,{h}] op_sel_hi:[1,{h}]",
               f"v_pk_fma_f32 {vr(ureg(i),2)}, {cc}, {vr(ACB+16+i-h,2)}, {vr(ureg(i),2)} op_sel:[1,{h},0] op_sel_hi:[0,{h},1] neg_lo:[1,0,0]"]
    tl.append(lambda a: a.need([vr(r, 2) for r in EL]))
    cur = EL[7]
    for n in range(6, -1, -1):
        tl += cfma_pk(EL[n], PA256, cur, EL[n])
        cur = EL[n]
    S, S0, S1 = EL[0], EL[1], EL[2]
    tl += [f"v_pk_mul_f32 {vr(S0,2)}, {vr(S,2)}, {vr(PAH,2)} op_sel:[0,0] op_sel_hi:[1,0]",
           cfma_pk(S0, PAH, S, S0)[1],
           f"v_mov_b32 v{S1}, v{S0}",
           f"v_mov_b32 v{S1+1}, v{S0+1}",
           f"s_add_u32 s{sRB}, s{sHB}, {28*KB}",
           f"v_permlane32_swap_b32 v{S0}, v{S1}",
           f"v_permlane32_swap_b32 v{S0+1}, v{S1+1}",
           f"v_pk_add_f32 {vr(S0,2)}, {vr(S0,2)}, {vr(S1,2)}"]
    tl += cfma_pk(PP, PAS, S0, PP)
    tl += [f"v_pk_mul_f32 {vr(S1,2)}, {vr(PP,2)}, {vr(PC,2)} op_sel:[0,0] op_sel_hi:[1,0]", cfma_pk(S1, PC, PP, S1)[1]]
    prev = S1
    for i in range(16):
        u = ureg(i)
        nb = 2 * OPT["pro"] - na
        for f in range(na + (nb * i) // 16, na + (nb * (i + 1)) // 16):
            tl += al[f]
        tl += cfma_pk(u, PA, prev, u)
        if i & 1:
            tl += [f"v_cvt_pk_bf16_f32 v{RE+(i>>1)}, v{prev}, v{u}",
                   f"v_cvt_pk_bf16_f32 v{IM+(i>>1)}, -v{prev+1}, -v{u+1}"]
        prev = u
        if i in (7, 15):
            hf = i >> 3
            for p, R in enumerate((RE, IM)):
                tl.append(f"ds_write_b128 v{TW}, {vr(R+4*hf,4)} offset:{p*2560+16*hf}")
    for p in range(2):
        for k in range(2):
            for e in range(2):
                tl.append(f"ds_read_b64_tr_b16 {vr(FR+8*p+4*k+2*e,2)}, v{TR} offset:{p*2560+(8*e+4*k)*80}")
    tl.append(stamp("scan done"))
    if OPT["flag2_at"] < 0:
        assert qs == 8
        tl += hflag(2)
    hs = [lambda a: a.need([vr(FR, 16)])]
    hs += [(f"buffer_store_dwordx4 {vr(FR+4*f,4)}, v{L16}, {srd(SWS)}, s{sRB} offen offset:{1024*f} {OPT['hsflags']}", "HS1") for f in range(4)]
    rest = sum((quad(qd) for qd in range(qs, 8)), [])
    cut = min(12, len(rest))
    tl += rest[:cut] + merge(rest[cut:cut + 24], hs) + rest[cut + 24:]
    return tl


RED, RED_SRC, RED_DT, RED_TT = 40 * KB, 8448, 4224, 4 * 8448


def wreg(s, e, dt):
    return ar(16 * s + 8 * e + 4 * dt, 4)


def hreg(f):
    return ar(176 + 4 * ((f + 4) % 20), 4)


def steps():
    l = [(L, s) for s in range(4) for L in range(4)]
    s1, s2 = [7, 8, 9, 10], [4, 5, 6]
    if OPT["scan_q"] == 8:
        s1, s2 = s2, s1
    if OPT["ord"] == 0:
        l += [(L, s) for L in range(4) for s in s1 + s2]
    else:
        l += [(L, s) for s in s1 for L in range(2)] + [(L, s) for L in range(2) for s in s2]
        l += [(L, s) for L in range(2, 4) for s in s1 + s2]
    return l


def p2_index(a):
    I = a.I
    I(f"s_and_b32 s{sN}, s{sJ}, 7")
    I(f"s_lshr_b32 s{sT1}, s{sJ}, 3")
    I(f"s_lshl1_add_u32 s{sI2}, s{sR}, s{sT1}")
    I(f"s_lshr_b32 s{sT0}, s{sW}, 1")
    I(f"s_lshl1_add_u32 s{sG2}, s{sT1}, s{sT0}")
    I(f"s_mul_i32 s{sT0}, s{sG2}, {G_STRIDE//2048}")
    I(f"s_and_b32 s{sT1}, s{sW}, 1")
    I(f"s_add_u32 s{sT0}, s{sT0}, s{sT1}")
    I(f"s_lshl_b32 s{sT0}, s{sT0}, 11")
    I(f"s_mul_i32 s{sA1}, s{sI2}, {2*RT_STRIDE}")
    I(f"s_add_u32 s{sA1}, s{sA1}, s{sT0}")
    I(f"s_xor_b32 s{sA0}, s{sI2}, 1")
    I(f"s_mul_i32 s{sA0}, s{sA0}, {2*RT_STRIDE}")
    I(f"s_add_u32 s{sA0}, s{sA0}, s{sT0}")
    I(f"s_mul_i32 s{sB0}, s{sN}, {2*RT_STRIDE}")
    I(f"s_add_u32 s{sB0}, s{sB0}, s{sT0}")
    I(f"s_add_u32 s{sB0}, s{sB0}, {BW}")
    I(f"s_lshl2_add_u32 s{sXI}, s2, s{sW}")
    I(f"s_lshl_b32 s{sXI}, s{sXI}, 11")
    I(f"s_or_b32 s{sXI}, s{sXI}, {XCH}")
    I(f"s_xor_b32 s{sXS}, s{sXI}, {4*8192}")


def b_loads():
    l = []
    for s in range(11):
        for e in range(2):
            for t in range(2):
                it = []
                if e == 0:
                    it += [f"s_add_u32 s{sP0+t}, s{sB0}, {s*4096 + t*RT_STRIDE}"]
                it.append(f"buffer_load_dwordx4 {wreg(s,e,t)}, v{L16}, {srd(SWS)}, s{sP0+t} offen offset:{e*1024} sc1")
                l.append(it)
    return l


def a_loads():
    l = []
    for n, (L, s) in enumerate(steps()):
        for e in range(2):
            it = []
            if e == 0:
                it += [f"s_add_u32 s{sP0}, s{sA1 if L >= 2 else sA0}, {s*4096 + (L&1)*RT_STRIDE}"]
            it.append(f"buffer_load_dwordx4 {hreg(2*n+e)}, v{L16}, {srd(SWS)}, s{sP0} offen offset:{e*1024} {OPT['aflags']}")
            if OPT["x_abl"] & 16 and L in (0, 2) and s in (0, 7) or OPT["x_abl"] & 32 and L in (0, 2) and s == 4:
                it = ["v_nop"]
            l.append(it)
    return l


def phase2(a):
    I = a.I
    al = a_loads()
    st = steps()
    OA, RA, A1, A2, TA = 192, 193, 194, 195, 196
    DK, BB, DF, BF = 198, 200, 208, 212
    XIN, XV, MN, RS, BASE = 128, 144, 152, 156, 160
    prep = [lambda a: a.wait_vm("AUX"),
            f"v_lshl_add_u32 v{A1}, v{LN}, 3, s{sAX}",
            f"v_lshrrev_b32 v{TA}, 4, v{LN}",
            f"s_and_b32 s{sG}, s{sI2}, 1",
            f"s_lshl3_add_u32 s{sG}, s{sG}, s{sW}",
            f"s_lshl_b32 s{sG}, s{sG}, 5",
            f"v_lshl_add_u32 v{A2}, v{TA}, 2, s{sG}"]
    for n in range(4):
        o = PARK + 128 * (n >> 1) + 16 * (n & 1)
        prep += [f"ds_read_b64 {vr(XV+2*n,2)}, v{A1} offset:{512*n}",
                 f"ds_read_b32 v{RS+n}, v{A2} offset:{o}",
                 f"ds_read_b32 v{MN+n}, v{A2} offset:{o+512}"]
    prep += [f"v_and_b32 v{OA}, 15, v{LN}",
             f"v_lshl_add_u32 v{A1}, v{OA}, 3, s{sAX}",
             f"ds_read_b64 {vr(DK,2)}, v{A1} offset:2048",
             f"ds_read_b64 {vr(BB,2)}, v{A1} offset:{2048+128}",
             f"v_and_b32 v{RA}, 3, v{LN}",
             f"v_lshlrev_b32 v{RA}, 5, v{RA}",
             f"v_bfe_u32 v{A2}, v{LN}, 2, 1",
             f"v_lshl_or_b32 v{RA}, v{A2}, 4, v{RA}",
             f"v_lshl_or_b32 v{RA}, v{TA}, 8, v{RA}",
             f"v_bfe_u32 v{A2}, v{LN}, 3, 1",
             f"v_mul_u32_u24 v{A2}, {RED_DT}, v{A2}",
             f"s_and_b32 s{sG}, s{sW}, 1",
             f"s_lshr_b32 s{sJJ}, s{sW}, 1",
             f"s_lshl4_add_u32 s{sG}, s{sG}, s{sJJ}",
             f"s_lshl_b32 s{sG}, s{sG}, 7",
             f"s_add_u32 s{sG}, s{sG}, {RED}",
             f"v_add3_u32 v{RA}, v{RA}, v{A2}, s{sG}",
             f"v_lshlrev_b32 v{OA}, 4, v{OA}",
             f"v_lshl_or_b32 v{OA}, v{TA}, 11, v{OA}",
             f"s_lshl_b32 s{sXO}, s{sXO}, 1",
             f"s_mul_i32 s{sG}, s{sW}, {RED_SRC}"]
    prep2 = [lambda a: a.need([vr(DK, 4), vr(XV, 16)])]
    for h in range(2):
        prep2 += [f"v_lshlrev_b32 v{DF+2*h}, 16, v{DK+h}", f"v_and_b32 v{DF+2*h+1}, 0xffff0000, v{DK+h}",
                  f"v_lshlrev_b32 v{BF+2*h}, 16, v{BB+h}", f"v_and_b32 v{BF+2*h+1}, 0xffff0000, v{BB+h}"]
    for n in range(4):
        for c in range(4):
            b = BASE + 4 * n + c
            src = XV + 2 * n + (c >> 1)
            prep2 += [f"v_lshlrev_b32 v{b}, 16, v{src}" if c % 2 == 0 else f"v_and_b32 v{b}, 0xffff0000, v{src}",
                      f"v_sub_f32 v{TA}, v{b}, v{MN+n}",
                      f"v_mul_f32 v{TA}, v{TA}, v{RS+n}",
                      f"v_add_f32 v{b}, v{b}, v{BF+c}",
                      f"v_fmac_f32 v{b}, v{TA}, v{DF+c}"]

    def add4(x, y, packed):
        if packed:
            return [f"v_pk_add_f32 {vr(x+h,2)}, {vr(x+h,2)}, {vr(y+h,2)}" for h in (0, 2)]
        return [f"v_add_f32 v{x+c}, v{x+c}, v{y+c}" for c in range(4)]

    def reduce(L, packed):
        acc, tt = 32 * L, L & 1
        w = [f"s_add_u32 m0, s{sG}, {RED_TT*tt}"]
        for dt in range(2):
            for i in range(16):
                w.append((f"ds_write_addtid_b32 v{acc+16*dt+i} offset:{RED+dt*RED_DT+i*256}", "RW"))
        r = [lambda a: a.wait_lg("RW"), "s_barrier"]
        for it in range(2):
            for q in range(4):
                r.append(f"ds_read_b128 {vr(acc+16*it+4*q,4)}, v{RA} offset:{RED_TT*tt+q*RED_SRC+it*1024}")
        e = []
        for it in range(2):
            p = acc + 16 * it
            e.append(lambda a, p=p: a.need([vr(p, 16)]))
            if L < 2:
                e += add4(p, p + 4, packed) + add4(p + 8, p + 12, packed) + add4(p, p + 8, packed)
                e += [f"v_cvt_pk_bf16_f32 v{acc+4+2*it+h}, v{p+2*h}, v{p+2*h+1}" for h in range(2)]
                if it and not OPT["x_abl"] & 8:
                    e.append(f"buffer_store_dwordx4 {vr(acc+4,4)}, v{L16}, {srd(SWS)}, s{sXS} offen offset:{1024*tt} sc1")
            else:
                b = BASE + 8 * tt + 4 * it
                e += add4(p, p + 4, packed) + add4(p + 8, p + 12, packed) + add4(b, p, packed) + add4(b, p + 8, packed)
        return w, r, e

    def xin(tt):
        if OPT["x_abl"] & 8:
            return [f"v_mov_b32 v{XIN+4*tt+k}, 0" for k in range(4)]
        return [f"buffer_load_dwordx4 {vr(XIN+4*tt,4)}, v{L16}, {srd(SWS)}, s{sXI} offen offset:{1024*tt} sc1"]

    def xcheck(tt):
        def f(a):
            x, name = XIN + 4 * tt, f"L_xc{tt}"
            a.need([vr(x, 4)])
            a.I(f"s_mov_b32 s{sT2}, 0")
            a.label(name)
            a.I(f"v_max3_u32 v{TA}, v{x}, v{x+1}, v{x+2}")
            a.I(f"v_max_u32 v{TA}, v{TA}, v{x+3}")
            a.I(f"v_cmp_eq_u32 vcc, -1, v{TA}")
            a.I(f"s_cmp_eq_u64 vcc, 0")
            a.I(f"s_cbranch_scc1 {name}_done")
            save, pos = list(a.vmq), a.pos
            a.I(f"s_add_u32 s{sT2}, s{sT2}, 1")
            a.I(f"s_cmp_ge_u32 s{sT2}, {SPIN_MAX}")
            a.I(f"s_cbranch_scc1 {name}_done")
            for l in xin(tt):
                a.I(l, track=False)
            a.wait_vm_all()
            a.I(f"s_branch {name}")
            a.vmq, a.pos = save, pos
            a.label(name + "_done")
            if DEBUG and not OPT["rt"]:
                CNTS.append(name)
                a.I(f"v_writelane_b32 v{STAMPV}, s{sT2}, {39+len(CNTS)}")
        return f

    def final(tt, packed=True):
        e = [xcheck(tt)]
        for it in range(2):
            b = BASE + 8 * tt + 4 * it
            x, u = XIN + 4 * tt + 2 * it, XIN + 8
            for h in range(2):
                e += [f"v_lshlrev_b32 v{u+2*h}, 16, v{x+h}", f"v_and_b32 v{u+2*h+1}, 0xffff0000, v{x+h}"]
            e += [f"s_add_u32 s{sJJ}, s{sXO}, {(32*tt+4*it)*2048}"] + add4(b, u, packed)
            e.append(f"buffer_store_dwordx4 {vr(b,4)}, v{OA}, {srd(SOUT)}, s{sJJ} offen {OPT['outflags']}")
        return e

    first = {1: min(n for n, (L, s) in enumerate(st) if s >= 7), 2: min(n for n, (L, s) in enumerate(st) if 4 <= s < 7)}
    done = [max(n for n, (L, s) in enumerate(st) if L == q) + 1 for q in range(4)]
    gate = {k: v - OPT["look"] for k, v in first.items()}
    issue, t, cnt = {}, 0, 0
    for f in range(2 * OPT["pro"], 88):
        m = f // 2
        lo = max([m - OPT["far"], 0] + [gate[k] for k in first if m >= first[k]])
        if lo > t:
            t, cnt = lo, 0
        if cnt >= OPT["rate"]:
            t, cnt = t + 1, 0
        assert t < m and OPT["far"] <= 9
        issue.setdefault(t, []).append(f)
        cnt += 1
    main = []
    for n, (L, s) in enumerate(st):
        ms = []
        for e in range(2):
            for dt in range(2):
                D = vr(32 * L + 16 * dt, 16)
                ms.append(f"v_mfma_f32_32x32x16_bf16 {D}, {hreg(2*n+e)}, {wreg(s,e,dt)}, {D if s or e else '0'}")
        regs = [hreg(2 * n), hreg(2 * n + 1), ar(16 * s, 16)]
        g0 = [lambda a, regs=regs: a.need(regs)]
        if n == 0 or OPT['only']:
            g0.append(stamp(f"k{n}"))
        g0.append(ms[0])
        g1, g2, g3 = [ms[1]], [ms[2]], [ms[3]]
        for stage in (1, 2):
            if n == gate[stage]:
                g0.append(hpoll(stage))
        for stage in (1, 2):
            lead = OPT["plead"] if gate[stage] == min(gate.values()) else min(OPT["plead"], abs(gate[2] - gate[1]))
            if n + lead == gate[stage]:
                g1.append(hload(stage))
        if n == max(gate.values()):
            g1.append(XLOAD)
        if n == max(gate.values()) + 7:
            g1.append(spoll("L_xr", XLOAD, 1))
        ld = issue.get(n, [])
        for j, f in enumerate(ld):
            (g0, g2, g1, g3)[j if len(ld) <= 2 else (0, 2, 1, 3)[j]].extend(al[f])
        if n == OPT["flag2_at"]:
            g1 += hflag(2)
        if n == OPT["flag1_at"]:
            g1 += hflag(1)
        main += [g0, g1, g2, g3]
    nl = OPT["lastdt"]
    if nl:
        ism = lambda it: isinstance(it, str) and it.startswith("v_mfma")
        gs = main[176 - 4 * nl:]
        mf = [it for g in gs for it in g if ism(it)]
        mf = mf[0::2] + mf[1::2]
        head = [it for g in gs for it in g if not ism(it)]
        main[176 - 4 * nl:] = [head + [mf[0]]] + [[m] for m in mf[1:]]
    plans = [(prep, 2, 14), (prep2, 16, 4 * done[0])]
    for L in range(3):
        rw, rs1, rr, rs2, re = [int(v) for v in (OPT["red"].split(",") * 3)[L].split("/")]
        w, r, e = reduce(L, False)
        g = 4 * done[L] + 2
        plans += [(w, g, g + rw), (r, g + rw + rs1, g + rw + rs1 + rr)]
        g += rw + rs1 + rr + rs2
        plans.append((e, g, min(g + re, 176)))
    assert 4 * (max(gate.values()) + 8) <= min(OPT["xin0"], OPT["xin1"]) and OPT["xin0"] < OPT["fin0"] and g + re <= OPT["fin0"]
    plans.append(([xin(0)], OPT["xin0"], OPT["xin0"] + 1, 1))
    plans.append(([xin(1)], OPT["xin1"], OPT["xin1"] + 1, 1))
    inloop = OPT["fin0"] < 176
    if inloop:
        plans.append((final(0, False), OPT["fin0"], OPT["fin0e"]))
    w3 = reduce(3, True)[0]
    if nl:
        plans.append((w3[:17], 176 - 2 * nl + 1, 176))
    if OPT["x_p2"] & 1:
        txt = lambda it: (it[0] if isinstance(it, tuple) else it) if not callable(it) and not isinstance(it, list) else ""
        plans = [([it for it in p[0] if not txt(it).startswith("s_barrier")],) + tuple(p[1:]) for p in plans]
    if OPT["x_p2"] & 2:
        txt = lambda it: (it[0] if isinstance(it, tuple) else it) if not callable(it) and not isinstance(it, list) else ""
        plans = [([it for it in p[0] if not txt(it).startswith("ds_write")],) + tuple(p[1:]) for p in plans]
    for g in spread(main, plans):
        a.run(g)
    I(stamp("mfma done"))
    w, r, e = reduce(3, True)
    if nl:
        w = w[17:]
    f1 = final(1)
    isst = lambda it: isinstance(it, str) and (it.startswith("buffer_store") or it.startswith("s_add"))
    st1 = [it for it in f1 if isst(it)]
    if OPT["endpre"]:
        a.run(w + ([] if inloop else final(0)) + [it for it in f1 if not isst(it)] + r)
        I(stamp("fin0"))
        h = len(e) // 2
        a.run(st1[:1] + e[:h] + st1[1:3] + e[h:] + st1[3:])
    else:
        a.run(w + ([] if inloop else final(0)) + r)
        I(stamp("fin0"))
        a.run(e + f1)
    I(stamp("out issued"))
    if DEBUG:
        a.wait_vm_all()
    I(stamp("out done"))


import os
HEADER = open(os.path.dirname(os.path.abspath(__file__)) + "/header.txt").read()


DOC = '''; out = x + S5(LN x) + MLP(LN LN x), one persistent launch, 256 workgroups (one per CU) of 4 waves.
; Generated by my own script (gen/gen.py): straight-line code, waits and wait states inserted per register.
;
;   x goes LDS-DMA -> MFMA fragments in registers; row sum / sum of squares with v_dot2; x - mean is formed in
;   fp32 (4x4 identity MFMA) and rounded to bf16; 1/std is applied after the GEMMs.  The second layer norm of
;   The S5 recurrence is an exact chunked scan: 16-step segments per lane, 8 segments per workgroup through LDS,
;   re-laid into fragment order once (spread over all workgroups) and sit in registers.  Waves are summed through
; Hand-offs: write-through (sc1) stores, drained, then a flag word; or words that are marked empty first.  Flag
;   words are reset at the start of the launch, which d_debug announces.  Every spin is bounded.  Nothing depends
'''


def kd(name):
    return f""".amdhsa_kernel {name}
  .amdhsa_next_free_vgpr 512
  .amdhsa_next_free_sgpr 102
  .amdhsa_accum_offset 256
  .amdhsa_group_segment_fixed_size 0
  .amdhsa_float_denorm_mode_32 3
  .amdhsa_kernarg_size 136
  .amdhsa_user_sgpr_count 2
  .amdhsa_user_sgpr_kernarg_segment_ptr 1
  .amdhsa_system_sgpr_workgroup_id_x 1
.end_amdhsa_kernel
"""


OPT = dict(only='', x_drop='', pre=0, ws_mb=0, pre_pairs=2, par_n=4, rt=0, x_p2=0, x_nostore=0, spin=0, hsflags='sc1', aflags='sc1', outflags='sc1', hglc=1,
           rotmask=7, rotw=2, x_first=2, x_second=2, x_third=2, x_fourth=2, w_loop=2, init_at=-2, gost_at=1,
           sch='gold:6,W:-2:5,go:35,R:7:12,H2:14:28,pick:34,RS:36:47,H3:30:44,H4:48:62,H5:76:90,XP:72:75,bflag:66,xr:96,bpoll:87,bchk:104,B:105:190,f0:150,hl0:176',
           b2=44, x_abl=0, endpre=1, lastdt=2, fin0e=173, c_rate=1, lskip=1, g1_pk=0, e_win=6, e_len=10, scan_q=8, eload_q=2, a_q='1/8', flag1_at=7, flag2_at=-1,
           la=2, wp=1, pro=8, pro_q=12, far=9, rate=2, look=5, plead=3, ord=1, red='8/2/2/2/3,6/2/2/2/5,5/2/2/2/5', xin0=146, xin1=160, fin0=167)


def build():
    a = Asm()
    k1 = NAME + "_kernel"
    a.raw(HEADER.rstrip())
    a.raw("; @launch grid=(256,1,1) block=(256,1,1) lds=163840")
    a.raw(DOC.rstrip())
    a.raw('.amdgcn_target "amdgcn-amd-amdhsa--gfx950"\n.text')
    a.raw(f".globl {k1}\n.p2align 8\n.type {k1},@function\n{k1}:")
    a.I("s_cmp_ge_u32 s2, 256")
    a.I("s_cbranch_scc1 L_end")
    if DEBUG:
        a.I("s_memrealtime s[86:87]")
    phase1(a, k1)
    phase2(a)
    if OPT["spin"]:
        a.I("s_cmp_lg_u32 s2, 100\ns_cbranch_scc1 L_end")
        a.I(f"s_cmp_lg_u32 s{sW}, 3\ns_cbranch_scc1 L_end")
        a.I("s_mov_b32 s4, 0")
        a.label("L_spin")
        a.I("s_memrealtime s[6:7]")
        a.wait_lg_all()
        a.I("s_sub_u32 s6, s6, s70\ns_add_u32 s4, s4, 1\ns_cmp_ge_u32 s4, 20000\ns_cbranch_scc1 L_end\ns_cmp_lt_u32 s6, 6000\ns_cbranch_scc1 L_spin")
    stamp_flush(a, 0)
    a.label("L_end")
    a.I("s_endpgm")
    a.raw('.section .rodata,"a"\n.p2align 6')
    a.raw(kd(k1))
    print(f"instructions: {a.count}, nops {a.nops}", file=sys.stderr)
    return a.text()


if __name__ == "__main__":
    out = sys.argv[1] if len(sys.argv) > 1 else f"cdna_kernels/{NAME}.s"
    DEBUG = "-d" in sys.argv
    for arg in sys.argv[2:]:
        if "=" in arg:
            k, v = arg.split("=", 1)
            OPT[k] = type(OPT[k])(v)
    txt = build()
    if DEBUG:
        txt += "; STAMPS " + ",".join(STAMPS) + "\n; CNTS " + ",".join(CNTS) + "\n"
    open(out, "w").write(txt)
```

```python
import sys, math, struct
from asmlib import Asm, TRANS

NAME = "parallel_sum__ssm_conv_s5__mixer_channel_mlp__prompt"
KB = 1024
RT_STRIDE = 176 * KB
G_STRIDE = 44 * KB
HID = 0
BW = 64 * RT_STRIDE
EOFF = BW + 16 * RT_STRIDE
HFLAG = EOFF + 64 * KB
XFLAG = HFLAG + 64 * KB
BFLAG = XFLAG + 32 * KB
XCH = 16 * 1024 * KB
WS_END = XCH + 2048 * KB
SPIN_MAX = 100000

H = [0, 32 * KB, 64 * KB, 96 * KB, 128 * KB, 0]
PARK = H[1]
ETAB = H[1] + 1 * KB
EIN = 108 * KB
TRB = H[4]


def f32(x):
    return "0x%08x" % struct.unpack("<I", struct.pack("<f", x))[0]


pX, pLRE, pLIM, pBRE, pBIM, pCRE, pCIM, pLDT = [4 + 2 * i for i in range(8)]
pDSK, pBX, pW1, pB1, pW2, pB2, pOUT, pDBG = [20 + 2 * i for i in range(8)]
pWS = 36
SX, SBR, SBI, SW1, SR, SWS, SWS2, SW1B, SRS, SOUT, SDBG, SE = [40 + 4 * i for i in range(12)]
sW, sR, sJ, sJJ, sG, sROT, sT0, sT1, sT2, sRA, sRB, sHB, sONE, sFL = range(88, 102)
sXB = 38
sUB = 39
sWL = 3
sA1, sXF, sHP, sXP, sXI, sXS = 6, 7, 8, 10, 12, 13
sI2, sN, sB0, sA0, sG2, sP0, sP1 = 15, 16, 17, 18, 19, 24, 25
sCS, sCM0, sCM1 = 26, 27, 28
sHF = 29
sIW, sIL = 34, 35
sRS = 1
sINI = 0


def srd(n):
    return f"s[{n}:{n+3}]"


def sp(n):
    return f"s[{n}:{n+1}]"


def vr(n, c=1):
    return f"v{n}" if c == 1 else f"v[{n}:{n+c-1}]"


def ar(n, c=1):
    return f"a{n}" if c == 1 else f"a[{n}:{n+c-1}]"


X = 0
ACA, ACB = 128, 160
VQ, VW, RDS, RDT = 192, 196, 200, 204
L16 = 206
MEAN, RSTD, IR2, K0, K1 = 207, 208, 209, 210, 211
PA, PC, PA16, PAS, PAH, PA256, PP = 212, 214, 216, 218, 220, 222, 224
BIA = 226
KEEP = 238
T = 242
STASH = 176
aTW, aTR, aXD, aAA, aES, aEA, aARS, aARW, aAET = 176, 177, 178, 179, 181, 182, 183, 184, 185
STG = 192


DEBUG = False
STAMPV = T + 3
STAMPS = []
JIT = []
DBGOFF = 15 * 1024 * KB


def stamp(name):
    def f(a):
        if OPT["jitter"]:
            JIT.append(name)
            n = len(JIT)
            pos = a.pos
            a.I(f"s_lshl2_add_u32 s22, s2, s{sW}")
            a.I(f"s_mul_i32 s22, s22, {(2654435761 * (OPT['jitter'] * 97 + n)) & 0xffffffff}")
            a.I(f"s_lshr_b32 s22, s22, 29")
            a.I(f"s_cmp_lg_u32 s22, 0")
            a.I(f"s_cbranch_scc1 L_jit{n}")
            a.I(f"s_sleep {20 + (n * 37) % 90}")
            a.label(f"L_jit{n}")
            a.pos = pos
            return
        if not DEBUG:
            return
        if OPT["only"] and name not in ("start", "out done") and name not in OPT["only"].split(","):
            return
        n = len(STAMPS)
        STAMPS.append(name)
        if name.endswith("start") and name[0] in "sk":
            a.I("s_memrealtime s[22:23]")
            a.wait_lg_all()
            a.I(f"v_writelane_b32 v{STAMPV}, s22, 62")
            a.I(f"v_writelane_b32 v{STAMPV}, s86, 61")
        a.I("s_memtime s[22:23]")
        a.wait_lg_all()
        a.I(f"v_writelane_b32 v{STAMPV}, s22, {n}")
        if OPT["rt"]:
            a.I("s_memrealtime s[22:23]")
            a.wait_lg_all()
            a.I(f"v_writelane_b32 v{STAMPV}, s22, {32+n}")
    return f


def stamp_flush(a, which):
    if not DEBUG:
        return
    a.I("s_memrealtime s[22:23]")
    a.wait_lg_all()
    a.I(f"v_writelane_b32 v{STAMPV}, s22, 63")
    a.I(f"s_lshl_b32 s22, s2, 2\ns_add_u32 s22, s22, s{sW}\ns_lshl_b32 s22, s22, 8\ns_add_u32 s22, s22, {DBGOFF + which*256*KB}")
    a.I(f"v_mbcnt_lo_u32_b32 v0, -1, 0\nv_mbcnt_hi_u32_b32 v0, -1, v0\nv_lshlrev_b32 v0, 2, v0")
    a.I(f"buffer_store_dword v{STAMPV}, v0, {srd(SWS)}, s22 offen")


def mk_srd(a, n, ptr, size):
    a.I(f"s_mov_b64 s[{n}:{n+1}], s[{ptr}:{ptr+1}]")
    a.I(f"s_mov_b32 s{n+2}, {size}")
    a.I(f"s_mov_b32 s{n+3}, 0x20000")


def load_kernargs(a):
    a.I("s_load_dwordx16 s[4:19], s[0:1], 0")
    a.I("s_load_dwordx16 s[20:35], s[0:1], 64")
    a.I("s_load_dwordx2 s[36:37], s[0:1], 128")


def dma4(vbase, s, soff, m0expr, tag):
    it = list(m0expr)
    for q in range(4):
        it.append((f"buffer_load_dwordx4 v{vbase+q}, {srd(s)}, s{soff} offen offset:{q*1024} lds", tag))
    return it


def stage_regs(n):
    return [ar(STG + 16 * (n & 3), 16)]


def frag_reads(n):
    u, d = divmod(n, 16)
    it = []
    for s in range(2):
        k = 2 * d + s
        base = STG + 16 * (n & 3) + 8 * s
        if u == 1:
            for part in range(2):
                it.append(f"ds_read_b128 {ar(base+4*part,4)}, v{RDS+(k&3)} offset:{(k>>2)*8192+part*4096}")
        else:
            kk = k if u == 0 else (k & 15)
            for t in range(2):
                for e in range(2):
                    it.append(f"ds_read_b64_tr_b16 {ar(base+4*t+2*e,2)}, v{RDT+t} offset:{kk*2048+e*512}")
    return it


def mfmas(n):
    u, d = divmod(n, 16)
    res = []
    for s in range(2):
        k = 2 * d + s
        base = STG + 16 * (n & 3) + 8 * s
        for t in range(2):
            D = vr((ACA, ACB, ACA)[u] + 16 * t, 16)
            c = D if k else "0"
            bias = f"v_mfma_f32_32x32x16_bf16 {D}, {vr(BIA+u,4)}, {vr(BIA+4+4*t,4)}, {c}"
            g = []
            if u == 1:
                g.append(f"v_mfma_f32_32x32x16_bf16 {D}, {vr(X+4*k,4)}, {ar(base+4*t,4)}, {c}")
            else:
                if u == 2 and k == 0:
                    g.append(bias)
                    c = D
                g.append(f"v_mfma_f32_32x32x16_bf16 {D}, {ar(base+4*t,4)}, {vr(X+4*k,4)}, {c}")
                if u == 0 and k == 31:
                    g.append(bias)
            res.append(g)
    return res


LN, HH, RHO = T, T + 6, T + 7


def cpow(dst, nreg_or_const, zr, zv, t0, t1):
    it = []
    n = nreg_or_const
    if n == 1:
        it += [f"v_exp_f32 v{t0}, v{zr}", f"v_fract_f32 v{t1}, v{zv}"]
    else:
        src = n if isinstance(n, str) else f32(float(n))
        it += [f"v_mul_f32 v{t0}, {src}, v{zr}", f"v_mul_f32 v{t1}, {src}, v{zv}",
               f"v_exp_f32 v{t0}, v{t0}", f"v_fract_f32 v{t1}, v{t1}"]
    it += [f"v_cos_f32 v{dst}, v{t1}", f"v_sin_f32 v{dst+1}, v{t1}",
           f"v_mul_f32 v{dst}, v{dst}, v{t0}", f"v_mul_f32 v{dst+1}, v{dst+1}, v{t0}"]
    return it


def fill_u0():
    it = []
    A0, A1, A2, A3 = [ACB + 8 + i for i in range(4)]
    EPS = f32(1e-5)
    k0 = -2.0 * math.log2(math.e) * math.sqrt(2.0 / math.pi)
    k1 = k0 * 0.044715
    it += [f"v_mov_b32 v{A0}, v{RSTD}",
           f"v_mul_f32 v{MEAN}, {f32(1/512)}, v{MEAN}",
           f"v_permlane32_swap_b32 v{A0}, v{RSTD}",
           f"v_add_f32 v{RSTD}, v{A0}, v{RSTD}",
           f"v_mul_f32 v{A0}, {f32(1/512)}, v{RSTD}",
           f"v_fma_f32 v{A0}, -v{MEAN}, v{MEAN}, v{A0}",
           f"v_max_f32 v{A0}, 0, v{A0}",
           f"v_add_f32 v{A1}, {EPS}, v{A0}",
           f"v_cvt_pk_bf16_f32 v{A2}, v{A0}, v{A0}",
           f"v_lshlrev_b32 v{A2}, 16, v{A2}",
           f"v_add_f32 v{A2}, {EPS}, v{A2}",
           f"v_cvt_pk_bf16_f32 v{A2}, v{A2}, v{A2}",
           f"v_lshlrev_b32 v{A2}, 16, v{A2}",
           f"v_sqrt_f32 v{A2}, v{A2}",
           f"v_fmac_f32 v{A0}, {EPS}, v{A1}",
           f"v_cvt_pk_bf16_f32 v{A2}, v{A2}, v{A2}",
           f"v_lshlrev_b32 v{A2}, 16, v{A2}",
           f"v_rcp_f32 v{RSTD}, v{A2}",
           f"v_rsq_f32 v{A2}, v{A0}",
           f"v_sqrt_f32 v{IR2}, v{A0}",
           f"v_mul_f32 v{K0}, {f32(k0)}, v{A2}",
           f"v_mul_f32 v{A3}, v{A2}, v{A2}",
           f"v_mul_f32 v{A3}, {f32(0.044715)}, v{A3}",
           f"v_mul_f32 v{K1}, v{K0}, v{A3}",
           f"v_cvt_pk_bf16_f32 v{A2}, v{IR2}, v{IR2}",
           f"v_and_b32 v{A3}, 0xffff0000, v{A2}",
           f"v_sub_f32 v{A3}, v{IR2}, v{A3}",
           f"v_cvt_pk_bf16_f32 v{A2}, v{IR2}, v{A3}",
           f"v_mul_lo_u32 v{BIA+8}, v{A2}, v{HH}",
           f"v_sub_u32 v{BIA+4}, v{A2}, v{BIA+8}"]
    return it


def ssm_params():
    it = []
    A0, A1, A2, A3 = [ACB + 8 + i for i in range(4)]
    for k in range(2):
        it.append(f"v_lshl_or_b32 v{BIA+2*k}, v{BIA+2*k}, 16, v{BIA+2*k}")
    LR, LI, ZR, ZV = [ACB + 12 + i for i in range(4)]
    it += [f"v_lshlrev_b32 v{LR}, 16, v{PA}",
           f"v_lshlrev_b32 v{LI}, 16, v{PA+1}",
           f"v_lshlrev_b32 v{A0}, 16, v{PC}",
           f"v_mul_f32 v{A0}, {f32(math.log2(math.e))}, v{A0}",
           f"v_exp_f32 v{A0}, v{A0}",
           f"v_cvt_f32_u32 v{A2}, v{HH}",
           f"v_cvt_pk_bf16_f32 v{A0}, v{A0}, v{A0}",
           f"v_and_b32 v{A0}, 0xffff0000, v{A0}",
           f"v_mul_f32 v{ZR}, v{A0}, v{LR}",
           f"v_mul_f32 v{ZV}, v{A0}, v{LI}",
           f"v_mul_f32 v{ZR}, {f32(math.log2(math.e))}, v{ZR}",
           f"v_mul_f32 v{ZV}, 0.15915494, v{ZV}"]
    it += cpow(PA, 1, ZR, ZV, A0, A1)
    it += cpow(PA16, 16, ZR, ZV, A0, A1)
    it += cpow(PA256, 256, ZR, ZV, A0, A1)
    it += [f"v_mul_f32 v{A3}, {f32(128.0)}, v{A2}"]
    it += cpow(PAH, f"v{A3}", ZR, ZV, A0, A1)
    it += [f"s_lshl_b32 s{sROT}, s{sW}, 1",
           f"v_add_u32 v{A3}, s{sROT}, v{HH}",
           f"v_cvt_f32_u32 v{A3}, v{A3}",
           f"v_mul_f32 v{A3}, {f32(16.0)}, v{A3}"]
    it += cpow(PAS, f"v{A3}", ZR, ZV, A0, A1)
    it += [f"v_mul_f32 v{A0}, v{LR}, v{LR}",
           f"v_fmac_f32 v{A0}, v{LI}, v{LI}",
           f"v_rcp_f32 v{A0}, v{A0}",
           f"v_add_f32 v{A1}, -1.0, v{PA}",
           f"v_mul_f32 v{A2}, v{A1}, v{LR}",
           f"v_fmac_f32 v{A2}, v{PA+1}, v{LI}",
           f"v_mul_f32 v{A3}, v{PA+1}, v{LR}",
           f"v_fma_f32 v{A3}, -v{A1}, v{LI}, v{A3}",
           f"v_add_f32 v{A0}, v{A0}, v{A0}",
           f"v_mul_f32 v{PC}, v{A2}, v{A0}",
           f"v_mul_f32 v{PC+1}, v{A3}, v{A0}"]
    return it


def xready():
    return [lambda a: a.wait_vm("XP"), f"buffer_store_dword v{FONE}, v{FZERO}, {srd(SWS)}, s{sXF} offen sc1"]


ARS, AET, ARW = VQ + 1, VQ + 2, VQ + 3
E0 = T + 4


def unstash(dst, src):
    return f"v_accvgpr_read_b32 v{dst}, a{src}"


def fill_u1():
    it, rest = [], []
    tmp = [T + 10 + i for i in range(4)]
    for qd in range(8):
        l = it if qd < 8 - OPT["g1_pk"] else rest
        l += gelu_plain([ACA + 4 * qd + i for i in range(4)], tmp) if l is it else gelu_packed(ACA + 4 * qd, T + 10)
        if qd & 1:
            l += pack_store(ACA + 8 * (qd >> 1), SWS, sHB, 1024 * (qd >> 1), "HS0")
    return it, rest


def stats_to_lds():
    Z = T + 8
    return [unstash(ARW, aARW), unstash(AET, aAET), unstash(ARS, aARS),
            f"v_mov_b32 v{Z}, 0", f"v_mov_b32 v{Z+1}, 0",
            f"ds_write_b32 v{ARW}, v{RSTD}",
            f"ds_write_b32 v{ARW}, v{MEAN} offset:512",
            f"ds_write_b64 v{AET}, {vr(Z,2)}"]


def fill_u2a():
    RS = RDS
    E1 = PP
    it = []
    for i0 in range(0, 16, 4):
        for i in range(i0, i0 + 4):
            it += [f"v_mul_f32 v{ACB+i}, v{ACB+i}, v{RS+(i&3)}",
                   f"v_mul_f32 v{ACB+16+i}, v{ACB+16+i}, v{RS+(i&3)}"]
        if i0 < 12:
            it.append(f"ds_read_b128 {vr(RS,4)}, v{ARS} offset:{4*i0+16}")
        for i in range(max(i0, 1), i0 + 4):
            cr, ci = (ACB, ACB + 16) if i == 1 else ((E1, E1 + 1) if i & 1 else (E0, E0 + 1))
            nx = E0 if i & 1 else E1
            it += [f"v_fma_f32 v{nx}, v{PA}, v{cr}, v{ACB+i}",
                   f"v_fma_f32 v{nx+1}, v{PA}, v{ci}, v{ACB+16+i}",
                   f"v_fma_f32 v{nx}, -v{PA+1}, v{ci}, v{nx}",
                   f"v_fmac_f32 v{nx+1}, v{PA+1}, v{cr}"]
    it.append((f"ds_write_b64 v{AET}, {vr(E0,2)} offset:2048", "E"))
    return it


def fill_u2b():
    it = []
    slots = [RDS, RDS + 2, VW, VW + 2, T + 8, T + 10, T + 12]
    for m in range(6, -1, -1):
        it.append(f"ds_read_b64 {vr(slots[m],2)}, v{AET} offset:{(7-m)*256}")
    XD, AA, ES = T + 1, X, T + 2
    it += [unstash(XD, aXD), unstash(AA, aAA), unstash(AA + 1, aAA + 1), unstash(ES, aES)]
    it.append(lambda a: a.need([vr(x, 2) for x in slots]))
    cur = slots[6]
    for m in range(5, -1, -1):
        dst = PP if m == 0 else slots[m]
        it += cfma(dst, PA16, cur, slots[m])
        cur = dst
    it += cfma(E0, PA16, PP, E0)

    def estore(a):
        a.I(f"s_cmp_lg_u32 s{sW}, 3")
        a.I("s_cbranch_scc1 L_noe")
        pos = a.pos
        a.I(f"buffer_store_dwordx2 {vr(E0,2)}, v{ES}, {srd(SE)}, 0 offen sc1", track=False)
        a.pos = pos
        a.label("L_noe")
    it.append(estore)
    for tt in range(2):
        it += [f"s_add_u32 m0, s{sAX}, {1024*tt}\ns_add_u32 s{sT0}, s{sXO}, {32768*tt}",
               (f"buffer_load_dwordx4 v{XD}, {srd(SX)}, s{sT0} offen lds", "AUX")]
    it += [f"s_add_u32 m0, s{sAX}, 2048\ns_add_u32 s{sRA}, s{sHB}, {16*KB}", (f"global_load_lds_dwordx4 {vr(AA,2)}, off", "AUX")]
    return it


def gelu_plain(regs, tmp):
    it = []
    n = len(regs)
    for r, t in zip(regs, tmp):
        it.append(f"v_mul_f32 v{t}, v{r}, v{r}")
    for r, t in zip(regs, tmp):
        it.append(f"v_fma_f32 v{t}, v{t}, v{K1}, v{K0}")
    for r, t in zip(regs, tmp):
        it.append(f"v_mul_f32 v{t}, v{t}, v{r}")
    for r, t in zip(regs, tmp):
        it.append(f"v_exp_f32 v{t}, v{t}")
    for r, t in zip(regs, tmp):
        it.append(f"v_fma_f32 v{t}, v{t}, v{IR2}, v{IR2}")
    for r, t in zip(regs, tmp):
        it.append(f"v_rcp_f32 v{t}, v{t}")
    for r, t in zip(regs, tmp):
        it.append(f"v_mul_f32 v{r}, v{r}, v{t}")
    return it


def gelu_packed(base, tmp):
    it = []
    kk = vr(K0, 2)
    ii = vr(RSTD, 2)
    for p in (0, 2):
        it.append(f"v_pk_mul_f32 {vr(tmp+p,2)}, {vr(base+p,2)}, {vr(base+p,2)}")
    for p in (0, 2):
        it.append(f"v_pk_fma_f32 {vr(tmp+p,2)}, {vr(tmp+p,2)}, {kk}, {kk} op_sel:[0,1,0] op_sel_hi:[1,1,0]")
    for p in (0, 2):
        it.append(f"v_pk_mul_f32 {vr(tmp+p,2)}, {vr(tmp+p,2)}, {vr(base+p,2)}")
    for p in range(4):
        it.append(f"v_exp_f32 v{tmp+p}, v{tmp+p}")
    for p in (0, 2):
        it.append(f"v_pk_fma_f32 {vr(tmp+p,2)}, {vr(tmp+p,2)}, {ii}, {ii} op_sel:[0,1,1] op_sel_hi:[1,1,1]")
    for p in range(4):
        it.append(f"v_rcp_f32 v{tmp+p}, v{tmp+p}")
    for p in (0, 2):
        it.append(f"v_pk_mul_f32 {vr(base+p,2)}, {vr(base+p,2)}, {vr(tmp+p,2)}")
    return it


_gp, _gk = gelu_plain, gelu_packed
gelu_plain = lambda regs, tmp: [] if OPT["x_abl"] & 1 else _gp(regs, tmp)
gelu_packed = lambda base, tmp: ["v_nop"] if OPT["x_abl"] & 2 else _gk(base, tmp)


def pack_store(base, s, soff, off, tag):
    it = [f"v_cvt_pk_bf16_f32 v{base+n}, v{base+2*n}, v{base+2*n+1}" for n in range(4)]
    if OPT["x_nostore"] == 1:
        return it
    it.append((f"buffer_store_dwordx4 {vr(base,4)}, v{L16}, {srd(s)}, s{soff} offen offset:{off} {OPT['hsflags']}", tag))
    return it


def cfma(dst, m, x, add):
    return [f"v_fma_f32 v{dst}, v{m}, v{x}, v{add}",
            f"v_fma_f32 v{dst+1}, v{m}, v{x+1}, v{add+1}",
            f"v_fma_f32 v{dst}, -v{m+1}, v{x+1}, v{dst}",
            f"v_fmac_f32 v{dst+1}, v{m+1}, v{x}"]


def poll(a, name, val, addr, s, soff, m="vcc"):
    ld = f"buffer_load_dword v{val}, v{addr}, {srd(s)}, {soff} offen sc1"
    a.need([f"v{val}"])
    a.I(f"v_cmp_eq_u32 {m}, 0, v{val}")
    a.I(f"s_mov_b32 s{sT2}, 0")
    a.I(f"s_cmp_eq_u64 {m}, 0")
    a.I(f"s_cbranch_scc1 {name}_done")
    save, pos = list(a.vmq), a.pos
    a.label(name)
    a.I(ld, track=False)
    a.wait_vm_all()
    a.I(f"v_cmp_eq_u32 {m}, 0, v{val}")
    a.I(f"s_add_u32 s{sT2}, s{sT2}, 1")
    a.I(f"s_cmp_ge_u32 s{sT2}, {SPIN_MAX}")
    a.I(f"s_cbranch_scc1 {name}_done")
    a.I(f"s_cmp_eq_u64 {m}, 0")
    a.I(f"s_cbranch_scc0 {name}")
    a.vmq, a.pos = save, pos
    a.label(name + "_done")
    if DEBUG and not OPT["rt"]:
        CNTS.append(name)
        a.I(f"v_writelane_b32 v{STAMPV}, s{sT2}, {39+len(CNTS)}")


def xlds(c):
    return 32 * KB * (1 + (c >> 1)) + 4 * KB * (c & 1)


def xgroup(c):
    return dma4(VQ, SX, sT0, [f"s_add_u32 m0, s{sWL}, {xlds(c)}", f"s_xor_b32 s{sT0}, s{sXB}, {c<<7}"], f"x{c}")


def wgroup(n, half):
    tag = f"H{n}"
    pre = [f"s_add_u32 m0, s{sWL}, {H[n] + 4*KB*half}"]
    if n in (2, 3):
        pre += [f"s_xor_b32 s{sT0}, s{sCS}, {512*(n&1)}"]
        return dma4(VQ, SBI if half else SBR, sT0, pre, tag)
    off = 32 * 3584 * half + (128 if n >= 4 else 0)
    pre += [f"s_add_u32 s{sT0}, s{sCM1 if n&1 else sCM0}, {off}"]
    return dma4(VW, SW1B if n >= 4 else SW1, sT0, pre, tag)


def cost(it):
    if callable(it):
        return 1
    if isinstance(it, tuple):
        it = it[0]
    c = 0
    for l in it.split("\n"):
        mn = l.split()[0]
        if mn in TRANS or mn.startswith("v_mfma"):
            c += 2
        elif mn == "ds_write_b128":
            c += 6
        elif mn.startswith("ds_write_addtid"):
            c += 2
        elif mn.startswith("ds_write"):
            c += 4
        elif mn == "buffer_store_dwordx4":
            c += 7
        elif mn.startswith("buffer_") or mn.startswith("global_"):
            c += 3
        else:
            c += 1
    return c


def grp(items):
    res, cur = [], []
    for it in items:
        cur.append(it)
        if not (isinstance(it, str) and it.startswith("s_")):
            res.append(cur)
            cur = []
    return res


def spread(main, plans):
    load = [sum(map(cost, g)) for g in main]
    gaps = [[] for _ in main]
    for items, g0, g1, *uni in plans:
        if not items:
            continue
        if uni:
            for j, grp in enumerate(items):
                i = g0 + (j * (g1 - g0)) // len(items)
                gaps[i] += grp
                load[i] += sum(map(cost, grp))
            continue
        tot = sum(load[g0:g1]) + sum(map(cost, items))
        acc, j = 0, 0
        for i in range(g0, g1):
            acc += load[i]
            target = tot * (i - g0 + 1) / (g1 - g0)
            while j < len(items) and (acc + cost(items[j]) / 2 <= target or i == g1 - 1):
                gaps[i].append(items[j])
                acc += cost(items[j])
                load[i] += cost(items[j])
                j += 1
    return [m + g for m, g in zip(main, gaps)]


NEGM, IDM, CD = ACB, ACB + 4, ACB + 16


def unpack(i):
    return [f"v_mfma_f32_4x4x4_16b_bf16 {vr(CD+4*q,4)}, {vr(IDM,2)}, {vr(X+8*i+2*q,2)}, {vr(NEGM,4)}" for q in range(4)]


def repack(i):
    return [f"v_cvt_pk_bf16_f32 v{X+8*i+n}, v{CD+2*n}, v{CD+2*n+1}" for n in range(8)]


def phase1(a, kname):
    I = a.I
    load_kernargs(a)
    TA, TB, TC, TD = T + 1, T + 2, ACB + 31, T + 4
    PI = T + 9
    RR = ACA
    I(f"v_lshrrev_b32 v{TA}, 6, v0")
    I(f"v_and_b32 v{LN}, 63, v0")
    I(f"v_readfirstlane_b32 s{sW}, v{TA}")
    def code_touch():
        I(f"s_getpc_b64 s[{SR}:{SR+1}]")
        a.label("L_pc")
        I(f"s_and_b32 s{sT2}, s2, 0xf8")
        I(f"v_lshrrev_b32 v{TB}, 5, v0")
        I(f"v_add_lshl_u32 v{RR+8}, s{sT2}, v{TB}, 7")
        I(f"v_mov_b32 v{RR+9}, 0")
        I(f"v_min_u32 v{RR+8}, L_end-L_pc, v{RR+8}")
        I(f"v_lshl_add_u64 {vr(RR+8,2)}, {vr(RR+8,2)}, 0, s[{SR}:{SR+1}]")
        I(f"global_load_dword v{RR+10}, {vr(RR+8,2)}, off", track=False)
    code_touch()
    I(f"s_bfe_u32 s{sT1}, s2, 0x20003")
    I(f"s_lshr_b32 s{sT0}, s2, 5")
    I(f"s_and_b32 s{sR}, s2, 3")
    I(f"s_lshl2_add_u32 s{sR}, s{sR}, s{sT1}")
    ROT = OPT["rotmask"] != 0
    if ROT:
        I(f"s_lshl1_add_u32 s{sROT}, s{sT1}, s{sT0}")
        I(f"s_and_b32 s{sROT}, s{sROT}, {OPT['rotmask']}")
    I(f"s_and_b32 s{sJ}, s2, 4")
    I(f"s_lshl1_add_u32 s{sJ}, s{sJ}, s{sT0}")
    I(f"s_lshl2_add_u32 s{sHB}, s{sR}, s{sW}")
    if ROT:
        I(f"s_lshl_b32 s{sXB}, s{sHB}, 8")
        I(f"s_or_b32 s{sXB}, s{sXB}, s{sROT}")
        I(f"s_lshl_b32 s{sXB}, s{sXB}, 7")
    else:
        I(f"s_lshl_b32 s{sXB}, s{sHB}, 15")
    I(f"s_lshl_b32 s{sWL}, s{sW}, 13")
    I(f"v_lshrrev_b32 v{TC}, 4, v{LN}")
    I(f"v_xor_b32 v{TC}, v{LN}, v{TC}")
    I(f"v_and_b32 v{TC}, 7, v{TC}")
    I(f"v_lshlrev_b32 v{TC}, 4, v{TC}")
    I(f"v_bfe_u32 v{TD}, v{LN}, 3, 2")
    I(f"v_lshl_or_b32 v{TC}, v{TD}, 10, v{TC}")
    I(f"v_lshrrev_b32 v{HH}, 5, v{LN}")
    I(f"v_lshl_or_b32 v{VQ}, v{HH}, 14, v{TC}")
    I(f"v_xor_b32 v{VQ+1}, 64, v{VQ}")
    I(f"v_add_u32 v{VQ+2}, {2*3072}, v{VQ}")
    I(f"v_add_u32 v{VQ+3}, {3*3072}, v{VQ+1}")
    I(f"v_add_u32 v{VQ+1}, 3072, v{VQ+1}")
    I(f"s_mov_b32 s{SX+2}, {2048*1024}")
    I(f"s_mov_b32 s{SX+3}, 0x20000")
    SCH = dict((e.split(":")[0], [int(v) for v in e.split(":")[1:]]) for e in OPT["sch"].split(","))
    V1, V2, V3, V4, V5 = RR + 11, RR + 12, RR + 13, RR + 14, RR + 15

    def touch_addr():
        I(f"s_lshr_b32 s{sG}, s{sJ}, 2")
        I(f"s_and_b32 s{sJJ}, s{sJ}, 3")
        I(f"s_mul_i32 s{sUB}, s{sG}, 7")
        I(f"s_lshl1_add_u32 s{sUB}, s{sJJ}, s{sUB}")
        I(f"s_lshl_b32 s{sUB}, s{sUB}, 7")
        I(f"s_cmp_lt_u32 s{sJJ}, 3")
        I(f"s_cselect_b32 s{sT1}, 128, 0")
        I(f"v_and_b32 v{TA}, 7, v{LN}")
        if OPT["t1_row"]:
            I(f"s_and_b32 s{sT2}, s{sJ}, 7")
            I(f"s_lshl3_add_u32 s{sT2}, s{sHB}, s{sT2}")
            I(f"s_lshr_b32 s{sRA}, s{sJ}, 3")
            I(f"s_lshl1_add_u32 s{sT2}, s{sT2}, s{sRA}")
            I(f"s_mul_i32 s{sT2}, s{sT2}, 1792")
            I(f"v_min_u32 v{V1}, 13, v{LN}")
            I(f"v_lshl_add_u32 v{V1}, v{V1}, 7, s{sT2}")
        else:
            I(f"s_mul_i32 s{sT2}, s{sHB}, {8*3584}")
            I(f"s_add_u32 s{sT2}, s{sT2}, s{sUB}")
            I(f"v_mul_u32_u24 v{V1}, 3584, v{TA}")
            I(f"v_mad_u32_u24 v{V1}, v{HH}, s{sT1}, v{V1}")
            I(f"v_add_u32 v{V1}, s{sT2}, v{V1}")
        I(f"s_lshr_b32 s{sT2}, s{sHB}, 1")
        I(f"s_lshl_b32 s{sRA}, s{sJ}, 5")
        I(f"s_add_u32 s{sT2}, s{sT2}, s{sRA}")
        I(f"s_lshl_b32 s{sT2}, s{sT2}, 10")
        I(f"v_lshl_add_u32 v{V2}, v{TA}, 7, s{sT2}")

    def param_addr():
        I(f"v_and_b32 v{RHO}, 31, v{LN}")
        I(f"v_bfe_u32 v{TB}, v{LN}, 2, 1")
        I(f"v_and_b32 v{TA}, 3, v{LN}")
        I(f"v_lshl_or_b32 v{TA}, v{TD}, 2, v{TA}")
        I(f"v_lshl_or_b32 v{PI}, v{TB}, 4, v{TA}")
        I(f"v_add_lshl_u32 v{V3}, v{PI}, s{sRA}, 1")
        I(f"v_and_b32 v{TA}, 0x33, v{LN}")
        I(f"v_lshl_or_b32 v{TA}, v{TB}, 3, v{TA}")
        I(f"v_and_b32 v{TC}, 1, v{TD}")
        I(f"v_lshl_or_b32 v{TA}, v{TC}, 2, v{TA}")
        I(f"v_lshl_add_u32 v{V4}, v{TA}, 1, s{sUB}")
        I(f"v_add_u32 v{V5}, s{sT1}, v{V4}")

    x0 = xgroup(0)
    a.run(x0[:2])
    if OPT["tx"] == 1:
        I(f"s_lshl4_add_u32 s{sT2}, s{sR}, s{sJ}")
        I(f"s_lshl2_add_u32 s{sT2}, s{sT2}, s{sW}")
        I(f"s_lshl_b32 s{sT2}, s{sT2}, 11")
        I(f"v_and_b32 v{RR+16}, 15, v{LN}")
        I(f"v_lshl_add_u32 v{RR+16}, v{RR+16}, 7, s{sT2}")
    if OPT["tx"] == 2:
        I(f"s_and_b32 s{sT2}, s{sJ}, 7")
        I(f"s_lshl3_add_u32 s{sT2}, s{sR}, s{sT2}")
        I(f"s_lshl2_add_u32 s{sT2}, s{sT2}, s{sW}")
        I(f"s_lshl_b32 s{sT2}, s{sT2}, 12")
        I(f"v_and_b32 v{RR+16}, 31, v{LN}")
        I(f"v_lshl_add_u32 v{RR+16}, v{RR+16}, 7, s{sT2}")
    if OPT["pre"] >= 1:
        touch_addr()
    if OPT["pre"] >= 2:
        param_addr()
    a.wait_lg_all()
    I(stamp("start"))
    if OPT["tx"]:
        I(f"global_load_dword v{RR+16}, v{RR+16}, {sp(pX)}")
    I(f"s_mov_b64 s[{SX}:{SX+1}], {sp(pX)}")
    a.vmq = []
    if not OPT["x_late"]:
        a.run(x0[2:])
    I(stamp("x0 issued"))
    for c in range(1, OPT["x_first"]):
        a.run(xgroup(c))
    if OPT["pre"] < 1:
        touch_addr()
    I(f"global_load_dword v{V1}, v{V1}, {sp(pW1)}")
    I(f"s_bitcmp0_b32 s{sW}, 0")
    I(f"s_cselect_b64 s[{SR}:{SR+1}], {sp(pBRE)}, {sp(pBIM)}")
    I(f"global_load_dword v{V2}, v{V2}, s[{SR}:{SR+1}]")
    if OPT["pre"] < 2:
        param_addr()
    I(f"global_load_ushort v{PA}, v{V3}, {sp(pLRE)}")
    I(f"global_load_ushort v{PA+1}, v{V3}, {sp(pLIM)}")
    I(f"global_load_ushort v{PC}, v{V3}, {sp(pLDT)}")
    I(f"global_load_ushort v{BIA}, v{V4}, {sp(pB1)}")
    I(f"global_load_ushort v{BIA+2}, v{V5}, {sp(pB1)}")

    def rtouch():
        I(f"s_lshr_b32 s{sT1}, s{sJ}, 3")
        I(f"s_and_b32 s{sT2}, s{sJ}, 7")
        I(f"s_min_u32 s{sRA}, s{sR}, 13")
        I(f"s_mul_i32 s{sRB}, s{sT1}, 14")
        I(f"s_add_u32 s{sRA}, s{sRA}, s{sRB}")
        I(f"s_lshl3_add_u32 s{sRA}, s{sRA}, s{sT2}")
        I(f"s_lshl2_add_u32 s{sRA}, s{sRA}, s{sW}")
        I(f"s_lshl_b32 s{sRA}, s{sRA}, 11")
        I(f"v_and_b32 v{RR+17}, 15, v{LN}")
        I(f"v_lshl_add_u32 v{RR+17}, v{RR+17}, 7, s{sRA}")
        I(f"global_load_dword v{RR+17}, v{RR+17}, {sp(pW2)}")
        I(f"s_and_b32 s{sRA}, s{sR}, 3")
        I(f"s_lshl2_add_u32 s{sRA}, s{sT2}, s{sRA}")
        I(f"s_lshl2_add_u32 s{sRA}, s{sRA}, s{sW}")
        I(f"s_lshl3_add_u32 s{sRA}, s{sRA}, s{sT1}")
        I(f"s_bfe_u32 s{sRB}, s{sR}, 0x10002")
        I(f"s_lshl1_add_u32 s{sRA}, s{sRA}, s{sRB}")
        I(f"s_lshl_b32 s{sRA}, s{sRA}, 8")
        I(f"v_lshl_add_u32 v{RR+18}, v{TD}, 10, s{sRA}")
        I(f"v_lshl_add_u32 v{RR+18}, v{HH}, 7, v{RR+18}")
        I(f"s_bitcmp0_b32 s{sR}, 3")
        I(f"s_cselect_b64 s[{SR}:{SR+1}], {sp(pCRE)}, {sp(pCIM)}")
        I(f"global_load_dword v{RR+18}, v{RR+18}, s[{SR}:{SR+1}]")
    if OPT["tr"]:
        rtouch()
    if OPT["x_late"]:
        a.run(x0[2:])
    for c in range(OPT["x_first"], OPT["x_second"]):
        a.run(xgroup(c))
    I(stamp("win1 issued"))
    I(f"v_lshlrev_b32 v{L16}, 4, v{LN}")
    if OPT["ws_mb"]:
        I(f"s_add_u32 s{pWS}, s{pWS}, {OPT['ws_mb'] << 20}")
        I(f"s_addc_u32 s{pWS+1}, s{pWS+1}, 0")
    mk_srd(a, SWS, pWS, WS_END)
    for k in range(4):
        I(f"v_accvgpr_write_b32 a{188+k}, -1")
    mk_srd(a, SDBG, pDBG, 256)
    I(f"s_lshl2_add_u32 s{sIW}, s{sJJ}, s{sW}")
    I(f"s_lshl2_add_u32 s{sIL}, s{sR}, s{sG}")
    for k in range(4):
        I(f"v_accvgpr_write_b32 a{172+k}, 0")

    def init(a):
        I(f"s_cmp_lg_u32 s{sIW}, 15")
        I("s_cbranch_scc1 L_noinit")
        pos = a.pos
        I(f"s_lshl_b32 s{sT1}, s{sIL}, 10")
        I(f"s_add_u32 s{sT1}, s{sT1}, {EOFF}")
        I(f"buffer_store_dwordx4 {ar(188,4)}, v{L16}, {srd(SWS)}, s{sT1} offen sc1", track=False)
        I(f"s_lshl_b32 s{sT1}, s{sIL}, 11")
        I(f"s_add_u32 s{sT1}, s{sT1}, {HFLAG}")
        for k in range(2):
            I(f"buffer_store_dwordx4 {ar(172,4)}, v{L16}, {srd(SWS)}, s{sT1} offen offset:{1024*k} sc1", tag="INIT", track=False)
        a.pos = pos
        a.label("L_noinit")

    if OPT["init_at"] == -2:
        init(a)
    xp = [(f"buffer_store_dwordx4 {ar(188,4)}, v{L16}, {srd(SWS)}, s{sXS} offen offset:{1024*k} sc1", "XP") for k in range(2)]
    sBK = sRS
    RSLOT = xlds(6)
    mk_srd(a, SRS, pWS, WS_END)
    I(f"s_lshr_b32 s{sT1}, s{sJ}, 3")
    I(f"s_and_b32 s{sT2}, s{sJ}, 7")
    I(f"s_mul_i32 s{sBK}, s{sT1}, 14")
    I(f"s_add_u32 s{sBK}, s{sBK}, s{sR}")
    I(f"s_lshl1_add_u32 s{sBK}, s{sBK}, s{sW}")
    I(f"s_lshl3_add_u32 s{sBK}, s{sBK}, s{sT2}")
    I(f"s_cmp_lt_u32 s{sR}, 14")
    I(f"s_cselect_b32 s{SR+2}, {1792*1024}, 0")
    I(f"s_cselect_b32 s{sBK}, s{sBK}, 0")
    I(f"s_and_b32 s{sT0}, s{sR}, 1")
    I(f"s_lshl1_add_u32 s{sT0}, s{sT2}, s{sT0}")
    I(f"s_lshl1_add_u32 s{sT0}, s{sT0}, s{sT1}")
    I(f"s_bfe_u32 s{sT1}, s{sR}, 0x20001")
    I(f"s_lshl2_add_u32 s{sT0}, s{sT0}, s{sT1}")
    I(f"s_bitcmp0_b32 s{sR}, 3")
    I(f"s_cselect_b64 s[{SR}:{SR+1}], {sp(pCRE)}, {sp(pCIM)}")
    I(f"s_cselect_b64 s[{SE}:{SE+1}], {sp(pDSK)}, {sp(pB2)}")
    I(f"s_cmp_lt_u32 s{sW}, 2")
    I(f"s_cselect_b64 s[{SR}:{SR+1}], {sp(pW2)}, s[{SR}:{SR+1}]")
    I(f"s_cselect_b32 s{SR+2}, s{SR+2}, {512*1024}")
    I(f"s_cselect_b32 s{sBK}, s{sBK}, s{sT0}")
    I(f"s_mov_b32 s{SR+3}, 0x20000")
    I(f"s_cmp_eq_u32 s{SR+2}, 0")
    I(f"s_cselect_b32 s{SRS+2}, 0, s{SRS+2}")
    I(f"s_lshr_b32 s{sT0}, s{sBK}, 3")
    I(f"s_lshl_b32 s{sT0}, s{sT0}, 8")
    I(f"s_cmp_eq_u32 s{sW}, 3")
    I(f"s_cselect_b64 s[{SR}:{SR+1}], s[{SE}:{SE+1}], s[{SR}:{SR+1}]")
    I(f"s_cselect_b32 s{SR+2}, 1024, s{SR+2}")
    I(f"s_cselect_b32 s{SRS+2}, 0, s{SRS+2}")
    I(f"s_cselect_b32 s{sT0}, 0, s{sT0}")
    I(f"s_and_b32 s{sT1}, s{sBK}, 7")
    I(f"s_or_b32 s{sT0}, s{sT0}, s{sT1}")
    I(f"s_lshl_b32 s{sINI}, s{sT0}, 7")
    rl = dma4(VQ, SR, sINI, [f"s_add_u32 m0, s{sWL}, {RSLOT}"], "R")
    I(f"s_mul_i32 s{sHB}, s{sHB}, {RT_STRIDE}")
    I(f"s_mul_i32 s{sT0}, s{sG}, 11")
    I(f"s_add_u32 s{sT0}, s{sT0}, s{sJJ}")
    I(f"s_lshl_b32 s{sT0}, s{sT0}, 12")
    I(f"s_add_u32 s{sHB}, s{sHB}, s{sT0}")
    I(f"s_and_b32 s{sT1}, s{sBK}, 7")
    I(f"s_lshr_b32 s{sT0}, s{sBK}, 3")
    I(f"s_cmp_ge_u32 s{sW}, 2")
    I("s_cbranch_scc1 L_dst2")
    I(f"s_mul_i32 s{sRA}, s{sT1}, {2*176}")
    I(f"s_and_b32 s{sT2}, s{sT0}, 1")
    I(f"s_lshl1_add_u32 s{sRA}, s{sT2}, s{sRA}")
    I(f"s_lshl3_add_u32 s{sFL}, s{sT1}, s{sT2}")
    I(f"s_lshr_b32 s{sT0}, s{sT0}, 1")
    I(f"s_lshl4_add_u32 s{sFL}, s{sFL}, s{sT0}")
    I(f"s_mul_i32 s{sT1}, s{sT0}, 37")
    I(f"s_lshr_b32 s{sT1}, s{sT1}, 8")
    I(f"s_mul_i32 s{sT2}, s{sT1}, {32-7}")
    I(f"s_add_u32 s{sFL}, s{sFL}, s{sT2}")
    I(f"s_mul_i32 s{sT2}, s{sT1}, 44")
    I(f"s_add_u32 s{sRA}, s{sRA}, s{sT2}")
    I(f"s_mul_i32 s{sT1}, s{sT1}, 7")
    I(f"s_sub_u32 s{sT0}, s{sT0}, s{sT1}")
    I(f"s_lshr_b32 s{sT1}, s{sT0}, 1")
    I(f"s_and_b32 s{sT0}, s{sT0}, 1")
    I(f"s_lshl2_add_u32 s{sT0}, s{sT0}, s{sT1}")
    I(f"s_lshl2_add_u32 s{sRA}, s{sT0}, s{sRA}")
    I(f"s_movk_i32 s{sRB}, 176")
    I("s_branch L_dstjoin")
    a.label("L_dst2")
    I(f"s_lshr_b32 s{sFL}, s{sT0}, 1")
    I(f"s_lshr_b32 s{sT2}, s{sT1}, 1")
    I(f"s_lshl2_add_u32 s{sFL}, s{sFL}, s{sT2}")
    I(f"s_lshr_b32 s{sRA}, s{sR}, 3")
    I(f"s_lshl1_add_u32 s{sFL}, s{sFL}, s{sRA}")
    I(f"s_and_b32 s{sRA}, s{sT0}, 1")
    I(f"s_lshl3_add_u32 s{sFL}, s{sFL}, s{sRA}")
    I(f"s_and_b32 s{sRA}, s{sT1}, 1")
    I(f"s_lshl1_add_u32 s{sFL}, s{sFL}, s{sRA}")
    I(f"s_add_u32 s{sFL}, s{sFL}, 7")
    I(f"s_mul_i32 s{sRA}, s{sT0}, 176")
    I(f"s_mul_i32 s{sT2}, s{sT2}, 44")
    I(f"s_add_u32 s{sRA}, s{sRA}, s{sT2}")
    I(f"s_and_b32 s{sT1}, s{sT1}, 1")
    I(f"s_lshl3_add_u32 s{sRA}, s{sT1}, s{sRA}")
    I(f"s_lshr_b32 s{sT1}, s{sR}, 3")
    I(f"s_lshl1_add_u32 s{sRA}, s{sT1}, s{sRA}")
    I(f"s_add_u32 s{sRA}, s{sRA}, 28")
    I(f"s_movk_i32 s{sRB}, 4")
    a.label("L_dstjoin")
    I(f"s_add_u32 s{sRA}, s{sRA}, {BW//1024}")
    I(f"s_add_u32 s{sRB}, s{sRB}, s{sRA}")
    I(f"s_lshl_b32 s{sRA}, s{sRA}, 10")
    I(f"s_lshl_b32 s{sRB}, s{sRB}, 10")
    I(f"s_lshl2_add_u32 s{sFL}, s{sFL}, {BFLAG}")
    for n, ptr, size in ((SBR, pBRE, 512 * 1024), (SBI, pBIM, 512 * 1024), (SW1, pW1, 512 * 3584), (SW1B, pW1, 512 * 3584),
                         (SWS2, pWS, WS_END), (SOUT, pOUT, 2048 * 2048)):
        mk_srd(a, n, ptr, size)
    I(f"s_cmp_lt_u32 s{sJJ}, 3")
    I(f"s_cselect_b32 s{SW1B+2}, s{SW1B+2}, 0")
    I(f"s_cselect_b32 s{SWS2+2}, s{SWS2+2}, 0")
    I(f"s_lshl_b32 s{sT0}, s{sJ}, 12")
    I(f"s_add_u32 s{sT0}, s{sT0}, {EOFF}")
    I(f"s_add_u32 s{SE}, s{pWS}, s{sT0}")
    I(f"s_addc_u32 s{SE+1}, s{pWS+1}, 0")
    I(f"s_mov_b32 s{SE+2}, 4096")
    I(f"s_mov_b32 s{SE+3}, 0x20000")
    I(f"s_xor_b32 s{sT0}, s{sW}, s{sROT}" if ROT else f"s_mov_b32 s{sT0}, s{sW}")
    I(f"s_lshl_b32 s{sCS}, s{sJ}, 8")
    I(f"s_or_b32 s{sCS}, s{sCS}, s{sT0}")
    I(f"s_lshl_b32 s{sCS}, s{sCS}, 7")
    I(f"s_mul_i32 s{sCM0}, s{sT0}, {64*3584}")
    I(f"s_add_u32 s{sCM0}, s{sCM0}, s{sUB}")
    I(f"s_xor_b32 s{sT0}, s{sT0}, 4")
    I(f"s_mul_i32 s{sCM1}, s{sT0}, {64*3584}")
    I(f"s_add_u32 s{sCM1}, s{sCM1}, s{sUB}")
    I(f"s_lshl2_add_u32 s{sHF}, s{sR}, s{sG}")
    I(f"s_lshl4_add_u32 s{sHF}, s{sHF}, s{sW}")
    I(f"s_lshl2_add_u32 s{sHF}, s{sHF}, s{sJJ}")
    I(f"s_lshl2_add_u32 s{sHF}, s{sHF}, {HFLAG}")
    p2_index(a)
    for c in range(OPT["x_second"], OPT["x_third"]):
        a.run(xgroup(c))
    I(f"v_lshrrev_b32 v{TA}, 3, v{LN}")
    I(f"v_and_b32 v{TC}, 0x70, v{L16}")
    I(f"v_bfe_u32 v{TB}, v{LN}, 4, 1")
    I(f"v_lshlrev_b32 v{TD}, 6, v{TB}")
    I(f"v_xor_b32 v{TC}, v{TC}, v{TD}")
    I(f"v_mul_u32_u24 v{TD}, 3584, v{TA}")
    I(f"v_add_u32 v{VW}, v{TD}, v{TC}")
    for q in range(1, 4):
        I(f"v_add_u32 v{VW+q}, {q*(8*3584-1024)}, v{VW}")
    I(f"v_bfe_u32 v{TA}, v{LN}, 2, 2")
    I(f"v_lshl_or_b32 v{TC}, v{HH}, 3, v{TA}")
    I(f"v_lshlrev_b32 v{TC}, 7, v{TC}")
    I(f"v_lshrrev_b32 v{TA}, 1, v{TA}")
    I(f"v_lshl_or_b32 v{TC}, v{TA}, 6, v{TC}")
    I(f"v_lshl_or_b32 v{TC}, v{TB}, 5, v{TC}")
    I(f"v_and_b32 v{TA}, 1, v{LN}")
    I(f"v_lshl_or_b32 v{TC}, v{TA}, 4, v{TC}")
    I(f"v_bfe_u32 v{TA}, v{LN}, 1, 1")
    I(f"v_lshl_or_b32 v{RDT}, v{TA}, 3, v{TC}")
    I(f"v_xor_b32 v{RDT+1}, 64, v{RDT}")
    I(f"v_bfe_u32 v{TA}, v{RHO}, 1, 3")
    I(f"v_xor_b32 v{TA}, v{TA}, v{HH}")
    I(f"v_lshlrev_b32 v{TA}, 4, v{TA}")
    I(f"v_lshl_or_b32 v{TA}, v{RHO}, 7, v{TA}")
    I(f"v_add_u32 v{RDS}, s{sWL}, v{TA}")
    for k in range(1, 4):
        I(f"v_xor_b32 v{RDS+k}, {32*k}, v{RDS}")
    AW = T + 10
    I(f"v_bfe_u32 v{TA}, v{LN}, 2, 2")
    I(f"v_lshl_or_b32 v{TA}, v{HH}, 4, v{TA}")
    I(f"s_add_u32 s{sT0}, s{sWL}, {RSLOT}")
    I(f"v_lshl_add_u32 v{AW}, v{TA}, 7, s{sT0}")
    I(f"v_and_b32 v{TA}, 1, v{LN}")
    I(f"v_lshl_or_b32 v{AW}, v{TA}, 5, v{AW}")
    I(f"v_bfe_u32 v{TA}, v{LN}, 3, 1")
    I(f"v_xor_b32 v{TA}, v{TA}, v{TB}")
    I(f"v_lshl_or_b32 v{AW}, v{TA}, 4, v{AW}")
    I(f"v_bfe_u32 v{TA}, v{LN}, 1, 1")
    I(f"v_lshl_or_b32 v{AW}, v{TA}, 3, v{AW}")
    for k in range(1, 4):
        I(f"v_xor_b32 v{AW+k}, {32*k}, v{AW}")
    I(f"s_cmp_lt_u32 s{sW}, 2")
    I("s_cbranch_scc1 L_awdone")
    for k in range(4):
        I(f"v_add_u32 v{AW+k}, {RSLOT}, v{RDS+k}")
    a.label("L_awdone")
    def stash(dst, src):
        I(f"v_accvgpr_write_b32 a{dst}, v{src}")
    I(f"s_lshl_b32 s{sT0}, s{sW}, 7")
    I(f"s_add_u32 s{sT0}, s{sT0}, {PARK}")
    I(f"v_lshl_add_u32 v{TA}, v{HH}, 6, s{sT0}")
    I(f"v_lshl_add_u32 v{TC}, v{PI}, 2, s{sT0}")
    stash(aARS, TA)
    stash(aARW, TC)
    I(f"s_lshl_b32 s{sT0}, s{sW}, 9")
    I(f"s_add_u32 s{sT0}, s{sT0}, {ETAB}")
    I(f"v_lshl_add_u32 v{TA}, v{LN}, 3, s{sT0}")
    stash(aAET, TA)
    I(f"s_lshl_b32 s{sT0}, s{sR}, 8")
    I(f"v_lshlrev_b32 v{TA}, 3, v{LN}")
    I(f"v_subrev_u32 v{TA}, 256, v{TA}")
    I(f"v_cmp_gt_i32 vcc, 0, v{TA}")
    I(f"v_add_u32 v{TC}, s{sT0}, v{TA}")
    I(f"v_cndmask_b32 v{TA}, v{TC}, v{TA}, vcc")
    stash(aES, TA)
    I(f"v_lshlrev_b32 v{TA}, 3, v{RHO}")
    I(f"v_lshlrev_b32 v{TC}, 8, v{HH}")
    I(f"v_sub_u32 v{TA}, v{TA}, v{TC}")
    I(f"v_add_u32 v{TA}, {EIN + 256}, v{TA}")
    stash(aEA, TA)
    I(f"s_mul_i32 s{sT0}, s{sW}, 5120")
    I(f"s_add_u32 s{sT0}, s{sT0}, {TRB}")
    I(f"v_mul_u32_u24 v{TA}, 80, v{RHO}")
    I(f"v_lshl_add_u32 v{TA}, v{HH}, 5, v{TA}")
    I(f"v_add_u32 v{TA}, s{sT0}, v{TA}")
    stash(aTW, TA)
    I(f"v_bfe_u32 v{TA}, v{LN}, 2, 2")
    I(f"v_lshl_add_u32 v{TA}, v{HH}, 4, v{TA}")
    I(f"v_mul_u32_u24 v{TC}, 80, v{TA}")
    I(f"v_and_b32 v{TA}, 1, v{LN}")
    I(f"v_lshl_add_u32 v{TC}, v{TA}, 5, v{TC}")
    I(f"v_lshl_add_u32 v{TC}, v{TB}, 4, v{TC}")
    I(f"v_bfe_u32 v{TA}, v{LN}, 1, 1")
    I(f"v_lshl_add_u32 v{TC}, v{TA}, 3, v{TC}")
    I(f"v_add_u32 v{TC}, s{sT0}, v{TC}")
    stash(aTR, TC)
    for c in range(OPT["x_third"], OPT["x_fourth"]):
        a.run(xgroup(c))
    I(f"s_mul_i32 s{sAX}, s{sW}, 3072")
    I(f"s_add_u32 s{sAX}, s{sAX}, {AUX}")
    I(f"s_lshl3_add_u32 s{sXO}, s{sI2}, s{sW}")
    I(f"s_lshl_b32 s{sXO}, s{sXO}, 13")
    I(f"s_lshl_b32 s{sT0}, s{sN}, 7")
    I(f"s_add_u32 s{sXO}, s{sXO}, s{sT0}")
    P0, P2 = ACB, ACB + 2
    I(f"v_mov_b32 v{P0}, s{pB2}")
    I(f"v_mov_b32 v{P0+1}, s{pB2+1}")
    I(f"v_cmp_gt_u32 vcc, 8, v{LN}")
    I(f"v_mov_b32 v{P2}, s{pDSK}")
    I(f"v_mov_b32 v{P2+1}, s{pDSK+1}")
    I(f"v_cndmask_b32 v{P0}, v{P0}, v{P2}, vcc")
    I(f"v_cndmask_b32 v{P0+1}, v{P0+1}, v{P2+1}, vcc")
    I(f"v_and_b32 v{TA}, 0x70, v{L16}")
    I(f"v_add_u32 v{P2}, s{sT0}, v{TA}")
    I(f"v_mov_b32 v{P2+1}, 0")
    I(f"v_lshl_add_u64 {vr(P0,2)}, {vr(P2,2)}, 0, {vr(P0,2)}")
    I(f"v_lshrrev_b32 v{TC}, 3, v{LN}")
    I(f"v_lshl_or_b32 v{TA}, v{TC}, 10, v{TA}")
    stash(aAA, P0)
    stash(aAA + 1, P0 + 1)
    stash(aXD, TA)
    I(f"v_and_b32 v{FREP}, 3, v{LN}")
    I(f"v_lshlrev_b32 v{FREP}, 14, v{FREP}")
    I(f"s_and_b32 s{sT0}, s{sN}, 3")
    I(f"s_lshl4_add_u32 s{sT0}, s{sT0}, s{sR}")
    I(f"s_lshl2_add_u32 s{sT0}, s{sT0}, s{sG2}")
    I(f"s_lshl_b32 s{sT0}, s{sT0}, 8")
    I(f"s_add_u32 s{sT0}, s{sT0}, {HFLAG}")
    I(f"s_add_u32 s{sHP}, s{pWS}, s{sT0}")
    I(f"s_addc_u32 s{sHP+1}, s{pWS+1}, 0")
    I(f"s_lshl2_add_u32 s{sT0}, s2, s{sW}")
    I(f"s_lshl_b32 s{sT0}, s{sT0}, 5")
    I(f"s_add_u32 s{sT0}, s{sT0}, {XFLAG}")
    I(f"s_add_u32 s{sXP}, s{pWS}, s{sT0}")
    I(f"s_addc_u32 s{sXP+1}, s{pWS+1}, 0")
    I(f"s_xor_b32 s{sXF}, s{sT0}, 512")
    I(f"s_and_b32 s{sT0}, s{sR}, 7")
    I(f"s_lshl3_add_u32 s{sT0}, s{sT0}, s{sN}")
    I(f"s_lshl2_add_u32 s{sT0}, s{sT0}, s{sG2}")
    I(f"s_and_b32 s{sT1}, s{sW}, 1")
    I(f"s_lshl1_add_u32 s{sT0}, s{sT0}, s{sT1}")
    I(f"s_lshl_b32 s{sT0}, s{sT0}, 6")
    I(f"s_add_u32 s{sT0}, s{sT0}, {BFLAG}")
    I(f"s_add_u32 s4, s{pWS}, s{sT0}")
    I(f"s_addc_u32 s5, s{pWS+1}, 0")
    GOA, GOV = T + 8, T + 9
    I(f"v_and_b32 v{TA}, 1, v{LN}")
    I(f"v_lshlrev_b32 v{TA}, 4, v{TA}")
    I(f"v_mov_b32 v{TB}, 0x3f80")
    I(f"v_lshlrev_b32 v{TA}, v{TA}, v{TB}")
    I(f"v_bfe_u32 v{TB}, v{LN}, 1, 1")
    I(f"v_mul_lo_u32 v{IDM+1}, v{TA}, v{TB}")
    I(f"v_sub_u32 v{IDM}, v{TA}, v{IDM+1}")
    a.run([f"v_mov_b32 v{BIA+k}, 0" for k in (1, 3, 5, 6, 7, 9, 10, 11)])
    a.run([f"v_mov_b32 v{MEAN}, 0", f"v_mov_b32 v{RSTD}, 0", f"v_lshlrev_b32 v{GOA}, 2, v{LN}",
           f"v_and_b32 v{KEEP}, 7, v{LN}", f"v_lshlrev_b32 v{KEEP}, 12, v{KEEP}",
           f"v_mov_b32 v{KEEP+2}, 1", f"v_mov_b32 v{KEEP+3}, 0"])
    def gostore(a):
        I(f"s_cmp_lg_u32 s{sIW}, 15")
        I("s_cbranch_scc1 L_nogo")
        pos, snap = a.pos, list(a.vmq)
        a.wait_vm("INIT")
        a.vmq = snap
        I(f"s_lshl_b32 s{sT1}, s{sIL}, 2")
        I(f"buffer_store_dword v{KEEP+2}, v{KEEP+3}, {srd(SDBG)}, s{sT1} offen sc1", track=False)
        a.pos = pos
        a.label("L_nogo")
    I(f"s_mov_b32 s{sONE}, 0x3f803f80")
    I(stamp("setup done"))
    if OPT["init_at"] == -1:
        init(a)
    for c in range(OPT["x_fourth"], 4):
        a.run(xgroup(c))

    def rpick(a):
        a.wait_vm("R")
        pos = a.pos
        I(f"s_cmp_ge_u32 s{sW}, 2")
        I("s_cbranch_scc1 L_rp2")
        for dt in range(2):
            for ph in range(2):
                for e in range(2):
                    I(f"ds_read_b64_tr_b16 {ar(8*dt+4*ph+2*e,2)}, v{AW+2*(dt^e)+ph} offset:{e*1024+ph*512}", track=False)
        I("s_branch L_rpjoin")
        a.lgq = [e for e in a.lgq if e.track]
        a.label("L_rp2")
        for k in range(4):
            I(f"ds_read_b128 {ar(4*k,4)}, v{AW+k}", track=False)
        a.pos = pos + 6
        a.label("L_rpjoin")

    rs = [lambda a: a.need([ar(0, 16)])]
    rs += [(f"buffer_store_dwordx4 {ar(4*k,4)}, v{L16}, {srd(SRS)}, s{sRB if k>=2 else sRA} offen offset:{1024*(k&1)} sc1", "RS") for k in range(4)]

    def stats(c):
        it = [lambda a: a.need([vr(X + 16 * c, 16)])]
        it += [f"v_dot2c_f32_bf16 v{MEAN}, s{sONE}, v{X+16*c+k}" for k in range(16)]
        it += [f"v_dot2c_f32_bf16 v{RSTD}, v{X+16*c+k}, v{X+16*c+k}" for k in range(16)]
        return it

    par = ssm_params()
    nw = OPT["w_loop"]
    for c in range(8):
        if c < 4:
            a.run(xgroup(c + 4))
        else:
            if c - 4 < nw:
                a.run(wgroup((c - 4) >> 1, c & 1))
        if c == OPT["init_at"]:
            init(a)
        if c in (2, 6):
            for k in range(4):
                I(f"v_add_u32 v{RDS+k}, {64*KB}, v{RDS+k}")
        if c == 7:
            a.run(stats(6)[:17])
        a.wait_vm(f"x{c}")
        if c in (0, 1, 4, 7):
            I(stamp(f"x{c} landed"))
        for k in range(4):
            I(f"ds_read_b128 {vr(X+16*c+4*k,4)}, v{RDS+k} offset:{xlds(c) % (64*KB)}")
        if c == OPT["gost_at"]:
            gostore(a)
        if c:
            a.run(stats(c - 1)[17 if c == 7 else 0:])
        if 1 <= c <= OPT["par_n"]:
            a.run(par[(len(par) * (c - 1)) // OPT["par_n"]:(len(par) * c) // OPT["par_n"]])
    s7 = stats(7)
    a.run(s7[:20])
    I(f"v_mov_b32 v{TA}, v{MEAN}")
    a.run(s7[20:22])
    I(f"v_permlane32_swap_b32 v{TA}, v{MEAN}")
    I(f"v_add_f32 v{MEAN}, v{TA}, v{MEAN}")
    for k in range(4):
        I(f"v_mul_f32 v{NEGM+k}, {f32(-1/512)}, v{MEAN}")
    a.run(s7[22:])
    I(f"s_add_u32 s{sUB}, s{sWL}, {128*KB - H[2]}")
    I(stamp("stats done"))

    bflag = [lambda a: a.wait_vm("RS"), f"buffer_store_dword v{KEEP+2}, v{KEEP}, {srd(SRS)}, s{sFL} offen sc1"]
    bl = b_loads()
    bload = f"s_load_dwordx16 s[{sHV}:{sHV+15}], s[4:5], 0 glc"
    bpoll = [bload]
    hg = lambda n: grp(wgroup(n, 0) + wgroup(n, 1))
    events = dict(W=(hg(0) + hg(1))[4 * nw:], H2=hg(2), H3=hg(3), H4=hg(4), H5=hg(5), R=grp(rl), pick=[[rpick]],
                  RS=[rs[:2]] + grp(rs[2:]), bflag=[bflag], bpoll=[bpoll], B=bl[:OPT["b2"]], xr=[xready()],
                  xl=[[XLOAD]], xc=[[spoll("L_xr", XLOAD, 1)]], f0=[hflag(0)],
                  el=[eaddr() + [f"buffer_load_dwordx4 {vr(X+56,4)}, v{X+48}, {srd(SE)}, 0 offen sc1"]], hl0=[[hload(0)]],
                  go=[[lambda a: poll(a, "L_go", GOV, GOA, SDBG, 0)]], gost=[[gostore]],
                  gold=[[f"buffer_load_dword v{GOV}, v{GOA}, {srd(SDBG)}, 0 offen sc1"]], XP=[[x] for x in xp],
                  bchk=[[spoll("L_bf", bload, 11), stamp("B flags")]])
    for name in OPT["x_drop"].split("/"):
        if name:
            events[name] = [[]]
    if OPT["b_mid"]:
        events["B2"], events["B"] = events["B"][OPT["b_mid"]:], events["B"][:OPT["b_mid"]]
        SCH["B2"], SCH["B"] = [OPT["b_gap"], SCH["B"][1]], [SCH["B"][0], OPT["b_gap"] - 1]
        assert SCH["B"][0] < SCH["B"][1]
    at = {}
    for name, pos in SCH.items():
        g0, g1 = pos[0], pos[-1] + 1
        for j, e in enumerate(events[name]):
            at.setdefault(g0 + (j * (g1 - g0)) // len(events[name]), []).extend(e)
    order = [x for x in ("R", "pick", "RS", "bflag", "bpoll", "bchk", "B") if x in SCH]
    assert all(SCH[x][-1] <= SCH[y][0] for x, y in zip(order, order[1:]))
    assert ("gost" in SCH) == (OPT["gost_at"] > 7) and SCH.get("gost", [-99])[0] < SCH["gold"][0] < SCH["go"][0] < min(88, SCH["bflag"][0], SCH["xr"][0]) and SCH["H5"][0] > 4 * (16 - OPT["la"])
    assert SCH["H5"][-1] < 128 and SCH["H3"][-1] < min(64, SCH["bpoll"][0])
    assert SCH["RS"][0] < SCH["H4"][0] and SCH["pick"][0] < 60
    assert SCH["bchk"][0] < SCH["hl0"][0] and SCH["f0"][0] >= 128
    assert SCH["XP"][-1] < SCH["xr"][0]
    for n, name in ((1, "W"), (2, "H2"), (3, "H3"), (4, "H4"), (5, "H5")):
        assert SCH.get(name, [-9])[-1] < 4 * (8 * n - OPT["la"])
    assert nw >= 2 and max(SCH.get("R", [0])[-1], SCH.get("W", [0])[-1], SCH.get("T1", [0])[-1]) < SCH["bpoll"][0]
    assert ("el" in SCH) == (OPT["eload_q"] < 0) and SCH.get("el", [191])[0] >= 164
    dm = sorted(SCH[x] for x in ("W", "H2", "H3", "H4", "H5", "R") if x in SCH)
    assert all(x[-1] < y[0] for x, y in zip(dm, dm[1:]))
    P = OPT["pre_pairs"]
    assert min(at) >= -P
    for i in range(P):
        u, r = unpack(i), repack(i)
        a.run(u + at.get(i - P, []))
        if i == P - 1:
            a.run([lambda a: a.wait_vm("H0"), "s_barrier"] + frag_reads(0))
        a.run(r)
    a.run(sum((frag_reads(k) for k in range(1, OPT["la"])), []) + (unpack(P) if P < 16 else []))

    n2 = OPT["b2"]
    flat = lambda ll: [x for l in ll for x in l]
    ge = 4 * OPT["e_win"]
    assert OPT["e_win"] >= 6
    f2b = fill_u2b()
    f0 = [f"v_subrev_u32 v{RDS+k}, s{sUB}, v{RDS+k}" for k in range(4)] + fill_u0() + (par if not OPT["par_n"] else [])
    plan = [[(f0, 2, 50)], [(stats_to_lds(), 26, 56), ([f"ds_read_b128 {vr(RDS,4)}, v{ARS}"], 60, 61), (fill_u1()[0], 1, 64)], [(fill_u2a(), 1, ge), (f2b[:-6], ge, ge + OPT["e_len"]), (f2b[-6:], max(ge + OPT["e_len"], OPT["aux0"]), max(ge + OPT["e_len"] + 3, OPT["aux1"]))]]
    for u in range(3):
        a.comment(f"---- GEMM unit {u} ----")
        I(stamp(f"U{u} start"))
        main = []
        LA, WP = OPT["la"], OPT["wp"]
        for d in range(16):
            n = 16 * u + d
            pre = [lambda a: a.need(sum((stage_regs(k) for k in range(WP)), []))] if n == 0 else []
            if OPT["only"] and n % 4 == 0 and d:
                pre.append(stamp(f"w{n}"))
            if n + LA < 48 and (n + LA) % 8 == 0:
                pre += [lambda a, hn=(n + LA) // 8: a.wait_vm(f"H{hn}"), "s_barrier"]
            if n == 32 + OPT["e_win"]:
                pre = [lambda a: a.wait_lg("E")] + pre + ([] if "s_barrier" in pre else ["s_barrier"])
            if n + LA == 32:
                pre += [f"v_add_u32 v{RDT}, {H[4]}, v{RDT}", f"v_add_u32 v{RDT+1}, {H[4]}, v{RDT+1}"]
            if n + LA == 40:
                pre += [f"v_subrev_u32 v{RDT}, {H[4]}, v{RDT}", f"v_subrev_u32 v{RDT+1}, {H[4]}, v{RDT+1}"]
            ms = mfmas(n)
            rd = frag_reads(n + LA) if n + LA < 48 else []
            h = len(rd) // 4
            for i in range(4):
                post = []
                if i == 3 and n < 47 and (n + 1) % WP == 0:
                    post = [lambda a, n=n: a.need(sum((stage_regs(n + 1 + k) for k in range(WP)), []))]
                main.append((pre if i == 0 else []) + ms[i] + post + rd[i * h:(i + 1) * h])
        main = [m + at.get(64 * u + i, []) for i, m in enumerate(main)]
        last = {63: fill_u1()[1]} if u == 1 else {}
        if u == 0:
            cg = 4 // OPT["c_rate"]
            for d in range(16 - P):
                r = repack(P + d)
                for i in range(cg):
                    main[cg * d + i] = main[cg * d + i] + r[(8 // cg) * i:(8 // cg) * (i + 1)]
                if P + d + 1 < 16:
                    last[cg * d + cg - 1] = unpack(P + d + 1)
        for i, g in enumerate(spread(main, plan[u])):
            a.run(g + last.get(i, []))
    I(stamp("tail start"))
    a.run(tail(flat(bl[n2:])))
    I(stamp("tail issued"))


def merge(fl, mem):
    if not mem:
        return list(fl)
    res = []
    n, m = len(fl), len(mem)
    j = 0
    for i in range(n):
        while j < m and j * n <= i * m:
            res.append(mem[j])
            j += 1
        res.append(fl[i])
    res += mem[j:]
    return res


FREP = KEEP + 1
FONE, FZERO = KEEP + 2, KEEP + 3


sHV = SBR


def hload(stage, retry=False):
    return f"s_load_dwordx16 s[{sHV}:{sHV+15}], s[{sHP}:{sHP+1}], {64*stage}" + (" glc" if retry or OPT["hglc"] else "")


XLOAD = f"s_load_dword s{sHV}, s[{sXP}:{sXP+1}], 0 glc"


def spoll(name, load, n, empty=None):
    if OPT["x_abl"] & 128:
        n = min(n, 4)

    def f(a):
        a.I(f"s_mov_b32 s{sT2}, 0")
        a.label(name)
        a.wait_lg_all()
        for k in range(2, n - 1, 2):
            a.I(f"s_and_b64 s[{sHV}:{sHV+1}], s[{sHV}:{sHV+1}], s[{sHV+k}:{sHV+k+1}]")
        if n > 1 and n & 1:
            a.I(f"s_and_b32 s{sHV}, s{sHV}, s{sHV+n-1}")
        if empty is None:
            a.I(f"s_and_b32 s{sHV}, s{sHV}, s{sHV+(1 if n > 1 else 0)}")
        else:
            a.I(f"s_cmp_lg_u32 s{sHV}, {empty}")
        a.I(f"s_cbranch_scc1 {name}_done")
        pos = a.pos
        a.I(f"s_add_u32 s{sT2}, s{sT2}, 1")
        a.I(f"s_cmp_ge_u32 s{sT2}, {SPIN_MAX}")
        a.I(f"s_cbranch_scc1 {name}_done")
        a.I(load)
        a.I(f"s_branch {name}")
        a.lgq, a.pos = [], pos
        a.label(name + "_done")
        if DEBUG and not OPT["rt"]:
            CNTS.append(name)
            a.I(f"v_writelane_b32 v{STAMPV}, s{sT2}, {39+len(CNTS)}")
    return f


CNTS = []


def hpoll(stage):
    return spoll(f"L_hf{stage}", hload(stage, True), 16)


def hflag(stage):
    return [lambda a: a.wait_vm(f"HS{stage}"),
            f"buffer_store_dword v{FONE}, v{FREP}, {srd(SWS)}, s{sHF} offen offset:{64*stage} sc1"]


def cfma_pk(dst, m, x, add):
    return [f"v_pk_fma_f32 {vr(dst,2)}, {vr(x,2)}, {vr(m,2)}, {vr(add,2)} op_sel:[0,0,0] op_sel_hi:[1,0,1]",
            f"v_pk_fma_f32 {vr(dst,2)}, {vr(x,2)}, {vr(m,2)}, {vr(dst,2)} op_sel:[1,1,0] op_sel_hi:[0,1,1] neg_lo:[0,1,0]"]


AUX = 112 * KB
sAX = pOUT
sXO = pOUT + 1


def eaddr():
    return [f"s_lshl2_add_u32 s{sT1}, s{sW}, s{sR}", f"s_lshl_b32 s{sT1}, s{sT1}, 8", f"s_sub_u32 s{sT1}, s{sT1}, 4096",
            f"v_add_u32 v{X+48}, s{sT1}, v{L16}"]


def tail(brest):
    RE, IM, FR = X, X + 8, X + 16
    EL = [X + 32 + 2 * n for n in range(8)]
    EA, EB, TW, TR, ER, EW, EQ = X + 48, X + 49, X + 50, X + 51, X + 52, X + 53, X + 56
    eloads = [f"buffer_load_dwordx4 {vr(EQ,4)}, v{EA}, {srd(SE)}, 0 offen sc1"]
    al = a_loads()
    na, qs, qe = min(2 * OPT["pro"], OPT["pro_q"]), OPT["scan_q"], OPT["eload_q"]
    a0, a1 = [int(v) for v in OPT["a_q"].split("/")]

    def quad(qd):
        mem = []
        if qd == 0:
            mem += brest
        if qd == a0:
            mem += [hpoll(0), stamp("H flags")]
        if a0 <= qd < a1:
            for f in range((na * (qd - a0)) // (a1 - a0), (na * (qd - a0 + 1)) // (a1 - a0)):
                mem += al[f]
        if qd == qe:
            mem += eloads
        ps = pack_store(ACA + 8 * (qd >> 1), SWS2, sRA, 1024 * (qd >> 1), "HS2") if qd & 1 else []
        if not OPT["lskip"]:
            r = merge(gelu_packed(ACA + 4 * qd, T + 8), mem) + ps
        else:
            def body(a):
                a.I(f"s_cbranch_vccnz L_q{qd}")
                pos = a.pos
                a.run(gelu_packed(ACA + 4 * qd, T + 8) + ps[:-1])
                a.label(f"L_q{qd}")
            r = mem + [body] + ps[-1:]
        return r + [stamp(f"q{qd}")]

    tl = ([] if qe < 0 else eaddr()) + [f"s_lshl_b32 s{sT0}, s{sW}, 10", f"s_add_u32 s{sT0}, s{sT0}, {EIN}",
          f"v_add_u32 v{EW}, s{sT0}, v{L16}", unstash(ER, aEA), unstash(TW, aTW), unstash(TR, aTR)]
    if OPT["lskip"]:
        tl = [f"s_cmp_eq_u32 s{sJJ}, 3\ns_cselect_b64 vcc, -1, 0"] + tl
    assert qs == 8 or na == 2 * OPT["pro"] or a1 <= qs
    assert qe < qs or qe < 0
    for qd in range(qs):
        tl += quad(qd)

    def epoll(a):
        a.need([vr(EQ, 4)])
        a.I(f"s_mov_b32 s{sT2}, 0")
        a.label("L_epoll")
        a.I(f"v_max3_u32 v{EB}, v{EQ}, v{EQ+1}, v{EQ+2}")
        a.I(f"v_max_u32 v{EB}, v{EB}, v{EQ+3}")
        a.I(f"v_cmp_eq_u32 vcc, -1, v{EB}")
        a.I("s_cmp_eq_u64 vcc, 0")
        a.I("s_cbranch_scc1 L_epoll_done")
        save, pos = list(a.vmq), a.pos
        a.I(f"s_add_u32 s{sT2}, s{sT2}, 1")
        a.I(f"s_cmp_ge_u32 s{sT2}, {SPIN_MAX}")
        a.I("s_cbranch_scc1 L_epoll_done")
        a.I(eloads[0], track=False)
        a.wait_vm_all()
        a.I("s_branch L_epoll")
        a.vmq, a.pos = save, pos
        a.label("L_epoll_done")
        if DEBUG and not OPT["rt"]:
            CNTS.append("epoll")
            a.I(f"v_writelane_b32 v{STAMPV}, s{sT2}, {39+len(CNTS)}")
    tl += [epoll, stamp("E seen"), (f"ds_write_b128 v{EW}, {vr(EQ,4)}", "EW")]
    ureg = lambda i: X + 64 + 2 * i
    for i in range(16):
        h, cc = i & 1, vr(PC, 2)
        if i == 6:
            tl += [lambda a: a.wait_lg("EW"), "s_barrier"]
            tl += [f"ds_read_b64 {vr(EL[n],2)}, v{ER} offset:{(14-2*n)*256}" for n in range(7, -1, -1)]
        tl += [f"v_pk_mul_f32 {vr(ureg(i),2)}, {cc}, {vr(ACB+i-h,2)} op_sel:[0,{h}] op_sel_hi:[1,{h}]",
               f"v_pk_fma_f32 {vr(ureg(i),2)}, {cc}, {vr(ACB+16+i-h,2)}, {vr(ureg(i),2)} op_sel:[1,{h},0] op_sel_hi:[0,{h},1] neg_lo:[1,0,0]"]
    tl.append(lambda a: a.need([vr(r, 2) for r in EL]))
    cur = EL[7]
    for n in range(6, -1, -1):
        tl += cfma_pk(EL[n], PA256, cur, EL[n])
        cur = EL[n]
    S, S0, S1 = EL[0], EL[1], EL[2]
    tl += [f"v_pk_mul_f32 {vr(S0,2)}, {vr(S,2)}, {vr(PAH,2)} op_sel:[0,0] op_sel_hi:[1,0]",
           cfma_pk(S0, PAH, S, S0)[1],
           f"v_mov_b32 v{S1}, v{S0}",
           f"v_mov_b32 v{S1+1}, v{S0+1}",
           f"s_add_u32 s{sRB}, s{sHB}, {28*KB}",
           f"v_permlane32_swap_b32 v{S0}, v{S1}",
           f"v_permlane32_swap_b32 v{S0+1}, v{S1+1}",
           f"v_pk_add_f32 {vr(S0,2)}, {vr(S0,2)}, {vr(S1,2)}"]
    tl += cfma_pk(PP, PAS, S0, PP)
    tl += [f"v_pk_mul_f32 {vr(S1,2)}, {vr(PP,2)}, {vr(PC,2)} op_sel:[0,0] op_sel_hi:[1,0]", cfma_pk(S1, PC, PP, S1)[1]]
    prev = S1
    for i in range(16):
        u = ureg(i)
        nb = 2 * OPT["pro"] - na
        for f in range(na + (nb * i) // 16, na + (nb * (i + 1)) // 16):
            tl += al[f]
        tl += cfma_pk(u, PA, prev, u)
        if i & 1:
            tl += [f"v_cvt_pk_bf16_f32 v{RE+(i>>1)}, v{prev}, v{u}",
                   f"v_cvt_pk_bf16_f32 v{IM+(i>>1)}, -v{prev+1}, -v{u+1}"]
        prev = u
        if i in (7, 15):
            hf = i >> 3
            for p, R in enumerate((RE, IM)):
                tl.append(f"ds_write_b128 v{TW}, {vr(R+4*hf,4)} offset:{p*2560+16*hf}")
    for p in range(2):
        for k in range(2):
            for e in range(2):
                tl.append(f"ds_read_b64_tr_b16 {vr(FR+8*p+4*k+2*e,2)}, v{TR} offset:{p*2560+(8*e+4*k)*80}")
    tl.append(stamp("scan done"))
    if OPT["flag2_at"] < 0:
        assert qs == 8
        tl += hflag(2)
    hs = [lambda a: a.need([vr(FR, 16)])]
    hs += [(f"buffer_store_dwordx4 {vr(FR+4*f,4)}, v{L16}, {srd(SWS)}, s{sRB} offen offset:{1024*f} {OPT['hsflags']}", "HS1") for f in range(4)]
    if qs == 8:
        return tl + hs
    if OPT["lskip"]:
        tl.append(f"s_cmp_eq_u32 s{sJJ}, 3\ns_cselect_b64 vcc, -1, 0")
    nh = min(OPT["hs_n"], 8 - qs)
    for qd in range(qs, 8):
        tl += quad(qd)
        i = qd - qs
        if i < nh:
            tl += (hs[:1] if i == 0 else []) + hs[1 + (4 * i) // nh:1 + (4 * (i + 1)) // nh]
    if OPT["flag1_at"] < 0:
        tl += hflag(1)
    return tl


RED, RED_SRC, RED_DT, RED_TT = 40 * KB, 8448, 4224, 4 * 8448


def wreg(s, e, dt):
    return ar(16 * s + 8 * e + 4 * dt, 4)


def hreg(f):
    return ar(176 + 4 * ((f + 4) % 20), 4)


def steps():
    l = [(L, s) for s in range(4) for L in range(4)]
    s1, s2 = [7, 8, 9, 10], [4, 5, 6]
    if OPT["scan_q"] == 8:
        s1, s2 = s2, s1
    if OPT["ord"] == 0:
        l += [(L, s) for L in range(4) for s in s1 + s2]
    else:
        l += [(L, s) for s in s1 for L in range(2)] + [(L, s) for L in range(2) for s in s2]
        l += [(L, s) for L in range(2, 4) for s in s1 + s2]
    return l


def p2_index(a):
    I = a.I
    I(f"s_and_b32 s{sN}, s{sJ}, 7")
    I(f"s_lshr_b32 s{sT1}, s{sJ}, 3")
    I(f"s_lshl1_add_u32 s{sI2}, s{sR}, s{sT1}")
    I(f"s_lshr_b32 s{sT0}, s{sW}, 1")
    I(f"s_lshl1_add_u32 s{sG2}, s{sT1}, s{sT0}")
    I(f"s_mul_i32 s{sT0}, s{sG2}, {G_STRIDE//2048}")
    I(f"s_and_b32 s{sT1}, s{sW}, 1")
    I(f"s_add_u32 s{sT0}, s{sT0}, s{sT1}")
    I(f"s_lshl_b32 s{sT0}, s{sT0}, 11")
    I(f"s_mul_i32 s{sA1}, s{sI2}, {2*RT_STRIDE}")
    I(f"s_add_u32 s{sA1}, s{sA1}, s{sT0}")
    I(f"s_xor_b32 s{sA0}, s{sI2}, 1")
    I(f"s_mul_i32 s{sA0}, s{sA0}, {2*RT_STRIDE}")
    I(f"s_add_u32 s{sA0}, s{sA0}, s{sT0}")
    I(f"s_mul_i32 s{sB0}, s{sN}, {2*RT_STRIDE}")
    I(f"s_add_u32 s{sB0}, s{sB0}, s{sT0}")
    I(f"s_add_u32 s{sB0}, s{sB0}, {BW}")
    I(f"s_lshl2_add_u32 s{sXI}, s2, s{sW}")
    I(f"s_lshl_b32 s{sXI}, s{sXI}, 11")
    I(f"s_or_b32 s{sXI}, s{sXI}, {XCH}")
    I(f"s_xor_b32 s{sXS}, s{sXI}, {4*8192}")


def b_loads():
    l = []
    for s in range(11):
        for e in range(2):
            for t in range(2):
                it = []
                if e == 0:
                    it += [f"s_add_u32 s{sP0+t}, s{sB0}, {s*4096 + t*RT_STRIDE}"]
                it.append(f"buffer_load_dwordx4 {wreg(s,e,t)}, v{L16}, {srd(SWS)}, s{sP0+t} offen offset:{e*1024} sc1")
                l.append(it)
    return l


def a_loads():
    l = []
    for n, (L, s) in enumerate(steps()):
        for e in range(2):
            it = []
            if e == 0:
                it += [f"s_add_u32 s{sP0}, s{sA1 if L >= 2 else sA0}, {s*4096 + (L&1)*RT_STRIDE}"]
            it.append(f"buffer_load_dwordx4 {hreg(2*n+e)}, v{L16}, {srd(SWS)}, s{sP0} offen offset:{e*1024} {OPT['aflags']}")
            if OPT["x_abl"] & 16 and L in (0, 2) and s in (0, 7) or OPT["x_abl"] & 32 and L in (0, 2) and s == 4:
                it = ["v_nop"]
            l.append(it)
    return l


def phase2(a):
    I = a.I
    al = a_loads()
    st = steps()
    OA, RA, A1, A2, TA = 192, 193, 194, 195, 196
    DK, BB, DF, BF = 198, 200, 208, 212
    XIN, XV, MN, RS, BASE = 128, 144, 152, 156, 160
    prep = [lambda a: a.wait_vm("AUX"),
            f"v_lshl_add_u32 v{A1}, v{LN}, 3, s{sAX}",
            f"v_lshrrev_b32 v{TA}, 4, v{LN}",
            f"s_and_b32 s{sG}, s{sI2}, 1",
            f"s_lshl3_add_u32 s{sG}, s{sG}, s{sW}",
            f"s_lshl_b32 s{sG}, s{sG}, 5",
            f"v_lshl_add_u32 v{A2}, v{TA}, 2, s{sG}"]
    for n in range(4):
        o = PARK + 128 * (n >> 1) + 16 * (n & 1)
        prep += [f"ds_read_b64 {vr(XV+2*n,2)}, v{A1} offset:{512*n}",
                 f"ds_read_b32 v{RS+n}, v{A2} offset:{o}",
                 f"ds_read_b32 v{MN+n}, v{A2} offset:{o+512}"]
    prep += [f"v_and_b32 v{OA}, 15, v{LN}",
             f"v_lshl_add_u32 v{A1}, v{OA}, 3, s{sAX}",
             f"ds_read_b64 {vr(DK,2)}, v{A1} offset:2048",
             f"ds_read_b64 {vr(BB,2)}, v{A1} offset:{2048+128}",
             f"v_and_b32 v{RA}, 3, v{LN}",
             f"v_lshlrev_b32 v{RA}, 5, v{RA}",
             f"v_bfe_u32 v{A2}, v{LN}, 2, 1",
             f"v_lshl_or_b32 v{RA}, v{A2}, 4, v{RA}",
             f"v_lshl_or_b32 v{RA}, v{TA}, 8, v{RA}",
             f"v_bfe_u32 v{A2}, v{LN}, 3, 1",
             f"v_mul_u32_u24 v{A2}, {RED_DT}, v{A2}",
             f"s_and_b32 s{sG}, s{sW}, 1",
             f"s_lshr_b32 s{sJJ}, s{sW}, 1",
             f"s_lshl4_add_u32 s{sG}, s{sG}, s{sJJ}",
             f"s_lshl_b32 s{sG}, s{sG}, 7",
             f"s_add_u32 s{sG}, s{sG}, {RED}",
             f"v_add3_u32 v{RA}, v{RA}, v{A2}, s{sG}",
             f"v_lshlrev_b32 v{OA}, 4, v{OA}",
             f"v_lshl_or_b32 v{OA}, v{TA}, 11, v{OA}",
             f"s_lshl_b32 s{sXO}, s{sXO}, 1",
             f"s_mul_i32 s{sG}, s{sW}, {RED_SRC}"]
    prep2 = [lambda a: a.need([vr(DK, 4), vr(XV, 16)])]
    for h in range(2):
        prep2 += [f"v_lshlrev_b32 v{DF+2*h}, 16, v{DK+h}", f"v_and_b32 v{DF+2*h+1}, 0xffff0000, v{DK+h}",
                  f"v_lshlrev_b32 v{BF+2*h}, 16, v{BB+h}", f"v_and_b32 v{BF+2*h+1}, 0xffff0000, v{BB+h}"]
    for n in range(4):
        for c in range(4):
            b = BASE + 4 * n + c
            src = XV + 2 * n + (c >> 1)
            prep2 += [f"v_lshlrev_b32 v{b}, 16, v{src}" if c % 2 == 0 else f"v_and_b32 v{b}, 0xffff0000, v{src}",
                      f"v_sub_f32 v{TA}, v{b}, v{MN+n}",
                      f"v_mul_f32 v{TA}, v{TA}, v{RS+n}",
                      f"v_add_f32 v{b}, v{b}, v{BF+c}",
                      f"v_fmac_f32 v{b}, v{TA}, v{DF+c}"]

    def add4(x, y, packed):
        if packed:
            return [f"v_pk_add_f32 {vr(x+h,2)}, {vr(x+h,2)}, {vr(y+h,2)}" for h in (0, 2)]
        return [f"v_add_f32 v{x+c}, v{x+c}, v{y+c}" for c in range(4)]

    def reduce(L, packed):
        acc, tt = 32 * L, L & 1
        w = [f"s_add_u32 m0, s{sG}, {RED_TT*tt}"]
        for dt in range(2):
            for i in range(16):
                w.append((f"ds_write_addtid_b32 v{acc+16*dt+i} offset:{RED+dt*RED_DT+i*256}", "RW"))
        r = [lambda a: a.wait_lg("RW"), "s_barrier"]
        for it in range(2):
            for q in range(4):
                r.append(f"ds_read_b128 {vr(acc+16*it+4*q,4)}, v{RA} offset:{RED_TT*tt+q*RED_SRC+it*1024}")
        e = []
        for it in range(2):
            p = acc + 16 * it
            e.append(lambda a, p=p: a.need([vr(p, 16)]))
            if L < 2:
                e += add4(p, p + 4, packed) + add4(p + 8, p + 12, packed) + add4(p, p + 8, packed)
                e += [f"v_cvt_pk_bf16_f32 v{acc+4+2*it+h}, v{p+2*h}, v{p+2*h+1}" for h in range(2)]
                if it and not OPT["x_abl"] & 8:
                    e.append(f"buffer_store_dwordx4 {vr(acc+4,4)}, v{L16}, {srd(SWS)}, s{sXS} offen offset:{1024*tt} sc1")
            else:
                b = BASE + 8 * tt + 4 * it
                e += add4(p, p + 4, packed) + add4(p + 8, p + 12, packed) + add4(b, p, packed) + add4(b, p + 8, packed)
        return w, r, e

    def xin(tt):
        if OPT["x_abl"] & 8:
            return [f"v_mov_b32 v{XIN+4*tt+k}, 0" for k in range(4)]
        return [f"buffer_load_dwordx4 {vr(XIN+4*tt,4)}, v{L16}, {srd(SWS)}, s{sXI} offen offset:{1024*tt} sc1"]

    def xcheck(tt):
        def f(a):
            x, name = XIN + 4 * tt, f"L_xc{tt}"
            a.need([vr(x, 4)])
            a.I(f"s_mov_b32 s{sT2}, 0")
            a.label(name)
            a.I(f"v_max3_u32 v{TA}, v{x}, v{x+1}, v{x+2}")
            a.I(f"v_max_u32 v{TA}, v{TA}, v{x+3}")
            a.I(f"v_cmp_eq_u32 vcc, -1, v{TA}")
            a.I(f"s_cmp_eq_u64 vcc, 0")
            a.I(f"s_cbranch_scc1 {name}_done")
            save, pos = list(a.vmq), a.pos
            a.I(f"s_add_u32 s{sT2}, s{sT2}, 1")
            a.I(f"s_cmp_ge_u32 s{sT2}, {SPIN_MAX}")
            a.I(f"s_cbranch_scc1 {name}_done")
            for l in xin(tt):
                a.I(l, track=False)
            a.wait_vm_all()
            a.I(f"s_branch {name}")
            a.vmq, a.pos = save, pos
            a.label(name + "_done")
            if DEBUG and not OPT["rt"]:
                CNTS.append(name)
                a.I(f"v_writelane_b32 v{STAMPV}, s{sT2}, {39+len(CNTS)}")
        return f

    def final(tt, packed=True):
        e = [xcheck(tt)]
        for it in range(2):
            b = BASE + 8 * tt + 4 * it
            x, u = XIN + 4 * tt + 2 * it, XIN + 8
            for h in range(2):
                e += [f"v_lshlrev_b32 v{u+2*h}, 16, v{x+h}", f"v_and_b32 v{u+2*h+1}, 0xffff0000, v{x+h}"]
            e += [f"s_add_u32 s{sJJ}, s{sXO}, {(32*tt+4*it)*2048}"] + add4(b, u, packed)
            e.append(f"buffer_store_dwordx4 {vr(b,4)}, v{OA}, {srd(SOUT)}, s{sJJ} offen {OPT['outflags']}")
        return e

    first = {1: min(n for n, (L, s) in enumerate(st) if s >= 7), 2: min(n for n, (L, s) in enumerate(st) if 4 <= s < 7)}
    done = [max(n for n, (L, s) in enumerate(st) if L == q) + 1 for q in range(4)]
    gate = {k: v - OPT["look"] for k, v in first.items()}
    issue, t, cnt = {}, 0, 0
    for f in range(2 * OPT["pro"], 88):
        m = f // 2
        lo = max([m - OPT["far"], 0] + [gate[k] for k in first if m >= first[k]])
        if lo > t:
            t, cnt = lo, 0
        if cnt >= OPT["rate"]:
            t, cnt = t + 1, 0
        assert t < m and OPT["far"] <= 9
        issue.setdefault(t, []).append(f)
        cnt += 1
    main = []
    for n, (L, s) in enumerate(st):
        ms = []
        for e in range(2):
            for dt in range(2):
                D = vr(32 * L + 16 * dt, 16)
                ms.append(f"v_mfma_f32_32x32x16_bf16 {D}, {hreg(2*n+e)}, {wreg(s,e,dt)}, {D if s or e else '0'}")
        regs = [hreg(2 * n), hreg(2 * n + 1), ar(16 * s, 16)]
        g0 = [lambda a, regs=regs: a.need(regs)]
        if n == 0 or OPT['only']:
            g0.append(stamp(f"k{n}"))
        g0.append(ms[0])
        g1, g2, g3 = [ms[1]], [ms[2]], [ms[3]]
        for stage in (1, 2):
            if n == gate[stage]:
                g0.append(hpoll(stage))
        for stage in (1, 2):
            lead = OPT["plead"] if gate[stage] == min(gate.values()) else min(OPT["plead"], abs(gate[2] - gate[1]))
            if n + lead == gate[stage]:
                g1.append(hload(stage))
        if n == max(gate.values()):
            g1.append(XLOAD)
        if n == max(gate.values()) + 7:
            g1.append(spoll("L_xr", XLOAD, 1))
        ld = issue.get(n, [])
        for j, f in enumerate(ld):
            (g0, g2, g1, g3)[j if len(ld) <= 2 else (0, 2, 1, 3)[j]].extend(al[f])
        if n == OPT["flag2_at"]:
            g1 += hflag(2)
        if n == OPT["flag1_at"]:
            g1 += hflag(1)
        main += [g0, g1, g2, g3]
    nl = OPT["lastdt"]
    if nl:
        ism = lambda it: isinstance(it, str) and it.startswith("v_mfma")
        gs = main[176 - 4 * nl:]
        mf = [it for g in gs for it in g if ism(it)]
        mf = mf[0::2] + mf[1::2]
        head = [it for g in gs for it in g if not ism(it)]
        main[176 - 4 * nl:] = [head + [mf[0]]] + [[m] for m in mf[1:]]
    plans = [(prep, OPT["pp0"], OPT["pp0"] + 12), (prep2, OPT["pp0"] + 14, min(OPT["pp1"], 4 * done[0]))]
    for L in range(3):
        rw, rs1, rr, rs2, re = [int(v) for v in (OPT["red"].split(",") * 3)[L].split("/")]
        w, r, e = reduce(L, False)
        g = 4 * done[L] + 2
        plans += [(w, g, g + rw), (r, g + rw + rs1, g + rw + rs1 + rr)]
        g += rw + rs1 + rr + rs2
        plans.append((e, g, min(g + re, 176)))
    assert 4 * (max(gate.values()) + 8) <= min(OPT["xin0"], OPT["xin1"]) and OPT["xin0"] < OPT["fin0"] and g + re <= OPT["fin0"]
    plans.append(([xin(0)], OPT["xin0"], OPT["xin0"] + 1, 1))
    plans.append(([xin(1)], OPT["xin1"], OPT["xin1"] + 1, 1))
    inloop = OPT["fin0"] < 176
    if inloop:
        plans.append((final(0, False), OPT["fin0"], OPT["fin0e"]))
    w3 = reduce(3, True)[0]
    if nl:
        plans.append((w3[:17], 176 - 2 * nl + 1, 176))
    if OPT["x_p2"] & 1:
        txt = lambda it: (it[0] if isinstance(it, tuple) else it) if not callable(it) and not isinstance(it, list) else ""
        plans = [([it for it in p[0] if not txt(it).startswith("s_barrier")],) + tuple(p[1:]) for p in plans]
    if OPT["x_p2"] & 2:
        txt = lambda it: (it[0] if isinstance(it, tuple) else it) if not callable(it) and not isinstance(it, list) else ""
        plans = [([it for it in p[0] if not txt(it).startswith("ds_write")],) + tuple(p[1:]) for p in plans]
    for g in spread(main, plans):
        a.run(g)
    I(stamp("mfma done"))
    w, r, e = reduce(3, True)
    if nl:
        w = w[17:]
    f1 = final(1)
    isst = lambda it: isinstance(it, str) and (it.startswith("buffer_store") or it.startswith("s_add"))
    st1 = [it for it in f1 if isst(it)]
    if OPT["endpre"]:
        a.run(w + ([] if inloop else final(0)) + [it for it in f1 if not isst(it)] + r)
        I(stamp("fin0"))
        h = len(e) // 2
        a.run(st1[:1] + e[:h] + st1[1:3] + e[h:] + st1[3:])
    else:
        a.run(w + ([] if inloop else final(0)) + r)
        I(stamp("fin0"))
        a.run(e + f1)
    I(stamp("out issued"))
    if DEBUG:
        a.wait_vm_all()
    I(stamp("out done"))


import os
HEADER = open(os.path.dirname(os.path.abspath(__file__)) + "/header.txt").read()


DOC = '''; out = x + S5(LN x) + MLP(LN LN x), one persistent launch, 256 workgroups (one per CU) of 4 waves.
; Generated by my own script (gen/gen.py): straight-line code, waits and wait states inserted per register.
;
; Phase 1, workgroup (r, j): rows 128r.., 32 S5 channels and 64 or 128 MLP columns.
;   x goes LDS-DMA -> MFMA fragments in registers; row sum / sum of squares with v_dot2; x - mean is formed in
;   fp32 (4x4 identity MFMA) and rounded to bf16; 1/std is applied after the GEMMs.  The second layer norm of
;   The S5 recurrence is an exact chunked scan: 16-step segments per lane, 8 segments per workgroup through LDS,
;   re-laid into fragment order once (spread over all workgroups) and sit in registers.  Waves are summed through
;   LDS, workgroups wg and wg^4 swap the halves they do not finish themselves.
; Hand-offs: write-through (sc1) stores, drained, then a flag word; or words that are marked empty first.  Flag
;   words are reset at the start of the launch, which d_debug announces.  Every spin is bounded.  Nothing depends
'''


def kd(name):
    return f""".amdhsa_kernel {name}
  .amdhsa_next_free_vgpr 512
  .amdhsa_next_free_sgpr 102
  .amdhsa_accum_offset 256
  .amdhsa_group_segment_fixed_size 0
  .amdhsa_float_denorm_mode_32 3
  .amdhsa_kernarg_size 136
  .amdhsa_user_sgpr_count 2
  .amdhsa_user_sgpr_kernarg_segment_ptr 1
  .amdhsa_system_sgpr_workgroup_id_x 1
.end_amdhsa_kernel
"""


OPT = dict(only='', x_drop='', pre=0, ws_mb=0, pre_pairs=2, par_n=4, rt=0, x_p2=0, x_nostore=0, spin=0, hsflags='sc1', aflags='sc1', outflags='sc1', hglc=1,
           rotmask=0, rotw=2, x_first=1, x_second=1, x_third=2, x_fourth=2, w_loop=2, init_at=-2, gost_at=1,
           sch='gold:21,W:-2:-1,go:57,R:1:6,H2:8:22,pick:34,RS:36:47,H3:24:38,H4:48:62,H5:76:90,XP:72:75,bflag:66,xr:96,bpoll:87,bchk:104,B:105:190,f0:146,hl0:172',
           b2=44, x_abl=0, b_mid=0, b_gap=128, aux0=34, aux1=40, pp0=2, pp1=60, t1_row=1, tx=1, tr=0, x_late=0, hs_n=2, jitter=0, endpre=1, lastdt=2, fin0e=173, c_rate=1, lskip=1, g1_pk=2, e_win=6, e_len=10, scan_q=8, eload_q=1, a_q='1/8', flag1_at=6, flag2_at=-1,
           la=2, wp=1, pro=8, pro_q=12, far=9, rate=2, look=6, plead=3, ord=1, red='8/2/2/2/3,6/2/2/2/5,5/2/2/2/5', xin0=146, xin1=160, fin0=167)


def build():
    a = Asm()
    k1 = NAME + "_kernel"
    a.raw(HEADER.rstrip())
    a.raw("; @launch grid=(256,1,1) block=(256,1,1) lds=163840")
    a.raw(DOC.rstrip())
    a.raw('.amdgcn_target "amdgcn-amd-amdhsa--gfx950"\n.text')
    a.raw(f".globl {k1}\n.p2align 8\n.type {k1},@function\n{k1}:")
    a.I("s_cmp_ge_u32 s2, 256")
    a.I("s_cbranch_scc1 L_end")
    if DEBUG:
        a.I("s_memrealtime s[86:87]")
    phase1(a, k1)
    phase2(a)
    if OPT["spin"]:
        a.I("s_cmp_lg_u32 s2, 100\ns_cbranch_scc1 L_end")
        a.I(f"s_cmp_lg_u32 s{sW}, 3\ns_cbranch_scc1 L_end")
        a.I("s_mov_b32 s4, 0")
        a.label("L_spin")
        a.I("s_memrealtime s[6:7]")
        a.wait_lg_all()
        a.I("s_sub_u32 s6, s6, s70\ns_add_u32 s4, s4, 1\ns_cmp_ge_u32 s4, 20000\ns_cbranch_scc1 L_end\ns_cmp_lt_u32 s6, 6000\ns_cbranch_scc1 L_spin")
    stamp_flush(a, 0)
    a.label("L_end")
    a.I("s_endpgm")
    a.raw('.section .rodata,"a"\n.p2align 6')
    a.raw(kd(k1))
    print(f"instructions: {a.count}, nops {a.nops}", file=sys.stderr)
    return a.text()


if __name__ == "__main__":
    out = sys.argv[1] if len(sys.argv) > 1 else f"cdna_kernels/{NAME}.s"
    DEBUG = "-d" in sys.argv
    for arg in sys.argv[2:]:
        if "=" in arg:
            k, v = arg.split("=", 1)
            OPT[k] = type(OPT[k])(v.replace("+", " "))
    txt = build()
    if DEBUG:
        txt += "; STAMPS " + ",".join(STAMPS) + "\n; CNTS " + ",".join(CNTS) + "\n"
    open(out, "w").write(txt)
```
